```python
import torch

def _softmax(x, axis=-1):
    return torch.softmax(x, dim=axis)
def _gelu(x):
    return torch.nn.functional.gelu(x, approximate="tanh")
def _silu(x):
    return torch.nn.functional.silu(x)
def _sigmoid(x):
    return torch.sigmoid(x)
def _layernorm(x, axis=-1, eps=1e-5):
    m = x.mean(dim=axis, keepdim=True)
    v = x.var(dim=axis, keepdim=True, unbiased=False)
    return (x - m) / torch.sqrt(v + eps)
def _scatter_add(tgt, idx, src, axis=0):
    return tgt.clone().index_add_(axis, idx, src)
def _segment_sum(src, seg, n):
    out = torch.zeros((n,) + src.shape[1:], dtype=src.dtype)
    return out.index_add_(0, seg, src)
def _pad(x, pw):
    flat = tuple(v for pair in reversed(pw) for v in pair)
    return torch.nn.functional.pad(x, flat)

kernel_name = 'parallel_sum__softmax_full_mha__dense_activation_squared_relu__prompt'

def setup_inputs():

    _w = (lambda a: (lambda t: t.to(torch.bfloat16) if t.is_floating_point() else t)(torch.as_tensor(a)))
    def _A_setup():
        B, S, D = 1, 2048, 640
        return {
            "x": _w((lambda *s: torch.randn(*s, dtype=torch.bfloat16) * 0.05)(B, S, D)),
            "wqkv": _w((lambda *s: torch.randn(*s, dtype=torch.bfloat16) * 0.2)(D, 3 * D)),
            "wo": _w((lambda *s: torch.randn(*s, dtype=torch.bfloat16) * 0.1)(D, D)),
        }
    _A_in = _A_setup()

    def _B_setup():
        B, S, D, F = 1, 2048, 640, 1728
        return {
            "x": _w((lambda *s: torch.randn(*s, dtype=torch.bfloat16) * 0.05)(B, S, D)),
            "w1": _w((lambda *s: torch.randn(*s, dtype=torch.bfloat16) * 0.1)(D, F)),
            "b1": _w((lambda *s: torch.randn(*s, dtype=torch.bfloat16) * 0.1)(F)),
            "w2": _w((lambda *s: torch.randn(*s, dtype=torch.bfloat16) * 0.1)(F, D)),
            "b2": _w((lambda *s: torch.randn(*s, dtype=torch.bfloat16) * 0.1)(D)),
        }
    _B_in = _B_setup()

    return {
        "A_x": _A_in["x"],
        "A_wqkv": _A_in["wqkv"],
        "A_wo": _A_in["wo"],
        "B_x": _B_in["x"],
        "B_w1": _B_in["w1"],
        "B_b1": _B_in["b1"],
        "B_w2": _B_in["w2"],
        "B_b2": _B_in["b2"],
    }

def reference(A_x, A_wqkv, A_wo, B_x, B_w1, B_b1, B_w2, B_b2):
    def _A_ref(x, wqkv, wo):
        B, S, D = x.shape
        H = 32; Dh = D // H
        qkv = (lambda x, *d: x.permute(*d))((x @ wqkv).reshape(B, S, 3, H, Dh), 2, 0, 3, 1, 4)
        q, k, v = qkv[0], qkv[1], qkv[2]
        scale = Dh ** -0.5
        scores = torch.einsum("bhqd,bhkd->bhqk", q, k) * scale
        p = _softmax(scores, axis=-1)
        o = torch.einsum("bhqk,bhkd->bhqd", p, v)
        return (lambda x, *d: x.permute(*d))(o, 0, 2, 1, 3).reshape(B, S, D) @ wo

    def _B_ref(x, w1, b1, w2, b2):
        h = torch.einsum("bsd,df->bsf", x, w1) + b1
        zero = torch.zeros_like(h)
        r = torch.where(h > zero, h, zero)
        h = r * r
        out = torch.einsum("bsf,fd->bsd", h, w2) + b2
        return out

    x = A_x
    xn = _layernorm(x, axis=-1)
    return x + _A_ref(xn, A_wqkv, A_wo) + _B_ref(xn, B_w1, B_b1, B_w2, B_b2)
```

```python
class Asm:
    def __init__(self):
        self.lines = []
        self.vm = []

    def __call__(self, *ins):
        for s in ins:
            if isinstance(s, (list, tuple)):
                self(*s)
            else:
                self.lines.append('    ' + s)

    def label(self, name):
        self.lines.append(name + ':')

    def raw(self, s):
        self.lines.append(s)

    def c(self, text):
        self.lines.append('    ; ' + text)

    def vmem(self, ins, tag):
        self(ins)
        self.vm.append(tag)

    def wait_vm(self, *tags):
        last = -1
        for i, t in enumerate(self.vm):
            if t in tags:
                last = i
        if last < 0:
            return
        n = len(self.vm) - 1 - last
        assert n <= 63, n
        self(f's_waitcnt vmcnt({n})')
        self.vm = self.vm[last + 1:]

    def drain_vm(self):
        self('s_waitcnt vmcnt(0)')
        self.vm = []

    def srd(self, d, base, nbytes, off=None):
        if off is None:
            self(f's_mov_b32 s{d}, s{base}', f's_mov_b32 s{d+1}, s{base+1}')
        else:
            self(f's_add_u32 s{d}, s{base}, {off}', f's_addc_u32 s{d+1}, s{base+1}, 0')
        self(f's_mov_b32 s{d+2}, {nbytes}', f's_mov_b32 s{d+3}, 0x00020000')

    def text(self):
        return '\n'.join(self.lines) + '\n'


def v(a, n=1):
    return f'v{a}' if n == 1 else f'v[{a}:{a+n-1}]'

def s(a, n=1):
    return f's{a}' if n == 1 else f's[{a}:{a+n-1}]'

def M16(d, a, b, c=None):
    cs = v(d, 16) if c is None else (c if isinstance(c, str) else v(c, 16))
    return f'v_mfma_f32_32x32x16_bf16 {v(d,16)}, {v(a,4)}, {v(b,4)}, {cs}'

def M8(d, a, b):
    return f'v_mfma_f32_32x32x8_bf16 {v(d,16)}, {v(a,2)}, {v(b,2)}, {v(d,16)}'

def CVT(d, a, b=None):
    return f'v_cvt_pk_bf16_f32 v{d}, v{a}, v{a+1 if b is None else b}'

def CSEL(d, t, f):
    return [f's_mov_b32 s{d}, {f}', f's_cmov_b32 s{d}, {t}']

def EXP(r):
    return f'v_exp_f32 v{r}, v{r}'


class Regs:
    def __init__(self, start=0, limit=168):
        self.n = start
        self.limit = limit
    def __call__(self, cnt=1, align=None):
        al = align or (2 if cnt > 1 else 1)
        self.n = (self.n + al - 1) // al * al
        r = self.n
        self.n += cnt
        assert self.n <= self.limit, (self.n, self.limit)
        return r


def kernel_header(name):
    return f'.text\n.globl {name}\n.p2align 8\n.type {name},@function\n{name}:\n'

def kernel_desc(name, vgpr, sgpr=96):
    acc = (vgpr + 3) // 4 * 4
    return f'''.section .rodata,"a"
.p2align 6
.amdhsa_kernel {name}
  .amdhsa_next_free_vgpr {vgpr}
  .amdhsa_next_free_sgpr {sgpr}
  .amdhsa_accum_offset {acc}
  .amdhsa_group_segment_fixed_size 0
  .amdhsa_kernarg_size 88
  .amdhsa_user_sgpr_count 2
  .amdhsa_user_sgpr_kernarg_segment_ptr 1
  .amdhsa_system_sgpr_workgroup_id_x 1
.end_amdhsa_kernel
'''
```

```python
from asmlib import *

WS_Q  = 0x000000
WS_KV = 0x280000
WS_H  = 0x780000
WS_O  = 0xE40000
WS_XN = 0x10C0000
WS_END = 0x1340000
QSCALE = 0x3ea52ae6
import struct, math
QSCALE = struct.unpack('<I', struct.pack('<f', 20 ** -0.5 * math.log2(math.e)))[0]


def gen_ln(name):
    a = Asm()
    a('s_cmp_ge_u32 s2, 256', 's_cbranch_scc1 L_ln_done')
    a('s_load_dwordx2 s[4:5], s[0:1], 0', 's_load_dwordx2 s[6:7], s[0:1], 80')
    a('v_lshrrev_b32 v1, 3, v0', 'v_and_b32 v2, 7, v0', 'v_mul_u32_u24 v1, 1280, v1', 'v_lshl_add_u32 v1, v2, 4, v1')
    a('s_mul_i32 s3, s2, 10240', 's_waitcnt lgkmcnt(0)')
    a.srd(8, 4, 2621440)
    a.srd(12, 6, 2621440, WS_XN)
    for i in range(10):
        a(f'buffer_load_dwordx4 {v(8+4*i,4)}, v1, s[8:11], s3 offen offset:{128*i}')
    a('s_waitcnt vmcnt(0)')
    for i in range(40):
        a(f'v_lshlrev_b32 v{48+2*i}, 16, v{8+i}', f'v_and_b32 v{49+2*i}, 0xffff0000, v{8+i}')
    def reduce8(r):
        for mod in ('quad_perm:[1,0,3,2]', 'quad_perm:[2,3,0,1]', 'row_half_mirror'):
            a('s_nop 1', f'v_add_f32_dpp v{r}, v{r}, v{r} {mod} row_mask:0xf bank_mask:0xf')
    a('v_add_f32 v2, v48, v49', 'v_add_f32 v3, v50, v51')
    for i in range(2, 40):
        a(f'v_add_f32 v2, v2, v{48+2*i}', f'v_add_f32 v3, v3, v{49+2*i}')
    a('v_add_f32 v2, v2, v3')
    reduce8(2)
    a('v_mul_f32 v2, 0x3acccccd, v2')
    for i in range(80):
        a(f'v_sub_f32 v{48+i}, v{48+i}, v2')
    a('v_mul_f32 v3, v48, v48', 'v_mul_f32 v4, v49, v49')
    for i in range(1, 40):
        a(f'v_fmac_f32 v3, v{48+2*i}, v{48+2*i}', f'v_fmac_f32 v4, v{49+2*i}, v{49+2*i}')
    a('v_add_f32 v3, v3, v4')
    reduce8(3)
    a('v_mov_b32 v4, 0x3727c5ac', 'v_fmac_f32 v4, 0x3acccccd, v3', 'v_rsq_f32 v4, v4', 's_nop 0')
    for i in range(80):
        a(f'v_mul_f32 v{48+i}, v{48+i}, v4')
    for i in range(40):
        a(CVT(8+i, 48+2*i))
    for i in range(10):
        a(f'buffer_store_dwordx4 {v(8+4*i,4)}, v1, s[12:15], s3 offen offset:{128*i}')
    a.label('L_ln_done')
    a('s_endpgm')
    return kernel_header(name) + a.text(), kernel_desc(name, 128, 32)


G1_B0, G1_B1, G1_A = 0, 49152, 98304
G1_LDS = 147456


def gen_gemm1(name):
    a = Asm()
    sW, sRB, sCG, sJ, sT0, sT1, sT2 = 20, 21, 22, 23, 24, 25, 26
    a('s_cmp_ge_u32 s2, 256', 's_cbranch_scc1 L_g1_done')
    a('s_load_dwordx2 s[6:7], s[0:1], 8', 's_load_dwordx4 s[8:11], s[0:1], 32', 's_load_dwordx2 s[12:13], s[0:1], 80')
    a(f's_lshr_b32 s{sJ}, s2, 3',
      f's_and_b32 s{sRB}, s2, 1', f's_lshl_b32 s{sRB}, s{sRB}, 3', f's_and_b32 s{sT0}, s{sJ}, 7', f's_add_u32 s{sRB}, s{sRB}, s{sT0}',
      f's_lshr_b32 s{sCG}, s2, 1', f's_and_b32 s{sCG}, s{sCG}, 3', f's_lshl_b32 s{sCG}, s{sCG}, 2',
      f's_lshr_b32 s{sT1}, s{sJ}, 3', f's_add_u32 s{sCG}, s{sCG}, s{sT1}')
    a(f's_cmp_ge_u32 s{sCG}, 15', 's_cbranch_scc1 L_g1_done')
    a('v_lshrrev_b32 v1, 6, v0', 'v_and_b32 v0, 63, v0', f'v_readfirstlane_b32 s{sW}, v1')
    a('s_waitcnt lgkmcnt(0)')
    a.srd(16, 12, WS_END)
    a(f's_cmp_lt_u32 s{sW}, 8', 's_cbranch_scc1 L_g1_compute')

    sL, sStride, sOA, sOB, sKC, sSlot, sMA, sMB, sCnt, sBstep, sCol, sRowA = range(32, 44)
    a(f's_sub_u32 s{sL}, s{sW}, 8')
    a(f's_lshr_b32 s{sT2}, s{sL}, 1', f's_lshl_b32 s{sCol}, s{sCG}, 1', f's_add_u32 s{sCol}, s{sCol}, s{sT2}')
    a(f's_cmp_lt_u32 s{sCol}, 15',
      's_cselect_b32 s28, s6, s8', 's_cselect_b32 s29, s7, s9', CSEL(30, 640*3840, 640*3456),
      CSEL(sStride, 3840, 3456), f's_cselect_b32 s{sKC}, 0, 15', 's_mov_b32 s31, 0x00020000')
    a(f's_sub_u32 s{sCol}, s{sCol}, s{sKC}', f's_lshl_b32 s{sCol}, s{sCol}, 8')
    a(f's_lshl_b32 s{sBstep}, s{sStride}, 6')
    a(f's_mul_i32 s{sRowA}, s{sRB}, {128*1280}', f's_add_u32 s{sRowA}, s{sRowA}, {WS_XN}')
    a(f's_mul_i32 s{sT0}, s{sT0}, 5', f's_mul_i32 s{sT1}, s{sT1}, 10', f's_add_u32 s{sKC}, s{sT0}, s{sT1}', f's_lshr_b32 s{sKC}, s{sKC}, 2',
      f's_cmp_ge_u32 s{sKC}, 10', f's_cselect_b32 s{sT0}, 10, 0', f's_sub_u32 s{sKC}, s{sKC}, s{sT0}')
    a(f's_lshl_b32 s{sMA}, s{sL}, 12', f's_add_u32 s{sMA}, s{sMA}, {G1_A}')
    a(f's_mul_i32 s{sMB}, s{sT2}, {G1_B1}', f's_and_b32 s{sT0}, s{sL}, 1', f's_lshl_b32 s{sT1}, s{sT0}, 13', f's_add_u32 s{sMB}, s{sMB}, s{sT1}')
    vA, vB = 8, 12
    a('v_lshrrev_b32 v1, 3, v0', 'v_lshrrev_b32 v2, 4, v0', 'v_and_b32 v3, 7, v0', 'v_xor_b32 v3, v3, v2')
    a(f's_lshl_b32 s{sT1}, s{sL}, 5', f'v_add_u32 v1, s{sT1}, v1', 'v_mul_u32_u24 v1, 1280, v1')
    a(f'v_lshl_add_u32 v{vA}, v3, 4, v1', 'v_xor_b32 v3, 4, v3', 'v_lshl_add_u32 v4, v3, 4, v1')
    a(f'v_add_u32 v{vA+1}, {10240-1024}, v4', f'v_add_u32 v{vA+2}, {2*(10240-1024)}, v{vA}', f'v_add_u32 v{vA+3}, {3*(10240-1024)}, v4')
    a('v_and_b32 v3, 15, v0', 'v_lshlrev_b32 v4, 2, v2', 'v_xor_b32 v3, v3, v4')
    a(f's_lshl_b32 s{sT0}, s{sT0}, 5', f'v_add_u32 v2, s{sT0}, v2', f'v_mul_u32_u24 v2, s{sStride}, v2', f'v_lshl_add_u32 v{vB}, v3, 4, v2')
    a(f's_lshl_b32 s{sT0}, s{sStride}, 2', f's_sub_u32 s{sT1}, s{sT0}, 1024', f's_lshl_b32 s{sT0}, s{sT0}, 2')
    for i in range(1, 4):
        a(f'v_add_u32 v{vB+i}, s{sT1}, v{vB+i-1}')
    for i in range(4):
        a(f'v_add_u32 v{vB+4+i}, s{sT0}, v{vB+i}')
    a(f's_mov_b32 s{sSlot}, 0')

    def issue_chunk():
        a(f's_lshl_b32 s{sOA}, s{sKC}, 7', f's_add_u32 s{sOA}, s{sOA}, s{sRowA}',
          f's_mul_i32 s{sOB}, s{sKC}, s{sBstep}', f's_add_u32 s{sOB}, s{sOB}, s{sCol}')
        a(f's_add_u32 m0, s{sMA}, s{sSlot}', f's_add_u32 s{sT0}, s{sMB}, s{sSlot}')
        for i in range(4):
            a(f'buffer_load_dwordx4 v{vA+i}, s[16:19], s{sOA} offen offset:{1024*i} lds')
        a(f's_mov_b32 m0, s{sT0}', f's_add_u32 s{sKC}, s{sKC}, 1')
        for i in range(4):
            a(f'buffer_load_dwordx4 v{vB+i}, s[28:31], s{sOB} offen offset:{1024*i} lds')
        a(f's_add_u32 m0, s{sT0}, 4096', f's_cmp_eq_u32 s{sKC}, 10')
        a(f's_cselect_b32 s{sKC}, 0, s{sKC}')
        for i in range(4):
            a(f'buffer_load_dwordx4 v{vB+4+i}, s[28:31], s{sOB} offen offset:{1024*i} lds')
        a(f's_add_u32 s{sSlot}, s{sSlot}, 16384', f's_cmp_eq_u32 s{sSlot}, 49152', f's_cselect_b32 s{sSlot}, 0, s{sSlot}')

    a(f's_mov_b32 s{sCnt}, 0')
    a.label('L_g1_ld_pro')
    issue_chunk()
    a(f's_add_u32 s{sCnt}, s{sCnt}, 1', f's_cmp_lt_u32 s{sCnt}, 3', 's_cbranch_scc1 L_g1_ld_pro')
    a('s_waitcnt vmcnt(24)', 's_barrier')
    a.label('L_g1_ld_loop')
    a('s_waitcnt vmcnt(12)', 's_barrier')
    issue_chunk()
    a(f's_add_u32 s{sCnt}, s{sCnt}, 1', f's_cmp_lt_u32 s{sCnt}, 10', 's_cbranch_scc1 L_g1_ld_loop')
    a('s_waitcnt vmcnt(12)', 's_barrier', 's_waitcnt vmcnt(0)', 's_barrier', 's_endpgm')

    a.label('L_g1_compute')
    sM, sN, sB, sDelta, sSlotC, sCntC = 32, 33, 34, 35, 36, 37
    a(f's_and_b32 s{sM}, s{sW}, 1', f's_lshr_b32 s{sN}, s{sW}, 1', f's_lshl_b32 s{sB}, s{sCG}, 2', f's_add_u32 s{sB}, s{sB}, s{sN}')
    a(f's_cmp_ge_u32 s{sB}, 57', 's_cbranch_scc1 L_g1_done')
    R = Regs(2)
    vH, vTok = R(), R()
    vAa = R(4); vBa = R(2)
    bias = R(16)
    F = [(R(8), R(8)), (R(8), R(8))]
    acc = R(64)
    tmp = R(16)
    a(f'v_lshrrev_b32 v{vH}, 5, v0', f'v_and_b32 v{vTok}, 31, v0')
    a.srd(28, 10, 3456)
    a(f's_sub_u32 s{sT0}, s{sB}, 30', f's_lshl_b32 s{sT0}, s{sT0}, 7', f'v_lshlrev_b32 v1, 3, v{vH}')
    a(f's_cmp_lt_u32 s{sB}, 30', 's_cbranch_scc1 L_g1_nobias')
    for i in range(8):
        a(f'buffer_load_dwordx2 {v(bias+2*i,2)}, v1, s[28:31], s{sT0} offen offset:{16*i}')
    a.label('L_g1_nobias')
    a(f'v_lshrrev_b32 v1, 1, v{vTok}', 'v_and_b32 v1, 7, v1', f'v_xor_b32 v1, v1, v{vH}')
    a(f's_lshl_b32 s{sT0}, s{sM}, 13', f's_add_u32 s{sT0}, s{sT0}, {G1_A}', f'v_lshlrev_b32 v{tmp}, 7, v{vTok}', f'v_add_u32 v{tmp}, s{sT0}, v{tmp}')
    for st in range(4):
        a(f'v_xor_b32 v{tmp+1}, {2*st}, v1', f'v_lshl_add_u32 v{vAa+st}, v{tmp+1}, 4, v{tmp}')
    a('v_lshrrev_b32 v1, 2, v0', 'v_and_b32 v1, 3, v1')
    a(f'v_lshl_add_u32 v{tmp}, v{vH}, 3, v1', f'v_lshlrev_b32 v{tmp}, 8, v{tmp}')
    a(f'v_and_b32 v{tmp+1}, 3, v0', f'v_lshl_add_u32 v{tmp}, v{tmp+1}, 3, v{tmp}')
    a(f'v_and_b32 v{tmp+1}, 16, v0', f'v_lshl_add_u32 v{tmp}, v{tmp+1}, 1, v{tmp}')
    a(f's_lshr_b32 s{sT0}, s{sN}, 1', f's_mul_i32 s{sT0}, s{sT0}, {G1_B1}', f'v_add_u32 v{tmp}, s{sT0}, v{tmp}')
    a(f's_and_b32 s{sT0}, s{sN}, 1', f's_lshl_b32 s{sT0}, s{sT0}, 1', f'v_xor_b32 v1, s{sT0}, v1')
    a(f'v_lshl_add_u32 v{vBa}, v1, 6, v{tmp}', 'v_xor_b32 v1, 1, v1', f'v_lshl_add_u32 v{vBa+1}, v1, 6, v{tmp}')
    for i in range(64):
        a(f'v_mov_b32 v{acc+i}, 0')
    a(f's_mov_b32 s{sSlotC}, 0', f's_mov_b32 s{sCntC}, 10')

    def reads(st, f):
        FA, FB = F[f]
        return [f'ds_read_b128 {v(FA,4)}, v{vAa+st}',
                f'ds_read_b64_tr_b16 {v(FB,2)}, v{vBa} offset:{4096*st}',
                f'ds_read_b64_tr_b16 {v(FB+2,2)}, v{vBa} offset:{4096*st+1024}',
                f'ds_read_b64_tr_b16 {v(FB+4,2)}, v{vBa+1} offset:{4096*st}',
                f'ds_read_b64_tr_b16 {v(FB+6,2)}, v{vBa+1} offset:{4096*st+1024}',
                f'ds_read_b128 {v(FA+4,4)}, v{vAa+st} offset:4096']

    def mfmas(f, swap):
        FA, FB = F[f]
        out = []
        for t, u in ((0, 0), (0, 1), (1, 1), (1, 0)):
            x, w = FA + 4 * t, FB + 4 * u
            out.append(M16(acc + 32 * t + 16 * u, x, w) if swap else M16(acc + 32 * t + 16 * u, w, x))
        return out

    def mainloop(tag, swap):
        a('s_barrier')
        a(reads(0, 0))
        a.label(f'L_g1_loop_{tag}')
        for st in range(4):
            m = mfmas(st & 1, swap)
            a('s_waitcnt lgkmcnt(0)')
            if st == 3:
                a(f's_sub_u32 s{sCntC}, s{sCntC}, 1', f's_cmp_eq_u32 s{sCntC}, 0', f's_cbranch_scc1 L_g1_last_{tag}')
                a('s_barrier')
                a(m[0])
                a(f's_add_u32 s{sSlotC}, s{sSlotC}, 1', f's_cmp_eq_u32 s{sSlotC}, 3',
                  CSEL(sDelta, -32768, 16384), f's_cselect_b32 s{sSlotC}, 0, s{sSlotC}')
                for r in list(range(vAa, vAa + 4)) + [vBa, vBa + 1]:
                    a(f'v_add_u32 v{r}, s{sDelta}, v{r}')
                rd = reads(0, 0)
                a(m[1], rd[0:3], m[2], rd[3:6], m[3])
                a(f's_branch L_g1_loop_{tag}')
            else:
                rd = reads(st + 1, (st + 1) & 1)
                a(m[0], rd[0:2], m[1], rd[2:4], m[2], rd[4:6], m[3])
        a.label(f'L_g1_last_{tag}')
        a(mfmas(1, swap))
        a('s_nop 15')

    a(f's_sub_u32 s{sT0}, s{sB}, 20', f's_cmp_lt_u32 s{sT0}, 10', 's_cbranch_scc1 L_g1_v')
    mainloop('t', False)
    a(f's_cmp_ge_u32 s{sB}, 30', 's_cbranch_scc1 L_g1_ffn')

    sHS, sOff, sScale = 38, 39, 40
    a(f's_cmp_lt_u32 s{sB}, 10',
      CSEL(sHS, 81920, 163840), f's_cselect_b32 s{sScale}, {hex(QSCALE)}, 1.0',
      CSEL(sT0, 5120, 10240), CSEL(sOff, WS_Q, WS_KV), f's_cselect_b32 s{sT1}, 0, 10')
    a(f's_mul_i32 s{sT0}, s{sT0}, s{sRB}', f's_add_u32 s{sOff}, s{sOff}, s{sT0}',
      f's_mul_i32 s{sT0}, s{sM}, 2560', f's_add_u32 s{sOff}, s{sOff}, s{sT0}')
    a(f's_sub_u32 s{sT1}, s{sB}, s{sT1}', f's_lshl_b32 s{sT1}, s{sT1}, 4')
    a(f'v_add_u32 v1, s{sT1}, v{vH}', f'v_lshlrev_b32 v{vTok}, 3, v{vTok}')
    t0, t1, t2, t3 = tmp, tmp + 1, tmp + 2, tmp + 3
    for u in range(2):
        for q in range(4):
            pk = tmp + 4 + 4 * (q & 1)
            a(f'v_add_u32 v{t0}, {8*u+2*q}, v1', f'v_mul_u32_u24 v{t1}, 205, v{t0}', f'v_lshrrev_b32 v{t1}, 10, v{t1}')
            a(f'v_mul_u32_u24 v{t2}, 5, v{t1}', f'v_sub_u32 v{t0}, v{t0}, v{t2}')
            a(f'v_mul_u32_u24 v{t1}, s{sHS}, v{t1}', f'v_lshl_add_u32 v{t1}, v{t0}, 8, v{t1}', f'v_add_u32 v{t1}, v{t1}, v{vTok}')
            a(f'v_lshrrev_b32 v{t0}, 2, v{t0}')
            a(f'v_lshl_add_u32 v{t2}, v{t0}, 10, v{t1}', f'v_lshl_add_u32 v{t3}, v{t0}, 8, v{t1}')
            for t in range(2):
                r = acc + 32 * t + 16 * u + 4 * q
                for e in range(4):
                    a(f'v_mul_f32 v{r+e}, s{sScale}, v{r+e}')
                a(CVT(pk + 2 * t, r), CVT(pk + 2 * t + 1, r + 2))
            a(f'buffer_store_dwordx2 {v(pk,2)}, v{t2}, s[16:19], s{sOff} offen')
            a(f'buffer_store_dwordx2 {v(pk+2,2)}, v{t3}, s[16:19], s{sOff} offen offset:1024')
    a('s_endpgm')

    a.label('L_g1_ffn')
    a(f's_lshl_b32 s{sT0}, s{sRB}, 2', f's_lshl_b32 s{sT1}, s{sM}, 1', f's_add_u32 s{sT0}, s{sT0}, s{sT1}', f's_mul_i32 s{sT0}, s{sT0}, 108',
      f's_sub_u32 s{sT1}, s{sB}, 30', f's_lshl_b32 s{sT1}, s{sT1}, 2', f's_add_u32 s{sT0}, s{sT0}, s{sT1}', f's_lshl_b32 s{sT0}, s{sT0}, 10',
      f's_add_u32 s{sOff}, s{sT0}, {WS_H}', f's_add_u32 s{sHS}, s{sOff}, {108*1024}')
    a('v_lshlrev_b32 v1, 4, v0', 's_waitcnt vmcnt(0)')
    for u in range(2):
        for ap in range(2):
            for i in range(4):
                src = bias + 8 * u + 4 * ap + i
                a(f'v_lshlrev_b32 v{tmp+2*i}, 16, v{src}', f'v_and_b32 v{tmp+2*i+1}, 0xffff0000, v{src}')
            for t in range(2):
                r = acc + 32 * t + 16 * u + 8 * ap
                for e in range(8):
                    a(f'v_add_f32 v{r+e}, v{r+e}, v{tmp+e}')
                for e in range(8):
                    a(f'v_max_f32 v{r+e}, 0, v{r+e}')
                for e in range(8):
                    a(f'v_mul_f32 v{r+e}, v{r+e}, v{r+e}')
                for e in range(4):
                    a(CVT(r + e, r + 2 * e))
                a(f'buffer_store_dwordx4 {v(r,4)}, v1, s[16:19], s{sHS if t else sOff} offen offset:{1024*(2*u+ap)}')
    a('s_endpgm')

    a.label('L_g1_v')
    mainloop('v', True)
    a(f's_mul_i32 s{sOff}, s{sRB}, 10240', f's_mul_i32 s{sT0}, s{sM}, 2560', f's_add_u32 s{sOff}, s{sOff}, s{sT0}', f's_add_u32 s{sOff}, s{sOff}, {WS_KV+5120}')
    a(f's_sub_u32 s{sT1}, s{sB}, 20', f's_lshl_b32 s{sT1}, s{sT1}, 6', f'v_add_u32 v1, s{sT1}, v{vTok}', f'v_mul_u32_u24 v{vH}, 320, v{vH}')
    for u in range(2):
        a(f'v_add_u32 v{t0}, {32*u}, v1', f'v_mul_u32_u24 v{t1}, 3277, v{t0}', f'v_lshrrev_b32 v{t1}, 16, v{t1}')
        a(f'v_mul_u32_u24 v{t2}, 20, v{t1}', f'v_sub_u32 v{t0}, v{t0}, v{t2}')
        a(f'v_mul_u32_u24 v{t1}, 163840, v{t1}', f'v_lshl_add_u32 v{t1}, v{t0}, 4, v{t1}', f'v_add_u32 v{t3+u}, v{t1}, v{vH}')
        for t in range(2):
            for ap in range(2):
                r = acc + 32 * t + 16 * u + 8 * ap
                for e in range(4):
                    a(CVT(r + e, r + 2 * e))
                a(f'buffer_store_dwordx4 {v(r,4)}, v{t3+u}, s[16:19], s{sOff} offen offset:{640*(2*t+ap)}')
    a.label('L_g1_done')
    a('s_endpgm')
    return kernel_header(name) + a.text(), kernel_desc(name, 168, 64)
```

```python
from asmlib import *
from k01 import WS_Q, WS_KV, WS_H, WS_O, WS_END

L_K = 0
L_V = 20480
L_W = 41472
K2_LDS = L_W + 102400
MAXOFF = 80.0


def fbits(x):
    import struct
    return hex(struct.unpack('<I', struct.pack('<f', x))[0])


def gen_attn(name):
    a = Asm()
    sW, sHead, sQB, sT0, sT1, sT2 = 20, 21, 22, 23, 24, 25
    a('s_cmp_ge_u32 s2, 256', 's_cbranch_scc1 L_at_done')
    a('s_load_dwordx2 s[4:5], s[0:1], 0', 's_load_dwordx2 s[6:7], s[0:1], 16', 's_load_dwordx4 s[8:11], s[0:1], 48',
      's_load_dwordx4 s[12:15], s[0:1], 64', 's_load_dwordx2 s[26:27], s[0:1], 80')
    a(f's_and_b32 s{sHead}, s2, 7', f's_lshl_b32 s{sHead}, s{sHead}, 2', f's_lshr_b32 s{sT0}, s2, 3', f's_and_b32 s{sT0}, s{sT0}, 3',
      f's_add_u32 s{sHead}, s{sHead}, s{sT0}', f's_lshr_b32 s{sQB}, s2, 5')
    a('v_lshrrev_b32 v1, 6, v0', 'v_and_b32 v0, 63, v0', f'v_readfirstlane_b32 s{sW}, v1')
    a('s_waitcnt lgkmcnt(0)')
    a.srd(16, 26, WS_END)
    a.srd(28, 14, 256)
    a(f's_cmp_ge_u32 s{sW}, 8', 's_cbranch_scc1 L_at_helper')

    R = Regs(2)
    vH, vKa, vVa, vTok = R(), R(), R(), R()
    Q1 = R(4); Q2 = [R(2), R(2)]
    S = [R(16), R(16)]
    P = R(8); O = R(16); C = R(16)
    K1 = [R(4), R(4)]; V = [R(8), R(8)]; K2 = R(2)
    tmp = R(8)
    sOff, sCnt, sKV, sPass = 32, 33, 34, 35
    a(f'v_lshrrev_b32 v{vH}, 5, v0', f'v_and_b32 v{vTok}, 31, v0', f'v_lshlrev_b32 v{vKa}, 3, v0')
    a(f's_lshl_b32 s{sT0}, s{sHead}, 5', f's_lshl_b32 s{sT1}, s{sQB}, 2', f's_add_u32 s{sT0}, s{sT0}, s{sT1}', f's_lshr_b32 s{sT1}, s{sW}, 1',
      f's_add_u32 s{sT0}, s{sT0}, s{sT1}', f's_mul_i32 s{sT0}, s{sT0}, 2560', f's_add_u32 s{sT0}, s{sT0}, {WS_Q}',
      f's_and_b32 s{sT1}, s{sW}, 1', f's_lshl_b32 s{sT2}, s{sT1}, 10', f's_add_u32 s{sT2}, s{sT2}, s{sT0}',
      f's_lshl_b32 s{sT1}, s{sT1}, 8', f's_add_u32 s{sT1}, s{sT1}, s{sT0}')
    a(f'v_lshlrev_b32 v1, 3, v{vTok}')
    a(f'buffer_load_dwordx2 {v(Q1,2)}, v{vKa}, s[16:19], s{sT2} offen',
      f'buffer_load_dwordx2 {v(Q1+2,2)}, v{vKa}, s[16:19], s{sT2} offen offset:512',
      f'buffer_load_dwordx2 {v(tmp,2)}, v1, s[16:19], s{sT1} offen offset:2048')
    a(f'v_min_u32 v1, 19, v{vTok}', 'v_lshlrev_b32 v1, 4, v1', f'v_mul_u32_u24 v{tmp+2}, 320, v{vH}', f'v_add_u32 v1, v1, v{tmp+2}')
    a(f'v_subrev_u32 v{tmp+2}, 20, v{vTok}', f'v_cmp_gt_u32 vcc, 8, v{tmp+2}', f'v_mov_b32 v{tmp+2}, 640', 's_nop 0',
      f'v_cndmask_b32 v1, v1, v{tmp+2}, vcc', f'v_add_u32 v{vVa}, {L_V}, v1')
    for i in range(16):
        a(f'v_mov_b32 v{O+i}, 0')
    for i in range(4):
        a(f'v_mov_b32 v{P+4+i}, 0', f'v_mov_b32 v{V[1]+4+i}, 0')
    a(f'v_cmp_eq_u32 vcc, 0, v{vH}', 's_waitcnt vmcnt(0)', 's_nop 0')
    for i in range(2):
        a(f'v_cndmask_b32 v{Q2[0]+i}, 0, v{tmp+i}, vcc')
    a(f'v_cmp_eq_u32 vcc, 1, v{vH}', 's_nop 1')
    for i in range(2):
        a(f'v_cndmask_b32 v{Q2[1]+i}, 0, v{tmp+i}, vcc')

    def rdK1(dst, blk):
        o = (blk // 4 % 4) * 10 + (blk // 2 % 2) * 5 + (blk % 2) * 2
        return f'ds_read2st64_b64 {v(dst,4)}, v{vKa} offset0:{o} offset1:{o+1}'
    def rdK2(pair):
        return f'ds_read_b64 {v(K2,2)}, v{vKa} offset:{(pair % 8) * 2560 + 2048}'
    def rdV(dst, blk, half):
        return f'ds_read_b128 {v(dst+4*half,4)}, v{vVa} offset:{((blk % 16) * 2 + half) * 656}'

    a('s_barrier')
    a(rdK1(K1[0], 0), rdK1(K1[1], 1), rdK2(0), rdV(V[0], 0, 0), rdV(V[0], 0, 1), 's_waitcnt lgkmcnt(2)')
    a(M16(S[0], K1[0], Q1, '0'), M16(S[1], K1[1], Q1, '0'), M8(S[0], K2, Q2[0]), M8(S[1], K2, Q2[1]), 's_nop 10')
    a(f'v_max3_f32 v{tmp}, v{S[0]}, v{S[0]+1}, v{S[0]+2}')
    for i in range(3, 15, 2):
        a(f'v_max3_f32 v{tmp}, v{tmp}, v{S[0]+i}, v{S[0]+i+1}')
    a(f'v_max3_f32 v{tmp}, v{tmp}, v{S[0]+15}, v{S[1]}')
    for i in range(1, 15, 2):
        a(f'v_max3_f32 v{tmp}, v{tmp}, v{S[1]+i}, v{S[1]+i+1}')
    a(f'v_max_f32 v{tmp}, v{tmp}, v{S[1]+15}', f'v_mov_b32 v{tmp+1}, v{tmp}', 's_nop 1', f'v_permlane32_swap_b32 v{tmp}, v{tmp+1}', 's_nop 1')
    a(f'v_max_f32 v{tmp}, v{tmp}, v{tmp+1}', f'v_sub_f32 v{C}, {fbits(-MAXOFF)}, v{tmp}')
    for i in range(1, 16):
        a(f'v_mov_b32 v{C+i}, v{C}')
    a('s_nop 1', M16(S[0], K1[0], Q1, C), M8(S[0], K2, Q2[0]), f's_mov_b32 s{sCnt}, 4', 's_nop 8')

    a.raw('.p2align 3')
    a.label('L_at_loop')
    for b in range(16):
        cur, nxt = S[b & 1], S[(b + 1) & 1]
        E = lambda i: EXP(cur + i)
        Cv = lambda i: CVT(P + i, cur + 2 * i)
        a(M16(nxt, K1[(b + 1) & 1], Q1, C))
        if b % 4 == 2:
            a('s_barrier')
        a(f's_setprio {3 - (b + 2) % 4}', rdK1(K1[b & 1], b + 2))
        a(E(0), E(1), E(2), Cv(0), E(3), E(4))
        a(M16(O, V[(b + 1) & 1] + 4, P + 4), 's_waitcnt lgkmcnt(1)', rdV(V[(b + 1) & 1], b + 1, 0), rdV(V[(b + 1) & 1], b + 1, 1))
        a(Cv(1), E(5), E(6), Cv(2), E(7), E(8))
        a(M8(nxt, K2, Q2[(b + 1) & 1]))
        a(Cv(3), E(9), E(10), Cv(4), E(11), E(12))
        a(M16(O, V[b & 1], P), 's_waitcnt lgkmcnt(2)')
        if b % 2 == 0:
            a(rdK2(b // 2 + 1))
        if b == 15:
            a(f's_sub_u32 s{sCnt}, s{sCnt}, 1', f's_cmp_lg_u32 s{sCnt}, 0')
        a(Cv(5), E(13), E(14), E(15), Cv(6), Cv(7))
    a('s_cbranch_scc1 L_at_loop')
    a('s_nop 0', M16(O, V[1] + 4, P + 4), f's_mov_b32 s{sPass}, 0', 's_waitcnt lgkmcnt(0)')

    a.label('L_at_fin')
    a(f'v_cmp_eq_u32 vcc, 0, v{vH}', 's_nop 11')
    vL, vSum = tmp, tmp + 1
    a(f'v_cndmask_b32 v{vL}, v{O+8}, v{O+12}, vcc')
    a(f'v_add_f32 v{vSum}, |v{O}|, |v{O+1}|')
    for i in range(2, 8):
        a(f'v_add_f32 v{vSum}, v{vSum}, |v{O+i}|')
    a(f'v_add_f32 v{tmp+2}, |v{O+8}|, |v{O+9}|', f'v_add_f32 v{tmp+3}, |v{O+10}|, |v{O+11}|', f'v_add_f32 v{tmp+2}, v{tmp+2}, v{tmp+3}',
      f'v_add_f32 v{tmp+2}, v{tmp+2}, v{vSum}', f'v_add_f32 v{tmp+2}, v{tmp+2}, v{vL}')
    a(f'v_rcp_f32 v{vL}, v{vL}')
    a(f'v_cmp_ngt_f32 vcc, {fbits(2.0**120)}, v{tmp+2}', f's_mov_b32 s{sT0}, {fbits(2.0**-100)}', f'v_cmp_gt_f32 s[36:37], s{sT0}, v{vSum}', 's_nop 1',
      's_or_b64 s[36:37], s[36:37], vcc', f's_cmp_eq_u32 s{sPass}, 0', 's_cselect_b64 s[36:37], s[36:37], 0', 's_cmp_lg_u64 s[36:37], 0',
      's_cbranch_scc1 L_at_slow')
    for i in range(12):
        a(f'v_mul_f32 v{O+i}, v{O+i}, v{vL}')
    for i in range(6):
        a(CVT(O + i, O + 2 * i))
    a(f's_lshl_b32 s{sT0}, s{sQB}, 3', f's_add_u32 s{sT0}, s{sT0}, s{sW}', f's_mul_i32 s{sT0}, s{sT0}, 40960', f's_add_u32 s{sT0}, s{sT0}, {WS_O}',
      f's_lshl_b32 s{sT1}, s{sHead}, 10', f's_add_u32 s{sT1}, s{sT1}, s{sT0}',
      f's_lshl_b32 s{sT2}, s{sHead}, 8', f's_add_u32 s{sT2}, s{sT2}, s{sT0}', f's_add_u32 s{sT2}, s{sT2}, 32768')
    a('v_lshlrev_b32 v1, 4, v0')
    a(f'buffer_store_dwordx4 {v(O,4)}, v1, s[16:19], s{sT1} offen sc1')
    a('s_mov_b32 exec_hi, 0')
    a(f'buffer_store_dwordx2 {v(O+4,2)}, v{vKa}, s[16:19], s{sT2} offen sc1')
    a('s_waitcnt vmcnt(0)', 's_barrier')
    a(f's_cmp_lg_u32 s{sW}, 0', 's_cbranch_scc1 L_at_done')
    a('s_mov_b64 exec, 1', f's_lshl_b32 s{sT0}, s{sQB}, 5', 'v_mov_b32 v1, 1', 'v_mov_b32 v2, 0')
    a(f'buffer_atomic_add v1, v2, s[28:31], s{sT0} offen sc1')
    a('s_endpgm')

    a.label('L_at_slow')
    a(f's_mul_i32 s{sKV}, s{sHead}, 163840', f's_add_u32 s{sKV}, s{sKV}, {WS_KV}')
    vVg = tmp + 4
    a(f'v_min_u32 v1, 19, v{vTok}', 'v_lshlrev_b32 v1, 4, v1', f'v_mul_u32_u24 v{vVg}, 320, v{vH}', f'v_add_u32 v{vVg}, v1, v{vVg}')
    a(f'v_mov_b32 v{tmp}, 0xff800000', f's_mov_b32 s{sCnt}, 0')
    def pair_off():
        a(f's_lshr_b32 s{sT0}, s{sCnt}, 1', f's_mul_i32 s{sT0}, s{sT0}, 10240', f's_and_b32 s{sT1}, s{sCnt}, 1', f's_mul_i32 s{sT1}, s{sT1}, 2560',
          f's_add_u32 s{sT0}, s{sT0}, s{sT1}', f's_add_u32 s{sT0}, s{sT0}, s{sKV}', f's_add_u32 s{sT1}, s{sT0}, 5120')
    def ldK():
        for b in range(2):
            a(f'buffer_load_dwordx2 {v(K1[b],2)}, v{vKa}, s[16:19], s{sT0} offen offset:{1024*b}',
              f'buffer_load_dwordx2 {v(K1[b]+2,2)}, v{vKa}, s[16:19], s{sT0} offen offset:{1024*b+512}')
        a(f'buffer_load_dwordx2 {v(K2,2)}, v{vKa}, s[16:19], s{sT0} offen offset:2048')
    a.label('L_at_slow_max')
    pair_off(); ldK()
    a('s_waitcnt vmcnt(0)')
    a(M16(S[0], K1[0], Q1, '0'), M16(S[1], K1[1], Q1, '0'), M8(S[0], K2, Q2[0]), M8(S[1], K2, Q2[1]), 's_nop 12')
    for i in range(16):
        a(f'v_max3_f32 v{tmp}, v{tmp}, v{S[0]+i}, v{S[1]+i}')
    a(f's_add_u32 s{sCnt}, s{sCnt}, 1', f's_cmp_lt_u32 s{sCnt}, 32', 's_cbranch_scc1 L_at_slow_max')
    a(f'v_mov_b32 v{tmp+1}, v{tmp}', 's_nop 1', f'v_permlane32_swap_b32 v{tmp}, v{tmp+1}', 's_nop 1', f'v_max_f32 v{tmp}, v{tmp}, v{tmp+1}')
    for i in range(16):
        a(f'v_sub_f32 v{C+i}, 0, v{tmp}', f'v_mov_b32 v{O+i}, 0')
    a(f'v_subrev_u32 v1, 20, v{vTok}', 'v_cmp_gt_u32 s[38:39], 8, v1', f'v_mov_b32 v{tmp+5}, 0x3f803f80', f's_mov_b32 s{sCnt}, 0')
    a.label('L_at_slow_pv')
    pair_off(); ldK()
    for g in range(4):
        a(f'buffer_load_dwordx4 {v(V[g//2]+4*(g%2),4)}, v{vVg}, s[16:19], s{sT1} offen offset:{640*g}')
    a('s_waitcnt vmcnt(0)')
    a(M16(S[0], K1[0], Q1, C), M16(S[1], K1[1], Q1, C), M8(S[0], K2, Q2[0]), M8(S[1], K2, Q2[1]))
    for b in range(2):
        for i in range(8):
            a(f'v_cndmask_b32 v{V[b]+i}, v{V[b]+i}, v{tmp+5}, s[38:39]')
    for b in range(2):
        for i in range(16):
            a(EXP(S[b] + i))
        a('s_nop 0')
        for i in range(8):
            a(CVT(P + i, S[b] + 2 * i))
        a('s_nop 1', M16(O, V[b], P), M16(O, V[b] + 4, P + 4))
    a(f's_add_u32 s{sCnt}, s{sCnt}, 1', f's_cmp_lt_u32 s{sCnt}, 32', 's_cbranch_scc1 L_at_slow_pv')
    a(f's_mov_b32 s{sPass}, 1', 's_branch L_at_fin')

    a.label('L_at_helper')
    a.vm = []
    R = Regs(2)
    vL16, vL8, vTr = R(), R(), R()
    vW = R(4); vWr = R(4)
    acc = R(96)
    AF = [R(8) for _ in range(3)]
    R(8)
    BF = [R(4) for _ in range(3)]
    tmp = R(8)
    sG, sKVo, sReg, sH0, sH1, sW2, sWo, sOwn, sKH = range(32, 41)
    sM40 = 42
    a(f's_sub_u32 s{sG}, s{sW}, 8', f's_and_b32 s{sOwn}, s{sG}, 1', f's_lshr_b32 s{sKH}, s{sG}, 1')
    a(f's_mov_b32 s{sM40}, -1', f's_mov_b32 s{sM40+1}, 0xff')
    a(f'v_lshlrev_b32 v{vL16}, 4, v0', f'v_lshlrev_b32 v{vL8}, 3, v0')
    a(f's_mul_i32 s{sKVo}, s{sHead}, 163840', f's_mul_i32 s{sT0}, s{sG}, 1280', f's_add_u32 s{sKVo}, s{sKVo}, s{sT0}', f's_add_u32 s{sKVo}, s{sKVo}, {WS_KV}')
    sMK, sMV = 44, 45
    a(f's_add_u32 s{sMK}, s{sT0}, {L_K}', f's_mul_i32 s{sMV}, s{sG}, 1312', f's_add_u32 s{sMV}, s{sMV}, {L_V}')

    def kv(c):
        slot = c % 4
        a(f's_add_u32 m0, s{sMK}, {slot*5120}', f's_add_u32 s{sT0}, s{sKVo}, {c*10240}', f's_mov_b64 exec, s[{sM40}:{sM40+1}]')
        a.vmem(f'buffer_load_dwordx4 v{vL16}, s[16:19], s{sT0} offen lds', ('kv', c))
        a.vmem(f'buffer_load_dwordx4 v{vL16}, s[16:19], s{sT0} offen offset:640 lds', ('kv', c))
        a(f's_add_u32 m0, s{sMV}, {slot*5248}', f's_add_u32 s{sT0}, s{sT0}, 5120', f's_sub_u32 s{sT1}, s{sT0}, 16')
        a.vmem(f'buffer_load_dwordx4 v{vL16}, s[16:19], s{sT0} offen lds', ('kv', c))
        a.vmem(f'buffer_load_dwordx4 v{vL16}, s[16:19], s{sT1} offen offset:656 lds', ('kv', c))
        a('s_mov_b64 exec, -1')

    kv(0); kv(1)
    a(f'v_and_b32 v1, 31, v0', 'v_mul_u32_u24 v1, 656, v1')
    for i in range(4):
        a(f'v_mov_b32 v{tmp+i}, 0x3f803f80')
    a(f'ds_write_b128 v1, {v(tmp,4)} offset:{L_V+640}')
    a.srd(48, 8, 1728 * 1280)
    a.srd(52, 6, 640 * 1280)
    a.srd(60, 12, 2621440)
    a(f's_cmp_eq_u32 s{sKH}, 0', 's_cselect_b32 s56, s4, s10', 's_cselect_b32 s57, s5, s11', CSEL(58, 2621440, 1280), 's_mov_b32 s59, 0x00020000',
      f's_cselect_b32 s{sT2}, 1280, 0')
    vOut, vRes = R(), R()
    sRow, sCol = 46, 47
    a(f's_lshl_b32 s{sRow}, s{sHead}, 1', f's_add_u32 s{sRow}, s{sRow}, s{sOwn}', f's_mul_i32 s{sCol}, s{sQB}, 160')
    a(f's_lshl_b32 s{sT0}, s{sRow}, 5', 'v_and_b32 v1, 31, v0', f'v_add_u32 v1, s{sT0}, v1', f'v_lshrrev_b32 v{tmp+4}, 5, v0', f'v_lshlrev_b32 v{tmp+4}, 4, v{tmp+4}',
      f'v_add_u32 v{tmp+4}, s{sCol}, v{tmp+4}', f'v_mul_u32_u24 v{vOut}, 1280, v1', f'v_add_u32 v{vOut}, v{vOut}, v{tmp+4}',
      f'v_mul_u32_u24 v{vRes}, s{sT2}, v1', f'v_add_u32 v{vRes}, v{vRes}, v{tmp+4}')
    res = acc + 48
    for gi in range(5):
        a.vmem(f'buffer_load_dwordx4 {v(res+4*gi,4)}, v{vRes}, s[56:59], 0 offen offset:{32*gi}', 'res')
    a(f'v_mul_u32_u24 v1, 205, v0', 'v_lshrrev_b32 v1, 11, v1')
    a(f'v_mul_u32_u24 v{tmp+4}, 10, v1', f'v_sub_u32 v{tmp+4}, v0, v{tmp+4}', f'v_lshlrev_b32 v{tmp+4}, 4, v{tmp+4}', f'v_add_u32 v{tmp+4}, s{sCol}, v{tmp+4}')
    a(f'v_and_b32 v{tmp+5}, 1, v1', 'v_lshrrev_b32 v1, 1, v1')
    a(f'v_lshl_add_u32 v{tmp+6}, v{tmp+5}, 2, v1', f'v_mul_u32_u24 v{tmp+6}, 1280, v{tmp+6}', f'v_add_u32 v{vW}, v{tmp+6}, v{tmp+4}')
    for i, ro in ((1, 2), (2, 8), (3, 10)):
        a(f'v_add_u32 v{vW+i}, {ro*1280-640*i}, v{vW}')
    a(f'v_mul_u32_u24 v{tmp+5}, 20, v{tmp+5}', f'v_add3_u32 v{tmp+6}, v{tmp+5}, v1, 16', f'v_mul_u32_u24 v{tmp+6}, 1280, v{tmp+6}', f'v_add_u32 v{vWr}, v{tmp+6}, v{tmp+4}')
    for i, ro in ((1, 2), (2, 40), (3, 42)):
        a(f'v_add_u32 v{vWr+i}, {ro*1280-640*i}, v{vWr}')
    a(f's_mul_i32 s{sReg}, s{sG}, 25600', f's_add_u32 s{sReg}, s{sReg}, {L_W}')
    a('v_lshrrev_b32 v1, 2, v0', 'v_and_b32 v1, 3, v1', f'v_lshrrev_b32 v{tmp+4}, 5, v0', f'v_lshl_add_u32 v1, v1, 1, v{tmp+4}', 'v_mul_u32_u24 v1, 160, v1')
    a(f'v_and_b32 v{tmp+4}, 16, v0', f'v_lshl_add_u32 v1, v{tmp+4}, 1, v1', f'v_and_b32 v{tmp+4}, 1, v0', f'v_lshl_add_u32 v1, v{tmp+4}, 4, v1',
      f'v_and_b32 v{tmp+4}, 2, v0', f'v_lshl_add_u32 v1, v{tmp+4}, 2, v1', f'v_add_u32 v{vTr}, s{sReg}, v1')
    a(f's_mul_i32 s{sH0}, s{sRow}, {108*1024}', f's_xor_b32 s{sT0}, s{sRow}, 1', f's_mul_i32 s{sH1}, s{sT0}, {108*1024}',
      f's_mul_i32 s{sT0}, s{sG}, {27*1024}', f's_add_u32 s{sT0}, s{sT0}, {WS_H}', f's_add_u32 s{sH0}, s{sH0}, s{sT0}', f's_add_u32 s{sH1}, s{sH1}, s{sT0}')
    a(f's_mul_i32 s{sW2}, s{sG}, {27*16*1280}', f's_mul_i32 s{sWo}, s{sG}, {160*1280}')

    def stage(srd, soff_base, soff_add, voff, slot, tag):
        a(f's_add_u32 m0, s{sReg}, {slot*2560}', f's_add_u32 s{sT0}, s{soff_base}, {soff_add}', f's_mov_b64 exec, s[{sM40}:{sM40+1}]')
        for i in range(4):
            a.vmem(f'buffer_load_dwordx4 v{voff+i}, s[{srd}:{srd+3}], s{sT0} offen offset:{640*i} lds', tag)
        a('s_mov_b64 exec, -1')

    def f2_load(st):
        stage(48, sW2, st * 16 * 1280, vW, st % 3, ('f2', st))
        a(f's_add_u32 s{sT0}, s{sH0}, {st*1024}', f's_add_u32 s{sT1}, s{sH1}, {st*1024}')
        a.vmem(f'buffer_load_dwordx4 {v(AF[st%3],4)}, v{vL16}, s[16:19], s{sT0} offen', ('f2', st))
        a.vmem(f'buffer_load_dwordx4 {v(AF[st%3]+4,4)}, v{vL16}, s[16:19], s{sT1} offen', ('f2', st))

    def wo_load(slot):
        if slot < 8:
            stage(52, sWo, slot * 20 * 1280, vW, slot, ('wo', slot))
        else:
            stage(52, sWo, (slot - 8) * 80 * 1280, vWr, slot, ('wo', slot))

    def trs(addr, off):
        out = []
        for c in range(3):
            out += [f'ds_read_b64_tr_b16 {v(BF[c],2)}, v{addr} offset:{off+64*c}', f'ds_read_b64_tr_b16 {v(BF[c]+2,2)}, v{addr} offset:{off+64*c+1280}']
        return out

    def f2_step(st):
        a.wait_vm(('f2', st))
        a(trs(vTr, (st % 3) * 2560))
        for c in range(3):
            a(f's_waitcnt lgkmcnt({4-2*c})', M16(acc + 16 * c, BF[c], AF[st % 3]), M16(acc + 48 + 16 * c, BF[c], AF[st % 3] + 4))
        if st + 3 < 27:
            f2_load(st + 3)

    for st in range(3):
        f2_load(st)
    a.wait_vm(('kv', 0))
    a('s_waitcnt lgkmcnt(0)', 's_barrier')
    kv(2)
    a.wait_vm('res')
    for gi in range(5):
        for i in range(4):
            a(f'v_lshlrev_b32 v{acc+8*gi+2*i}, 16, v{res+4*gi+i}', f'v_and_b32 v{acc+8*gi+2*i+1}, 0xffff0000, v{res+4*gi+i}')
    for i in range(40, 96):
        a(f'v_mov_b32 v{acc+i}, 0')
    st = 0
    for c in range(16):
        if c >= 1 and c + 2 < 16:
            kv(c + 2)
        if 4 <= c < 10:
            wo_load(c)
        for _ in range(1 if c == 0 else 2):
            if st < 27:
                f2_step(st); st += 1
        if c == 14:
            a(f'v_add_u32 v1, s{sReg}, v{vL16}', 's_nop 10')
            for i in range(10):
                a(f'ds_write_b128 v1, {v(acc+48+4*i,4)} offset:{1024*i}')
            a('s_waitcnt lgkmcnt(0)')
        if c == 15:
            a(f's_xor_b32 s{sT0}, s{sG}, 1', f's_mul_i32 s{sT0}, s{sT0}, 25600', f's_add_u32 s{sT0}, s{sT0}, {L_W}', f'v_add_u32 v1, s{sT0}, v{vL16}')
            for i in range(10):
                a(f'ds_read_b128 {v(acc+48+4*i,4)}, v1 offset:{1024*i}')
            a('s_waitcnt lgkmcnt(0)')
        a.wait_vm(('kv', c + 1))
        a('s_barrier')
    for slot in range(4):
        wo_load(slot)
    for i in range(40):
        a(f'v_add_f32 v{acc+i}, v{acc+i}, v{acc+48+i}')
    OF = acc + 48
    assert OF + 80 <= BF[0]
    sO0, sO1 = sH0, sH1
    a(f's_mul_i32 s{sO0}, s{sRow}, 40960', f's_add_u32 s{sO0}, s{sO0}, {WS_O}', f's_lshl_b32 s{sT0}, s{sKH}, 12', f's_add_u32 s{sO1}, s{sO0}, s{sT0}',
      f's_add_u32 s{sO1}, s{sO1}, 32768', f's_lshl_b32 s{sT0}, s{sKH}, 14', f's_add_u32 s{sO0}, s{sO0}, s{sT0}')
    a(f's_mul_i32 s{sT0}, s{sOwn}, 25600', f'v_subrev_u32 v{vTr}, s{sT0}, v{vTr}')
    a.drain_vm()
    a('s_barrier')
    a(f's_cmp_lg_u32 s{sG}, 0', 's_cbranch_scc1 L_at_ready')
    a(f's_lshr_b32 s{sT0}, s{sHead}, 2', f's_lshl_b32 s{sT0}, s{sT0}, 5', 'v_mov_b32 v1, 0', f's_mov_b32 s{sT2}, 0x40000')
    a.label('L_at_poll')
    a(f'buffer_load_dword v{tmp}, v1, s[28:31], s{sT0} offen sc1', f's_sub_u32 s{sT2}, s{sT2}, 1', 's_cbranch_scc1 L_at_ready',
      's_waitcnt vmcnt(0)', f'v_readfirstlane_b32 s{sT1}, v{tmp}', 's_nop 0',
      f's_cmp_lt_u32 s{sT1}, 32', 's_cbranch_scc1 L_at_poll')
    a.label('L_at_ready')
    a('s_barrier')
    order = []
    for r in range(2):
        for sl in range(10):
            order.append((r, sl))
    for i, (r, sl) in enumerate(order):
        if sl < 8:
            h = 8 * r + sl
            if h % 4 == 0:
                a(f's_add_u32 s{sT0}, s{sO0}, {h*1024}')
            a.vmem(f'buffer_load_dwordx4 {v(OF+4*i,4)}, v{vL16}, s[16:19], s{sT0} offen offset:{(h%4)*1024} sc1', ('o', i))
        else:
            g = 2 * r + sl - 8
            a.vmem(f'buffer_load_dwordx2 {v(OF+4*i,2)}, v{vL8}, s[16:19], s{sO1} offen offset:{g*1024} sc1', ('o', i))
            a.vmem(f'buffer_load_dwordx2 {v(OF+4*i+2,2)}, v{vL8}, s[16:19], s{sO1} offen offset:{g*1024+512} sc1', ('o', i))
    a(trs(vTr, 0))
    for i, (r, sl) in enumerate(order):
        a.wait_vm(('o', i))
        nx = trs(vTr, (i + 1) * 2560) if i + 1 < 20 else None
        for c in range(3):
            a(f's_waitcnt lgkmcnt({4 if nx else 4-2*c})', M16(acc + 16 * c, BF[c], OF + 4 * i))
            if nx:
                a(nx[2 * c:2 * c + 2])
    a(f's_mul_i32 s{sT0}, s{sG}, 6144', f's_xor_b32 s{sT1}, s{sG}, 2', f's_mul_i32 s{sT1}, s{sT1}, 6144',
      f'v_add_u32 v1, s{sT0}, v{vL16}', f'v_add_u32 v{tmp}, s{sT1}, v{vL16}', f's_cmp_eq_u32 s{sKH}, 0', 's_nop 7', 's_cbranch_scc0 L_at_hi')
    for tag, send, keep in (('lo', (3, 4), (0, 1, 2)), ('hi', (0, 1, 2), (3, 4))):
        if tag == 'hi':
            a.label('L_at_hi')
        for k, gi in enumerate(send):
            a(f'ds_write_b128 v1, {v(acc+8*gi,4)} offset:{2048*k}', f'ds_write_b128 v1, {v(acc+8*gi+4,4)} offset:{2048*k+1024}')
        a('s_waitcnt lgkmcnt(0)', 's_barrier')
        for k, gi in enumerate(keep):
            a(f'ds_read_b128 {v(OF+8*k,4)}, v{tmp} offset:{2048*k}', f'ds_read_b128 {v(OF+8*k+4,4)}, v{tmp} offset:{2048*k+1024}')
        for k, gi in enumerate(keep):
            a(f's_waitcnt lgkmcnt({2*(len(keep)-1-k)})')
            r = acc + 8 * gi
            for e in range(8):
                a(f'v_add_f32 v{r+e}, v{r+e}, v{OF+8*k+e}')
            for e in range(4):
                a(CVT(r + e, r + 2 * e))
            a(f'buffer_store_dwordx4 {v(r,4)}, v{vOut}, s[60:63], 0 offen offset:{32*gi}')
        a('s_endpgm')
    a.label('L_at_done')
    a('s_endpgm')
    return kernel_header(name) + a.text(), kernel_desc(name, 168, 72)
```

```python
import sys
sys.path.insert(0, 'gen')
from k01 import *
from k2 import *

REF = 'parallel_sum__softmax_full_mha__dense_activation_squared_relu__prompt.s.ref'

def build(path, extra_empty=0):
    head = [l for l in open(REF).read().splitlines() if l.startswith(';') and '@launch' not in l and 'Override launch' not in l and 'grid=ceil' not in l]
    ks = [('ln_kernel', gen_ln, 256, 64, 0), ('gemm1_kernel', gen_gemm1, 256, 768, G1_LDS), ('attn_kernel', gen_attn, 256, 768, K2_LDS)]
    for n, g, gx, bx, lds in ks:
        head.append(f'; @launch kernel={n} grid=({gx},1,1) block=({bx},1,1) lds={lds}')
    for _ in range(extra_empty):
        head.append('; @launch kernel=empty_kernel grid=(256,1,1) block=(64,1,1) lds=0')
    out = '\n'.join(head) + '\n.amdgcn_target "amdgcn-amd-amdhsa--gfx950"\n'
    descs = ''
    for n, g, *_ in ks:
        t, d = g(n)
        out += t; descs += d
    if extra_empty:
        out += kernel_header('empty_kernel') + '    s_endpgm\n'; descs += kernel_desc('empty_kernel', 8, 16)
    open(path, 'w').write(out + descs)

if __name__ == '__main__':
    build(sys.argv[1] if len(sys.argv) > 1 else 'parallel_sum__softmax_full_mha__dense_activation_squared_relu__prompt.s',
          int(sys.argv[2]) if len(sys.argv) > 2 else 0)
```

```python
class Asm:
    def __init__(self):
        self.lines = []
        self.vm = []

    def __call__(self, *ins):
        for s in ins:
            if isinstance(s, (list, tuple)):
                self(*s)
            else:
                self.lines.append('    ' + s)

    def label(self, name):
        self.lines.append(name + ':')

    def raw(self, s):
        self.lines.append(s)

    def c(self, text):
        self.lines.append('    ; ' + text)

    def vmem(self, ins, tag):
        self(ins)
        self.vm.append(tag)

    def wait_vm(self, *tags):
        last = -1
        for i, t in enumerate(self.vm):
            if t in tags:
                last = i
        if last < 0:
            return
        n = len(self.vm) - 1 - last
        assert n <= 63, n
        self(f's_waitcnt vmcnt({n})')
        self.vm = self.vm[last + 1:]

    def drain_vm(self):
        self('s_waitcnt vmcnt(0)')
        self.vm = []

    def srd(self, d, base, nbytes, off=None):
        if off is None:
            self(f's_mov_b32 s{d}, s{base}', f's_mov_b32 s{d+1}, s{base+1}')
        else:
            self(f's_add_u32 s{d}, s{base}, {off}', f's_addc_u32 s{d+1}, s{base+1}, 0')
        self(f's_mov_b32 s{d+2}, {nbytes}', f's_mov_b32 s{d+3}, 0x00020000')

    diag = False
    def stamp(self, i, real=False):
        if Asm.diag:
            self(f's_mem{"real" if real else ""}time s[{64+2*i}:{65+2*i}]')

    def dump(self, kidx, swave, srd=16, base=0x2000000):
        if not Asm.diag:
            return
        self.stamp(14)
        self.stamp(15, True)
        self('s_waitcnt lgkmcnt(0)', 's_mov_b64 exec, -1')
        for i in range(16):
            self(f'v_writelane_b32 v2, s{64+2*i}, {i}')
        self(f's_lshl_b32 s96, s2, 4', f's_add_u32 s96, s96, s{swave}', 's_lshl_b32 s96, s96, 6', f's_add_u32 s96, s96, {base + kidx * 0x40000}')
        self('v_mbcnt_lo_u32_b32 v1, -1, 0', 'v_lshlrev_b32 v1, 2, v1', 's_mov_b64 exec, 0xffff', f's_mov_b32 s{srd+2}, -1')
        self(f'buffer_store_dword v2, v1, s[{srd}:{srd+3}], s96 offen')

    def text(self):
        return '\n'.join(self.lines) + '\n'


def v(a, n=1):
    return f'v{a}' if n == 1 else f'v[{a}:{a+n-1}]'

def s(a, n=1):
    return f's{a}' if n == 1 else f's[{a}:{a+n-1}]'

def M16(d, a, b, c=None):
    cs = v(d, 16) if c is None else (c if isinstance(c, str) else v(c, 16))
    return f'v_mfma_f32_32x32x16_bf16 {v(d,16)}, {v(a,4)}, {v(b,4)}, {cs}'

def M8(d, a, b):
    return f'v_mfma_f32_32x32x8_bf16 {v(d,16)}, {v(a,2)}, {v(b,2)}, {v(d,16)}'

def CVT(d, a, b=None):
    return f'v_cvt_pk_bf16_f32 v{d}, v{a}, v{a+1 if b is None else b}'

def CSEL(d, t, f):
    return [f's_mov_b32 s{d}, {f}', f's_cmov_b32 s{d}, {t}']

def EXP(r):
    return f'v_exp_f32 v{r}, v{r}'


class Regs:
    def __init__(self, start=0, limit=168):
        self.n = start
        self.limit = limit
    def __call__(self, cnt=1, align=None):
        al = align or (2 if cnt > 1 else 1)
        self.n = (self.n + al - 1) // al * al
        r = self.n
        self.n += cnt
        assert self.n <= self.limit, (self.n, self.limit)
        return r


def kernel_header(name):
    return f'.text\n.globl {name}\n.p2align 8\n.type {name},@function\n{name}:\n'

def kernel_desc(name, vgpr, sgpr=96):
    if Asm.diag:
        sgpr = 100
    acc = (vgpr + 3) // 4 * 4
    return f'''.section .rodata,"a"
.p2align 6
.amdhsa_kernel {name}
  .amdhsa_next_free_vgpr {vgpr}
  .amdhsa_next_free_sgpr {sgpr}
  .amdhsa_accum_offset {acc}
  .amdhsa_group_segment_fixed_size 0
  .amdhsa_kernarg_size 88
  .amdhsa_user_sgpr_count 2
  .amdhsa_user_sgpr_kernarg_segment_ptr 1
  .amdhsa_system_sgpr_workgroup_id_x 1
.end_amdhsa_kernel
'''
```

```python
from asmlib import *

WS_Q  = 0x000000
WS_KV = 0x280000
WS_H  = 0x780000
WS_O  = 0xE40000
WS_XN = 0x10C0000
WS_CNT = 0x1340000
WS_END = 0x1341000
OPT = {'rot': 1}
QSCALE = 0x3ea52ae6
import struct, math
QSCALE = struct.unpack('<I', struct.pack('<f', 20 ** -0.5 * math.log2(math.e)))[0]


def gen_ln(name):
    a = Asm()
    a('s_cmp_ge_u32 s2, 256', 's_cbranch_scc1 L_ln_done')
    a('s_load_dwordx2 s[4:5], s[0:1], 0', 's_load_dwordx2 s[6:7], s[0:1], 80')
    a('v_lshrrev_b32 v1, 3, v0', 'v_and_b32 v2, 7, v0', 'v_mul_u32_u24 v1, 1280, v1', 'v_lshl_add_u32 v1, v2, 4, v1')
    a('s_mul_i32 s3, s2, 10240', 's_waitcnt lgkmcnt(0)')
    a.srd(8, 4, 2621440)
    a.srd(12, 6, 2621440, WS_XN)
    for i in range(10):
        a(f'buffer_load_dwordx4 {v(8+4*i,4)}, v1, s[8:11], s3 offen offset:{128*i}')
    a('s_waitcnt vmcnt(0)')
    for i in range(40):
        a(f'v_lshlrev_b32 v{48+2*i}, 16, v{8+i}', f'v_and_b32 v{49+2*i}, 0xffff0000, v{8+i}')
    def reduce8(r):
        for mod in ('quad_perm:[1,0,3,2]', 'quad_perm:[2,3,0,1]', 'row_half_mirror'):
            a('s_nop 1', f'v_add_f32_dpp v{r}, v{r}, v{r} {mod} row_mask:0xf bank_mask:0xf')
    a('v_add_f32 v2, v48, v49', 'v_add_f32 v3, v50, v51')
    for i in range(2, 40):
        a(f'v_add_f32 v2, v2, v{48+2*i}', f'v_add_f32 v3, v3, v{49+2*i}')
    a('v_add_f32 v2, v2, v3')
    reduce8(2)
    a('v_mul_f32 v2, 0x3acccccd, v2')
    for i in range(80):
        a(f'v_sub_f32 v{48+i}, v{48+i}, v2')
    a('v_mul_f32 v3, v48, v48', 'v_mul_f32 v4, v49, v49')
    for i in range(1, 40):
        a(f'v_fmac_f32 v3, v{48+2*i}, v{48+2*i}', f'v_fmac_f32 v4, v{49+2*i}, v{49+2*i}')
    a('v_add_f32 v3, v3, v4')
    reduce8(3)
    a('v_mov_b32 v4, 0x3727c5ac', 'v_fmac_f32 v4, 0x3acccccd, v3', 'v_rsq_f32 v4, v4', 's_nop 0')
    for i in range(80):
        a(f'v_mul_f32 v{48+i}, v{48+i}, v4')
    for i in range(40):
        a(CVT(8+i, 48+2*i))
    for i in range(10):
        a(f'buffer_store_dwordx4 {v(8+4*i,4)}, v1, s[12:15], s3 offen offset:{128*i}')
    a.label('L_ln_done')
    a('s_endpgm')
    return kernel_header(name) + a.text(), kernel_desc(name, 128, 32)


G1_B0, G1_B1, G1_A = 0, 49152, 98304
G1_LDS = 147456


def gen_gemm1(name):
    a = Asm()
    sW, sRB, sCG, sJ, sT0, sT1, sT2 = 20, 21, 22, 23, 24, 25, 26
    a('s_cmp_ge_u32 s2, 256', 's_cbranch_scc1 L_g1_done')
    a.stamp(0); a.stamp(1, True)
    a('s_load_dwordx2 s[6:7], s[0:1], 8', 's_load_dwordx4 s[8:11], s[0:1], 32', 's_load_dwordx2 s[12:13], s[0:1], 80')
    a(f's_lshr_b32 s{sJ}, s2, 3',
      f's_and_b32 s{sRB}, s2, 1', f's_lshl_b32 s{sRB}, s{sRB}, 3', f's_and_b32 s{sT0}, s{sJ}, 7', f's_add_u32 s{sRB}, s{sRB}, s{sT0}',
      f's_lshr_b32 s{sCG}, s2, 1', f's_and_b32 s{sCG}, s{sCG}, 3', f's_lshl_b32 s{sCG}, s{sCG}, 2',
      f's_lshr_b32 s{sT1}, s{sJ}, 3', f's_add_u32 s{sCG}, s{sCG}, s{sT1}')
    a(f's_cmp_ge_u32 s{sCG}, 15', 's_cbranch_scc1 L_g1_done')
    a('v_lshrrev_b32 v1, 6, v0', 'v_and_b32 v0, 63, v0', f'v_readfirstlane_b32 s{sW}, v1')
    a('s_waitcnt lgkmcnt(0)')
    a.srd(16, 12, WS_END)
    a(f's_cmp_lt_u32 s{sW}, 8', 's_cbranch_scc1 L_g1_compute')

    sL, sStride, sOA, sOB, sKC, sSlot, sMA, sMB, sCnt, sBstep, sCol, sRowA = range(32, 44)
    a(f's_sub_u32 s{sL}, s{sW}, 8')
    a(f's_or_b32 s{sT2}, s{sL}, s2', 's_cbranch_scc1 L_g1_nozero')
    a('v_lshlrev_b32 v1, 4, v0', 'v_mov_b32 v4, 0', 'v_mov_b32 v5, 0', 'v_mov_b32 v6, 0', 'v_mov_b32 v7, 0', f's_mov_b32 s{sT2}, {WS_CNT}',
      f'buffer_store_dwordx4 v[4:7], v1, s[16:19], s{sT2} offen', 's_waitcnt vmcnt(0)')
    a.label('L_g1_nozero')
    a(f's_lshr_b32 s{sT2}, s{sL}, 1', f's_lshl_b32 s{sCol}, s{sCG}, 1', f's_add_u32 s{sCol}, s{sCol}, s{sT2}')
    a(f's_cmp_lt_u32 s{sCol}, 15',
      's_cselect_b32 s28, s6, s8', 's_cselect_b32 s29, s7, s9', CSEL(30, 640*3840, 640*3456),
      CSEL(sStride, 3840, 3456), f's_cselect_b32 s{sKC}, 0, 15', 's_mov_b32 s31, 0x00020000')
    a(f's_sub_u32 s{sCol}, s{sCol}, s{sKC}', f's_lshl_b32 s{sCol}, s{sCol}, 8')
    a(f's_lshl_b32 s{sBstep}, s{sStride}, 6')
    a(f's_mul_i32 s{sRowA}, s{sRB}, {128*1280}', f's_add_u32 s{sRowA}, s{sRowA}, {WS_XN}')
    a(f's_mul_i32 s{sT0}, s{sT0}, 5', f's_mul_i32 s{sT1}, s{sT1}, 10', f's_add_u32 s{sKC}, s{sT0}, s{sT1}', f's_lshr_b32 s{sKC}, s{sKC}, 2',
      f's_cmp_ge_u32 s{sKC}, 10', f's_cselect_b32 s{sT0}, 10, 0', f's_sub_u32 s{sKC}, s{sKC}, s{sT0}')
    if not OPT['rot']:
        a(f's_mov_b32 s{sKC}, 0')
    a(f's_lshl_b32 s{sMA}, s{sL}, 12', f's_add_u32 s{sMA}, s{sMA}, {G1_A}')
    a(f's_mul_i32 s{sMB}, s{sT2}, {G1_B1}', f's_and_b32 s{sT0}, s{sL}, 1', f's_lshl_b32 s{sT1}, s{sT0}, 13', f's_add_u32 s{sMB}, s{sMB}, s{sT1}')
    vA, vB = 8, 12
    a('v_lshrrev_b32 v1, 3, v0', 'v_lshrrev_b32 v2, 4, v0', 'v_and_b32 v3, 7, v0', 'v_xor_b32 v3, v3, v2')
    a(f's_lshl_b32 s{sT1}, s{sL}, 5', f'v_add_u32 v1, s{sT1}, v1', 'v_mul_u32_u24 v1, 1280, v1')
    a(f'v_lshl_add_u32 v{vA}, v3, 4, v1', 'v_xor_b32 v3, 4, v3', 'v_lshl_add_u32 v4, v3, 4, v1')
    a(f'v_add_u32 v{vA+1}, {10240-1024}, v4', f'v_add_u32 v{vA+2}, {2*(10240-1024)}, v{vA}', f'v_add_u32 v{vA+3}, {3*(10240-1024)}, v4')
    a('v_and_b32 v3, 15, v0', 'v_lshlrev_b32 v4, 2, v2', 'v_xor_b32 v3, v3, v4')
    a(f's_lshl_b32 s{sT0}, s{sT0}, 5', f'v_add_u32 v2, s{sT0}, v2', f'v_mul_u32_u24 v2, s{sStride}, v2', f'v_lshl_add_u32 v{vB}, v3, 4, v2')
    a(f's_lshl_b32 s{sT0}, s{sStride}, 2', f's_sub_u32 s{sT1}, s{sT0}, 1024', f's_lshl_b32 s{sT0}, s{sT0}, 2')
    for i in range(1, 4):
        a(f'v_add_u32 v{vB+i}, s{sT1}, v{vB+i-1}')
    for i in range(4):
        a(f'v_add_u32 v{vB+4+i}, s{sT0}, v{vB+i}')
    a(f's_mov_b32 s{sSlot}, 0')

    def issue_chunk():
        a(f's_lshl_b32 s{sOA}, s{sKC}, 7', f's_add_u32 s{sOA}, s{sOA}, s{sRowA}',
          f's_mul_i32 s{sOB}, s{sKC}, s{sBstep}', f's_add_u32 s{sOB}, s{sOB}, s{sCol}')
        a(f's_add_u32 m0, s{sMA}, s{sSlot}', f's_add_u32 s{sT0}, s{sMB}, s{sSlot}')
        for i in range(4):
            a(f'buffer_load_dwordx4 v{vA+i}, s[16:19], s{sOA} offen offset:{1024*i} lds')
        a(f's_mov_b32 m0, s{sT0}', f's_add_u32 s{sKC}, s{sKC}, 1')
        for i in range(4):
            a(f'buffer_load_dwordx4 v{vB+i}, s[28:31], s{sOB} offen offset:{1024*i} lds')
        a(f's_add_u32 m0, s{sT0}, 4096', f's_cmp_eq_u32 s{sKC}, 10')
        a(f's_cselect_b32 s{sKC}, 0, s{sKC}')
        for i in range(4):
            a(f'buffer_load_dwordx4 v{vB+4+i}, s[28:31], s{sOB} offen offset:{1024*i} lds')
        a(f's_add_u32 s{sSlot}, s{sSlot}, 16384', f's_cmp_eq_u32 s{sSlot}, 49152', f's_cselect_b32 s{sSlot}, 0, s{sSlot}')

    issue_chunk()
    a.stamp(2)
    a('s_waitcnt vmcnt(0)')
    a.stamp(3)
    a('s_barrier')
    issue_chunk()
    issue_chunk()
    a(f's_mov_b32 s{sCnt}, 3')
    a.label('L_g1_ld_loop')
    a('s_waitcnt vmcnt(12)', 's_barrier')
    issue_chunk()
    a(f's_add_u32 s{sCnt}, s{sCnt}, 1', f's_cmp_lt_u32 s{sCnt}, 10', 's_cbranch_scc1 L_g1_ld_loop')
    a.stamp(4)
    a('s_waitcnt vmcnt(12)', 's_barrier', 's_waitcnt vmcnt(0)', 's_barrier')
    a.dump(1, sW)
    a('s_endpgm')

    a.label('L_g1_compute')
    sM, sN, sB, sDelta, sSlotC, sCntC = 32, 33, 34, 35, 36, 37
    a(f's_and_b32 s{sM}, s{sW}, 1', f's_lshr_b32 s{sN}, s{sW}, 1', f's_lshl_b32 s{sB}, s{sCG}, 2', f's_add_u32 s{sB}, s{sB}, s{sN}')
    a(f's_cmp_ge_u32 s{sB}, 57', 's_cbranch_scc1 L_g1_done')
    R = Regs(2)
    vH, vTok = R(), R()
    vAa = R(4); vBa = R(2)
    bias = R(16)
    F = [(R(8), R(8)), (R(8), R(8))]
    acc = R(64)
    tmp = R(16)
    a(f'v_lshrrev_b32 v{vH}, 5, v0', f'v_and_b32 v{vTok}, 31, v0')
    a.srd(28, 10, 3456)
    a(f's_sub_u32 s{sT0}, s{sB}, 30', f's_lshl_b32 s{sT0}, s{sT0}, 7', f'v_lshlrev_b32 v1, 3, v{vH}')
    a(f's_cmp_lt_u32 s{sB}, 30', 's_cbranch_scc1 L_g1_nobias')
    for i in range(8):
        a(f'buffer_load_dwordx2 {v(bias+2*i,2)}, v1, s[28:31], s{sT0} offen offset:{16*i}')
    a.label('L_g1_nobias')
    a(f'v_lshrrev_b32 v1, 1, v{vTok}', 'v_and_b32 v1, 7, v1', f'v_xor_b32 v1, v1, v{vH}')
    a(f's_lshl_b32 s{sT0}, s{sM}, 13', f's_add_u32 s{sT0}, s{sT0}, {G1_A}', f'v_lshlrev_b32 v{tmp}, 7, v{vTok}', f'v_add_u32 v{tmp}, s{sT0}, v{tmp}')
    for st in range(4):
        a(f'v_xor_b32 v{tmp+1}, {2*st}, v1', f'v_lshl_add_u32 v{vAa+st}, v{tmp+1}, 4, v{tmp}')
    a('v_lshrrev_b32 v1, 2, v0', 'v_and_b32 v1, 3, v1')
    a(f'v_lshl_add_u32 v{tmp}, v{vH}, 3, v1', f'v_lshlrev_b32 v{tmp}, 8, v{tmp}')
    a(f'v_and_b32 v{tmp+1}, 3, v0', f'v_lshl_add_u32 v{tmp}, v{tmp+1}, 3, v{tmp}')
    a(f'v_and_b32 v{tmp+1}, 16, v0', f'v_lshl_add_u32 v{tmp}, v{tmp+1}, 1, v{tmp}')
    a(f's_lshr_b32 s{sT0}, s{sN}, 1', f's_mul_i32 s{sT0}, s{sT0}, {G1_B1}', f'v_add_u32 v{tmp}, s{sT0}, v{tmp}')
    a(f's_and_b32 s{sT0}, s{sN}, 1', f's_lshl_b32 s{sT0}, s{sT0}, 1', f'v_xor_b32 v1, s{sT0}, v1')
    a(f'v_lshl_add_u32 v{vBa}, v1, 6, v{tmp}', 'v_xor_b32 v1, 1, v1', f'v_lshl_add_u32 v{vBa+1}, v1, 6, v{tmp}')
    for i in range(64):
        a(f'v_mov_b32 v{acc+i}, 0')
    a(f's_mov_b32 s{sSlotC}, 0', f's_mov_b32 s{sCntC}, 10')

    def reads(st, f):
        FA, FB = F[f]
        return [f'ds_read_b128 {v(FA,4)}, v{vAa+st}',
                f'ds_read_b64_tr_b16 {v(FB,2)}, v{vBa} offset:{4096*st}',
                f'ds_read_b64_tr_b16 {v(FB+2,2)}, v{vBa} offset:{4096*st+1024}',
                f'ds_read_b64_tr_b16 {v(FB+4,2)}, v{vBa+1} offset:{4096*st}',
                f'ds_read_b64_tr_b16 {v(FB+6,2)}, v{vBa+1} offset:{4096*st+1024}',
                f'ds_read_b128 {v(FA+4,4)}, v{vAa+st} offset:4096']

    def mfmas(f, swap):
        FA, FB = F[f]
        out = []
        for t, u in ((0, 0), (0, 1), (1, 1), (1, 0)):
            x, w = FA + 4 * t, FB + 4 * u
            out.append(M16(acc + 32 * t + 16 * u, x, w) if swap else M16(acc + 32 * t + 16 * u, w, x))
        return out

    def fin():
        if Asm.diag:
            a.stamp(5)
            a('s_waitcnt vmcnt(0)')
            a.dump(1, sW)
        a('s_endpgm')

    def mainloop(tag, swap):
        a.stamp(2)
        a('s_barrier')
        a.stamp(3)
        a(reads(0, 0))
        a.label(f'L_g1_loop_{tag}')
        for st in range(4):
            m = mfmas(st & 1, swap)
            a('s_waitcnt lgkmcnt(0)')
            if st == 3:
                a(f's_sub_u32 s{sCntC}, s{sCntC}, 1', f's_cmp_eq_u32 s{sCntC}, 0', f's_cbranch_scc1 L_g1_last_{tag}')
                a('s_barrier')
                a(m[0])
                a(f's_add_u32 s{sSlotC}, s{sSlotC}, 1', f's_cmp_eq_u32 s{sSlotC}, 3',
                  CSEL(sDelta, -32768, 16384), f's_cselect_b32 s{sSlotC}, 0, s{sSlotC}')
                for r in list(range(vAa, vAa + 4)) + [vBa, vBa + 1]:
                    a(f'v_add_u32 v{r}, s{sDelta}, v{r}')
                rd = reads(0, 0)
                a(m[1], rd[0:3], m[2], rd[3:6], m[3])
                a(f's_branch L_g1_loop_{tag}')
            else:
                rd = reads(st + 1, (st + 1) & 1)
                a(m[0], rd[0:2], m[1], rd[2:4], m[2], rd[4:6], m[3])
        a.label(f'L_g1_last_{tag}')
        a(mfmas(1, swap))
        a('s_nop 15')
        a.stamp(4)

    a(f's_sub_u32 s{sT0}, s{sB}, 20', f's_cmp_lt_u32 s{sT0}, 10', 's_cbranch_scc1 L_g1_v')
    mainloop('t', False)
    a(f's_cmp_ge_u32 s{sB}, 30', 's_cbranch_scc1 L_g1_ffn')

    sHS, sOff, sScale = 38, 39, 40
    a(f's_cmp_lt_u32 s{sB}, 10',
      CSEL(sHS, 81920, 163840), f's_cselect_b32 s{sScale}, {hex(QSCALE)}, 1.0',
      CSEL(sT0, 5120, 10240), CSEL(sOff, WS_Q, WS_KV), f's_cselect_b32 s{sT1}, 0, 10')
    a(f's_mul_i32 s{sT0}, s{sT0}, s{sRB}', f's_add_u32 s{sOff}, s{sOff}, s{sT0}',
      f's_mul_i32 s{sT0}, s{sM}, 2560', f's_add_u32 s{sOff}, s{sOff}, s{sT0}')
    a(f's_sub_u32 s{sT1}, s{sB}, s{sT1}', f's_lshl_b32 s{sT1}, s{sT1}, 4')
    a(f'v_add_u32 v1, s{sT1}, v{vH}', f'v_lshlrev_b32 v{vTok}, 3, v{vTok}')
    t0, t1, t2, t3 = tmp, tmp + 1, tmp + 2, tmp + 3
    for u in range(2):
        for q in range(4):
            pk = tmp + 4 + 4 * (q & 1)
            a(f'v_add_u32 v{t0}, {8*u+2*q}, v1', f'v_mul_u32_u24 v{t1}, 205, v{t0}', f'v_lshrrev_b32 v{t1}, 10, v{t1}')
            a(f'v_mul_u32_u24 v{t2}, 5, v{t1}', f'v_sub_u32 v{t0}, v{t0}, v{t2}')
            a(f'v_mul_u32_u24 v{t1}, s{sHS}, v{t1}', f'v_lshl_add_u32 v{t1}, v{t0}, 8, v{t1}', f'v_add_u32 v{t1}, v{t1}, v{vTok}')
            a(f'v_lshrrev_b32 v{t0}, 2, v{t0}')
            a(f'v_lshl_add_u32 v{t2}, v{t0}, 10, v{t1}', f'v_lshl_add_u32 v{t3}, v{t0}, 8, v{t1}')
            for t in range(2):
                r = acc + 32 * t + 16 * u + 4 * q
                for e in range(4):
                    a(f'v_mul_f32 v{r+e}, s{sScale}, v{r+e}')
                a(CVT(pk + 2 * t, r), CVT(pk + 2 * t + 1, r + 2))
            a(f'buffer_store_dwordx2 {v(pk,2)}, v{t2}, s[16:19], s{sOff} offen')
            a(f'buffer_store_dwordx2 {v(pk+2,2)}, v{t3}, s[16:19], s{sOff} offen offset:1024')
    fin()

    a.label('L_g1_ffn')
    a(f's_lshl_b32 s{sT0}, s{sRB}, 2', f's_lshl_b32 s{sT1}, s{sM}, 1', f's_add_u32 s{sT0}, s{sT0}, s{sT1}', f's_mul_i32 s{sT0}, s{sT0}, 108',
      f's_sub_u32 s{sT1}, s{sB}, 30', f's_lshl_b32 s{sT1}, s{sT1}, 2', f's_add_u32 s{sT0}, s{sT0}, s{sT1}', f's_lshl_b32 s{sT0}, s{sT0}, 10',
      f's_add_u32 s{sOff}, s{sT0}, {WS_H}', f's_add_u32 s{sHS}, s{sOff}, {108*1024}')
    a('v_lshlrev_b32 v1, 4, v0', 's_waitcnt vmcnt(0)')
    for u in range(2):
        for ap in range(2):
            for i in range(4):
                src = bias + 8 * u + 4 * ap + i
                a(f'v_lshlrev_b32 v{tmp+2*i}, 16, v{src}', f'v_and_b32 v{tmp+2*i+1}, 0xffff0000, v{src}')
            for t in range(2):
                r = acc + 32 * t + 16 * u + 8 * ap
                for e in range(8):
                    a(f'v_add_f32 v{r+e}, v{r+e}, v{tmp+e}')
                for e in range(8):
                    a(f'v_max_f32 v{r+e}, 0, v{r+e}')
                for e in range(8):
                    a(f'v_mul_f32 v{r+e}, v{r+e}, v{r+e}')
                for e in range(4):
                    a(CVT(r + e, r + 2 * e))
                a(f'buffer_store_dwordx4 {v(r,4)}, v1, s[16:19], s{sHS if t else sOff} offen offset:{1024*(2*u+ap)}')
    fin()

    a.label('L_g1_v')
    mainloop('v', True)
    a(f's_mul_i32 s{sOff}, s{sRB}, 10240', f's_mul_i32 s{sT0}, s{sM}, 2560', f's_add_u32 s{sOff}, s{sOff}, s{sT0}', f's_add_u32 s{sOff}, s{sOff}, {WS_KV+5120}')
    a(f's_sub_u32 s{sT1}, s{sB}, 20', f's_lshl_b32 s{sT1}, s{sT1}, 6', f'v_add_u32 v1, s{sT1}, v{vTok}', f'v_mul_u32_u24 v{vH}, 320, v{vH}')
    for u in range(2):
        a(f'v_add_u32 v{t0}, {32*u}, v1', f'v_mul_u32_u24 v{t1}, 3277, v{t0}', f'v_lshrrev_b32 v{t1}, 16, v{t1}')
        a(f'v_mul_u32_u24 v{t2}, 20, v{t1}', f'v_sub_u32 v{t0}, v{t0}, v{t2}')
        a(f'v_mul_u32_u24 v{t1}, 163840, v{t1}', f'v_lshl_add_u32 v{t1}, v{t0}, 4, v{t1}', f'v_add_u32 v{t3+u}, v{t1}, v{vH}')
        for t in range(2):
            for ap in range(2):
                r = acc + 32 * t + 16 * u + 8 * ap
                for e in range(4):
                    a(CVT(r + e, r + 2 * e))
                a(f'buffer_store_dwordx4 {v(r,4)}, v{t3+u}, s[16:19], s{sOff} offen offset:{640*(2*t+ap)}')
    fin()
    a.label('L_g1_done')
    a('s_endpgm')
    return kernel_header(name) + a.text(), kernel_desc(name, 168, 64)
```

```python
from asmlib import *
from k01 import WS_Q, WS_KV, WS_H, WS_O, WS_END, WS_CNT

L_K = 0
L_V = 20480
L_W = 41472
K2_LDS = L_W + 102400
MAXOFF = 80.0


def fbits(x):
    import struct
    return hex(struct.unpack('<I', struct.pack('<f', x))[0])


def gen_attn(name):
    a = Asm()
    sW, sHead, sQB, sT0, sT1, sT2 = 20, 21, 22, 23, 24, 25
    a('s_cmp_ge_u32 s2, 256', 's_cbranch_scc1 L_at_done')
    a.stamp(0); a.stamp(1, True)
    a('s_load_dwordx2 s[4:5], s[0:1], 0', 's_load_dwordx2 s[6:7], s[0:1], 16', 's_load_dwordx4 s[8:11], s[0:1], 48',
      's_load_dwordx4 s[12:15], s[0:1], 64', 's_load_dwordx2 s[26:27], s[0:1], 80')
    a(f's_and_b32 s{sHead}, s2, 7', f's_lshl_b32 s{sHead}, s{sHead}, 2', f's_lshr_b32 s{sT0}, s2, 3', f's_and_b32 s{sT0}, s{sT0}, 3',
      f's_add_u32 s{sHead}, s{sHead}, s{sT0}', f's_lshr_b32 s{sQB}, s2, 5')
    a('v_lshrrev_b32 v1, 6, v0', 'v_and_b32 v0, 63, v0', f'v_readfirstlane_b32 s{sW}, v1')
    a('s_waitcnt lgkmcnt(0)')
    a.srd(16, 26, WS_END)
    a.srd(28, 26, 1024, WS_CNT)
    a(f's_cmp_ge_u32 s{sW}, 8', 's_cbranch_scc1 L_at_helper')

    R = Regs(2)
    vH, vKa, vVa, vTok = R(), R(), R(), R()
    Q1 = R(4); Q2 = [R(2), R(2)]
    S = [R(16), R(16)]
    P = R(8); O = R(16); C = R(16)
    K1 = [R(4), R(4)]; V = [R(8), R(8)]; K2 = R(2)
    tmp = R(8)
    sOff, sCnt, sKV, sPass = 32, 33, 34, 35
    a(f'v_lshrrev_b32 v{vH}, 5, v0', f'v_and_b32 v{vTok}, 31, v0', f'v_lshlrev_b32 v{vKa}, 3, v0')
    a(f's_lshl_b32 s{sT0}, s{sHead}, 5', f's_lshl_b32 s{sT1}, s{sQB}, 2', f's_add_u32 s{sT0}, s{sT0}, s{sT1}', f's_lshr_b32 s{sT1}, s{sW}, 1',
      f's_add_u32 s{sT0}, s{sT0}, s{sT1}', f's_mul_i32 s{sT0}, s{sT0}, 2560', f's_add_u32 s{sT0}, s{sT0}, {WS_Q}',
      f's_and_b32 s{sT1}, s{sW}, 1', f's_lshl_b32 s{sT2}, s{sT1}, 10', f's_add_u32 s{sT2}, s{sT2}, s{sT0}',
      f's_lshl_b32 s{sT1}, s{sT1}, 8', f's_add_u32 s{sT1}, s{sT1}, s{sT0}')
    a(f'v_lshlrev_b32 v1, 3, v{vTok}')
    a(f'buffer_load_dwordx2 {v(Q1,2)}, v{vKa}, s[16:19], s{sT2} offen',
      f'buffer_load_dwordx2 {v(Q1+2,2)}, v{vKa}, s[16:19], s{sT2} offen offset:512',
      f'buffer_load_dwordx2 {v(tmp,2)}, v1, s[16:19], s{sT1} offen offset:2048')
    a(f'v_min_u32 v1, 19, v{vTok}', 'v_lshlrev_b32 v1, 4, v1', f'v_mul_u32_u24 v{tmp+2}, 320, v{vH}', f'v_add_u32 v1, v1, v{tmp+2}')
    a(f'v_subrev_u32 v{tmp+2}, 20, v{vTok}', f'v_cmp_gt_u32 vcc, 8, v{tmp+2}', f'v_mov_b32 v{tmp+2}, 640', 's_nop 0',
      f'v_cndmask_b32 v1, v1, v{tmp+2}, vcc', f'v_add_u32 v{vVa}, {L_V}, v1')
    for i in range(16):
        a(f'v_mov_b32 v{O+i}, 0')
    for i in range(4):
        a(f'v_mov_b32 v{P+4+i}, 0', f'v_mov_b32 v{V[1]+4+i}, 0')
    a(f'v_cmp_eq_u32 vcc, 0, v{vH}', 's_waitcnt vmcnt(0)', 's_nop 0')
    for i in range(2):
        a(f'v_cndmask_b32 v{Q2[0]+i}, 0, v{tmp+i}, vcc')
    a(f'v_cmp_eq_u32 vcc, 1, v{vH}', 's_nop 1')
    for i in range(2):
        a(f'v_cndmask_b32 v{Q2[1]+i}, 0, v{tmp+i}, vcc')

    def rdK1(dst, blk):
        o = (blk // 4 % 4) * 10 + (blk // 2 % 2) * 5 + (blk % 2) * 2
        return f'ds_read2st64_b64 {v(dst,4)}, v{vKa} offset0:{o} offset1:{o+1}'
    def rdK2(pair):
        return f'ds_read_b64 {v(K2,2)}, v{vKa} offset:{(pair % 8) * 2560 + 2048}'
    def rdV(dst, blk, half):
        return f'ds_read_b128 {v(dst+4*half,4)}, v{vVa} offset:{((blk % 16) * 2 + half) * 656}'

    a.stamp(2)
    a('s_barrier')
    a.stamp(3)
    a(rdK1(K1[0], 0), rdK1(K1[1], 1), rdK2(0), rdV(V[0], 0, 0), rdV(V[0], 0, 1), 's_waitcnt lgkmcnt(2)')
    a(M16(S[0], K1[0], Q1, '0'), M16(S[1], K1[1], Q1, '0'), M8(S[0], K2, Q2[0]), M8(S[1], K2, Q2[1]), 's_nop 10')
    a(f'v_max3_f32 v{tmp}, v{S[0]}, v{S[0]+1}, v{S[0]+2}')
    for i in range(3, 15, 2):
        a(f'v_max3_f32 v{tmp}, v{tmp}, v{S[0]+i}, v{S[0]+i+1}')
    a(f'v_max3_f32 v{tmp}, v{tmp}, v{S[0]+15}, v{S[1]}')
    for i in range(1, 15, 2):
        a(f'v_max3_f32 v{tmp}, v{tmp}, v{S[1]+i}, v{S[1]+i+1}')
    a(f'v_max_f32 v{tmp}, v{tmp}, v{S[1]+15}', f'v_mov_b32 v{tmp+1}, v{tmp}', 's_nop 1', f'v_permlane32_swap_b32 v{tmp}, v{tmp+1}', 's_nop 1')
    a(f'v_max_f32 v{tmp}, v{tmp}, v{tmp+1}', f'v_sub_f32 v{C}, {fbits(-MAXOFF)}, v{tmp}')
    for i in range(1, 16):
        a(f'v_mov_b32 v{C+i}, v{C}')
    a('s_nop 1', M16(S[0], K1[0], Q1, C), M8(S[0], K2, Q2[0]), f's_mov_b32 s{sCnt}, 4', 's_nop 8')

    a.stamp(4)
    a.raw('.p2align 3')
    a.label('L_at_loop')
    for b in range(16):
        cur, nxt = S[b & 1], S[(b + 1) & 1]
        E = lambda i: EXP(cur + i)
        Cv = lambda i: CVT(P + i, cur + 2 * i)
        a(M16(nxt, K1[(b + 1) & 1], Q1, C))
        if b % 4 == 2:
            a('s_barrier')
        a(f's_setprio {3 - (b + 2) % 4}', rdK1(K1[b & 1], b + 2))
        a(E(0), E(1), E(2), Cv(0), E(3), E(4))
        a(M16(O, V[(b + 1) & 1] + 4, P + 4), 's_waitcnt lgkmcnt(1)', rdV(V[(b + 1) & 1], b + 1, 0), rdV(V[(b + 1) & 1], b + 1, 1))
        a(Cv(1), E(5), E(6), Cv(2), E(7), E(8))
        a(M8(nxt, K2, Q2[(b + 1) & 1]))
        a(Cv(3), E(9), E(10), Cv(4), E(11), E(12))
        a(M16(O, V[b & 1], P), 's_waitcnt lgkmcnt(2)')
        if b % 2 == 0:
            a(rdK2(b // 2 + 1))
        if b == 15:
            a(f's_sub_u32 s{sCnt}, s{sCnt}, 1', f's_cmp_lg_u32 s{sCnt}, 0')
        a(Cv(5), E(13), E(14), E(15), Cv(6), Cv(7))
    a('s_cbranch_scc1 L_at_loop')
    a('s_nop 0', M16(O, V[1] + 4, P + 4), f's_mov_b32 s{sPass}, 0', 's_waitcnt lgkmcnt(0)')

    a.stamp(5)
    a.label('L_at_fin')
    a(f'v_cmp_eq_u32 vcc, 0, v{vH}', 's_nop 11')
    vL, vSum = tmp, tmp + 1
    a(f'v_cndmask_b32 v{vL}, v{O+8}, v{O+12}, vcc')
    a(f'v_add_f32 v{vSum}, |v{O}|, |v{O+1}|')
    for i in range(2, 8):
        a(f'v_add_f32 v{vSum}, v{vSum}, |v{O+i}|')
    a(f'v_add_f32 v{tmp+2}, |v{O+8}|, |v{O+9}|', f'v_add_f32 v{tmp+3}, |v{O+10}|, |v{O+11}|', f'v_add_f32 v{tmp+2}, v{tmp+2}, v{tmp+3}',
      f'v_add_f32 v{tmp+2}, v{tmp+2}, v{vSum}', f'v_add_f32 v{tmp+2}, v{tmp+2}, v{vL}')
    a(f'v_rcp_f32 v{vL}, v{vL}')
    a(f'v_cmp_ngt_f32 vcc, {fbits(2.0**120)}, v{tmp+2}', f's_mov_b32 s{sT0}, {fbits(2.0**-100)}', f'v_cmp_gt_f32 s[36:37], s{sT0}, v{vSum}', 's_nop 1',
      's_or_b64 s[36:37], s[36:37], vcc', f's_cmp_eq_u32 s{sPass}, 0', 's_cselect_b64 s[36:37], s[36:37], 0', 's_cmp_lg_u64 s[36:37], 0',
      's_cbranch_scc1 L_at_slow')
    for i in range(12):
        a(f'v_mul_f32 v{O+i}, v{O+i}, v{vL}')
    for i in range(6):
        a(CVT(O + i, O + 2 * i))
    a(f's_lshl_b32 s{sT0}, s{sQB}, 3', f's_add_u32 s{sT0}, s{sT0}, s{sW}', f's_mul_i32 s{sT0}, s{sT0}, 40960', f's_add_u32 s{sT0}, s{sT0}, {WS_O}',
      f's_lshl_b32 s{sT1}, s{sHead}, 10', f's_add_u32 s{sT1}, s{sT1}, s{sT0}',
      f's_lshl_b32 s{sT2}, s{sHead}, 8', f's_add_u32 s{sT2}, s{sT2}, s{sT0}', f's_add_u32 s{sT2}, s{sT2}, 32768')
    a('v_lshlrev_b32 v1, 4, v0')
    a(f'buffer_store_dwordx4 {v(O,4)}, v1, s[16:19], s{sT1} offen sc1')
    a('s_mov_b32 exec_hi, 0')
    a(f'buffer_store_dwordx2 {v(O+4,2)}, v{vKa}, s[16:19], s{sT2} offen sc1')
    a.stamp(6)
    a('s_waitcnt vmcnt(0)')
    a.stamp(7)
    a('s_barrier')
    a.dump(2, sW)
    a(f's_cmp_lg_u32 s{sW}, 0', 's_cbranch_scc1 L_at_done')
    a('s_mov_b64 exec, 1', f's_lshl_b32 s{sT0}, s{sQB}, 7', 'v_mov_b32 v1, 1', 'v_mov_b32 v2, 0')
    a(f'buffer_atomic_add v1, v2, s[28:31], s{sT0} offen sc1')
    a('s_endpgm')

    a.label('L_at_slow')
    a(f's_mul_i32 s{sKV}, s{sHead}, 163840', f's_add_u32 s{sKV}, s{sKV}, {WS_KV}')
    vVg = tmp + 4
    a(f'v_min_u32 v1, 19, v{vTok}', 'v_lshlrev_b32 v1, 4, v1', f'v_mul_u32_u24 v{vVg}, 320, v{vH}', f'v_add_u32 v{vVg}, v1, v{vVg}')
    a(f'v_mov_b32 v{tmp}, 0xff800000', f's_mov_b32 s{sCnt}, 0')
    def pair_off():
        a(f's_lshr_b32 s{sT0}, s{sCnt}, 1', f's_mul_i32 s{sT0}, s{sT0}, 10240', f's_and_b32 s{sT1}, s{sCnt}, 1', f's_mul_i32 s{sT1}, s{sT1}, 2560',
          f's_add_u32 s{sT0}, s{sT0}, s{sT1}', f's_add_u32 s{sT0}, s{sT0}, s{sKV}', f's_add_u32 s{sT1}, s{sT0}, 5120')
    def ldK():
        for b in range(2):
            a(f'buffer_load_dwordx2 {v(K1[b],2)}, v{vKa}, s[16:19], s{sT0} offen offset:{1024*b}',
              f'buffer_load_dwordx2 {v(K1[b]+2,2)}, v{vKa}, s[16:19], s{sT0} offen offset:{1024*b+512}')
        a(f'buffer_load_dwordx2 {v(K2,2)}, v{vKa}, s[16:19], s{sT0} offen offset:2048')
    a.label('L_at_slow_max')
    pair_off(); ldK()
    a('s_waitcnt vmcnt(0)')
    a(M16(S[0], K1[0], Q1, '0'), M16(S[1], K1[1], Q1, '0'), M8(S[0], K2, Q2[0]), M8(S[1], K2, Q2[1]), 's_nop 12')
    for i in range(16):
        a(f'v_max3_f32 v{tmp}, v{tmp}, v{S[0]+i}, v{S[1]+i}')
    a(f's_add_u32 s{sCnt}, s{sCnt}, 1', f's_cmp_lt_u32 s{sCnt}, 32', 's_cbranch_scc1 L_at_slow_max')
    a(f'v_mov_b32 v{tmp+1}, v{tmp}', 's_nop 1', f'v_permlane32_swap_b32 v{tmp}, v{tmp+1}', 's_nop 1', f'v_max_f32 v{tmp}, v{tmp}, v{tmp+1}')
    for i in range(16):
        a(f'v_sub_f32 v{C+i}, 0, v{tmp}', f'v_mov_b32 v{O+i}, 0')
    a(f'v_subrev_u32 v1, 20, v{vTok}', 'v_cmp_gt_u32 s[38:39], 8, v1', f'v_mov_b32 v{tmp+5}, 0x3f803f80', f's_mov_b32 s{sCnt}, 0')
    a.label('L_at_slow_pv')
    pair_off(); ldK()
    for g in range(4):
        a(f'buffer_load_dwordx4 {v(V[g//2]+4*(g%2),4)}, v{vVg}, s[16:19], s{sT1} offen offset:{640*g}')
    a('s_waitcnt vmcnt(0)')
    a(M16(S[0], K1[0], Q1, C), M16(S[1], K1[1], Q1, C), M8(S[0], K2, Q2[0]), M8(S[1], K2, Q2[1]))
    for b in range(2):
        for i in range(8):
            a(f'v_cndmask_b32 v{V[b]+i}, v{V[b]+i}, v{tmp+5}, s[38:39]')
    for b in range(2):
        for i in range(16):
            a(EXP(S[b] + i))
        a('s_nop 0')
        for i in range(8):
            a(CVT(P + i, S[b] + 2 * i))
        a('s_nop 1', M16(O, V[b], P), M16(O, V[b] + 4, P + 4))
    a(f's_add_u32 s{sCnt}, s{sCnt}, 1', f's_cmp_lt_u32 s{sCnt}, 32', 's_cbranch_scc1 L_at_slow_pv')
    a(f's_mov_b32 s{sPass}, 1', 's_branch L_at_fin')

    a.label('L_at_helper')
    a.vm = []
    R = Regs(2)
    vL16, vL8, vTr = R(), R(), R()
    vW = R(4); vWr = R(4)
    acc = R(96)
    AF = [R(8) for _ in range(3)]
    R(8)
    BF = [R(4) for _ in range(3)]
    tmp = R(8)
    sG, sKVo, sReg, sH0, sH1, sW2, sWo, sOwn, sKH = range(32, 41)
    sM40 = 42
    a(f's_sub_u32 s{sG}, s{sW}, 8', f's_and_b32 s{sOwn}, s{sG}, 1', f's_lshr_b32 s{sKH}, s{sG}, 1')
    a(f's_mov_b32 s{sM40}, -1', f's_mov_b32 s{sM40+1}, 0xff')
    a(f'v_lshlrev_b32 v{vL16}, 4, v0', f'v_lshlrev_b32 v{vL8}, 3, v0')
    a(f's_mul_i32 s{sKVo}, s{sHead}, 163840', f's_mul_i32 s{sT0}, s{sG}, 1280', f's_add_u32 s{sKVo}, s{sKVo}, s{sT0}', f's_add_u32 s{sKVo}, s{sKVo}, {WS_KV}')
    sMK, sMV = 44, 45
    a(f's_add_u32 s{sMK}, s{sT0}, {L_K}', f's_mul_i32 s{sMV}, s{sG}, 1312', f's_add_u32 s{sMV}, s{sMV}, {L_V}')

    def kv(c):
        slot = c % 4
        a(f's_add_u32 m0, s{sMK}, {slot*5120}', f's_add_u32 s{sT0}, s{sKVo}, {c*10240}', f's_mov_b64 exec, s[{sM40}:{sM40+1}]')
        a.vmem(f'buffer_load_dwordx4 v{vL16}, s[16:19], s{sT0} offen lds', ('kv', c))
        a.vmem(f'buffer_load_dwordx4 v{vL16}, s[16:19], s{sT0} offen offset:640 lds', ('kv', c))
        a(f's_add_u32 m0, s{sMV}, {slot*5248}', f's_add_u32 s{sT0}, s{sT0}, 5120', f's_sub_u32 s{sT1}, s{sT0}, 16')
        a.vmem(f'buffer_load_dwordx4 v{vL16}, s[16:19], s{sT0} offen lds', ('kv', c))
        a.vmem(f'buffer_load_dwordx4 v{vL16}, s[16:19], s{sT1} offen offset:656 lds', ('kv', c))
        a('s_mov_b64 exec, -1')

    kv(0)
    a(f'v_and_b32 v1, 31, v0', 'v_mul_u32_u24 v1, 656, v1')
    for i in range(4):
        a(f'v_mov_b32 v{tmp+i}, 0x3f803f80')
    a(f'ds_write_b128 v1, {v(tmp,4)} offset:{L_V+640}')
    a.srd(48, 8, 1728 * 1280)
    a.srd(52, 6, 640 * 1280)
    a.srd(60, 12, 2621440)
    a(f's_cmp_eq_u32 s{sKH}, 0', 's_cselect_b32 s56, s4, s10', 's_cselect_b32 s57, s5, s11', CSEL(58, 2621440, 1280), 's_mov_b32 s59, 0x00020000',
      f's_cselect_b32 s{sT2}, 1280, 0')
    vOut, vRes = R(), R()
    sRow, sCol = 46, 47
    a(f's_lshl_b32 s{sRow}, s{sHead}, 1', f's_add_u32 s{sRow}, s{sRow}, s{sOwn}', f's_mul_i32 s{sCol}, s{sQB}, 160')
    a(f's_lshl_b32 s{sT0}, s{sRow}, 5', 'v_and_b32 v1, 31, v0', f'v_add_u32 v1, s{sT0}, v1', f'v_lshrrev_b32 v{tmp+4}, 5, v0', f'v_lshlrev_b32 v{tmp+4}, 4, v{tmp+4}',
      f'v_add_u32 v{tmp+4}, s{sCol}, v{tmp+4}', f'v_mul_u32_u24 v{vOut}, 1280, v1', f'v_add_u32 v{vOut}, v{vOut}, v{tmp+4}',
      f'v_mul_u32_u24 v{vRes}, s{sT2}, v1', f'v_add_u32 v{vRes}, v{vRes}, v{tmp+4}')
    res = acc + 48
    a(f'v_mul_u32_u24 v1, 205, v0', 'v_lshrrev_b32 v1, 11, v1')
    a(f'v_mul_u32_u24 v{tmp+4}, 10, v1', f'v_sub_u32 v{tmp+4}, v0, v{tmp+4}', f'v_lshlrev_b32 v{tmp+4}, 4, v{tmp+4}', f'v_add_u32 v{tmp+4}, s{sCol}, v{tmp+4}')
    a(f'v_and_b32 v{tmp+5}, 1, v1', 'v_lshrrev_b32 v1, 1, v1')
    a(f'v_lshl_add_u32 v{tmp+6}, v{tmp+5}, 2, v1', f'v_mul_u32_u24 v{tmp+6}, 1280, v{tmp+6}', f'v_add_u32 v{vW}, v{tmp+6}, v{tmp+4}')
    for i, ro in ((1, 2), (2, 8), (3, 10)):
        a(f'v_add_u32 v{vW+i}, {ro*1280-640*i}, v{vW}')
    a(f'v_mul_u32_u24 v{tmp+5}, 20, v{tmp+5}', f'v_add3_u32 v{tmp+6}, v{tmp+5}, v1, 16', f'v_mul_u32_u24 v{tmp+6}, 1280, v{tmp+6}', f'v_add_u32 v{vWr}, v{tmp+6}, v{tmp+4}')
    for i, ro in ((1, 2), (2, 40), (3, 42)):
        a(f'v_add_u32 v{vWr+i}, {ro*1280-640*i}, v{vWr}')
    a(f's_mul_i32 s{sReg}, s{sG}, 25600', f's_add_u32 s{sReg}, s{sReg}, {L_W}')
    a('v_lshrrev_b32 v1, 2, v0', 'v_and_b32 v1, 3, v1', f'v_lshrrev_b32 v{tmp+4}, 5, v0', f'v_lshl_add_u32 v1, v1, 1, v{tmp+4}', 'v_mul_u32_u24 v1, 160, v1')
    a(f'v_and_b32 v{tmp+4}, 16, v0', f'v_lshl_add_u32 v1, v{tmp+4}, 1, v1', f'v_and_b32 v{tmp+4}, 1, v0', f'v_lshl_add_u32 v1, v{tmp+4}, 4, v1',
      f'v_and_b32 v{tmp+4}, 2, v0', f'v_lshl_add_u32 v1, v{tmp+4}, 2, v1', f'v_add_u32 v{vTr}, s{sReg}, v1')
    a(f's_mul_i32 s{sH0}, s{sRow}, {108*1024}', f's_xor_b32 s{sT0}, s{sRow}, 1', f's_mul_i32 s{sH1}, s{sT0}, {108*1024}',
      f's_mul_i32 s{sT0}, s{sG}, {27*1024}', f's_add_u32 s{sT0}, s{sT0}, {WS_H}', f's_add_u32 s{sH0}, s{sH0}, s{sT0}', f's_add_u32 s{sH1}, s{sH1}, s{sT0}')
    a(f's_mul_i32 s{sW2}, s{sG}, {27*16*1280}', f's_mul_i32 s{sWo}, s{sG}, {160*1280}')

    def stage(srd, soff_base, soff_add, voff, slot, tag):
        a(f's_add_u32 m0, s{sReg}, {slot*2560}', f's_add_u32 s{sT0}, s{soff_base}, {soff_add}', f's_mov_b64 exec, s[{sM40}:{sM40+1}]')
        for i in range(4):
            a.vmem(f'buffer_load_dwordx4 v{voff+i}, s[{srd}:{srd+3}], s{sT0} offen offset:{640*i} lds', tag)
        a('s_mov_b64 exec, -1')

    def f2_load(st):
        stage(48, sW2, st * 16 * 1280, vW, st % 3, ('f2', st))
        a(f's_add_u32 s{sT0}, s{sH0}, {st*1024}', f's_add_u32 s{sT1}, s{sH1}, {st*1024}')
        a.vmem(f'buffer_load_dwordx4 {v(AF[st%3],4)}, v{vL16}, s[16:19], s{sT0} offen', ('f2', st))
        a.vmem(f'buffer_load_dwordx4 {v(AF[st%3]+4,4)}, v{vL16}, s[16:19], s{sT1} offen', ('f2', st))

    def wo_load(slot):
        if slot < 8:
            stage(52, sWo, slot * 20 * 1280, vW, slot, ('wo', slot))
        else:
            stage(52, sWo, (slot - 8) * 80 * 1280, vWr, slot, ('wo', slot))

    def trs(addr, off):
        out = []
        for c in range(3):
            out += [f'ds_read_b64_tr_b16 {v(BF[c],2)}, v{addr} offset:{off+64*c}', f'ds_read_b64_tr_b16 {v(BF[c]+2,2)}, v{addr} offset:{off+64*c+1280}']
        return out

    def f2_step(st):
        a.wait_vm(('f2', st))
        a(trs(vTr, (st % 3) * 2560))
        for c in range(3):
            a(f's_waitcnt lgkmcnt({4-2*c})', M16(acc + 16 * c, BF[c], AF[st % 3]), M16(acc + 48 + 16 * c, BF[c], AF[st % 3] + 4))
        if st + 3 < 27:
            f2_load(st + 3)

    a.stamp(2)
    a.wait_vm(('kv', 0))
    a.stamp(3)
    a('s_waitcnt lgkmcnt(0)', 's_barrier')
    kv(1)
    for gi in range(5):
        a.vmem(f'buffer_load_dwordx4 {v(res+4*gi,4)}, v{vRes}, s[56:59], 0 offen offset:{32*gi}', 'res')
    f2_load(0)
    kv(2)
    f2_load(1)
    f2_load(2)
    a.wait_vm('res')
    for gi in range(5):
        for i in range(4):
            a(f'v_lshlrev_b32 v{acc+8*gi+2*i}, 16, v{res+4*gi+i}', f'v_and_b32 v{acc+8*gi+2*i+1}, 0xffff0000, v{res+4*gi+i}')
    for i in range(40, 96):
        a(f'v_mov_b32 v{acc+i}, 0')
    st = 0
    for c in range(16):
        if c >= 1 and c + 2 < 16:
            kv(c + 2)
        if 4 <= c < 10:
            wo_load(c)
        for _ in range(1 if c == 0 else 2):
            if st < 27:
                f2_step(st); st += 1
        if c == 14:
            a(f'v_add_u32 v1, s{sReg}, v{vL16}', 's_nop 10')
            for i in range(10):
                a(f'ds_write_b128 v1, {v(acc+48+4*i,4)} offset:{1024*i}')
            a('s_waitcnt lgkmcnt(0)')
        if c == 15:
            a(f's_xor_b32 s{sT0}, s{sG}, 1', f's_mul_i32 s{sT0}, s{sT0}, 25600', f's_add_u32 s{sT0}, s{sT0}, {L_W}', f'v_add_u32 v1, s{sT0}, v{vL16}')
            for i in range(10):
                a(f'ds_read_b128 {v(acc+48+4*i,4)}, v1 offset:{1024*i}')
            a('s_waitcnt lgkmcnt(0)')
        a.wait_vm(('kv', c + 1))
        if c in (3, 4): a.stamp(4 + 2 * (c - 3))
        a('s_barrier')
        if c in (3, 4): a.stamp(5 + 2 * (c - 3))
    for slot in range(4):
        wo_load(slot)
    for i in range(40):
        a(f'v_add_f32 v{acc+i}, v{acc+i}, v{acc+48+i}')
    OF = acc + 48
    assert OF + 80 <= BF[0]
    sO0, sO1 = sH0, sH1
    a(f's_mul_i32 s{sO0}, s{sRow}, 40960', f's_add_u32 s{sO0}, s{sO0}, {WS_O}', f's_lshl_b32 s{sT0}, s{sKH}, 12', f's_add_u32 s{sO1}, s{sO0}, s{sT0}',
      f's_add_u32 s{sO1}, s{sO1}, 32768', f's_lshl_b32 s{sT0}, s{sKH}, 14', f's_add_u32 s{sO0}, s{sO0}, s{sT0}')
    a(f's_mul_i32 s{sT0}, s{sOwn}, 25600', f'v_subrev_u32 v{vTr}, s{sT0}, v{vTr}')
    a.drain_vm()
    a.stamp(8)
    a('s_barrier')
    a.stamp(9)
    a(f's_cmp_lg_u32 s{sG}, 0', 's_cbranch_scc1 L_at_ready')
    a(f's_lshr_b32 s{sT0}, s{sHead}, 2', f's_lshl_b32 s{sT0}, s{sT0}, 7', 'v_mov_b32 v1, 0', f's_mov_b32 s{sT2}, 0x40000', 's_mov_b64 exec, 1')
    a.label('L_at_poll')
    a(f'buffer_load_dword v{tmp}, v1, s[28:31], s{sT0} offen sc1', f's_sub_u32 s{sT2}, s{sT2}, 1', 's_cbranch_scc1 L_at_ready',
      's_waitcnt vmcnt(0)', f'v_readfirstlane_b32 s{sT1}, v{tmp}', 's_nop 0',
      f's_cmp_lt_u32 s{sT1}, 32', 's_cbranch_scc1 L_at_poll')
    a.label('L_at_ready')
    a('s_mov_b64 exec, -1', 's_barrier')
    a.stamp(10)
    order = []
    for r in range(2):
        for sl in range(10):
            order.append((r, sl))
    for i, (r, sl) in enumerate(order):
        if sl < 8:
            h = 8 * r + sl
            if h % 4 == 0:
                a(f's_add_u32 s{sT0}, s{sO0}, {h*1024}')
            a.vmem(f'buffer_load_dwordx4 {v(OF+4*i,4)}, v{vL16}, s[16:19], s{sT0} offen offset:{(h%4)*1024} sc1', ('o', i))
        else:
            g = 2 * r + sl - 8
            a.vmem(f'buffer_load_dwordx2 {v(OF+4*i,2)}, v{vL8}, s[16:19], s{sO1} offen offset:{g*1024} sc1', ('o', i))
            a.vmem(f'buffer_load_dwordx2 {v(OF+4*i+2,2)}, v{vL8}, s[16:19], s{sO1} offen offset:{g*1024+512} sc1', ('o', i))
    a(trs(vTr, 0))
    for i, (r, sl) in enumerate(order):
        a.wait_vm(('o', i))
        nx = trs(vTr, (i + 1) * 2560) if i + 1 < 20 else None
        for c in range(3):
            a(f's_waitcnt lgkmcnt({4 if nx else 4-2*c})', M16(acc + 16 * c, BF[c], OF + 4 * i))
            if nx:
                a(nx[2 * c:2 * c + 2])
    a.stamp(11)
    a(f's_mul_i32 s{sT0}, s{sG}, 6144', f's_xor_b32 s{sT1}, s{sG}, 2', f's_mul_i32 s{sT1}, s{sT1}, 6144',
      f'v_add_u32 v1, s{sT0}, v{vL16}', f'v_add_u32 v{tmp}, s{sT1}, v{vL16}', f's_cmp_eq_u32 s{sKH}, 0', 's_nop 7', 's_cbranch_scc0 L_at_hi')
    for tag, send, keep in (('lo', (3, 4), (0, 1, 2)), ('hi', (0, 1, 2), (3, 4))):
        if tag == 'hi':
            a.label('L_at_hi')
        for k, gi in enumerate(send):
            a(f'ds_write_b128 v1, {v(acc+8*gi,4)} offset:{2048*k}', f'ds_write_b128 v1, {v(acc+8*gi+4,4)} offset:{2048*k+1024}')
        a('s_waitcnt lgkmcnt(0)', 's_barrier')
        for k, gi in enumerate(keep):
            a(f'ds_read_b128 {v(OF+8*k,4)}, v{tmp} offset:{2048*k}', f'ds_read_b128 {v(OF+8*k+4,4)}, v{tmp} offset:{2048*k+1024}')
        for k, gi in enumerate(keep):
            a(f's_waitcnt lgkmcnt({2*(len(keep)-1-k)})')
            r = acc + 8 * gi
            for e in range(8):
                a(f'v_add_f32 v{r+e}, v{r+e}, v{OF+8*k+e}')
            for e in range(4):
                a(CVT(r + e, r + 2 * e))
            a(f'buffer_store_dwordx4 {v(r,4)}, v{vOut}, s[60:63], 0 offen offset:{32*gi}')
        if Asm.diag:
            a.stamp(12)
            a('s_waitcnt vmcnt(0)')
            a.dump(2, sW)
        a('s_endpgm')
    a.label('L_at_done')
    a('s_endpgm')
    return kernel_header(name) + a.text(), kernel_desc(name, 168, 72)
```

```python
import sys
sys.path.insert(0, 'gen')
from k01 import *
from k2 import *

REF = 'parallel_sum__softmax_full_mha__dense_activation_squared_relu__prompt.s.ref'

def build(path, extra_empty=0):
    head = [l for l in open(REF).read().splitlines() if l.startswith(';') and '@launch' not in l and 'Override launch' not in l and 'grid=ceil' not in l]
    ks = [('ln_kernel', gen_ln, 256, 64, 0), ('gemm1_kernel', gen_gemm1, 256, 768, G1_LDS), ('attn_kernel', gen_attn, 256, 768, K2_LDS)]
    for n, g, gx, bx, lds in ks:
        head.append(f'; @launch kernel={n} grid=({gx},1,1) block=({bx},1,1) lds={lds}')
    for _ in range(extra_empty):
        head.append('; @launch kernel=empty_kernel grid=(256,1,1) block=(64,1,1) lds=0')
    out = '\n'.join(head) + '\n.amdgcn_target "amdgcn-amd-amdhsa--gfx950"\n'
    descs = ''
    for n, g, *_ in ks:
        t, d = g(n)
        out += t; descs += d
    if extra_empty:
        out += kernel_header('empty_kernel') + '    s_endpgm\n'; descs += kernel_desc('empty_kernel', 8, 16)
    open(path, 'w').write(out + descs)

if __name__ == '__main__':
    import os
    Asm.diag = bool(os.environ.get('DIAG'))
    for kv in os.environ.get('OPT', '').split(','):
        if kv:
            k, val = kv.split('=')
            OPT[k] = int(val)
    build(sys.argv[1] if len(sys.argv) > 1 else 'parallel_sum__softmax_full_mha__dense_activation_squared_relu__prompt.s',
          int(sys.argv[2]) if len(sys.argv) > 2 else 0)
```

```python
class Asm:
    def __init__(self):
        self.lines = []
        self.vm = []

    def __call__(self, *ins):
        for s in ins:
            if isinstance(s, (list, tuple)):
                self(*s)
            else:
                self.lines.append('    ' + s)

    def label(self, name):
        self.lines.append(name + ':')

    def raw(self, s):
        self.lines.append(s)

    def c(self, text):
        self.lines.append('    ; ' + text)

    def vmem(self, ins, tag):
        self(ins)
        self.vm.append(tag)

    def wait_vm(self, *tags):
        last = -1
        for i, t in enumerate(self.vm):
            if t in tags:
                last = i
        if last < 0:
            return
        n = len(self.vm) - 1 - last
        assert n <= 63, n
        self(f's_waitcnt vmcnt({n})')
        self.vm = self.vm[last + 1:]

    def drain_vm(self):
        self('s_waitcnt vmcnt(0)')
        self.vm = []

    def srd(self, d, base, nbytes, off=None):
        if off is None:
            self(f's_mov_b32 s{d}, s{base}', f's_mov_b32 s{d+1}, s{base+1}')
        else:
            self(f's_add_u32 s{d}, s{base}, {off}', f's_addc_u32 s{d+1}, s{base+1}, 0')
        self(f's_mov_b32 s{d+2}, {nbytes}', f's_mov_b32 s{d+3}, 0x00020000')

    diag = False
    def stamp(self, i, real=False):
        if Asm.diag:
            self(f's_mem{"real" if real else ""}time s[{70+2*i}:{71+2*i}]')

    def dump(self, kidx, swave, srd=16, base=0x2000000):
        if not Asm.diag:
            return
        self.stamp(14)
        self.stamp(15, True)
        self('s_waitcnt lgkmcnt(0)', 's_mov_b64 exec, -1')
        for i in range(16):
            self(f'v_writelane_b32 v2, s{70+2*i}, {i}')
        self(f's_lshl_b32 s70, s2, 4', f's_add_u32 s70, s70, s{swave}', 's_lshl_b32 s70, s70, 6', f's_add_u32 s70, s70, {base + kidx * 0x40000}')
        self('v_mbcnt_lo_u32_b32 v1, -1, 0', 'v_lshlrev_b32 v1, 2, v1', 's_mov_b64 exec, 0xffff', f's_mov_b32 s{srd+2}, -1')
        self(f'buffer_store_dword v2, v1, s[{srd}:{srd+3}], s70 offen')

    def text(self):
        return '\n'.join(self.lines) + '\n'


def v(a, n=1):
    return f'v{a}' if n == 1 else f'v[{a}:{a+n-1}]'

def s(a, n=1):
    return f's{a}' if n == 1 else f's[{a}:{a+n-1}]'

def M16(d, a, b, c=None):
    cs = v(d, 16) if c is None else (c if isinstance(c, str) else v(c, 16))
    return f'v_mfma_f32_32x32x16_bf16 {v(d,16)}, {v(a,4)}, {v(b,4)}, {cs}'

def M8(d, a, b):
    return f'v_mfma_f32_32x32x8_bf16 {v(d,16)}, {v(a,2)}, {v(b,2)}, {v(d,16)}'

def CVT(d, a, b=None):
    return f'v_cvt_pk_bf16_f32 v{d}, v{a}, v{a+1 if b is None else b}'

def CSEL(d, t, f):
    return [f's_mov_b32 s{d}, {f}', f's_cmov_b32 s{d}, {t}']

def EXP(r):
    return f'v_exp_f32 v{r}, v{r}'


class Regs:
    def __init__(self, start=0, limit=168):
        self.n = start
        self.limit = limit
    def __call__(self, cnt=1, align=None):
        al = align or (2 if cnt > 1 else 1)
        self.n = (self.n + al - 1) // al * al
        r = self.n
        self.n += cnt
        assert self.n <= self.limit, (self.n, self.limit)
        return r


def kernel_header(name):
    return f'.text\n.globl {name}\n.p2align 8\n.type {name},@function\n{name}:\n'

def kernel_desc(name, vgpr, sgpr=96):
    if Asm.diag:
        sgpr = 102
    acc = (vgpr + 3) // 4 * 4
    return f'''.section .rodata,"a"
.p2align 6
.amdhsa_kernel {name}
  .amdhsa_next_free_vgpr {vgpr}
  .amdhsa_next_free_sgpr {sgpr}
  .amdhsa_accum_offset {acc}
  .amdhsa_group_segment_fixed_size 0
  .amdhsa_kernarg_size 88
  .amdhsa_user_sgpr_count 2
  .amdhsa_user_sgpr_kernarg_segment_ptr 1
  .amdhsa_system_sgpr_workgroup_id_x 1
.end_amdhsa_kernel
'''
```

```python
from asmlib import *
import struct, math

def fbits(x):
    return hex(struct.unpack('<I', struct.pack('<f', x))[0])

WS_Q   = 0x000000
WS_KV  = 0x280000
WS_H   = 0x780000
WS_O   = 0xE40000
WS_RS  = 0x10C0000
WS_CS  = 0x10C8000
WS_F1  = 0x10E8000
WS_FH  = 0x10E9000
WS_FO  = 0x10EA000
WS_EP  = 0x10EB000
WS_END = 0x10EC000

L_A, L_B = 0, 49152
L_W = 0
L_K = 102400
L_V = 122880
L_MEAN, L_RSTD, L_CS, L_BIAS = 143872, 144384, 144896, 145920
L_TR = 146432
LDS_BYTES = 150528
FAR = 0x30000

QSCALE = 20 ** -0.5 * math.log2(math.e)
MAXOFF = 80.0
SPIN = 0x20000
OPT = {}

sW, sRB, sCG, sHead, sQB, sTag, sT0, sT1, sT2, sT3 = range(28, 38)
WS = 's[24:27]'


def gen(name):
    a = Asm()
    bar = lambda: a('s_barrier')

    a('s_cmp_ge_u32 s2, 256', 's_cbranch_scc1 L_done')
    a.stamp(0); a.stamp(1, True)
    a('s_load_dwordx2 s[22:23], s[0:1], 80', 's_load_dwordx8 s[4:11], s[0:1], 0', 's_load_dwordx8 s[12:19], s[0:1], 32', 's_load_dwordx2 s[20:21], s[0:1], 64')
    a(f's_lshr_b32 s{sT0}, s2, 3',
      f's_and_b32 s{sRB}, s2, 1', f's_lshl_b32 s{sRB}, s{sRB}, 3', f's_and_b32 s{sT1}, s{sT0}, 7', f's_add_u32 s{sRB}, s{sRB}, s{sT1}',
      f's_lshr_b32 s{sCG}, s2, 1', f's_and_b32 s{sCG}, s{sCG}, 3', f's_lshl_b32 s{sCG}, s{sCG}, 2', f's_lshr_b32 s{sT1}, s2, 6', f's_add_u32 s{sCG}, s{sCG}, s{sT1}',
      f's_and_b32 s{sHead}, s2, 7', f's_lshl_b32 s{sHead}, s{sHead}, 2', f's_and_b32 s{sT0}, s{sT0}, 3', f's_add_u32 s{sHead}, s{sHead}, s{sT0}',
      f's_lshr_b32 s{sQB}, s2, 5')
    a('v_lshrrev_b32 v1, 6, v0', 'v_and_b32 v0, 63, v0', f'v_readfirstlane_b32 s{sW}, v1')
    a('s_waitcnt lgkmcnt(0)')
    a(f's_add_u32 s10, s22, {WS_EP}', 's_addc_u32 s11, s23, 0', f's_load_dword s{sTag}, s[10:11], 0')
    a.srd(24, 22, WS_END)
    a(f's_cmp_ge_u32 s{sW}, 8', 's_cbranch_scc1 L_helper', f's_cmp_lt_u32 s{sW}, 4', 's_cbranch_scc1 L_x')

    def tag():
        a('s_waitcnt lgkmcnt(0)', f's_add_u32 s{sTag}, s{sTag}, 0x9e3779b1')

    sL, sOA, sOB, sSlot, sMA, sMB, sCnt, sBstep = range(40, 48)
    XA, WB = 48, 52
    vA1, vB1, vA2, vB2 = 8, 12, 16, 20
    a(f's_sub_u32 s{sL}, s{sW}, 4')
    a(f's_cmp_lt_u32 s{sCG}, 15', f's_cselect_b32 s{XA+2}, 2621440, 0', f's_cselect_b32 s{WB+2}, {640*3840}, 0')
    a(f's_mov_b32 s{XA}, s4', f's_mov_b32 s{XA+1}, s5', f's_mov_b32 s{XA+3}, 0x00020000',
      f's_mov_b32 s{WB}, s6', f's_mov_b32 s{WB+1}, s7', f's_mov_b32 s{WB+3}, 0x00020000')
    a(f's_lshl_b32 s{sMA}, s{sL}, 12', f's_add_u32 s{sMB}, s{sMA}, {L_B}')
    a(f's_mul_i32 s{sOA}, s{sRB}, {128*1280}', f's_lshl_b32 s{sOB}, s{sCG}, 8', f's_mov_b32 s{sBstep}, {64*3840}', f's_mov_b32 s{sSlot}, 0')
    a(f's_lshr_b32 s{sT0}, s{sL}, 1', f's_lshl_b32 s{sT0}, s{sT0}, 6', f's_and_b32 s{sT1}, s{sL}, 1', f's_add_u32 s{sT0}, s{sT0}, s{sT1}',
      f's_lshl_b32 s{sT1}, s{sL}, 5', f's_cmp_lt_u32 s{sCG}, 10', f's_cselect_b32 s{sT0}, s{sT0}, s{sT1}', CSEL(sT2, 2560, 1280))
    a('v_lshrrev_b32 v1, 3, v0', 'v_lshrrev_b32 v2, 4, v0', 'v_and_b32 v3, 7, v0', 'v_xor_b32 v3, v3, v2', 'v_lshlrev_b32 v3, 4, v3', 'v_xor_b32 v4, 64, v3')
    a(f's_mul_i32 s{sT0}, s{sT0}, 1280', f'v_mul_u32_u24 v5, s{sT2}, v1', f'v_add_u32 v5, s{sT0}, v5', f's_lshl_b32 s{sT2}, s{sT2}, 3', f's_sub_u32 s{sT2}, s{sT2}, 1024')
    a(f'v_add_u32 v{vA1}, v5, v3', f'v_add3_u32 v{vA1+1}, v5, v4, s{sT2}', f's_lshl_b32 s{sT2}, s{sT2}, 1',
      f'v_add_u32 v{vA1+2}, s{sT2}, v{vA1}', f'v_add_u32 v{vA1+3}, s{sT2}, v{vA1+1}')
    a('v_and_b32 v6, 15, v0', 'v_lshlrev_b32 v7, 2, v2', 'v_xor_b32 v6, v6, v7', 'v_lshlrev_b32 v6, 4, v6', f's_lshl_b32 s{sT0}, s{sL}, 4', f'v_add_u32 v2, s{sT0}, v2')
    a('v_mul_u32_u24 v7, 3840, v2', f'v_add_u32 v{vB1}, v7, v6')
    for i in range(1, 4):
        a(f'v_add_u32 v{vB1+i}, {i*(4*3840-1024)}, v{vB1}')

    def issue(vA, vB):
        a(f's_add_u32 m0, s{sMA}, s{sSlot}', f's_add_u32 s{sT0}, s{sMB}, s{sSlot}')
        for i in range(4):
            a(f'buffer_load_dwordx4 v{vA+i}, s[{XA}:{XA+3}], s{sOA} offen offset:{1024*i} lds')
        a(f's_mov_b32 m0, s{sT0}', f's_add_u32 s{sOA}, s{sOA}, 128')
        for i in range(4):
            a(f'buffer_load_dwordx4 v{vB+i}, s[{WB}:{WB+3}], s{sOB} offen offset:{1024*i} lds')
        a(f's_add_u32 s{sOB}, s{sOB}, s{sBstep}', f's_add_u32 s{sSlot}, s{sSlot}, 16384', f's_cmp_eq_u32 s{sSlot}, 49152', f's_cselect_b32 s{sSlot}, 0, s{sSlot}')

    issue(vA1, vB1)
    issue(vA1, vB1)
    a.stamp(2)
    a(f'v_add_u32 v5, s{sT1}, v1', 'v_mul_u32_u24 v5, 1280, v5', f'v_add_u32 v{vA2}, v5, v3', f'v_add_u32 v{vA2+1}, v5, v4',
      f'v_add_u32 v{vA2+1}, {10240-1024}, v{vA2+1}', f'v_add_u32 v{vA2+2}, {2*(10240-1024)}, v{vA2}', f'v_add_u32 v{vA2+3}, {2*(10240-1024)}, v{vA2+1}')
    a('v_mul_u32_u24 v7, 3456, v2', f'v_add_u32 v{vB2}, v7, v6')
    for i in range(1, 4):
        a(f'v_add_u32 v{vB2+i}, {i*(4*3456-1024)}, v{vB2}')
    tag()
    a(f's_mov_b32 s{sCnt}, 8')
    a.label('L_z1')
    a('s_waitcnt vmcnt(8)', 's_barrier')
    issue(vA1, vB1)
    a(f's_sub_u32 s{sCnt}, s{sCnt}, 1', f's_cmp_lg_u32 s{sCnt}, 0', 's_cbranch_scc1 L_z1')
    a(f's_cmp_lt_u32 s{sCG}, 14', f's_cselect_b32 s{XA+2}, 2621440, 0', f's_cselect_b32 s{WB+2}, {640*3456}, 0',
      f's_mov_b32 s{WB}, s12', f's_mov_b32 s{WB+1}, s13',
      f's_sub_u32 s{sOA}, s{sOA}, 1280', f's_lshl_b32 s{sOB}, s{sCG}, 8', f's_mov_b32 s{sBstep}, {64*3456}', f's_mov_b32 s{sCnt}, 10')
    a.stamp(3)
    a.label('L_z2')
    a('s_waitcnt vmcnt(8)', 's_barrier')
    issue(vA2, vB2)
    a(f's_sub_u32 s{sCnt}, s{sCnt}, 1', f's_cmp_lg_u32 s{sCnt}, 0', 's_cbranch_scc1 L_z2')
    a('s_waitcnt vmcnt(8)', 's_barrier', 's_waitcnt vmcnt(0)', 's_barrier')
    a('s_branch L_attn')

    R = Regs(2)
    vH, vTok = R(), R()
    vAa = R(4); vBa = R(2)
    F = [(R(8), R(8)), (R(8), R(8))]
    FR = F[0][0]
    acc = R(64)
    tmp = R(16)
    sM, sN, sDelta, sSlotC, sCntC, sOff, sHS, sScale = range(40, 48)

    def gemm_setup(wave_base, slot0):
        a(f's_sub_u32 s{sN}, s{sW}, {wave_base}', f's_and_b32 s{sM}, s{sN}, 1', f's_lshr_b32 s{sN}, s{sN}, 1')
        a(f'v_lshrrev_b32 v{vH}, 5, v0', f'v_and_b32 v{vTok}, 31, v0')
        a(f'v_lshrrev_b32 v1, 1, v{vTok}', 'v_and_b32 v1, 7, v1', f'v_xor_b32 v1, v1, v{vH}')
        a(f's_lshl_b32 s{sT0}, s{sM}, 13', f's_add_u32 s{sT0}, s{sT0}, {L_A+16384*slot0}', f'v_lshlrev_b32 v{tmp}, 7, v{vTok}', f'v_add_u32 v{tmp}, s{sT0}, v{tmp}')
        for st in range(4):
            a(f'v_xor_b32 v{tmp+1}, {2*st}, v1', f'v_lshl_add_u32 v{vAa+st}, v{tmp+1}, 4, v{tmp}')
        a('v_lshrrev_b32 v1, 2, v0', 'v_and_b32 v1, 3, v1')
        a(f'v_lshl_add_u32 v{tmp}, v{vH}, 3, v1', f'v_lshlrev_b32 v{tmp}, 8, v{tmp}')
        a(f'v_and_b32 v{tmp+1}, 3, v0', f'v_lshl_add_u32 v{tmp}, v{tmp+1}, 3, v{tmp}')
        a(f'v_and_b32 v{tmp+1}, 16, v0', f'v_lshl_add_u32 v{tmp}, v{tmp+1}, 1, v{tmp}', f'v_add_u32 v{tmp}, {L_B+16384*slot0}, v{tmp}')
        a(f's_lshl_b32 s{sT0}, s{sN}, 1', f'v_xor_b32 v1, s{sT0}, v1')
        a(f'v_lshl_add_u32 v{vBa}, v1, 6, v{tmp}', 'v_xor_b32 v1, 1, v1', f'v_lshl_add_u32 v{vBa+1}, v1, 6, v{tmp}')
        for i in range(64):
            a(f'v_mov_b32 v{acc+i}, 0')
        a(f's_mov_b32 s{sSlotC}, {slot0}', f's_mov_b32 s{sCntC}, 10')

    def reads(st, f):
        FA, FB = F[f]
        return [f'ds_read_b128 {v(FA,4)}, v{vAa+st}',
                f'ds_read_b64_tr_b16 {v(FB,2)}, v{vBa} offset:{4096*st}',
                f'ds_read_b64_tr_b16 {v(FB+2,2)}, v{vBa} offset:{4096*st+1024}',
                f'ds_read_b64_tr_b16 {v(FB+4,2)}, v{vBa+1} offset:{4096*st}',
                f'ds_read_b64_tr_b16 {v(FB+6,2)}, v{vBa+1} offset:{4096*st+1024}',
                f'ds_read_b128 {v(FA+4,4)}, v{vAa+st} offset:4096']

    def mfmas(f, swap):
        FA, FB = F[f]
        out = []
        for t, u in ((0, 0), (0, 1), (1, 1), (1, 0)):
            x, w = FA + 4 * t, FB + 4 * u
            out.append(M16(acc + 32 * t + 16 * u, x, w) if swap else M16(acc + 32 * t + 16 * u, w, x))
        return out

    def mainloop(tagname, swap, final_barrier):
        bar()
        a.stamp(3)
        a(reads(0, 0))
        a.label(f'L_loop_{tagname}')
        for st in range(3):
            m = mfmas(st & 1, swap); rd = reads(st + 1, (st + 1) & 1)
            a('s_waitcnt lgkmcnt(3)', m[0], rd[0:3], 's_waitcnt lgkmcnt(4)', m[1], rd[3:6], 's_waitcnt lgkmcnt(6)', m[2])
            if st == 1:
                a(f's_add_u32 s{sSlotC}, s{sSlotC}, 1', f's_cmp_eq_u32 s{sSlotC}, 3', CSEL(sDelta, -32768, 16384), f's_cselect_b32 s{sSlotC}, 0, s{sSlotC}')
            if st == 2:
                for r in (vAa, vBa, vBa + 1):
                    a(f'v_add_u32 v{r}, s{sDelta}, v{r}')
            a(m[3])
            if st == 2:
                a(f's_sub_u32 s{sCntC}, s{sCntC}, 1')
                for r in (vAa + 1, vAa + 2, vAa + 3):
                    a(f'v_add_u32 v{r}, s{sDelta}, v{r}')
        m = mfmas(1, swap); rd = reads(0, 0)
        a(f's_cmp_eq_u32 s{sCntC}, 0', 's_waitcnt lgkmcnt(0)', f's_cbranch_scc1 L_last_{tagname}')
        a('s_barrier', m[0], rd[0:3], m[1], rd[3:6], m[2], m[3], f's_branch L_loop_{tagname}')
        a.label(f'L_last_{tagname}')
        if final_barrier:
            bar()
        a(m)
        a.stamp(4)

    a.label('L_x')
    a(f's_cmp_lt_u32 s{sCG}, 15', 's_cbranch_scc1 L_x_act')
    tag()
    for _ in range(20):
        bar()
    a('s_branch L_attn')
    a.label('L_x_act')
    a('s_setprio 1')
    gemm_setup(0, 0)
    tag()
    a.stamp(2)
    a(f's_cmp_ge_u32 s{sCG}, 10', 's_cbranch_scc1 L_x_v')
    mainloop('qk', False, True)
    a('s_setprio 0')
    vMean, vRs = tmp, tmp + 2
    a(f's_lshl_b32 s{sT0}, s{sM}, 8', f'v_lshl_add_u32 v1, v{vTok}, 3, s{sT0}')
    a(f'ds_read_b64 {v(vMean,2)}, v1 offset:{L_MEAN - 0x20000 if False else 0}' if False else f'v_add_u32 v1, {L_MEAN}, v1')
    a(f'ds_read_b64 {v(vMean,2)}, v1', f'ds_read_b64 {v(vRs,2)}, v1 offset:{L_RSTD-L_MEAN}')
    a(f's_lshl_b32 s{sT0}, s{sN}, 8', f's_add_u32 s{sT0}, s{sT0}, {L_CS}', f'v_lshl_add_u32 v1, v{vH}, 4, s{sT0}')
    for i in range(8):
        a(f'ds_read_b128 {v(FR+4*i,4)}, v1 offset:{32*i}')
    a(f's_cmp_lt_u32 s{sCG}, 5',
      CSEL(sHS, 81920, 163840), f's_cselect_b32 s{sScale}, {fbits(QSCALE)}, 1.0',
      CSEL(sT0, 5120, 10240), CSEL(sOff, WS_Q, WS_KV), f's_cselect_b32 s{sT1}, 0, 5')
    a(f's_mul_i32 s{sT0}, s{sT0}, s{sRB}', f's_add_u32 s{sOff}, s{sOff}, s{sT0}',
      f's_mul_i32 s{sT0}, s{sM}, 2560', f's_add_u32 s{sOff}, s{sOff}, s{sT0}')
    a(f's_sub_u32 s{sT1}, s{sCG}, s{sT1}', f's_lshl_b32 s{sT1}, s{sT1}, 1', f's_add_u32 s{sT1}, s{sT1}, s{sN}', f's_lshl_b32 s{sT1}, s{sT1}, 4')
    a(f'v_add_u32 v1, s{sT1}, v{vH}', f'v_lshlrev_b32 v{vTok}, 4, v{vTok}', 's_waitcnt lgkmcnt(8)')
    a(f'v_mul_f32 v{vRs}, s{sScale}, v{vRs}', f'v_mul_f32 v{vRs+1}, s{sScale}, v{vRs+1}')
    t0, t1, t2 = tmp + 4, tmp + 5, tmp + 6
    for i in range(8):
        u, q = i // 4, i % 4
        pk = tmp + 8 + 4 * (i & 1)
        a(f'v_add_u32 v{t0}, {2*i}, v1', f'v_mul_u32_u24 v{t1}, 205, v{t0}', f'v_lshrrev_b32 v{t1}, 10, v{t1}')
        a(f'v_mul_u32_u24 v{t2}, 5, v{t1}', f'v_sub_u32 v{t0}, v{t0}, v{t2}')
        a(f'v_mul_u32_u24 v{t1}, s{sHS}, v{t1}', f'v_lshl_add_u32 v{t1}, v{t0}, 9, v{t1}', f'v_add_u32 v{t1}, v{t1}, v{vTok}')
        if i == 0:
            a('s_waitcnt lgkmcnt(0)')
        for t in range(2):
            r = acc + 32 * t + 16 * u + 4 * q
            for e in range(4):
                a(f'v_fma_f32 v{r+e}, -v{vMean+t}, v{FR+4*i+e}, v{r+e}')
            for e in range(4):
                a(f'v_mul_f32 v{r+e}, v{vRs+t}, v{r+e}')
            a(CVT(pk + 2 * t, r), CVT(pk + 2 * t + 1, r + 2))
        a(f'buffer_store_dwordx4 {v(pk,4)}, v{t1}, {WS}, s{sOff} offen sc1')
        if i in (2, 5):
            bar()
    a('s_branch L_x_sig')
    a.label('L_x_v')
    mainloop('v', True, True)
    a('s_setprio 0')
    a(f's_lshl_b32 s{sT0}, s{sN}, 8', f's_add_u32 s{sT0}, s{sT0}, {L_CS}', f'v_lshl_add_u32 v1, v{vTok}, 2, s{sT0}')
    a(f'ds_read2_b32 {v(tmp,2)}, v1 offset0:0 offset1:32')
    vSt = tmp + 2
    a(f's_lshl_b32 s{sT0}, s{sM}, 8', f's_add_u32 s{sT0}, s{sT0}, {L_MEAN}', f'v_lshl_add_u32 v{vSt}, v{vH}, 4, s{sT0}')
    def v_stats(t):
        for q in range(4):
            a(f'ds_read_b128 {v(FR+4*q,4)}, v{vSt} offset:{128*t+32*q}', f'ds_read_b128 {v(FR+16+4*q,4)}, v{vSt} offset:{L_RSTD-L_MEAN+128*t+32*q}')
    v_stats(0)
    a(f's_mul_i32 s{sOff}, s{sRB}, 10240', f's_mul_i32 s{sT0}, s{sM}, 2560', f's_add_u32 s{sOff}, s{sOff}, s{sT0}', f's_add_u32 s{sOff}, s{sOff}, {WS_KV+5120}')
    a(f's_sub_u32 s{sT1}, s{sCG}, 10', f's_lshl_b32 s{sT1}, s{sT1}, 7', f's_lshl_b32 s{sT0}, s{sN}, 6', f's_add_u32 s{sT1}, s{sT1}, s{sT0}',
      f'v_add_u32 v1, s{sT1}, v{vTok}', f'v_mul_u32_u24 v{vH}, 320, v{vH}')
    vVo = tmp + 8
    for u in range(2):
        a(f'v_add_u32 v{t0}, {32*u}, v1', f'v_mul_u32_u24 v{t1}, 3277, v{t0}', f'v_lshrrev_b32 v{t1}, 16, v{t1}')
        a(f'v_mul_u32_u24 v{t2}, 20, v{t1}', f'v_sub_u32 v{t0}, v{t0}, v{t2}')
        a(f'v_mul_u32_u24 v{t1}, 163840, v{t1}', f'v_lshl_add_u32 v{t1}, v{t0}, 4, v{t1}', f'v_add_u32 v{vVo+u}, v{t1}, v{vH}')
    n = 0
    for t in range(2):
        a('s_waitcnt lgkmcnt(0)')
        for u in range(2):
            for ap in range(2):
                r = acc + 32 * t + 16 * u + 8 * ap
                for e in range(8):
                    a(f'v_fma_f32 v{r+e}, -v{tmp+u}, v{FR+8*ap+e}, v{r+e}')
                for e in range(8):
                    a(f'v_mul_f32 v{r+e}, v{FR+16+8*ap+e}, v{r+e}')
                if t == 0 and u == 1 and ap == 1:
                    v_stats(1)
                for e in range(4):
                    a(CVT(r + e, r + 2 * e))
                a(f'buffer_store_dwordx4 {v(r,4)}, v{vVo+u}, {WS}, s{sOff} offen offset:{640*(2*t+ap)} sc1')
                if n in (2, 6):
                    bar()
                n += 1
    a.label('L_x_sig')
    a.stamp(5)
    bar(); bar()
    a('s_waitcnt vmcnt(0)')
    a.stamp(6)
    bar()
    a(f's_cmp_lg_u32 s{sW}, 0', 's_cbranch_scc1 L_x_nosig')
    a(f's_lshl_b32 s{sT0}, s{sCG}, 7', f's_lshl_b32 s{sT1}, s{sRB}, 2', f's_add_u32 s{sT0}, s{sT0}, s{sT1}', f's_add_u32 s{sT0}, s{sT0}, {WS_F1}',
      f'v_mov_b32 v1, s{sTag}', 'v_mov_b32 v2, 0', 's_mov_b64 exec, 1', f'buffer_store_dword v1, v2, {WS}, s{sT0} offen sc1', 's_mov_b64 exec, -1')
    a.label('L_x_nosig')
    for _ in range(4):
        bar()

    a.label('L_attn')
    a.stamp(7)
    R = Regs(2)
    vH, vTokA, vVa, vK2a = R(), R(), R(), R()
    vKa = [R(), R()]
    Q1 = R(4); Q2 = [R(2), R(2)]
    S = [R(16), R(16)]
    P = R(8); O = R(16); C = R(16)
    K1 = [R(4), R(4)]; V = [R(8), R(8)]; K2 = R(2)
    tp = R(8)
    sCnt, sKV, sPass, sM40 = 40, 41, 42, 44
    a(f's_mul_i32 s{sT0}, s{sHead}, 20', f's_add_u32 s{sT1}, s{sT0}, 19', f's_lshr_b32 s{sT0}, s{sT0}, 7', f's_lshr_b32 s{sT1}, s{sT1}, 7',
      f's_sub_u32 s{sT1}, s{sT1}, s{sT0}', f's_lshl_b32 s{sT1}, s{sT1}, 7', f's_lshl_b32 s{sT0}, s{sT0}, 7', f's_add_u32 s{sT0}, s{sT0}, {WS_F1}')
    a(f'v_lshrrev_b32 v{vH}, 5, v0', f'v_and_b32 v{vTokA}, 31, v0')
    a('v_and_b32 v1, 15, v0', 'v_lshlrev_b32 v1, 2, v1', f'v_bfe_u32 v{tp}, v0, 4, 1', f'v_mul_u32_u24 v{tp}, s{sT1}, v{tp}', f'v_add_u32 v1, v1, v{tp}',
      f'v_mul_u32_u24 v{tp}, 640, v{vH}', f'v_add_u32 v{tp}, v{tp}, v1', f's_mov_b32 s{sT2}, {SPIN}')
    a.label('L_poll1')
    a(f'buffer_load_dword v{tp+1}, v{tp}, {WS}, s{sT0} offen offset:640 sc1', f'buffer_load_dword v{tp+2}, v1, {WS}, s{sT0} offen sc1',
      f's_sub_u32 s{sT2}, s{sT2}, 1', 's_cbranch_scc1 L_poll1_done', 's_waitcnt vmcnt(0)',
      f'v_cmp_ne_u32 vcc, s{sTag}, v{tp+1}', f'v_cmp_ne_u32 s[46:47], s{sTag}, v{tp+2}', 's_nop 1', 's_or_b64 vcc, vcc, s[46:47]', 's_cbranch_scc1 L_poll1')
    a.label('L_poll1_done')
    a.stamp(8)
    a(f's_mov_b32 s{sM40}, -1', f's_mov_b32 s{sM40+1}, 0xff', 'v_lshlrev_b32 v1, 4, v0')
    a(f's_mul_i32 s{sKV}, s{sHead}, 163840', f's_add_u32 s{sKV}, s{sKV}, {WS_KV}',
      f's_and_b32 s{sT0}, s{sW}, 3', f's_lshr_b32 s{sT1}, s{sW}, 2', f's_mul_i32 s{sT2}, s{sT1}, 10240', f's_mul_i32 s{sT3}, s{sT0}, 1280',
      f's_add_u32 s{sT2}, s{sT2}, s{sT3}', f's_add_u32 s{sT2}, s{sT2}, s{sKV}',
      f's_mul_i32 s{sT3}, s{sW}, 1280', f's_add_u32 m0, s{sT3}, {L_K}', f's_mov_b64 exec, s[{sM40}:{sM40+1}]')
    a(f'buffer_load_dwordx4 v1, {WS}, s{sT2} offen sc1 lds', f'buffer_load_dwordx4 v1, {WS}, s{sT2} offen offset:640 sc1 lds')
    a(f's_mul_i32 s{sT3}, s{sW}, 1312', f's_add_u32 m0, s{sT3}, {L_V}', f's_add_u32 s{sT2}, s{sT2}, 5120', f's_sub_u32 s{sT3}, s{sT2}, 16')
    a(f'buffer_load_dwordx4 v1, {WS}, s{sT2} offen sc1 lds', f'buffer_load_dwordx4 v1, {WS}, s{sT3} offen offset:656 sc1 lds', 's_mov_b64 exec, -1')
    a(f's_lshl_b32 s{sT0}, s{sHead}, 5', f's_lshl_b32 s{sT1}, s{sQB}, 2', f's_add_u32 s{sT0}, s{sT0}, s{sT1}', f's_lshr_b32 s{sT1}, s{sW}, 1',
      f's_add_u32 s{sT0}, s{sT0}, s{sT1}', f's_mul_i32 s{sT0}, s{sT0}, 2560', f's_and_b32 s{sT1}, s{sW}, 1', f's_lshl_b32 s{sT1}, s{sT1}, 8',
      f's_add_u32 s{sT0}, s{sT0}, s{sT1}', f's_add_u32 s{sT0}, s{sT0}, {WS_Q}')
    vKg = tp + 6
    a(f'v_lshlrev_b32 v1, 3, v{vTokA}', f'v_lshl_add_u32 v{vKg}, v{vH}, 9, v1')
    a(f'buffer_load_dwordx2 {v(Q1,2)}, v{vKg}, {WS}, s{sT0} offen sc1',
      f'buffer_load_dwordx2 {v(Q1+2,2)}, v{vKg}, {WS}, s{sT0} offen offset:1024 sc1',
      f'buffer_load_dwordx2 {v(tp,2)}, v1, {WS}, s{sT0} offen offset:2048 sc1')
    a(f'v_add_u32 v{vKa[0]}, {L_K}, v{vKg}', f'v_add_u32 v{vKa[1]}, {L_K+256}, v{vKg}', f'v_lshlrev_b32 v{vK2a}, 3, v0', f'v_add_u32 v{vK2a}, {L_K+2048}, v{vK2a}')
    a(f'v_lshlrev_b32 v1, 4, v{vTokA}', f'v_mul_u32_u24 v{tp+2}, 320, v{vH}', f'v_add_u32 v1, v1, v{tp+2}', f'v_add_u32 v1, {L_V}, v1')
    a(f'v_cmp_eq_u32 vcc, 20, v{vTokA}', f'v_mov_b32 v{tp+2}, {L_V+640}', f'v_mov_b32 v{tp+3}, {FAR}', f'v_cndmask_b32 v1, v1, v{tp+2}, vcc',
      f'v_cmp_lt_u32 vcc, 20, v{vTokA}', 's_nop 1', f'v_cndmask_b32 v{vVa}, v1, v{tp+3}, vcc')
    for i in range(16):
        a(f'v_mov_b32 v{O+i}, 0')
    for i in range(4):
        a(f'v_mov_b32 v{P+4+i}, 0', f'v_mov_b32 v{V[1]+4+i}, 0')
    a(f'v_cmp_eq_u32 vcc, 0, v{vH}', 's_waitcnt vmcnt(0)', 's_nop 0')
    for i in range(2):
        a(f'v_cndmask_b32 v{Q2[0]+i}, 0, v{tp+i}, vcc')
    a(f'v_cmp_eq_u32 vcc, 1, v{vH}', 's_nop 1')
    for i in range(2):
        a(f'v_cndmask_b32 v{Q2[1]+i}, 0, v{tp+i}, vcc')

    def rdK1(dst, blk):
        o = (blk // 2 % 8) * 5
        return f'ds_read2st64_b64 {v(dst,4)}, v{vKa[blk % 2]} offset0:{o} offset1:{o+2}'
    def rdK2(pair):
        return f'ds_read_b64 {v(K2,2)}, v{vK2a} offset:{(pair % 8) * 2560}'
    def rdV(dst, blk, half):
        return f'ds_read_b128 {v(dst+4*half,4)}, v{vVa} offset:{((blk % 16) * 2 + half) * 656}'

    a.stamp(9)
    bar()
    a.stamp(10)
    a(rdK1(K1[0], 0), rdK1(K1[1], 1), rdK2(0), rdV(V[0], 0, 0), rdV(V[0], 0, 1), 's_waitcnt lgkmcnt(2)')
    a(M16(S[0], K1[0], Q1, '0'), M16(S[1], K1[1], Q1, '0'), M8(S[0], K2, Q2[0]), M8(S[1], K2, Q2[1]), 's_nop 10')
    a(f'v_max3_f32 v{tp}, v{S[0]}, v{S[0]+1}, v{S[0]+2}')
    for i in range(3, 15, 2):
        a(f'v_max3_f32 v{tp}, v{tp}, v{S[0]+i}, v{S[0]+i+1}')
    a(f'v_max3_f32 v{tp}, v{tp}, v{S[0]+15}, v{S[1]}')
    for i in range(1, 15, 2):
        a(f'v_max3_f32 v{tp}, v{tp}, v{S[1]+i}, v{S[1]+i+1}')
    a(f'v_max_f32 v{tp}, v{tp}, v{S[1]+15}', f'v_mov_b32 v{tp+1}, v{tp}', 's_nop 1', f'v_permlane32_swap_b32 v{tp}, v{tp+1}', 's_nop 1')
    a(f'v_max_f32 v{tp}, v{tp}, v{tp+1}', f'v_sub_f32 v{C}, {fbits(-MAXOFF)}, v{tp}')
    for i in range(1, 16):
        a(f'v_mov_b32 v{C+i}, v{C}')
    a('s_nop 1', M16(S[0], K1[0], Q1, C), M8(S[0], K2, Q2[0]), f's_mov_b32 s{sCnt}, 4', 's_nop 8')
    a.stamp(11)
    a.raw('.p2align 3')
    a.label('L_at_loop')
    for b in range(16):
        cur, nxt = S[b & 1], S[(b + 1) & 1]
        E = lambda i: EXP(cur + i)
        Cv = lambda i: CVT(P + i, cur + 2 * i)
        a(M16(nxt, K1[(b + 1) & 1], Q1, C))
        if b % 4 == 2:
            bar()
        a(f's_setprio {3 - (b + 2) % 4}', rdK1(K1[b & 1], b + 2))
        a(E(0), E(1), E(2), Cv(0), E(3), E(4))
        a(M16(O, V[(b + 1) & 1] + 4, P + 4), 's_waitcnt lgkmcnt(1)', rdV(V[(b + 1) & 1], b + 1, 0), rdV(V[(b + 1) & 1], b + 1, 1))
        a(Cv(1), E(5), E(6), Cv(2), E(7), E(8))
        a(M8(nxt, K2, Q2[(b + 1) & 1]))
        a(Cv(3), E(9), E(10), Cv(4), E(11), E(12))
        a(M16(O, V[b & 1], P), 's_waitcnt lgkmcnt(2)')
        if b % 2 == 0:
            a(rdK2(b // 2 + 1))
        if b == 15:
            a(f's_sub_u32 s{sCnt}, s{sCnt}, 1', f's_cmp_lg_u32 s{sCnt}, 0')
        a(Cv(5), E(13), E(14), E(15), Cv(6), Cv(7))
    a('s_cbranch_scc1 L_at_loop')
    a('s_nop 0', M16(O, V[1] + 4, P + 4), f's_mov_b32 s{sPass}, 0', 's_waitcnt lgkmcnt(0)')
    a.stamp(12)

    a.label('L_at_fin')
    a(f's_lshl_b32 s{sT0}, s{sQB}, 3', f's_add_u32 s{sT0}, s{sT0}, s{sW}', f's_mul_i32 s{sT0}, s{sT0}, 40960', f's_add_u32 s{sT0}, s{sT0}, {WS_O}',
      f's_lshl_b32 s{sT1}, s{sHead}, 10', f's_add_u32 s{sT1}, s{sT1}, s{sT0}',
      f's_lshl_b32 s{sT2}, s{sHead}, 8', f's_add_u32 s{sT2}, s{sT2}, s{sT0}', f's_add_u32 s{sT2}, s{sT2}, 32768', f's_mov_b32 s{sT3}, {fbits(2.0**-100)}', 's_nop 1')
    vL, vSum = tp, tp + 1
    a(f'v_mov_b32 v{vL}, v{O+8}', f'v_mov_b32 v{tp+2}, v{O+8}', f'v_add_f32 v{vSum}, |v{O}|, |v{O+1}|', f'v_add_f32 v{tp+3}, |v{O+8}|, |v{O+9}|')
    a(f'v_permlane32_swap_b32 v{tp+2}, v{vL}')
    for i in range(2, 8):
        a(f'v_add_f32 v{vSum}, v{vSum}, |v{O+i}|')
    a(f'v_add_f32 v{tp+3}, v{tp+3}, |v{O+10}|', f'v_add_f32 v{tp+3}, v{tp+3}, |v{O+11}|', f'v_add_f32 v{tp+3}, v{tp+3}, v{vSum}')
    a(f'v_rcp_f32 v{vL}, v{vL}')
    a(f'v_cmp_ngt_f32 vcc, {fbits(2.0**120)}, v{tp+3}', f'v_cmp_gt_f32 s[46:47], s{sT3}, v{vSum}', 's_nop 1',
      's_or_b64 s[46:47], s[46:47], vcc', f's_cmp_eq_u32 s{sPass}, 0', 's_cselect_b64 s[46:47], s[46:47], 0', 's_cmp_lg_u64 s[46:47], 0',
      's_cbranch_scc1 L_at_slow')
    for i in range(12):
        a(f'v_mul_f32 v{O+i}, v{O+i}, v{vL}')
    for i in range(6):
        a(CVT(O + i, O + 2 * i))
    a('v_lshlrev_b32 v1, 4, v0', f'v_lshlrev_b32 v{tp}, 3, v0')
    a(f'buffer_store_dwordx4 {v(O,4)}, v1, {WS}, s{sT1} offen sc1')
    a('s_mov_b32 exec_hi, 0')
    a(f'buffer_store_dwordx2 {v(O+4,2)}, v{tp}, {WS}, s{sT2} offen sc1')
    a('s_waitcnt vmcnt(0)')
    a.stamp(13)
    bar()
    a(f's_cmp_lg_u32 s{sW}, 0', 's_cbranch_scc1 L_at_exit')
    a(f's_lshl_b32 s{sT0}, s{sQB}, 7', f's_lshl_b32 s{sT1}, s{sHead}, 2', f's_add_u32 s{sT0}, s{sT0}, s{sT1}', f's_add_u32 s{sT0}, s{sT0}, {WS_FO}',
      f'v_mov_b32 v1, s{sTag}', 'v_mov_b32 v2, 0', 's_mov_b64 exec, 1', f'buffer_store_dword v1, v2, {WS}, s{sT0} offen sc1')
    a.label('L_at_exit')
    a.dump(0, sW, 24)
    a('s_endpgm')

    a.label('L_at_slow')
    vVg, vL8s = tp + 4, tp + 7
    a(f'v_min_u32 v1, 19, v{vTokA}', 'v_lshlrev_b32 v1, 4, v1', f'v_mul_u32_u24 v{vVg}, 320, v{vH}', f'v_add_u32 v{vVg}, v1, v{vVg}', f'v_lshlrev_b32 v{vL8s}, 3, v0')
    a(f'v_mov_b32 v{tp}, 0xff800000', f's_mov_b32 s{sCnt}, 0')
    def pair_off():
        a(f's_lshr_b32 s{sT0}, s{sCnt}, 1', f's_mul_i32 s{sT0}, s{sT0}, 10240', f's_and_b32 s{sT1}, s{sCnt}, 1', f's_mul_i32 s{sT1}, s{sT1}, 2560',
          f's_add_u32 s{sT0}, s{sT0}, s{sT1}', f's_add_u32 s{sT0}, s{sT0}, s{sKV}', f's_add_u32 s{sT1}, s{sT0}, 5120')
    def ldK():
        for b in range(2):
            a(f'buffer_load_dwordx2 {v(K1[b],2)}, v{vKg}, {WS}, s{sT0} offen offset:{256*b} sc1',
              f'buffer_load_dwordx2 {v(K1[b]+2,2)}, v{vKg}, {WS}, s{sT0} offen offset:{256*b+1024} sc1')
        a(f'buffer_load_dwordx2 {v(K2,2)}, v{vL8s}, {WS}, s{sT0} offen offset:2048 sc1')
    a.label('L_at_slow_max')
    pair_off(); ldK()
    a('s_waitcnt vmcnt(0)')
    a(M16(S[0], K1[0], Q1, '0'), M16(S[1], K1[1], Q1, '0'), M8(S[0], K2, Q2[0]), M8(S[1], K2, Q2[1]), 's_nop 12')
    for i in range(16):
        a(f'v_max3_f32 v{tp}, v{tp}, v{S[0]+i}, v{S[1]+i}')
    a(f's_add_u32 s{sCnt}, s{sCnt}, 1', f's_cmp_lt_u32 s{sCnt}, 32', 's_cbranch_scc1 L_at_slow_max')
    a(f'v_mov_b32 v{tp+1}, v{tp}', 's_nop 1', f'v_permlane32_swap_b32 v{tp}, v{tp+1}', 's_nop 1', f'v_max_f32 v{tp}, v{tp}, v{tp+1}')
    for i in range(16):
        a(f'v_sub_f32 v{C+i}, 0, v{tp}', f'v_mov_b32 v{O+i}, 0')
    a(f'v_cmp_eq_u32 s[48:49], 20, v{vTokA}', f'v_mov_b32 v{tp+5}, 0x3f803f80', f's_mov_b32 s{sCnt}, 0')
    a.label('L_at_slow_pv')
    pair_off(); ldK()
    for g in range(4):
        a(f'buffer_load_dwordx4 {v(V[g//2]+4*(g%2),4)}, v{vVg}, {WS}, s{sT1} offen offset:{640*g} sc1')
    a('s_waitcnt vmcnt(0)')
    a(M16(S[0], K1[0], Q1, C), M16(S[1], K1[1], Q1, C), M8(S[0], K2, Q2[0]), M8(S[1], K2, Q2[1]))
    for b in range(2):
        for i in range(8):
            a(f'v_cndmask_b32 v{V[b]+i}, v{V[b]+i}, v{tp+5}, s[48:49]')
    for b in range(2):
        for i in range(16):
            a(EXP(S[b] + i))
        a('s_nop 0')
        for i in range(8):
            a(CVT(P + i, S[b] + 2 * i))
        a('s_nop 1', M16(O, V[b], P), M16(O, V[b] + 4, P + 4))
    a(f's_add_u32 s{sCnt}, s{sCnt}, 1', f's_cmp_lt_u32 s{sCnt}, 32', 's_cbranch_scc1 L_at_slow_pv')
    a(f's_mov_b32 s{sPass}, 1', 's_branch L_at_fin')

    a.label('L_helper')
    sG = 38
    SD = 48
    a(f's_sub_u32 s{sG}, s{sW}, 8')
    a('v_and_b32 v1, 31, v0', 'v_mul_u32_u24 v1, 656, v1', f'v_add_u32 v1, {L_V+640}, v1')
    for i in range(4):
        a(f'v_mov_b32 v{4+i}, 0x3f803f80')
    a('ds_write_b128 v1, v[4:7]')
    a(f's_and_b32 s{sT0}, s{sG}, 1', f's_cmp_eq_u32 s{sT0}, 1', 's_cbranch_scc1 L_h_cols')
    D, U = 8, 28
    a.srd(SD, 4, 2621440)
    a(f's_lshl_b32 s{sT0}, s{sRB}, 7', f's_lshl_b32 s{sT1}, s{sCG}, 3', f's_add_u32 s{sT0}, s{sT0}, s{sT1}', f's_lshl_b32 s{sT1}, s{sG}, 1', f's_add_u32 s{sT0}, s{sT0}, s{sT1}',
      f's_mul_i32 s{sT1}, s{sT0}, 1280', f's_lshl_b32 s{sT0}, s{sT0}, 4', f's_add_u32 s{sT0}, s{sT0}, {WS_RS}')
    a('v_lshrrev_b32 v1, 4, v0', 'v_and_b32 v2, 15, v0', 'v_mul_u32_u24 v3, 1280, v1', 'v_lshl_add_u32 v3, v2, 4, v3')
    tag()
    for i in range(5):
        a(f'buffer_load_dwordx4 {v(D+4*i,4)}, v3, s[{SD}:{SD+3}], s{sT1} offen offset:{256*i}')
    bar()
    a('s_waitcnt vmcnt(0)')
    for i in range(20):
        a(f'v_lshlrev_b32 v{U+2*i}, 16, v{D+i}', f'v_and_b32 v{U+2*i+1}, 0xffff0000, v{D+i}')
    def reduce16(r):
        for mod in ('quad_perm:[1,0,3,2]', 'quad_perm:[2,3,0,1]', 'row_half_mirror', 'row_mirror'):
            a('s_nop 1', f'v_add_f32_dpp v{r}, v{r}, v{r} {mod} row_mask:0xf bank_mask:0xf')
    a(f'v_add_f32 v4, v{U}, v{U+1}', f'v_add_f32 v5, v{U+2}, v{U+3}')
    for i in range(2, 20):
        a(f'v_add_f32 v4, v4, v{U+2*i}', f'v_add_f32 v5, v5, v{U+2*i+1}')
    a('v_add_f32 v4, v4, v5')
    reduce16(4)
    a(f'v_mul_f32 v4, {fbits(1/640)}, v4')
    bar()
    for i in range(40):
        a(f'v_sub_f32 v{U+i}, v{U+i}, v4')
    a(f'v_mul_f32 v6, v{U}, v{U}', f'v_mul_f32 v5, v{U+1}, v{U+1}')
    for i in range(1, 20):
        a(f'v_fmac_f32 v6, v{U+2*i}, v{U+2*i}', f'v_fmac_f32 v5, v{U+2*i+1}, v{U+2*i+1}')
    a('v_add_f32 v6, v6, v5')
    reduce16(6)
    a(f'v_mov_b32 v5, {fbits(1e-5)}', f'v_fmac_f32 v5, {fbits(1/640)}, v6', 'v_rsq_f32 v6, v5', f'v_mov_b32 v5, s{sTag}', f'v_mov_b32 v7, s{sTag}')
    a('v_lshlrev_b32 v1, 4, v1', 's_mov_b32 exec_lo, 0x00010001', 's_mov_b32 exec_hi, 0x00010001',
      f'buffer_store_dwordx4 v[4:7], v1, {WS}, s{sT0} offen sc1', 's_mov_b64 exec, -1', 's_branch L_h_pub')
    a.label('L_h_cols')
    a(f's_and_b32 s{sT0}, s{sRB}, 1', f's_lshl_b32 s{sT1}, s{sCG}, 1', f's_add_u32 s{sT0}, s{sT0}, s{sT1}', f's_and_b32 s{sT1}, s{sRB}, 2', f's_cmp_eq_u32 s{sT1}, 0',
      f's_cselect_b32 s{SD}, s6, s12', f's_cselect_b32 s{SD+1}, s7, s13', CSEL(SD + 2, 640 * 3840, 640 * 3456), f's_mov_b32 s{SD+3}, 0x00020000',
      CSEL(sT2, 3840, 3456), f's_cselect_b32 s{sT1}, 30, 27', f's_cmp_lt_u32 s{sT0}, s{sT1}', f's_cselect_b32 s{SD+2}, s{SD+2}, 0')
    a(f's_lshl_b32 s{sT0}, s{sT0}, 7', f's_lshr_b32 s{sT1}, s{sG}, 1', f's_lshl_b32 s{sT1}, s{sT1}, 6', f's_add_u32 s{sT0}, s{sT0}, s{sT1}',
      f's_lshr_b32 s{sT1}, s{sRB}, 2', f's_mul_i32 s{sT1}, s{sT1}, 160', f's_mul_i32 s{sT1}, s{sT1}, s{sT2}', f's_add_u32 s{sT0}, s{sT0}, s{sT1}')
    a('v_lshrrev_b32 v1, 2, v0', 'v_and_b32 v2, 3, v0', f'v_mul_u32_u24 v3, s{sT2}, v1', 'v_lshl_add_u32 v3, v2, 4, v3', f's_lshl_b32 s{sT2}, s{sT2}, 4')
    tag()
    for i in range(10):
        a(f'buffer_load_dwordx4 {v(16+4*i,4)}, v3, s[{SD}:{SD+3}], s{sT0} offen')
        if i < 9:
            a(f's_add_u32 s{sT0}, s{sT0}, s{sT2}')
    bar()
    a('s_waitcnt vmcnt(0)')
    for i in range(10):
        for d in range(4):
            if i == 0:
                a(f'v_lshlrev_b32 v{8+2*d}, 16, v{16+d}', f'v_and_b32 v{9+2*d}, 0xffff0000, v{16+d}')
            else:
                a(f'v_lshlrev_b32 v4, 16, v{16+4*i+d}', f'v_and_b32 v5, 0xffff0000, v{16+4*i+d}', f'v_add_f32 v{8+2*d}, v{8+2*d}, v4', f'v_add_f32 v{9+2*d}, v{9+2*d}, v5')
        if i == 5:
            bar()
    a(f's_lshr_b32 s{sT1}, s{sG}, 1', f's_lshl_b32 s{sT0}, s{sT1}, 11', f's_add_u32 s{sT0}, s{sT0}, {L_TR}', f'v_lshl_add_u32 v1, v0, 5, s{sT0}',
      'ds_write_b128 v1, v[8:11]', 'ds_write_b128 v1, v[12:15] offset:16')
    a('v_and_b32 v2, 31, v0', 'v_lshrrev_b32 v3, 5, v0', 'v_lshlrev_b32 v3, 10, v3', 'v_lshl_add_u32 v3, v2, 2, v3', f'v_add_u32 v3, s{sT0}, v3', 's_waitcnt lgkmcnt(0)')
    for i in range(4):
        a(f'ds_read2_b32 {v(8+2*i,2)}, v3 offset0:{64*i} offset1:{64*i+32}')
    a(f's_lshl_b32 s{sT0}, s{sCG}, 4', f's_and_b32 s{sT2}, s{sRB}, 3', f's_lshl_b32 s{sT2}, s{sT2}, 2', f's_add_u32 s{sT0}, s{sT0}, s{sT2}', f's_lshr_b32 s{sT2}, s{sRB}, 2',
      f's_add_u32 s{sT0}, s{sT0}, s{sT2}', f's_lshl_b32 s{sT0}, s{sT0}, 9', f's_lshl_b32 s{sT1}, s{sT1}, 8', f's_add_u32 s{sT0}, s{sT0}, s{sT1}', f's_add_u32 s{sT0}, s{sT0}, {WS_CS}')
    a('s_waitcnt lgkmcnt(0)')
    a('v_add_f32 v8, v8, v9', 'v_add_f32 v10, v10, v11', 'v_add_f32 v12, v12, v13', 'v_add_f32 v14, v14, v15', 'v_add_f32 v8, v8, v10', 'v_add_f32 v12, v12, v14',
      'v_add_f32 v8, v8, v12', 'v_mov_b32 v9, v8', 's_nop 1', 'v_permlane32_swap_b32 v8, v9', 's_nop 1', 'v_add_f32 v8, v8, v9', f'v_mov_b32 v9, s{sTag}')
    a('v_lshlrev_b32 v2, 3, v2', 's_mov_b32 exec_hi, 0', f'buffer_store_dwordx2 v[8:9], v2, {WS}, s{sT0} offen sc1', 's_mov_b64 exec, -1')
    a.label('L_h_pub')
    a.stamp(2)
    bar()
    gemm_setup(8, 1)
    bar(); bar(); bar(); bar()
    a.srd(SD, 14, 3456)
    a(f's_lshl_b32 s{sT0}, s{sCG}, 2', f's_add_u32 s{sT0}, s{sT0}, s{sG}', f's_lshl_b32 s{sT0}, s{sT0}, 11', f's_add_u32 s{sT0}, s{sT0}, {WS_CS}',
      f's_lshl_b32 s{sT1}, s{sRB}, 2', f's_add_u32 s{sT1}, s{sT1}, s{sG}', f's_lshl_b32 s{sT1}, s{sT1}, 9', f's_add_u32 s{sT1}, s{sT1}, {WS_RS}',
      f's_lshl_b32 s{sT2}, s{sCG}, 8', f's_lshl_b32 s{sT3}, s{sG}, 6', f's_add_u32 s{sT2}, s{sT2}, s{sT3}', f's_mov_b32 s{sT3}, {SPIN}')
    g0 = FR
    a(f'v_lshlrev_b32 v{tmp}, 3, v0', f'v_lshlrev_b32 v{tmp+1}, 4, v{vTok}', f'v_lshlrev_b32 v{tmp+2}, 1, v{vTok}')
    a(f'buffer_load_ushort v{g0+12}, v{tmp+2}, s[{SD}:{SD+3}], s{sT2} offen')
    def gather():
        for q in range(4):
            a(f'buffer_load_dwordx2 {v(g0+2*q,2)}, v{tmp}, {WS}, s{sT0} offen offset:{512*q} sc1')
        a(f'buffer_load_dwordx4 {v(g0+8,4)}, v{tmp+1}, {WS}, s{sT1} offen sc1')
    gather()
    bar(); bar()
    a.label('L_h_chk')
    a('s_waitcnt vmcnt(0)')
    a(f'v_xor_b32 v1, s{sTag}, v{g0+1}')
    for r in (g0 + 3, g0 + 5, g0 + 7, g0 + 9, g0 + 11):
        a(f'v_xor_b32 v{tmp+3}, s{sTag}, v{r}', f'v_or_b32 v1, v1, v{tmp+3}')
    a('v_cmp_ne_u32 vcc, 0, v1', 's_nop 1', 's_cmp_eq_u64 vcc, 0', 's_cbranch_scc1 L_h_got', f's_sub_u32 s{sT3}, s{sT3}, 1', 's_cbranch_scc1 L_h_got')
    gather()
    a('s_branch L_h_chk')
    a.label('L_h_got')
    a(f'v_add_f32 v{g0}, v{g0}, v{g0+2}', f'v_add_f32 v{g0+4}, v{g0+4}, v{g0+6}', f'v_add_f32 v{g0}, v{g0}, v{g0+4}', f'v_lshlrev_b32 v{g0+12}, 16, v{g0+12}')
    a(f's_lshl_b32 s{sT0}, s{sG}, 8', f's_add_u32 s{sT0}, s{sT0}, {L_CS}', f'v_lshl_add_u32 v1, v0, 2, s{sT0}', f'ds_write_b32 v1, v{g0}')
    a(f's_lshl_b32 s{sT0}, s{sG}, 7', f's_add_u32 s{sT0}, s{sT0}, {L_MEAN}', f'v_lshl_add_u32 v1, v{vTok}, 2, s{sT0}',
      f'ds_write_b32 v1, v{g0+8}', f'ds_write_b32 v1, v{g0+10} offset:{L_RSTD-L_MEAN}', f'ds_write_b32 v1, v{g0+12} offset:{L_BIAS-L_MEAN}', 's_waitcnt lgkmcnt(0)')
    bar()
    sFB = 39
    a(f's_lshl_b32 s{sFB}, s{sCG}, 1', f's_add_u32 s{sFB}, s{sFB}, s{sN}', f's_cmp_lt_u32 s{sFB}, 27', 's_cbranch_scc1 L_h_act')
    for _ in range(10):
        bar()
    a('s_branch L_h_p2')
    a.label('L_h_act')
    a('s_setprio 1')
    mainloop('ffn', False, False)
    a('s_setprio 0')
    vMean, vRs, vCa = tmp, tmp + 2, tmp + 4
    a(f's_lshl_b32 s{sT0}, s{sM}, 8', f's_add_u32 s{sT0}, s{sT0}, {L_MEAN}', f'v_lshl_add_u32 v1, v{vTok}, 2, s{sT0}')
    a(f'ds_read2_b32 {v(vMean,2)}, v1 offset0:0 offset1:32', f'ds_read2_b32 {v(vRs,2)}, v1 offset0:128 offset1:160')
    a(f's_lshl_b32 s{sT0}, s{sN}, 8', f's_add_u32 s{sT0}, s{sT0}, {L_CS+512}', f'v_lshl_add_u32 v{vCa}, v{2}, 4, s{sT0}')
    def f_stats(u):
        for q in range(4):
            a(f'ds_read_b128 {v(FR+4*q,4)}, v{vCa} offset:{128*u+32*q}', f'ds_read_b128 {v(FR+16+4*q,4)}, v{vCa} offset:{L_BIAS-L_CS-512+128*u+32*q}')
    f_stats(0)
    a(f's_lshl_b32 s{sT0}, s{sRB}, 2', f's_lshl_b32 s{sT1}, s{sM}, 1', f's_add_u32 s{sT0}, s{sT0}, s{sT1}', f's_mul_i32 s{sT0}, s{sT0}, 108',
      f's_lshl_b32 s{sT1}, s{sFB}, 2', f's_add_u32 s{sT0}, s{sT0}, s{sT1}', f's_lshl_b32 s{sT0}, s{sT0}, 10',
      f's_add_u32 s{sOff}, s{sT0}, {WS_H}', f's_add_u32 s{sHS}, s{sOff}, {108*1024}', 'v_lshlrev_b32 v1, 4, v0')
    for u in range(2):
        a('s_waitcnt lgkmcnt(0)')
        for t in range(2):
            for ap in range(2):
                r = acc + 32 * t + 16 * u + 8 * ap
                for e in range(8):
                    a(f'v_fma_f32 v{r+e}, -v{vMean+t}, v{FR+8*ap+e}, v{r+e}')
                for e in range(8):
                    a(f'v_fma_f32 v{r+e}, v{vRs+t}, v{r+e}, v{FR+16+8*ap+e}')
                if u == 0 and t == 1 and ap == 1:
                    f_stats(1)
                for e in range(8):
                    a(f'v_max_f32 v{r+e}, 0, v{r+e}')
                for e in range(8):
                    a(f'v_mul_f32 v{r+e}, v{r+e}, v{r+e}')
                for e in range(4):
                    a(CVT(r + e, r + 2 * e))
                a(f'buffer_store_dwordx4 {v(r,4)}, v1, {WS}, s{sHS if t else sOff} offen offset:{1024*(2*u+ap)} sc1')
    a.label('L_h_p2')
    a.stamp(5)
    bar()

    a.vm = ['hst']
    R = Regs(2)
    vL16, vL8, vTr, vTr2, vOut, vRes = R(), R(), R(), R(), R(), R()
    vW = R(4); vWr = R(4)
    acc = R(96)
    AF = [R(8) for _ in range(4)]
    BF = [R(4) for _ in range(3)]
    tmp = R(8)
    sKVo, sReg, sH0, sH1, sW2, sWo, sOwn, sKH = range(40, 48)
    W2, WO, RES = 48, 52, 56
    sM40, sMK, sMV, sRow, sCol = 60, 62, 63, 64, 65
    a(f's_and_b32 s{sOwn}, s{sG}, 1', f's_lshr_b32 s{sKH}, s{sG}, 1', f's_mov_b32 s{sM40}, -1', f's_mov_b32 s{sM40+1}, 0xff')
    a(f'v_lshlrev_b32 v{vL16}, 4, v0', f'v_lshlrev_b32 v{vL8}, 3, v0')
    a(f's_mul_i32 s{sKVo}, s{sHead}, 163840', f's_mul_i32 s{sT0}, s{sG}, 1280', f's_add_u32 s{sKVo}, s{sKVo}, s{sT0}', f's_add_u32 s{sKVo}, s{sKVo}, {WS_KV}')
    a(f's_add_u32 s{sMK}, s{sT0}, {L_K}', f's_mul_i32 s{sMV}, s{sG}, 1312', f's_add_u32 s{sMV}, s{sMV}, {L_V}')
    MASK, FULL = f's_mov_b64 exec, s[{sM40}:{sM40+1}]', 's_mov_b64 exec, -1'

    def kv(c):
        slot = c % 4
        ld = lambda so, off: f'buffer_load_dwordx4 v{vL16}, {WS}, s{so} offen offset:{off} sc1 lds'
        return [([f's_add_u32 m0, s{sMK}, {slot*5120}', f's_add_u32 s{sT0}, s{sKVo}, {c*10240}'], ld(sT0, 0), ('kv', c), True),
                ([], ld(sT0, 640), ('kv', c), True),
                ([f's_add_u32 m0, s{sMV}, {slot*5248}', f's_add_u32 s{sT0}, s{sT0}, 5120'], ld(sT0, 0), ('kv', c), True),
                ([f's_sub_u32 s{sT0}, s{sT0}, 16'], ld(sT0, 656), ('kv', c), True)]
    def stage(srd, base, add, voff, slot, tg):
        out = []
        for i in range(4):
            pre = [f's_add_u32 m0, s{sReg}, {slot*2560}', f's_add_u32 s{sT0}, s{base}, {add}'] if i == 0 else []
            out.append((pre, f'buffer_load_dwordx4 v{voff+i}, s[{srd}:{srd+3}], s{sT0} offen offset:{640*i} lds', tg, True))
        return out
    def f2B(st):
        return stage(W2, sW2, st * 16 * 1280, vW, st % 4, ('fb', st))
    def f2A(st):
        return [([f's_add_u32 s{sT1}, s{sH0}, {st*1024}'], f'buffer_load_dwordx4 {v(AF[st%4],4)}, v{vL16}, {WS}, s{sT1} offen sc1', ('fa', st), False),
                ([f's_add_u32 s{sT1}, s{sH1}, {st*1024}'], f'buffer_load_dwordx4 {v(AF[st%4]+4,4)}, v{vL16}, {WS}, s{sT1} offen sc1', ('fa', st), False)]
    def wo(slot):
        if slot < 8:
            return stage(WO, sWo, slot * 20 * 1280, vW, slot, ('wo', slot))
        return stage(WO, sWo, (slot - 8) * 80 * 1280, vWr, slot, ('wo', slot))
    def emit(fl):
        masked = False
        for pre, ins, tg, mk in fl:
            a(pre)
            if mk != masked:
                a(MASK if mk else FULL); masked = mk
            elif pre and 'm0' in pre[-1]:
                a('s_nop 0')
            a.vmem(ins, tg)
        if masked:
            a(FULL)

    emit(kv(2))
    a.srd(W2, 16, 1728 * 1280)
    a.srd(WO, 8, 640 * 1280)
    a(f's_cmp_eq_u32 s{sKH}, 0', f's_cselect_b32 s{RES}, s4, s18', f's_cselect_b32 s{RES+1}, s5, s19', CSEL(RES + 2, 2621440, 1280), f's_mov_b32 s{RES+3}, 0x00020000',
      f's_cselect_b32 s{sT2}, 1280, 0')
    a(f's_lshl_b32 s{sRow}, s{sHead}, 1', f's_add_u32 s{sRow}, s{sRow}, s{sOwn}', f's_mul_i32 s{sCol}, s{sQB}, 160')
    a(f's_lshl_b32 s{sT0}, s{sRow}, 5', 'v_and_b32 v1, 31, v0', f'v_add_u32 v1, s{sT0}, v1', f'v_lshrrev_b32 v{tmp+4}, 5, v0', f'v_lshlrev_b32 v{tmp+4}, 4, v{tmp+4}',
      f'v_add_u32 v{tmp+4}, s{sCol}, v{tmp+4}', f'v_mul_u32_u24 v{vOut}, 1280, v1', f'v_add_u32 v{vOut}, v{vOut}, v{tmp+4}',
      f'v_mul_u32_u24 v{vRes}, s{sT2}, v1', f'v_add_u32 v{vRes}, v{vRes}, v{tmp+4}')
    a(f'v_mul_u32_u24 v1, 205, v0', 'v_lshrrev_b32 v1, 11, v1')
    a(f'v_mul_u32_u24 v{tmp+4}, 10, v1', f'v_sub_u32 v{tmp+4}, v0, v{tmp+4}', f'v_lshlrev_b32 v{tmp+4}, 4, v{tmp+4}', f'v_add_u32 v{tmp+4}, s{sCol}, v{tmp+4}')
    a(f'v_and_b32 v{tmp+5}, 1, v1', 'v_lshrrev_b32 v1, 1, v1')
    a.wait_vm('hst')
    a(f'v_lshl_add_u32 v{tmp+6}, v{tmp+5}, 2, v1', f'v_mul_u32_u24 v{tmp+6}, 1280, v{tmp+6}', f'v_add_u32 v{vW}, v{tmp+6}, v{tmp+4}')
    for i, ro in ((1, 2), (2, 8), (3, 10)):
        a(f'v_add_u32 v{vW+i}, {ro*1280-640*i}, v{vW}')
    a(f'v_mul_u32_u24 v{tmp+5}, 20, v{tmp+5}', f'v_add3_u32 v{tmp+6}, v{tmp+5}, v1, 16', f'v_mul_u32_u24 v{tmp+6}, 1280, v{tmp+6}', f'v_add_u32 v{vWr}, v{tmp+6}, v{tmp+4}')
    for i, ro in ((1, 2), (2, 40), (3, 42)):
        a(f'v_add_u32 v{vWr+i}, {ro*1280-640*i}, v{vWr}')
    a.stamp(6)
    bar()
    a(f's_cmp_lg_u32 s{sG}, 0', 's_cbranch_scc1 L_h_nosig', f's_cmp_ge_u32 s{sCG}, 14', 's_cbranch_scc1 L_h_nosig')
    a(f's_lshl_b32 s{sT0}, s{sRB}, 7', f's_lshl_b32 s{sT1}, s{sCG}, 2', f's_add_u32 s{sT0}, s{sT0}, s{sT1}', f's_add_u32 s{sT0}, s{sT0}, {WS_FH}',
      f'v_mov_b32 v1, s{sTag}', f'v_mov_b32 v{tmp}, 0', 's_mov_b64 exec, 1', f'buffer_store_dword v1, v{tmp}, {WS}, s{sT0} offen sc1', FULL)
    a.label('L_h_nosig')
    a(f's_mul_i32 s{sReg}, s{sG}, 25600', f's_mul_i32 s{sW2}, s{sG}, {27*16*1280}', f's_mul_i32 s{sWo}, s{sG}, {160*1280}')
    emit(kv(3))
    res = acc + 48
    for gi in range(5):
        a.vmem(f'buffer_load_dwordx4 {v(res+4*gi,4)}, v{vRes}, s[{RES}:{RES+3}], 0 offen offset:{32*gi}', 'res')
    emit(f2B(0) + f2B(1) + f2B(2))
    a('v_lshrrev_b32 v1, 2, v0', 'v_and_b32 v1, 3, v1', f'v_lshrrev_b32 v{tmp+4}, 5, v0', f'v_lshl_add_u32 v1, v1, 1, v{tmp+4}', 'v_mul_u32_u24 v1, 160, v1')
    a(f'v_and_b32 v{tmp+4}, 16, v0', f'v_lshl_add_u32 v1, v{tmp+4}, 1, v1', f'v_and_b32 v{tmp+5}, 1, v0', f'v_lshl_add_u32 v1, v{tmp+5}, 4, v1',
      f'v_and_b32 v{tmp+5}, 2, v0', f'v_lshl_add_u32 v1, v{tmp+5}, 2, v1', f'v_add_u32 v{vTr}, s{sReg}, v1',
      f'v_lshl_add_u32 v{vTr2}, v{tmp+4}, 14, v{vTr}')
    a(f's_mul_i32 s{sH0}, s{sRow}, {108*1024}', f's_xor_b32 s{sT0}, s{sRow}, 1', f's_mul_i32 s{sH1}, s{sT0}, {108*1024}',
      f's_mul_i32 s{sT0}, s{sG}, {27*1024}', f's_add_u32 s{sT0}, s{sT0}, {WS_H}', f's_add_u32 s{sH0}, s{sH0}, s{sT0}', f's_add_u32 s{sH1}, s{sH1}, s{sT0}')
    a.wait_vm('res')
    for gi in range(5):
        for i in range(4):
            a(f'v_lshlrev_b32 v{acc+8*gi+2*i}, 16, v{res+4*gi+i}', f'v_and_b32 v{acc+8*gi+2*i+1}, 0xffff0000, v{res+4*gi+i}')
    bar()
    emit(kv(4))
    a(f's_lshr_b32 s{sT0}, s{sHead}, 1', f's_lshl_b32 s{sT0}, s{sT0}, 7', f's_add_u32 s{sT0}, s{sT0}, {WS_FH}', 'v_min_u32 v1, 13, v0', 'v_lshlrev_b32 v1, 2, v1',
      f's_mov_b32 s{sT2}, {SPIN}')
    a.label('L_poll2')
    a(f'buffer_load_dword v{tmp}, v1, {WS}, s{sT0} offen sc1', f's_sub_u32 s{sT2}, s{sT2}, 1', 's_cbranch_scc1 L_poll2_done', 's_waitcnt vmcnt(0)',
      f'v_cmp_ne_u32 vcc, s{sTag}, v{tmp}', 's_nop 1', 's_cmp_lg_u64 vcc, 0', 's_cbranch_scc1 L_poll2')
    a.label('L_poll2_done')
    a.drain_vm()
    a.stamp(7)
    emit(f2A(0) + f2A(1) + f2A(2))
    for i in range(40, 96):
        a(f'v_mov_b32 v{acc+i}, 0')

    def tr(p, base):
        c = p % 3
        ad = vTr2 if c == 2 else vTr
        return [f'ds_read_b64_tr_b16 {v(BF[c],2)}, v{ad} offset:{base+64*c}', f'ds_read_b64_tr_b16 {v(BF[c]+2,2)}, v{ad} offset:{base+64*c+1280}']
    def f2tr(p):
        if p // 3 >= 27:
            return
        if p % 3 == 0:
            a.wait_vm(('fb', p // 3))
        a(tr(p, (p // 3 % 4) * 2560))
    def f2_steps(steps, extra):
        fl = list(extra)
        nslots = 6 * len(steps)
        k = 0
        for st in steps:
            if st + 3 < 27:
                fl += f2B(st + 3) + f2A(st + 3)
            a.wait_vm(('fa', st))
            for c in range(3):
                p = 3 * st + c
                for t in range(2):
                    if t == 0:
                        a(f's_waitcnt lgkmcnt({2 if p + 1 < 81 else 0})')
                    a(M16(acc + 48 * t + 16 * c, BF[c], AF[st % 4] + 4 * t))
                    if t == 0:
                        f2tr(p + 2)
                    k += 1
                    left = 6 * (steps.index(st) + 1) - k + 1
                    n = -(-len(fl) // left)
                    emit(fl[:n]); fl = fl[n:]
        emit(fl)
    f2tr(0); f2tr(1)
    bar()
    plan = {c: 2 for c in range(3, 16)}
    plan[3] = 1; plan[4] = 1
    st = 0
    for c in range(3, 16):
        extra = kv(c + 2) if c + 2 < 16 else []
        if 3 <= c < 5:
            extra += wo(4 + 2 * (c - 3)) + wo(5 + 2 * (c - 3))
        if c >= 14:
            extra += wo(8 + c - 14)
        f2_steps(list(range(st, st + plan[c])), extra); st += plan[c]
        a.wait_vm(('kv', c + 1))
        if c == 10: a.stamp(8)
        bar()
        if c == 10: a.stamp(9)
    f2_steps(list(range(st, 27)), [])
    emit(wo(0) + wo(1) + wo(2) + wo(3))
    OF = acc + 48
    assert OF + 80 <= BF[0]
    sO0, sO1 = sH0, sH1
    OUT = W2
    a.srd(OUT, 20, 2621440)
    a(f's_mul_i32 s{sO0}, s{sRow}, 40960', f's_add_u32 s{sO0}, s{sO0}, {WS_O}', f's_lshl_b32 s{sT0}, s{sKH}, 12', f's_add_u32 s{sO1}, s{sO0}, s{sT0}',
      f's_add_u32 s{sO1}, s{sO1}, 32768', f's_lshl_b32 s{sT0}, s{sKH}, 14', f's_add_u32 s{sO0}, s{sO0}, s{sT0}')
    a(f's_mul_i32 s{sT0}, s{sOwn}, 25600', f'v_subrev_u32 v{vTr}, s{sT0}, v{vTr}', f'v_subrev_u32 v{vTr2}, s{sT0}, v{vTr2}')
    a(f's_mul_i32 s{sT0}, s{sG}, 10240', f's_add_u32 s{sT0}, s{sT0}, {L_K}', f's_xor_b32 s{sT1}, s{sG}, 1', f's_mul_i32 s{sT1}, s{sT1}, 10240', f's_add_u32 s{sT1}, s{sT1}, {L_K}',
      f'v_add_u32 v{tmp+1}, s{sT0}, v{vL16}', f'v_add_u32 v{tmp+2}, s{sT1}, v{vL16}')
    a.stamp(10)
    bar()
    for i in range(10):
        a(f'ds_write_b128 v{tmp+1}, {v(acc+48+4*i,4)} offset:{1024*i}')
    a('s_waitcnt lgkmcnt(0)')
    bar()
    for i in range(10):
        a(f'ds_read_b128 {v(acc+48+4*i,4)}, v{tmp+2} offset:{1024*i}')
    for i in range(10):
        a(f's_waitcnt lgkmcnt({9-i})')
        for e in range(4):
            a(f'v_add_f32 v{acc+4*i+e}, v{acc+4*i+e}, v{acc+48+4*i+e}')
    a.drain_vm()
    a(f's_cmp_lg_u32 s{sG}, 0', 's_cbranch_scc1 L_ready')
    a(f's_lshr_b32 s{sT0}, s{sHead}, 2', f's_lshl_b32 s{sT0}, s{sT0}, 7', f's_add_u32 s{sT0}, s{sT0}, {WS_FO}', 'v_and_b32 v1, 31, v0', 'v_lshlrev_b32 v1, 2, v1',
      f's_mov_b32 s{sT2}, {SPIN}')
    a.label('L_poll3')
    a(f'buffer_load_dword v{tmp}, v1, {WS}, s{sT0} offen sc1', f's_sub_u32 s{sT2}, s{sT2}, 1', 's_cbranch_scc1 L_poll3_done', 's_waitcnt vmcnt(0)',
      f'v_cmp_ne_u32 vcc, s{sTag}, v{tmp}', 's_nop 1', 's_cmp_lg_u64 vcc, 0', 's_cbranch_scc1 L_poll3')
    a.label('L_poll3_done')
    a('s_waitcnt vmcnt(0)')
    a.label('L_ready')
    bar()
    a.stamp(11)
    order = [(r, sl) for r in range(2) for sl in range(10)]
    for i, (r, sl) in enumerate(order):
        if sl < 8:
            h = 8 * r + sl
            if h % 4 == 0:
                a(f's_add_u32 s{sT0}, s{sO0}, {h*1024}')
            a.vmem(f'buffer_load_dwordx4 {v(OF+4*i,4)}, v{vL16}, {WS}, s{sT0} offen offset:{(h%4)*1024} sc1', ('o', i))
        else:
            g = 2 * r + sl - 8
            a.vmem(f'buffer_load_dwordx2 {v(OF+4*i,2)}, v{vL8}, {WS}, s{sO1} offen offset:{g*1024} sc1', ('o', i))
            a.vmem(f'buffer_load_dwordx2 {v(OF+4*i+2,2)}, v{vL8}, {WS}, s{sO1} offen offset:{g*1024+512} sc1', ('o', i))
    a(tr(0, 0), tr(1, 0), tr(2, 0))
    for i in range(20):
        a.wait_vm(('o', i))
        for c in range(3):
            last = i == 19
            a(f's_waitcnt lgkmcnt({4-2*c if last else 4})', M16(acc + 16 * c, BF[c], OF + 4 * i))
            if not last:
                a(tr(c, (i + 1) * 2560))
    a.stamp(12)
    a(f's_or_b32 s{sT0}, s2, s{sG}', 's_cbranch_scc1 L_noep')
    a(f'v_mov_b32 v1, s{sTag}', f'v_mov_b32 v{tmp}, 0', f's_mov_b32 s{sT0}, {WS_EP}', 's_mov_b64 exec, 1', f'buffer_store_dword v1, v{tmp}, {WS}, s{sT0} offen', FULL)
    a.label('L_noep')
    a(f's_xor_b32 s{sT1}, s{sG}, 2', f's_mul_i32 s{sT1}, s{sT1}, 10240', f's_add_u32 s{sT1}, s{sT1}, {L_K}', f'v_add_u32 v{tmp+2}, s{sT1}, v{vL16}',
      f's_cmp_eq_u32 s{sKH}, 0', 's_nop 7', 's_cbranch_scc0 L_hi')
    for nm, send, keep in (('lo', (3, 4), (0, 1, 2)), ('hi', (0, 1, 2), (3, 4))):
        if nm == 'hi':
            a.label('L_hi')
        for k, gi in enumerate(send):
            a(f'ds_write_b128 v{tmp+1}, {v(acc+8*gi,4)} offset:{2048*k}', f'ds_write_b128 v{tmp+1}, {v(acc+8*gi+4,4)} offset:{2048*k+1024}')
        a('s_waitcnt lgkmcnt(0)', 's_barrier')
        for k, gi in enumerate(keep):
            a(f'ds_read_b128 {v(OF+8*k,4)}, v{tmp+2} offset:{2048*k}', f'ds_read_b128 {v(OF+8*k+4,4)}, v{tmp+2} offset:{2048*k+1024}')
        for k, gi in enumerate(keep):
            a(f's_waitcnt lgkmcnt({2*(len(keep)-1-k)})')
            r = acc + 8 * gi
            for e in range(8):
                a(f'v_add_f32 v{r+e}, v{r+e}, v{OF+8*k+e}')
            for e in range(4):
                a(CVT(r + e, r + 2 * e))
            a(f'buffer_store_dwordx4 {v(r,4)}, v{vOut}, s[{OUT}:{OUT+3}], 0 offen offset:{32*gi}')
        if Asm.diag:
            a.stamp(13)
            a('s_waitcnt vmcnt(0)')
            a.dump(0, sW, 24)
        a('s_endpgm')
    a.label('L_done')
    a('s_endpgm')
    return kernel_header(name) + a.text(), kernel_desc(name, 168, 70)
```

```python
import sys, os
sys.path.insert(0, 'gen')
import fused
from asmlib import *
NAME = 'parallel_sum__softmax_full_mha__dense_activation_squared_relu__prompt'
REF = f'cdna_kernels/{NAME}.s.ref'

def build(path):
    head = [l for l in open(REF).read().splitlines() if l.startswith(';') and '@launch' not in l]
    head.append(f'; @launch grid=(256,1,1) block=(768,1,1) lds={fused.LDS_BYTES}')
    t, d = fused.gen(NAME + '_kernel')
    open(path, 'w').write('\n'.join(head) + '\n.amdgcn_target "amdgcn-amd-amdhsa--gfx950"\n' + t + d)

if __name__ == '__main__':
    Asm.diag = bool(os.environ.get('DIAG'))
    Asm.allreal = os.environ.get('DIAG') == 'real'
    for kv in os.environ.get('OPT', '').split(','):
        if kv:
            k, val = kv.split('=')
            fused.OPT[k] = int(val)
    build(sys.argv[1] if len(sys.argv) > 1 else f'cdna_kernels/{NAME}.s')
```

```python
class Asm:
    def __init__(self):
        self.lines = []
        self.vm = []

    def __call__(self, *ins):
        for s in ins:
            if isinstance(s, (list, tuple)):
                self(*s)
            else:
                self.lines.append('    ' + s)

    def label(self, name):
        self.lines.append(name + ':')

    def raw(self, s):
        self.lines.append(s)

    def c(self, text):
        self.lines.append('    ; ' + text)

    def vmem(self, ins, tag):
        self(ins)
        self.vm.append(tag)

    def wait_vm(self, *tags):
        last = -1
        for i, t in enumerate(self.vm):
            if t in tags:
                last = i
        if last < 0:
            return
        n = len(self.vm) - 1 - last
        assert n <= 63, n
        self(f's_waitcnt vmcnt({n})')
        self.vm = self.vm[last + 1:]

    def drain_vm(self):
        self('s_waitcnt vmcnt(0)')
        self.vm = []

    def srd(self, d, base, nbytes, off=None):
        if off is None:
            self(f's_mov_b32 s{d}, s{base}', f's_mov_b32 s{d+1}, s{base+1}')
        else:
            self(f's_add_u32 s{d}, s{base}, {off}', f's_addc_u32 s{d+1}, s{base+1}, 0')
        self(f's_mov_b32 s{d+2}, {nbytes}', f's_mov_b32 s{d+3}, 0x00020000')

    diag = False
    lock = None
    allreal = False
    def stamp(self, i, real=False):
        real = real or (Asm.allreal and i not in (0, 14))
        if Asm.diag and not (self.lock and i in self.lock):
            self(f's_mem{"real" if real else ""}time s[{70+2*i}:{71+2*i}]')

    def dump(self, kidx, swave, srd=16, base=0x2000000):
        if not Asm.diag:
            return
        self.stamp(14)
        self.stamp(15, True)
        self('s_waitcnt lgkmcnt(0)', 's_mov_b64 exec, -1')
        for i in range(16):
            self(f'v_writelane_b32 v2, s{70+2*i}, {i}')
        self(f's_lshl_b32 s70, s2, 4', f's_add_u32 s70, s70, s{swave}', 's_lshl_b32 s70, s70, 6', f's_add_u32 s70, s70, {base + kidx * 0x40000}')
        self('v_mbcnt_lo_u32_b32 v1, -1, 0', 'v_lshlrev_b32 v1, 2, v1', 's_mov_b64 exec, 0xffff', f's_mov_b32 s{srd+2}, -1')
        self(f'buffer_store_dword v2, v1, s[{srd}:{srd+3}], s70 offen')

    def text(self):
        return '\n'.join(self.lines) + '\n'


def v(a, n=1):
    return f'v{a}' if n == 1 else f'v[{a}:{a+n-1}]'

def s(a, n=1):
    return f's{a}' if n == 1 else f's[{a}:{a+n-1}]'

def M16(d, a, b, c=None):
    cs = v(d, 16) if c is None else (c if isinstance(c, str) else v(c, 16))
    return f'v_mfma_f32_32x32x16_bf16 {v(d,16)}, {v(a,4)}, {v(b,4)}, {cs}'

def M8(d, a, b, c=None):
    return f'v_mfma_f32_32x32x8_bf16 {v(d,16)}, {v(a,2)}, {v(b,2)}, {c or v(d,16)}'

def CVT(d, a, b=None):
    return f'v_cvt_pk_bf16_f32 v{d}, v{a}, v{a+1 if b is None else b}'

def CSEL(d, t, f):
    return [f's_mov_b32 s{d}, {f}', f's_cmov_b32 s{d}, {t}']

def EXP(r):
    return f'v_exp_f32 v{r}, v{r}'


class Regs:
    def __init__(self, start=0, limit=168):
        self.n = start
        self.limit = limit
    def __call__(self, cnt=1, align=None):
        al = align or (2 if cnt > 1 else 1)
        self.n = (self.n + al - 1) // al * al
        r = self.n
        self.n += cnt
        assert self.n <= self.limit, (self.n, self.limit)
        return r


def kernel_header(name, page=False):
    return '.text\n' + ('.p2align 12\n' if page else '') + f'.globl {name}\n.p2align 8\n.type {name},@function\n{name}:\n'

def kernel_desc(name, vgpr, sgpr=96):
    if Asm.diag:
        sgpr = 102
    acc = (vgpr + 3) // 4 * 4
    return f'''.section .rodata,"a"
.p2align 6
.amdhsa_kernel {name}
  .amdhsa_next_free_vgpr {vgpr}
  .amdhsa_next_free_sgpr {sgpr}
  .amdhsa_accum_offset {acc}
  .amdhsa_group_segment_fixed_size 0
  .amdhsa_kernarg_size 88
  .amdhsa_user_sgpr_count 2
  .amdhsa_user_sgpr_kernarg_segment_ptr 1
  .amdhsa_system_sgpr_workgroup_id_x 1
.end_amdhsa_kernel
'''
```

```python
import sys
sys.path.insert(0, 'gen')
from asmlib import *

def add(src, dst, spec):
    lines = open(src).read().split('\n')
    last = max(i for i, l in enumerate(lines) if '@launch' in l)
    if 'kernel=' not in lines[last]:
        lines[last] = lines[last].replace('@launch ', '@launch kernel=parallel_sum__softmax_full_mha__dense_activation_squared_relu__prompt_kernel ')
    lines.insert(last + 1, '; @launch kernel=probe_kernel grid=(1,1,1) block=(64,1,1) lds=0')
    a = Asm()
    a('s_cmp_ge_u32 s2, 1', 's_cbranch_scc1 L_probe_done')
    a('s_load_dwordx2 s[4:5], s[0:1], 80', 's_memrealtime s[10:11]', 's_waitcnt lgkmcnt(0)')
    a.srd(16, 4, 0x40000, 0x2000000)
    for k, part in enumerate(spec.split(':')):
        op, w, idx, x = part.split(',')
        w, idx, x = int(w), int(idx), int(x)
        if x < 0:
            a('v_lshlrev_b32 v1, 10, v0')
            offs = [0, 65536, 131072, 196608]
        else:
            a('v_and_b32 v1, 31, v0', 'v_lshlrev_b32 v1, 13, v1', f'v_add_u32 v1, {x*1024}, v1')
            offs = [0]
        for j, o in enumerate(offs):
            a(f's_mov_b32 s20, {o + w*64 + idx*4}', f'buffer_load_dword v{4+j}, v1, s[16:19], s20 offen')
        a('s_waitcnt vmcnt(0)')
        bad = '0' if op == 'min' else '-1'
        for j in range(len(offs)):
            a(f'v_sub_u32 v{4+j}, s10, v{4+j}', f'v_cmp_gt_u32 vcc, 20000, v{4+j}', 's_nop 1', f'v_cndmask_b32 v{4+j}, {bad}, v{4+j}, vcc')
        vop = 'v_max_u32' if op == 'min' else 'v_min_u32'
        sop = 's_max_u32' if op == 'min' else 's_min_u32'
        for j in range(1, len(offs)):
            a(f'{vop} v4, v4, v{4+j}')
        a('s_nop 1', f'v_readlane_b32 s{24+k}, v4, 0')
        for l in range(1, 64):
            a(f'v_readlane_b32 s21, v4, {l}', 's_nop 0', f'{sop} s{24+k}, s{24+k}, s21')
    a('s_sub_u32 s12, s24, s25', 's_add_u32 s12, s12, 200', 's_lshl_b32 s12, s12, 3', 's_min_u32 s12, s12, 100000')
    a.label('L_probe_w')
    a('s_memrealtime s[14:15]', 's_waitcnt lgkmcnt(0)', 's_sub_u32 s14, s14, s10', 's_cmp_lt_u32 s14, s12', 's_cbranch_scc1 L_probe_w')
    a.label('L_probe_done')
    a('s_endpgm')
    open(dst, 'w').write('\n'.join(lines) + kernel_header('probe_kernel') + a.text() + kernel_desc('probe_kernel', 16, 32))

if __name__ == '__main__':
    for i, spec in enumerate(sys.argv[2:]):
        add(sys.argv[1], f'p{i}.s', spec)
```

```python
from asmlib import *
import struct, math

def fbits(x):
    return hex(struct.unpack('<I', struct.pack('<f', x))[0])

WS_Q   = 0x000000
WS_KV  = 0x280000
WS_H   = 0x780000
WS_O   = 0xE40000
WS_RS  = 0x10C0000
WS_F1  = 0x10D0000
WS_FH  = 0x10E0000
WS_FO  = 0x1100000
WS_EP  = 0x1140000
WS_END = 0x1141000

L_W = 0
L_K = 114688
L_V = 135168
L_MEAN, L_ISTD, L_RSTD = 156160, 156672, 157184
L_TAG = 157696
L_Q0, L_Q1 = L_K + 15360, 158720
LDS_BYTES = 163840
FAR = 0x30000

QSCALE = 20 ** -0.5 * math.log2(math.e)
MAXOFF = 80.0
SPIN = 0x20000
OPT = {}

sW, sRB, sCG, sHead, sQB, sTag, sT0, sT1, sT2, sT3 = range(28, 38)
WS = 's[24:27]'


def gen(name):
    a = Asm()
    NA = OPT.get('na', 5); NB = 9 - NA
    L_A, L_B = (0, 65536) if NA == 4 else (16384 * NB, 0)
    slotA = lambda c: (c + {4: 0, 5: 3, 6: 2}[NA]) % NA
    slotB = lambda c: (c + (3 if NA == 4 else 0)) % NB
    kpos = lambda c: c if c < 10 else (c - NA) % 10
    bar = lambda: a('s_barrier')

    a('s_cmp_ge_u32 s2, 256', 's_cbranch_scc1 L_done')
    a.stamp(0); a.stamp(1, True)
    a('s_load_dwordx2 s[22:23], s[0:1], 80', 's_load_dwordx8 s[4:11], s[0:1], 0', 's_load_dwordx8 s[12:19], s[0:1], 32', 's_load_dwordx2 s[20:21], s[0:1], 64')
    a(f's_lshr_b32 s{sT0}, s2, 3',
      f's_and_b32 s{sRB}, s2, 1', f's_lshl_b32 s{sRB}, s{sRB}, 3', f's_and_b32 s{sT1}, s{sT0}, 7', f's_add_u32 s{sRB}, s{sRB}, s{sT1}',
      f's_lshr_b32 s{sCG}, s2, 1', f's_and_b32 s{sCG}, s{sCG}, 3', f's_lshl_b32 s{sCG}, s{sCG}, 2', f's_lshr_b32 s{sT1}, s2, 6', f's_add_u32 s{sCG}, s{sCG}, s{sT1}',
      f's_and_b32 s{sHead}, s2, 7', f's_lshl_b32 s{sHead}, s{sHead}, 2', f's_and_b32 s{sT0}, s{sT0}, 3', f's_add_u32 s{sHead}, s{sHead}, s{sT0}',
      f's_lshr_b32 s{sQB}, s2, 5')
    a('v_lshrrev_b32 v1, 6, v0', 'v_and_b32 v0, 63, v0', f'v_readfirstlane_b32 s{sW}, v1')
    if OPT.get('cpf', 1):
        a(f's_cmp_lg_u32 s{sW}, 0', 's_cbranch_scc1 L_nocode', 's_getpc_b64 s[40:41]')
        a.label('L_pc')
        a('s_lshr_b32 s42, s2, 3', 's_lshl_b32 s42, s42, 10', f's_mov_b32 s43, L_done-L_pc', 'v_lshlrev_b32 v2, 7, v0', 'v_add_u32 v2, s42, v2', 'v_min_u32 v2, s43, v2',
          'v_mov_b32 v3, s41', 'v_add_co_u32 v2, vcc, s40, v2', 's_mov_b64 exec, 0xff', 's_nop 0', 'v_addc_co_u32 v3, vcc, 0, v3, vcc',
          'global_load_dword v167, v[2:3], off', 's_mov_b64 exec, -1')
        a.label('L_nocode')
    a(f's_cmp_ge_u32 s{sW}, 8', 's_cbranch_scc1 L_helper', f's_cmp_lt_u32 s{sW}, 4', 's_cbranch_scc1 L_x')

    def backoff(key):
        n = OPT.get(key, {'s3': 2}.get(key, 8))
        return [f's_sleep {n}'] if n else []
    def ws_setup():
        a.srd(24, 22, WS_END)
    def lds_tag(t):
        a(f'v_mov_b32 v{t}, {L_TAG}', f'ds_read_b32 v{t}, v{t}', 's_waitcnt lgkmcnt(0)', f'v_readfirstlane_b32 s{sTag}, v{t}')
    def f1_off(d, t, n, m):
        a(f's_lshl_b32 s{d}, s{sCG}, 1', f's_add_u32 s{d}, s{d}, s{n}', f's_lshl_b32 s{d}, s{d}, 10', f's_lshr_b32 s{t}, s{sRB}, 1', f's_lshl_b32 s{t}, s{t}, 7',
          f's_add_u32 s{d}, s{d}, s{t}', f's_add_u32 s{d}, s{d}, {WS_F1}')
        if m is not None:
            a(f's_and_b32 s{t}, s{sRB}, 1', f's_lshl_b32 s{t}, s{t}, 1', f's_add_u32 s{t}, s{t}, s{m}', f's_lshl_b32 s{t}, s{t}, 2', f's_add_u32 s{d}, s{d}, s{t}')

    SD = 48
    SX = 122

    sL, sOA, sOB, sSlot, sMA, sMB, sCnt, sBstep = range(40, 48)
    XA, WB = 48, 52
    vA1, vB1, vB2 = 8, 12, 16
    vA2 = vA1
    a(f's_sub_u32 s{sL}, s{sW}, 4')
    a(f's_cmp_lt_u32 s{sCG}, 15', f's_cselect_b32 s{XA+2}, 2621440, 0', f's_cselect_b32 s{WB+2}, {640*3840}, 0')
    a(f's_mov_b32 s{XA+3}, 0x00020000', f's_mov_b32 s{WB+3}, 0x00020000')
    a(f's_lshl_b32 s{sMA}, s{sL}, 12', f's_mul_i32 s{sOA}, s{sRB}, {128*1280}', f's_lshl_b32 s{sOB}, s{sCG}, 8')
    a(f's_lshr_b32 s{sT0}, s{sL}, 1', f's_lshl_b32 s{sT0}, s{sT0}, 6', f's_and_b32 s{sT1}, s{sL}, 1', f's_add_u32 s{sT0}, s{sT0}, s{sT1}',
      f's_mul_i32 s{sT0}, s{sT0}, 1280', f's_lshl_b32 s{sT1}, s{sT1}, 6')
    a('v_lshrrev_b32 v1, 3, v0', 'v_lshrrev_b32 v2, 4, v0', 'v_and_b32 v3, 7, v0', 'v_xor_b32 v3, v3, v2', 'v_lshlrev_b32 v3, 4, v3', f'v_xor_b32 v3, s{sT1}, v3',
      'v_xor_b32 v4, 64, v3', 'v_mul_u32_u24 v5, 2560, v1', f'v_add_u32 v5, s{sT0}, v5')
    a(f'v_add_u32 v{vA1}, v5, v3', f'v_add_u32 v4, v5, v4', f'v_add_u32 v{vA1+1}, {20480-1024}, v4',
      f'v_add_u32 v{vA1+2}, {2*(20480-1024)}, v{vA1}', f'v_add_u32 v{vA1+3}, {3*(20480-1024)}, v4')
    a('v_and_b32 v6, 15, v0', 'v_lshlrev_b32 v7, 2, v2', 'v_xor_b32 v6, v6, v7', 'v_lshlrev_b32 v6, 4, v6', f's_lshl_b32 s{sT0}, s{sL}, 4', f'v_add_u32 v2, s{sT0}, v2')
    a('v_mul_u32_u24 v7, 3840, v2', f'v_add_u32 v{vB1}, v7, v6')
    for i in range(1, 4):
        a(f'v_add_u32 v{vB1+i}, {i*(4*3840-1024)}, v{vB1}')

    def ldA(c, lo=0, hi=4):
        a(f's_add_u32 m0, s{sMA}, {L_A + slotA(c) * 16384}', f's_add_u32 s{sT0}, s{sOA}, {128*kpos(c)}')
        for i in range(lo, hi):
            a.vmem(f'buffer_load_dwordx4 v{vA1+i}, s[{XA}:{XA+3}], s{sT0} offen offset:{1024*i} lds', ('c', c))
    def ldB(c):
        a(f's_add_u32 m0, s{sMA}, {L_B + slotB(c) * 16384}', f's_add_u32 s{sT0}, s{sOB}, {64*kpos(c)*(3840 if c < 10 else 3456)}')
        for i in range(4):
            a.vmem(f'buffer_load_dwordx4 v{(vB1 if c < 10 else vB2)+i}, s[{WB}:{WB+3}], s{sT0} offen offset:{1024*i} lds', ('c', c))

    a.vm = []
    a('s_waitcnt lgkmcnt(0)', f's_mov_b32 s{XA}, s4', f's_mov_b32 s{XA+1}, s5', f's_mov_b32 s{WB}, s6', f's_mov_b32 s{WB+1}, s7')
    ldA(0); ldB(0)
    ws_setup()
    ldA(1); ldB(1)
    a('v_mul_u32_u24 v7, 3456, v2', f'v_add_u32 v{vB2}, v7, v6')
    for i in range(1, 4):
        a(f'v_add_u32 v{vB2+i}, {i*(4*3456-1024)}, v{vB2}')
    cnts = {4: {11: 2, 12: 3, 13: 3, 14: 4, 15: 4, 16: 4, 17: 4}, 5: {12: 2, 13: 2, 14: 4, 15: 4, 16: 4, 17: 4}, 6: {13: 2, 14: 3, 15: 3, 16: 4, 17: 4},
            15: {11: 2, 12: 3, 13: 3, 14: 3, 15: 3, 16: 3, 17: 3}, 16: {12: 2, 13: 3, 14: 3, 15: 3, 16: 3, 17: 2}}[NA + 10 * OPT.get('late', 0)]
    lateA, n = {}, 0
    for c, cnt in cnts.items():
        lateA[c] = []
        while cnt:
            take = min(cnt, 4 - n % 4); ch = 10 + NA + n // 4
            assert ch - NA + 1 <= c <= ch - 2
            lateA[c].append((ch, n % 4, n % 4 + take)); n += take; cnt -= take
    assert n == 4 * (10 - NA)
    nb = 2
    c0 = OPT.get('c0', 99)
    for c in range(19):
        rec = c0 <= c < c0 + 4
        if rec: a.stamp(2 + 3 * (c - c0))
        a.wait_vm(('c', c))
        if rec: a.stamp(3 + 3 * (c - c0))
        bar()
        if rec: a.stamp(4 + 3 * (c - c0))
        if c == 8:
            a(f's_cmp_lt_u32 s{sCG}, 14', f's_cselect_b32 s{XA+2}, 2621440, 0', f's_cselect_b32 s{WB+2}, {640*3456}, 0', f's_mov_b32 s{WB}, s12', f's_mov_b32 s{WB+1}, s13')
        if c < 8:
            ldA(c + 2)
        for args in lateA.get(c, []):
            ldA(*args)
        for _ in range(1 if c < 8 else 2):
            if nb < 20 and nb <= c + NB - 1:
                ldB(nb); nb += 1
    assert nb == 20
    zvm = list(a.vm)
    a('s_branch L_attn_z')

    R = Regs(2)
    vH, vTok = R(), R()
    vAa = R(4); vBa = R(2)
    F = [(R(8), R(8)), (R(8), R(8))]
    FR = F[0][0]
    acc = R(64)
    tmp = R(16)
    sM, sN, sDA, sDB, sSA, sSB = range(40, 46)
    sCntC = 55
    sOff, sHS, sScale = 52, 53, 54

    def gemm_setup(wave_base, c0, maybe_v):
        a(f's_sub_u32 s{sN}, s{sW}, {wave_base}', f's_and_b32 s{sM}, s{sN}, 1', f's_lshr_b32 s{sN}, s{sN}, 1')
        a(f'v_lshrrev_b32 v{vH}, 5, v0', f'v_and_b32 v{vTok}, 31, v0', f'v_mov_b32 v{tmp}, v{vTok}')
        if maybe_v:
            a(f's_cmp_lt_u32 s{sCG}, 10', 's_cbranch_scc1 L_x_rows', f'v_and_b32 v1, 1, v0', f'v_lshrrev_b32 v{tmp}, 1, v{vTok}', f'v_lshl_add_u32 v{tmp}, v1, 5, v{tmp}')
            a.label('L_x_rows')
        a(f'v_bfe_u32 v1, v{tmp}, 1, 3', f'v_xor_b32 v1, v1, v{vH}', f'v_lshrrev_b32 v{tmp+1}, 5, v{tmp}', f'v_lshlrev_b32 v{tmp+1}, 2, v{tmp+1}', f'v_xor_b32 v1, v1, v{tmp+1}')
        a(f's_lshl_b32 s{sT0}, s{sM}, 13', f's_add_u32 s{sT0}, s{sT0}, {L_A+16384*slotA(c0)}', f'v_lshlrev_b32 v{tmp}, 7, v{tmp}', f'v_add_u32 v{tmp}, s{sT0}, v{tmp}')
        for st in range(4):
            a(f'v_xor_b32 v{tmp+1}, {2*st}, v1', f'v_lshl_add_u32 v{vAa+st}, v{tmp+1}, 4, v{tmp}')
        a('v_lshrrev_b32 v1, 2, v0', 'v_and_b32 v1, 3, v1')
        a(f'v_lshl_add_u32 v{tmp}, v{vH}, 3, v1', f'v_lshlrev_b32 v{tmp}, 8, v{tmp}')
        a(f'v_and_b32 v{tmp+1}, 3, v0', f'v_lshl_add_u32 v{tmp}, v{tmp+1}, 3, v{tmp}')
        a(f'v_and_b32 v{tmp+1}, 16, v0', f'v_lshl_add_u32 v{tmp}, v{tmp+1}, 1, v{tmp}', f'v_add_u32 v{tmp}, {L_B+16384*slotB(c0)}, v{tmp}')
        a(f's_lshl_b32 s{sT0}, s{sN}, 1', f'v_xor_b32 v1, s{sT0}, v1')
        a(f'v_lshl_add_u32 v{vBa}, v1, 6, v{tmp}', 'v_xor_b32 v1, 1, v1', f'v_lshl_add_u32 v{vBa+1}, v1, 6, v{tmp}')
        a(f's_mov_b32 s{sSA}, {slotA(c0)}', f's_mov_b32 s{sSB}, {slotB(c0)}', f's_mov_b32 s{sCntC}, 10')

    def zero_acc(lo, hi):
        for i in range(lo, hi):
            a(f'v_mov_b32 v{acc+i}, 0')

    def reads(st, f, swap):
        FA, FB = F[f]
        return [f'ds_read_b128 {v(FA,4)}, v{vAa+st}',
                f'ds_read_b64_tr_b16 {v(FB,2)}, v{vBa} offset:{4096*st}',
                f'ds_read_b64_tr_b16 {v(FB+2,2)}, v{vBa} offset:{4096*st+1024}',
                f'ds_read_b64_tr_b16 {v(FB+4,2)}, v{vBa+1} offset:{4096*st}',
                f'ds_read_b64_tr_b16 {v(FB+6,2)}, v{vBa+1} offset:{4096*st+1024}',
                f'ds_read_b128 {v(FA+4,4)}, v{vAa+st} offset:2048' if swap else f'ds_read_b128 {v(FA+4,4)}, v{vAa+(st^2)} offset:4096']

    def mfmas(f, swap):
        FA, FB = F[f]
        out = []
        for t, u in ((0, 0), (0, 1), (1, 1), (1, 0)):
            x, w = FA + 4 * t, FB + 4 * u
            out.append(M16(acc + 32 * t + 16 * u, x, w) if swap else M16(acc + 32 * t + 16 * u, w, x))
        return out

    CT, CF, CR = SX, SX + 4, SX + 8
    PA, CS = SX + 32, [SX + 36, SX + 40]
    def colsum(f):
        return [f'v_mfma_f32_16x16x32_bf16 {v(CS[u],4)}, {v(PA,4)}, {v(F[f][1]+4*u,4)}, {v(CS[u],4)}' for u in range(2)]
    def colsum_setup():
        a(f'v_cmp_eq_u32 vcc, 0, v{vTok}', f'v_cmp_eq_u32 s[46:47], 20, v{vTok}', 'v_mov_b32 v1, 0x3f803f80', 's_nop 0', 's_or_b64 vcc, vcc, s[46:47]', 's_nop 1')
        for i in range(4):
            a(f'v_cndmask_b32 v{PA+i}, 0, v1, vcc')
        for i in range(8):
            a(f'v_mov_b32 v{CS[0]+i}, 0')
    def corr_split():
        out = []
        for t in range(2):
            out += [CVT(CT + 2 * t, CR + t, CR + t), CVT(CF + 2 * t, CS[t], CS[t])]
        for t in range(2):
            out += [f'v_and_b32 v{CR+4+t}, 0xffff0000, v{CT+2*t}', f'v_and_b32 v{CR+6+t}, 0xffff0000, v{CF+2*t}']
        for t in range(2):
            out += [f'v_sub_f32 v{CR+4+t}, v{CR+t}, v{CR+4+t}', f'v_sub_f32 v{CR+6+t}, v{CS[t]}, v{CR+6+t}']
        for t in range(2):
            out += [CVT(CT + 2 * t + 1, CR + 4 + t, CR + 4 + t), CVT(CF + 2 * t, CS[t], CR + 6 + t), CVT(CF + 2 * t + 1, CS[t], CR + 6 + t)]
        return out
    def corr_mfma(swap, c=None):
        out = []
        for t, u in ((0, 0), (0, 1), (1, 1), (1, 0)):
            x, w = CT + 2 * t, CF + 2 * u
            out.append(M8(acc + 32 * t + 16 * u, x, w, c) if swap else M8(acc + 32 * t + 16 * u, w, x, c))
        return out

    def mainloop(tagname, swap, pre_last):
        bar()
        a.stamp(3)
        a(reads(0, 0, swap))
        a.label(f'L_loop_{tagname}')
        for st in range(3):
            m = mfmas(st & 1, swap); rd = reads(st + 1, (st + 1) & 1, swap)
            a('s_waitcnt lgkmcnt(3)', m[0], rd[0:3], 's_waitcnt lgkmcnt(4)', m[1], rd[3:6], 's_waitcnt lgkmcnt(6)', m[2])
            if st == 0:
                a(f's_add_u32 s{sSA}, s{sSA}, 1', f's_cmp_eq_u32 s{sSA}, {NA}', CSEL(sDA, -16384*(NA-1), 16384), f's_cselect_b32 s{sSA}, 0, s{sSA}')
            if st == 1:
                a(f's_add_u32 s{sSB}, s{sSB}, 1', f's_cmp_eq_u32 s{sSB}, {NB}', CSEL(sDB, -16384*(NB-1), 16384), f's_cselect_b32 s{sSB}, 0, s{sSB}')
            if st == 2:
                a(f'v_add_u32 v{vAa}, s{sDA}, v{vAa}', f'v_add_u32 v{vBa}, s{sDB}, v{vBa}', f'v_add_u32 v{vBa+1}, s{sDB}, v{vBa+1}')
            a(colsum(st & 1), m[3])
            if st == 2:
                a(f's_sub_u32 s{sCntC}, s{sCntC}, 1')
                for r in (vAa + 1, vAa + 2, vAa + 3):
                    a(f'v_add_u32 v{r}, s{sDA}, v{r}')
        m = mfmas(1, swap); rd = reads(0, 0, swap)
        a(f's_cmp_eq_u32 s{sCntC}, 0', 's_waitcnt lgkmcnt(0)', 's_barrier', f's_cbranch_scc1 L_last_{tagname}')
        a(m[0], rd[0:3], m[1], rd[3:6], m[2], colsum(1), m[3], f's_branch L_loop_{tagname}')
        a.label(f'L_last_{tagname}')
        sp = corr_split()
        a(pre_last[:1], colsum(1), m[0], pre_last[1:], 's_nop 3', m[1], f's_waitcnt lgkmcnt({len(pre_last)-1})', sp[:5], m[2], sp[5:11], m[3], sp[11:], 's_nop 1', corr_mfma(swap))
        a.stamp(4)

    a.label('L_x')
    XBAR = {0: (1, 4), 1: (1, 3, 5), 2: (0, 2, 5), 3: (2, 5), 4: (3,), 5: (2,), 6: (2, 6), 7: (), 8: (4,)}[OPT.get('xbar', 7)]
    XSIG = OPT.get('xsig', 13)
    gemm_setup(0, 0, True)
    a('s_waitcnt lgkmcnt(0)')
    ws_setup()
    zero_acc(0, 64)
    colsum_setup()
    vAd, vSa, vSb = tmp, tmp + 8, tmp + 9
    t0, t1, t2 = tmp + 10, tmp + 11, tmp + 12
    a(f's_cmp_lt_u32 s{sCG}, 5',
      CSEL(sHS, 81920, 163840), f's_cselect_b32 s{sScale}, {fbits(QSCALE)}, 1.0',
      CSEL(sT0, 5120, 10240), CSEL(sOff, WS_Q, WS_KV), f's_cselect_b32 s{sT1}, 0, 5')
    a(f's_mul_i32 s{sT0}, s{sT0}, s{sRB}', f's_add_u32 s{sOff}, s{sOff}, s{sT0}',
      f's_mul_i32 s{sT0}, s{sM}, 2560', f's_add_u32 s{sOff}, s{sOff}, s{sT0}')
    a(f's_sub_u32 s{sT1}, s{sCG}, s{sT1}', f's_lshl_b32 s{sT1}, s{sT1}, 1', f's_add_u32 s{sT1}, s{sT1}, s{sN}', f's_lshl_b32 s{sT1}, s{sT1}, 4',
      f's_sub_u32 s{sHS}, s{sHS}, 2560')
    a(f'v_add_u32 v1, s{sT1}, v{vH}', f'v_lshlrev_b32 v{t2}, 4, v{vTok}', f'v_lshl_add_u32 v{t2}, v1, 9, v{t2}', 'v_mul_u32_u24 v1, 205, v1')
    for i in range(8):
        a(f'v_add_u32 v{t0}, {2*i*205}, v1', f'v_lshrrev_b32 v{t0}, 10, v{t0}', f'v_mad_u32_u24 v{vAd+i}, v{t0}, s{sHS}, v{t2}')
        if i >= 4:
            a(f'v_add_u32 v{vAd+i}, 4096, v{vAd+i}')
    vSc = tmp + 13
    a(f's_lshl_b32 s{sT2}, s{sM}, 8', f's_add_u32 s{sT2}, s{sT2}, {L_MEAN}', f'v_lshl_add_u32 v{vSc}, v{vTok}, 3, s{sT2}', f'v_lshl_add_u32 v{vSa}, v{vH}, 9, v{vSc}')
    a(f's_cmp_lt_u32 s{sCG}, 10', 's_cbranch_scc1 L_x_st')
    a(f's_mul_i32 s{sOff}, s{sRB}, 10240', f's_mul_i32 s{sT0}, s{sM}, 2560', f's_add_u32 s{sOff}, s{sOff}, s{sT0}', f's_add_u32 s{sOff}, s{sOff}, {WS_KV+5120}')
    a(f's_sub_u32 s{sT1}, s{sCG}, 10', f's_lshl_b32 s{sT1}, s{sT1}, 7', f's_lshl_b32 s{sT0}, s{sN}, 6', f's_add_u32 s{sT1}, s{sT1}, s{sT0}',
      f'v_add_u32 v1, s{sT1}, v{vTok}', f'v_mul_u32_u24 v{t2}, 320, v{vH}')
    for u in range(2):
        a(f'v_add_u32 v{t0}, {32*u}, v1', f'v_mul_u32_u24 v{t1}, 3277, v{t0}', f'v_lshrrev_b32 v{t1}, 16, v{t1}',
          f'v_mul_u32_u24 v{t1}, {163840-320}, v{t1}', f'v_lshl_add_u32 v{t1}, v{t0}, 4, v{t1}', f'v_add_u32 v{vAd+u}, v{t1}, v{t2}')
    a(f'v_lshl_add_u32 v{vSa}, v{vTok}, 2, s{sT2}', f'v_lshl_add_u32 v{vSa}, v{vH}, 9, v{vSa}', f'v_lshl_add_u32 v{vSc}, v{vH}, 4, s{sT2}')
    a.label('L_x_st')
    a.stamp(2)
    a(f's_cmp_lt_u32 s{sCG}, 15', 's_cbranch_scc1 L_x_act')
    for _ in range(16):
        bar()
    lds_tag(1)
    a('s_branch L_attn')
    a.label('L_x_act')
    a('s_setprio 1')
    a(f's_cmp_ge_u32 s{sCG}, 10', 's_cbranch_scc1 L_x_v')
    vRs = SX + 16
    mainloop('qk', False, [f'ds_read_b64 {v(CR,2)}, v{vSa}', f'ds_read_b64 {v(vRs,2)}, v{vSc} offset:{L_RSTD-L_MEAN}'])
    a(f's_setprio {OPT.get("xprio", 2)}', 's_waitcnt lgkmcnt(0)')
    a(f'v_mul_f32 v{vRs}, s{sScale}, v{vRs}', f'v_mul_f32 v{vRs+1}, s{sScale}, v{vRs+1}', 's_nop 5')
    for n, i in enumerate((4, 5, 6, 7, 0, 1, 2, 3)):
        u, q = i // 4, i % 4
        pk = FR + 4 * n
        for t in range(2):
            r = acc + 32 * t + 16 * u + 4 * q
            for e in range(4):
                a(f'v_mul_f32 v{r+e}, v{vRs+t}, v{r+e}')
            a(CVT(pk + 2 * t, r), CVT(pk + 2 * t + 1, r + 2))
        a(f'buffer_store_dwordx4 {v(pk,4)}, v{vAd+i}, {WS}, s{sOff} offen offset:{1024*(i%4)} sc1')
        if n in XBAR:
            bar()
    a('s_branch L_x_sig')
    a.label('L_x_v')
    def v_stats(t, dst):
        return [f'ds_read_b128 {v(dst+4*q,4)}, v{vSc} offset:{L_RSTD-L_MEAN+128*t+32*q}' for q in range(4)]
    mainloop('v', True, [f'ds_read2_b32 {v(CR,2)}, v{vSa} offset0:0 offset1:32'] + v_stats(0, vRs))
    a(f's_setprio {OPT.get("xprio", 2)}', v_stats(1, FR), 's_waitcnt lgkmcnt(4)', 's_nop 2')
    n = 0
    for t in range(2):
        st_ = FR if t else vRs
        if t:
            a('s_waitcnt lgkmcnt(0)')
        for u in range(2):
            for ap in range(2):
                r = acc + 32 * t + 16 * u + 8 * ap
                for e in range(8):
                    a(f'v_mul_f32 v{r+e}, v{st_+8*ap+e}, v{r+e}')
                for e in range(4):
                    a(CVT(r + e, r + 2 * e))
                a(f'buffer_store_dwordx4 {v(r,4)}, v{vAd+u}, {WS}, s{sOff} offen offset:{640*(2*t+ap)} sc1')
                if n in XBAR:
                    bar()
                n += 1
    a.label('L_x_sig')
    a.stamp(5)
    lds_tag(4)
    f1_off(sT0, sT1, sN, sM)
    a('v_mov_b32 v1, 0', 's_mov_b64 vcc, 1')
    for _ in range(XSIG - 10 - len(XBAR)):
        bar()
    a('s_mov_b64 exec, vcc', 's_waitcnt vmcnt(0)', f'buffer_store_dword v4, v1, {WS}, s{sT0} offen sc1', 's_mov_b64 exec, -1')
    a.stamp(6)
    for _ in range(15 - XSIG):
        bar()

    a.label('L_attn')
    if 'c0' in OPT:
        a.lock = tuple(range(2, 14))
    a.stamp(7)
    R = Regs(2)
    vH, vTokA, vVa, vK2a = R(), R(), R(), R()
    vKa = [R(), R()]
    Q1 = R(4); Q2 = [R(2), R(2)]
    S = [R(16), R(16)]
    P = R(8); O = R(16); C = R(16)
    K1 = [R(4), R(4)]; V = [R(8), R(8)]; K2 = R(2)
    tp = R(8)
    sCnt, sKV, sPass, sM40 = 40, 41, 42, 44
    vKg = tp + 6
    def a_setup():
        a(f'v_lshrrev_b32 v{vH}, 5, v0', f'v_and_b32 v{vTokA}, 31, v0', f's_mul_i32 s{sKV}, s{sHead}, 163840', f's_add_u32 s{sKV}, s{sKV}, {WS_KV}')
        a(f'v_lshlrev_b32 v{vK2a}, 3, v{vTokA}', f'v_lshl_add_u32 v{vKg}, v{vH}, 9, v{vK2a}')
        a(f'v_add_u32 v{vKa[0]}, {L_K}, v{vKg}', f'v_add_u32 v{vKa[1]}, {L_K+256}, v{vKg}', f'v_lshlrev_b32 v{vK2a}, 3, v0', f'v_add_u32 v{vK2a}, {L_K+2048}, v{vK2a}')
        a(f'v_lshlrev_b32 v{vVa}, 4, v{vTokA}', f'v_mul_u32_u24 v{K2}, 320, v{vH}', f'v_add_u32 v{vVa}, v{vVa}, v{K2}', f'v_add_u32 v{vVa}, {L_V}, v{vVa}')
        a(f'v_cmp_eq_u32 vcc, 20, v{vTokA}', f'v_mov_b32 v{K2}, {L_V+640}', f'v_mov_b32 v{K2+1}, {FAR}', f'v_cndmask_b32 v{vVa}, v{vVa}, v{K2}, vcc',
          f'v_cmp_lt_u32 vcc, 20, v{vTokA}', 's_nop 1', f'v_cndmask_b32 v{vVa}, v{vVa}, v{K2+1}, vcc')
        for i in range(16):
            a(f'v_mov_b32 v{O+i}, 0')
        for i in range(4):
            a(f'v_mov_b32 v{P+4+i}, 0', f'v_mov_b32 v{V[1]+4+i}, 0')
        a(f's_lshr_b32 s{sT0}, s{sW}, 1', f's_cmp_lt_u32 s{sT0}, 2', CSEL(sT1, L_Q0, L_Q1 - 5120), f's_mul_i32 s{sT0}, s{sT0}, 2560', f's_add_u32 s{sT0}, s{sT0}, s{sT1}',
          f's_and_b32 s{sT1}, s{sW}, 1', f's_lshl_b32 s{sT1}, s{sT1}, 3', f's_add_u32 s{sT0}, s{sT0}, s{sT1}',
          f'v_lshl_add_u32 v{vQb}, v{vTokA}, 4, s{sT0}', f'v_lshl_add_u32 v{vQa}, v{vH}, 9, v{vQb}')
    vQa, vQb = tp + 4, tp + 5
    a_setup()
    sP, sNB, sSpin = 48, 49, 50
    if True:
        a(f's_mul_i32 s{sT0}, s{sHead}, 20', f's_add_u32 s{sT1}, s{sT0}, 19', f's_lshr_b32 s{sT0}, s{sT0}, 6', f's_lshr_b32 s{sT1}, s{sT1}, 6', f's_sub_u32 s{sT1}, s{sT1}, s{sT0}',
          f's_lshl_b32 s{sT1}, s{sT1}, 10', f's_lshl_b32 s{sP}, s{sT0}, 10', f's_add_u32 s{sP}, s{sP}, {WS_F1}')
        a(f'v_min_u32 v{tp}, 47, v0', f'v_and_b32 v1, 7, v{tp}', 'v_lshlrev_b32 v1, 7, v1', f'v_bfe_u32 v{tp+1}, v{tp}, 3, 1', f'v_mad_u32_u24 v1, v{tp+1}, s{sT1}, v1',
          f'v_lshrrev_b32 v{tp}, 4, v{tp}', f'v_mul_u32_u24 v{tp}, 10240, v{tp}', f'v_add_u32 v1, v1, v{tp}')
    a(f's_mov_b32 s{sSpin}, {SPIN}')
    a(f's_mov_b32 s{sM40}, -1', f's_mov_b32 s{sM40+1}, 0xff')
    a(f's_lshl_b32 s{sT0}, s{sHead}, 5', f's_lshl_b32 s{sT1}, s{sQB}, 2', f's_add_u32 s{sT0}, s{sT0}, s{sT1}', f's_add_u32 s{sT0}, s{sT0}, s{sW}', f's_mul_i32 s51, s{sT0}, 2560',
      f's_add_u32 s51, s51, {WS_Q}', f's_cmp_lt_u32 s{sW}, 2', CSEL(sT1, L_Q0, L_Q1 - 5120), f's_mul_i32 s52, s{sW}, 2560', f's_add_u32 s52, s52, s{sT1}')
    a(f's_mul_i32 s{sT0}, s{sW}, 1280', f's_mul_i32 s{sT1}, s{sW}, 1312', f's_add_u32 s{sT2}, s{sT0}, s{sKV}')
    poll1 = f'buffer_load_dwordx4 {v(tp,4)}, v1, {WS}, s{sP} offen sc1'
    check = ['s_waitcnt vmcnt(0)'] + [f'v_xor_b32 v{tp+i}, s{sTag}, v{tp+i}' for i in range(4)] + [
        f'v_or3_b32 v{tp}, v{tp}, v{tp+1}, v{tp+2}', f'v_or_b32 v{tp}, v{tp}, v{tp+3}', f'v_cmp_ne_u32 vcc, 0, v{tp}', 's_nop 1', 's_cmp_eq_u64 vcc, 0', 's_cbranch_scc1 L_poll1_ok']
    bar()
    a(poll1, f's_mov_b32 s{sNB}, 2')
    a.label('L_poll1a')
    bar()
    a(check, poll1, f's_sub_u32 s{sNB}, s{sNB}, 1', 's_cbranch_scc0 L_poll1a', f's_mov_b32 s{sNB}, 0')
    a.label('L_poll1b')
    a(check, f's_sub_u32 s{sSpin}, s{sSpin}, 1', 's_cbranch_scc1 L_poll1_ok', backoff('s1'), poll1, 's_branch L_poll1b')
    a.label('L_poll1_ok')
    a.stamp(8)
    a('v_lshlrev_b32 v1, 4, v0', 's_mov_b32 m0, s52', f's_mov_b64 exec, s[{sM40}:{sM40+1}]')
    for i in range(4):
        a(f'buffer_load_dwordx4 v1, {WS}, s51 offen offset:{640*i} sc1 lds')
    for c in range(2):
        a(f's_add_u32 m0, s{sT0}, {L_K+5120*c}', f's_add_u32 s{sT3}, s{sT2}, {10240*c}')
        a(f'buffer_load_dwordx4 v1, {WS}, s{sT3} offen sc1 lds', f'buffer_load_dwordx4 v1, {WS}, s{sT3} offen offset:640 sc1 lds')
        a(f's_add_u32 m0, s{sT1}, {L_V+5248*c}', f's_add_u32 s{sT3}, s{sT3}, 5120')
        a(f'buffer_load_dwordx4 v1, {WS}, s{sT3} offen sc1 lds', f's_sub_u32 s{sT3}, s{sT3}, 16', f'buffer_load_dwordx4 v1, {WS}, s{sT3} offen offset:656 sc1 lds')
    a('s_mov_b64 exec, -1')
    a.label('L_rest')
    a(f's_sub_u32 s{sNB}, s{sNB}, 1', 's_cbranch_scc1 L_rest_done', 's_barrier', 's_branch L_rest')
    a.label('L_rest_done')
    a('s_waitcnt vmcnt(4)', 's_branch L_attn_j')
    a.label('L_attn_z')
    a.vm = zvm
    lds_tag(1)
    a_setup()
    a(f'v_mul_u32_u24 v1, 656, v{vTokA}', f'v_add_u32 v1, {L_V+640}, v1')
    for i in range(4):
        a(f'v_mov_b32 v{K1[0]+i}, 0x3f803f80')
    a(f's_cmp_lg_u32 s{sW}, 4', 's_cbranch_scc1 L_noones', f'ds_write_b128 v1, {v(K1[0],4)}')
    a.label('L_noones')
    a.wait_vm(('c', 19))
    bar()
    a('s_waitcnt lgkmcnt(0)')
    a.label('L_attn_j')
    sHi = 46
    a('s_mov_b32 vcc_lo, -1', 's_mov_b32 vcc_hi, 0', f's_mov_b32 s{sHi}, -1', f's_mov_b32 s{sHi+1}, 0')

    def rdK1(dst, blk):
        o = (blk // 2 % 8) * 5
        return f'ds_read2st64_b64 {v(dst,4)}, v{vKa[blk % 2]} offset0:{o} offset1:{o+2}'
    def rdK2(pair):
        return f'ds_read_b64 {v(K2,2)}, v{vK2a} offset:{(pair % 8) * 2560}'
    def rdV(dst, blk, half):
        return f'ds_read_b128 {v(dst+4*half,4)}, v{vVa} offset:{((blk % 16) * 2 + half) * 656}'

    a.stamp(9)
    bar()
    a.stamp(10)
    a(f'ds_read2st64_b64 {v(Q1,4)}, v{vQa} offset0:0 offset1:2', rdK1(K1[0], 0), rdK1(K1[1], 1), f'ds_read_b64 {v(tp,2)}, v{vQb} offset:2048', rdK2(0),
      rdV(V[0], 0, 0), rdV(V[0], 0, 1), 's_waitcnt lgkmcnt(5)')
    a(M16(S[0], K1[0], Q1, '0'), 's_waitcnt lgkmcnt(3)')
    for i in range(2):
        a(f'v_cndmask_b32 v{Q2[0]+i}, 0, v{tp+i}, vcc')
    for i in range(2):
        a(f'v_cndmask_b32 v{Q2[1]+i}, v{tp+i}, 0, s[{sHi}:{sHi+1}]')
    a(M16(S[1], K1[1], Q1, '0'), 's_waitcnt lgkmcnt(2)', M8(S[0], K2, Q2[0]), M8(S[1], K2, Q2[1]), 's_nop 10')
    a(f'v_max3_f32 v{tp}, v{S[0]}, v{S[0]+1}, v{S[0]+2}')
    for i in range(3, 15, 2):
        a(f'v_max3_f32 v{tp}, v{tp}, v{S[0]+i}, v{S[0]+i+1}')
    a(f'v_max3_f32 v{tp}, v{tp}, v{S[0]+15}, v{S[1]}')
    for i in range(1, 15, 2):
        a(f'v_max3_f32 v{tp}, v{tp}, v{S[1]+i}, v{S[1]+i+1}')
    a(f'v_max_f32 v{tp}, v{tp}, v{S[1]+15}', f'v_mov_b32 v{tp+1}, v{tp}', 's_nop 1', f'v_permlane32_swap_b32 v{tp}, v{tp+1}', 's_nop 1')
    a(f'v_max_f32 v{tp}, v{tp}, v{tp+1}', f'v_sub_f32 v{C}, {fbits(-MAXOFF)}, v{tp}')
    a(f'v_mov_b32 v{C+1}, v{C}')
    for i in range(2, 16, 2):
        a(f'v_mov_b64 {v(C+i,2)}, {v(C,2)}')
    a('s_nop 1', M16(S[0], K1[0], Q1, C), M8(S[0], K2, Q2[0]), f's_mov_b32 s{sCnt}, 4', 's_waitcnt vmcnt(0)', 's_nop 7')
    a.stamp(11)
    a.raw('.p2align 3')
    a.label('L_at_loop')
    for b in range(16):
        cur, nxt = S[b & 1], S[(b + 1) & 1]
        E = lambda i: EXP(cur + i)
        Cv = lambda i: CVT(P + i, cur + 2 * i)
        a(M16(nxt, K1[(b + 1) & 1], Q1, C))
        if b % 4 == 2:
            bar()
        a(f's_setprio {3 - (b + 2) % 4}', rdK1(K1[b & 1], b + 2))
        a(E(0), E(1), E(2), Cv(0), E(3), E(4))
        a(M16(O, V[(b + 1) & 1] + 4, P + 4), 's_waitcnt lgkmcnt(1)', rdV(V[(b + 1) & 1], b + 1, 0), rdV(V[(b + 1) & 1], b + 1, 1))
        a(Cv(1), E(5), E(6), Cv(2), E(7), E(8))
        a(M8(nxt, K2, Q2[(b + 1) & 1]))
        a(Cv(3), E(9), E(10), Cv(4), E(11), E(12))
        a(M16(O, V[b & 1], P), 's_waitcnt lgkmcnt(2)')
        if b % 2 == 0:
            a(rdK2(b // 2 + 1))
        if b == 15:
            a(f's_sub_u32 s{sCnt}, s{sCnt}, 1', f's_cmp_lg_u32 s{sCnt}, 0')
        a(Cv(5), E(13), E(14), E(15), Cv(6), Cv(7))
    a('s_cbranch_scc1 L_at_loop')
    a('s_nop 0', M16(O, V[1] + 4, P + 4), f's_mov_b32 s{sPass}, 0', 's_waitcnt lgkmcnt(0)')
    a.stamp(12)

    a.label('L_at_fin')
    a(f's_lshl_b32 s{sT0}, s{sQB}, 3', f's_add_u32 s{sT0}, s{sT0}, s{sW}', f's_mul_i32 s{sT0}, s{sT0}, 40960', f's_add_u32 s{sT0}, s{sT0}, {WS_O}',
      f's_lshl_b32 s{sT1}, s{sHead}, 10', f's_add_u32 s{sT1}, s{sT1}, s{sT0}',
      f's_lshl_b32 s{sT2}, s{sHead}, 8', f's_add_u32 s{sT2}, s{sT2}, s{sT0}', f's_add_u32 s{sT2}, s{sT2}, 32768', f's_mov_b32 s{sT3}, {fbits(2.0**-100)}', 's_nop 1')
    vL, vSum = tp, tp + 1
    a(f'v_mov_b32 v{vL}, v{O+8}', f'v_mov_b32 v{tp+2}, v{O+8}', f'v_add_f32 v{vSum}, |v{O}|, |v{O+1}|', f'v_add_f32 v{tp+3}, |v{O+8}|, |v{O+9}|')
    a(f'v_permlane32_swap_b32 v{tp+2}, v{vL}')
    for i in range(2, 8):
        a(f'v_add_f32 v{vSum}, v{vSum}, |v{O+i}|')
    a(f'v_add_f32 v{tp+3}, v{tp+3}, |v{O+10}|', f'v_add_f32 v{tp+3}, v{tp+3}, |v{O+11}|', f'v_add_f32 v{tp+3}, v{tp+3}, v{vSum}')
    a(f'v_rcp_f32 v{vL}, v{vL}')
    a(f'v_cmp_ngt_f32 vcc, {fbits(2.0**120)}, v{tp+3}', f'v_cmp_gt_f32 s[46:47], s{sT3}, v{vSum}', 's_nop 1',
      's_or_b64 s[46:47], s[46:47], vcc', f's_cmp_eq_u32 s{sPass}, 0', 's_cselect_b64 s[46:47], s[46:47], 0', 's_cmp_lg_u64 s[46:47], 0',
      's_cbranch_scc1 L_at_slow')
    for i in range(12):
        a(f'v_mul_f32 v{O+i}, v{O+i}, v{vL}')
    for i in range(6):
        a(CVT(O + i, O + 2 * i))
    a('v_lshlrev_b32 v1, 4, v0', f'v_lshlrev_b32 v{tp}, 3, v0')
    a(f'buffer_store_dwordx4 {v(O,4)}, v1, {WS}, s{sT1} offen sc1')
    a('s_mov_b32 exec_hi, 0')
    a(f'buffer_store_dwordx2 {v(O+4,2)}, v{tp}, {WS}, s{sT2} offen sc1')
    FOS = OPT.get('fos', 2)
    a(f's_lshl_b32 s{sT0}, s{sQB}, 3', f's_add_u32 s{sT0}, s{sT0}, s{sW}', f's_lshl_b32 s{sT0}, s{sT0}, 12', f's_lshr_b32 s{sT1}, s{sHead}, {FOS}', f's_lshl_b32 s{sT1}, s{sT1}, 7',
      f's_add_u32 s{sT0}, s{sT0}, s{sT1}', f's_and_b32 s{sT1}, s{sHead}, {(1<<FOS)-1}', f's_lshl_b32 s{sT1}, s{sT1}, 2',
      f's_add_u32 s{sT0}, s{sT0}, s{sT1}', f's_add_u32 s{sT0}, s{sT0}, {WS_FO}', f'v_mov_b32 v1, s{sTag}', 'v_mov_b32 v2, 0', 's_mov_b64 exec, 1')
    a('s_waitcnt vmcnt(0)', f'buffer_store_dword v1, v2, {WS}, s{sT0} offen sc1')
    a.stamp(13)
    a.dump(0, sW, 24)
    a('s_endpgm')

    a.label('L_at_slow')
    vVg, vL8s = tp + 4, tp + 7
    a(f'v_min_u32 v1, 19, v{vTokA}', 'v_lshlrev_b32 v1, 4, v1', f'v_mul_u32_u24 v{vVg}, 320, v{vH}', f'v_add_u32 v{vVg}, v1, v{vVg}', f'v_lshlrev_b32 v{vL8s}, 3, v0')
    a(f'v_mov_b32 v{tp}, 0xff800000', f's_mov_b32 s{sCnt}, 0')
    def pair_off():
        a(f's_lshr_b32 s{sT0}, s{sCnt}, 1', f's_mul_i32 s{sT0}, s{sT0}, 10240', f's_and_b32 s{sT1}, s{sCnt}, 1', f's_mul_i32 s{sT1}, s{sT1}, 2560',
          f's_add_u32 s{sT0}, s{sT0}, s{sT1}', f's_add_u32 s{sT0}, s{sT0}, s{sKV}', f's_add_u32 s{sT1}, s{sT0}, 5120')
    def ldK():
        for b in range(2):
            a(f'buffer_load_dwordx2 {v(K1[b],2)}, v{vKg}, {WS}, s{sT0} offen offset:{256*b} sc1',
              f'buffer_load_dwordx2 {v(K1[b]+2,2)}, v{vKg}, {WS}, s{sT0} offen offset:{256*b+1024} sc1')
        a(f'buffer_load_dwordx2 {v(K2,2)}, v{vL8s}, {WS}, s{sT0} offen offset:2048 sc1')
    a.label('L_at_slow_max')
    pair_off(); ldK()
    a('s_waitcnt vmcnt(0)')
    a(M16(S[0], K1[0], Q1, '0'), M16(S[1], K1[1], Q1, '0'), M8(S[0], K2, Q2[0]), M8(S[1], K2, Q2[1]), 's_nop 12')
    for i in range(16):
        a(f'v_max3_f32 v{tp}, v{tp}, v{S[0]+i}, v{S[1]+i}')
    a(f's_add_u32 s{sCnt}, s{sCnt}, 1', f's_cmp_lt_u32 s{sCnt}, 32', 's_cbranch_scc1 L_at_slow_max')
    a(f'v_mov_b32 v{tp+1}, v{tp}', 's_nop 1', f'v_permlane32_swap_b32 v{tp}, v{tp+1}', 's_nop 1', f'v_max_f32 v{tp}, v{tp}, v{tp+1}')
    for i in range(16):
        a(f'v_sub_f32 v{C+i}, 0, v{tp}', f'v_mov_b32 v{O+i}, 0')
    a(f'v_cmp_eq_u32 s[48:49], 20, v{vTokA}', f'v_mov_b32 v{tp+5}, 0x3f803f80', f's_mov_b32 s{sCnt}, 0')
    a.label('L_at_slow_pv')
    pair_off(); ldK()
    for g in range(4):
        a(f'buffer_load_dwordx4 {v(V[g//2]+4*(g%2),4)}, v{vVg}, {WS}, s{sT1} offen offset:{640*g} sc1')
    a('s_waitcnt vmcnt(0)')
    a(M16(S[0], K1[0], Q1, C), M16(S[1], K1[1], Q1, C), M8(S[0], K2, Q2[0]), M8(S[1], K2, Q2[1]))
    for b in range(2):
        for i in range(8):
            a(f'v_cndmask_b32 v{V[b]+i}, v{V[b]+i}, v{tp+5}, s[48:49]')
    for b in range(2):
        for i in range(16):
            a(EXP(S[b] + i))
        a('s_nop 0')
        for i in range(8):
            a(CVT(P + i, S[b] + 2 * i))
        a('s_nop 1', M16(O, V[b], P), M16(O, V[b] + 4, P + 4))
    a(f's_add_u32 s{sCnt}, s{sCnt}, 1', f's_cmp_lt_u32 s{sCnt}, 32', 's_cbranch_scc1 L_at_slow_pv')
    a(f's_mov_b32 s{sPass}, 1', 's_branch L_at_fin')

    a.label('L_helper')
    a.lock = None
    sG = 38
    a(f's_sub_u32 s{sG}, s{sW}, 8')
    gemm_setup(8, 10, False)
    sFB = 39
    a(f's_lshl_b32 s{sT0}, s{sRB}, 7', f's_lshl_b32 s{sT1}, s{sCG}, 3', f's_add_u32 s{sT0}, s{sT0}, s{sT1}', f's_lshl_b32 s{sT1}, s{sG}, 1', f's_add_u32 s{sT2}, s{sT0}, s{sT1}',
      f's_mul_i32 s{sT3}, s{sT2}, 1280', f's_lshl_b32 s{sT2}, s{sT2}, 4', f's_add_u32 s{sT2}, s{sT2}, {WS_RS}')
    a(f'v_mul_u32_u24 v1, 1280, v2', f'v_lshl_add_u32 v{tmp+4}, v{vTok}, 4, v1', f'v_lshl_add_u32 v{tmp+5}, v{vTok}, 3, v1', f'v_lshlrev_b32 v{tmp+6}, 1, v{vTok}')
    a(f's_lshl_b32 s{sFB}, s{sCG}, 1', f's_add_u32 s{sFB}, s{sFB}, s{sN}', f's_lshl_b32 s{sT0}, s{sFB}, 7')
    a('s_waitcnt lgkmcnt(0)')
    if OPT.get('rl', 0) == 0:
        a.srd(SD, 4, 2621440)
        a(f'buffer_load_dwordx4 {v(SX,4)}, v{tmp+4}, s[{SD}:{SD+3}], s{sT3} offen', f'buffer_load_dwordx4 {v(SX+4,4)}, v{tmp+4}, s[{SD}:{SD+3}], s{sT3} offen offset:512',
          f'buffer_load_dwordx2 {v(SX+8,2)}, v{tmp+5}, s[{SD}:{SD+3}], s{sT3} offen offset:1024')
    ws_setup()
    a(f's_add_u32 s10, s22, {WS_EP}', 's_addc_u32 s11, s23, 0', f's_load_dword s{sTag}, s[10:11], 0')
    def touch(off, extra=(0,)):
        a(f's_and_b32 s10, s{off}, 0xffffff80', 's_add_u32 s10, s22, s10', 's_addc_u32 s11, s23, 0')
        for e in extra:
            a(f's_load_dword s61, s[10:11], {e}', f's_load_dword s61, s[10:11], {e+64}')
    if OPT.get('tch', 1):
        touch(sT2)
        f1_off(56, 57, sN, None)
        touch(56)
        a(f's_lshl_b32 s56, s{sRB}, 1', f's_add_u32 s56, s56, s{sM}', 's_lshl_b32 s56, s56, 4', f's_add_u32 s56, s56, s{sCG}', 's_lshl_b32 s56, s56, 7', f's_add_u32 s56, s56, {WS_FH}')
        touch(56)
        a(f's_lshl_b32 s56, s{sQB}, 2', f's_add_u32 s56, s56, s{sG}', 's_lshl_b32 s56, s56, 13', f's_lshr_b32 s57, s{sHead}, {OPT.get("fos", 2)}', 's_lshl_b32 s57, s57, 7',
          's_add_u32 s56, s56, s57', f's_add_u32 s56, s56, {WS_FO}')
        touch(56, (0, 4096))
    zero_acc(0, 64)
    colsum_setup()
    a(f'v_lshlrev_b32 v{tmp+2}, 4, v{vTok}')
    PF = 56
    a(f's_and_b32 s{sT1}, s{sRB}, 7', f's_lshl_b32 s{sT1}, s{sT1}, 2', f's_add_u32 s{sT1}, s{sT1}, s{sG}', f's_mul_i32 s{sT1}, s{sT1}, {2*3840}',
      f's_min_u32 s{PF}, s{sCG}, 14', f's_lshl_b32 s{PF}, s{PF}, 8', f's_add_u32 s{sT1}, s{sT1}, s{PF}', f's_add_u32 s{PF}, s6, s{sT1}', f's_addc_u32 s{PF+1}, s7, 0')
    PD = OPT.get('pf', 0)
    def prefetch(i):
        c = i + 2 + PD
        if PD and c < 10:
            a(f's_add_u32 s{PF+2}, s{PF}, {64*3840*c}', f's_addc_u32 s{PF+3}, s{PF+1}, 0')
            for r in range(2):
                for l in range(4):
                    a(f's_load_dword s{PF+4}, s[{PF+2}:{PF+3}], {r*3840 + l*64}')
    for i in range(-PD, 0):
        prefetch(i)
    def rowloads():
        a.srd(SD, 4, 2621440)
        a(f'buffer_load_dwordx4 {v(SX,4)}, v{tmp+4}, s[{SD}:{SD+3}], s{sT3} offen', f'buffer_load_dwordx4 {v(SX+4,4)}, v{tmp+4}, s[{SD}:{SD+3}], s{sT3} offen offset:512',
          f'buffer_load_dwordx2 {v(SX+8,2)}, v{tmp+5}, s[{SD}:{SD+3}], s{sT3} offen offset:1024')
    RL = OPT.get('rl', 0)
    if RL == 1:
        rowloads()
    bar()
    if RL == 2:
        rowloads()
    prefetch(0)
    bar()
    prefetch(1)
    RW = OPT.get('rw', 0)
    for i in range(RW):
        bar()
        prefetch(2 + i)
    a('s_waitcnt vmcnt(0) lgkmcnt(0)', f's_add_u32 s{sTag}, s{sTag}, 0x9e3779b1')
    a.srd(SD, 14, 3456)
    a(f'buffer_load_ushort v{tmp+7}, v{tmp+6}, s[{SD}:{SD+3}], s{sT0} offen', f'buffer_load_ushort v{tmp+8}, v{tmp+6}, s[{SD}:{SD+3}], s{sT0} offen offset:64')
    a(f's_lshl_b32 s{sT1}, s{sRB}, 11', f's_lshl_b32 s{sT0}, s{sG}, 9', f's_add_u32 s{sT1}, s{sT1}, s{sT0}', f's_add_u32 s{sT1}, s{sT1}, {WS_RS}', f's_mov_b32 s{sT3}, {SPIN}')
    r0, r1, r2, r3 = FR, FR + 1, FR + 2, FR + 3
    def reduce32(r):
        for mod in ('quad_perm:[1,0,3,2]', 'quad_perm:[2,3,0,1]', 'row_half_mirror', 'row_mirror'):
            a('s_nop 1', f'v_add_f32_dpp v{r}, v{r}, v{r} {mod} row_mask:0xf bank_mask:0xf')
        a(f'v_mov_b32 v{r3}, v{r}', 's_nop 1', f'v_permlane16_swap_b32 v{r}, v{r3}', 's_nop 1', f'v_add_f32 v{r}, v{r}, v{r3}')
    U = lambda i: (FR + 8 + i) if i < 10 else (SX + i - 10)
    for i in range(10):
        a(f'v_lshlrev_b32 v{U(i)}, 16, v{SX+i}', f'v_and_b32 v{SX+i}, 0xffff0000, v{SX+i}')
        if i < 2:
            a(f'v_add_f32 v{r0+i}, v{U(i)}, v{U(10+i)}')
        else:
            a(f'v_add_f32 v{r0}, v{r0}, v{U(i)}', f'v_add_f32 v{r1}, v{r1}, v{U(10+i)}')
    a(f'v_add_f32 v{r0}, v{r0}, v{r1}')
    reduce32(r0)
    a(f'v_mul_f32 v{r0}, {fbits(1/640)}, v{r0}', f'v_mov_b32 v{r1}, 0', f'v_mov_b32 v{r2}, 0')
    bar()
    prefetch(2 + RW)
    for i in range(0, 20, 2):
        a(f'v_sub_f32 v{U(i)}, v{U(i)}, v{r0}', f'v_sub_f32 v{U(i+1)}, v{U(i+1)}, v{r0}', f'v_fmac_f32 v{r1}, v{U(i)}, v{U(i)}', f'v_fmac_f32 v{r2}, v{U(i+1)}, v{U(i+1)}')
    a(f'v_add_f32 v{r2}, v{r1}, v{r2}')
    reduce32(r2)
    a(f'v_mov_b32 v{r3}, {fbits(1e-5)}', f'v_fmac_f32 v{r3}, {fbits(1/640)}, v{r2}', f'v_rsq_f32 v{r2}, v{r3}', f'v_mov_b32 v{r1}, s{sTag}', f'v_mov_b32 v{r3}, s{sTag}',
      'v_lshrrev_b32 v1, 1, v0', 's_mov_b32 exec_lo, 1', 's_mov_b32 exec_hi, 1', f'buffer_store_dwordx4 {v(r0,4)}, v1, {WS}, s{sT2} offen sc1', 's_mov_b64 exec, -1')
    a.stamp(2)
    vL16, vL8, vTr, vTr2, vOut, vRes = range(SX + 16, SX + 22)
    vW, vWr = SX + 22, SX + 26
    sOwn, sKH, sRow, sCol, sReg = 62, 63, 64, 65, 66
    def p2_setup(part, t):
        if part == 0:
            a(f's_and_b32 s{sOwn}, s{sG}, 1', f's_lshr_b32 s{sKH}, s{sG}, 1', f's_lshl_b32 s{sRow}, s{sHead}, 1', f's_add_u32 s{sRow}, s{sRow}, s{sOwn}',
              f's_mul_i32 s{sCol}, s{sQB}, 160', f's_mul_i32 s{sReg}, s{sG}, 25600', f's_cmp_eq_u32 s{sKH}, 0', 's_cselect_b32 s67, 1280, 0')
            a(f'v_lshlrev_b32 v{vL16}, 4, v0', f'v_lshlrev_b32 v{vL8}, 3, v0')
            a(f's_lshl_b32 s{sT0}, s{sHead}, 6', f's_add_u32 s{sT0}, s{sT0}, s{sOwn}', f'v_lshl_add_u32 v1, v{vTok}, 1, s{sT0}', f'v_lshl_add_u32 v{t}, v2, 4, s{sCol}',
              f'v_mul_u32_u24 v{vOut}, 1280, v1', f'v_add_u32 v{vOut}, v{vOut}, v{t}', f'v_mul_u32_u24 v{vRes}, s67, v1', f'v_add_u32 v{vRes}, v{vRes}, v{t}')
            a('v_bfe_u32 v1, v0, 2, 2', 'v_lshl_add_u32 v1, v1, 1, v2', 'v_mul_u32_u24 v1, 160, v1')
            a(f'v_and_b32 v{t}, 16, v0', f'v_lshl_add_u32 v1, v{t}, 1, v1', f'v_and_b32 v{t+1}, 1, v0', f'v_lshl_add_u32 v1, v{t+1}, 4, v1',
              f'v_and_b32 v{t+1}, 2, v0', f'v_lshl_add_u32 v1, v{t+1}, 2, v1', f'v_add_u32 v{vTr}, s{sReg}, v1',
              f'v_lshl_add_u32 v{vTr2}, v{t}, 14, v{vTr}')
        else:
            a(f'v_mul_u32_u24 v1, 205, v0', 'v_lshrrev_b32 v1, 11, v1')
            a(f'v_mul_u32_u24 v{t}, 10, v1', f'v_sub_u32 v{t}, v0, v{t}', f'v_lshl_add_u32 v{t}, v{t}, 4, s{sCol}')
            a(f'v_and_b32 v{t+1}, 1, v1', 'v_lshrrev_b32 v1, 1, v1')
            a(f'v_lshl_add_u32 v{t+2}, v{t+1}, 2, v1', f'v_mul_u32_u24 v{t+2}, 1280, v{t+2}', f'v_add_u32 v{vW}, v{t+2}, v{t}')
            for i, ro in ((1, 2), (2, 8), (3, 10)):
                a(f'v_add_u32 v{vW+i}, {ro*1280-640*i}, v{vW}')
            a(f'v_mul_u32_u24 v{t+1}, 20, v{t+1}', f'v_add3_u32 v{t+2}, v{t+1}, v1, 16', f'v_mul_u32_u24 v{t+2}, 1280, v{t+2}', f'v_add_u32 v{vWr}, v{t+2}, v{t}')
            for i, ro in ((1, 2), (2, 40), (3, 42)):
                a(f'v_add_u32 v{vWr+i}, {ro*1280-640*i}, v{vWr}')
    GI, GC = OPT.get('gi', 6), OPT.get('gc', 8)
    for i in range(3 + RW, GI + 1):
        bar()
        prefetch(i)
        if i - RW in (3, 4):
            p2_setup(i - RW - 3, tmp + 10)
    g0 = FR
    gather = f'buffer_load_dwordx4 {v(g0,4)}, v{tmp+2}, {WS}, s{sT1} offen sc1'
    a(gather)
    for i in range(GI + 1, GC + 1):
        bar()
        prefetch(i)
    a.label('L_h_chk')
    a('s_waitcnt vmcnt(0)', f'v_cmp_ne_u32 vcc, s{sTag}, v{g0+1}', f'v_cmp_ne_u32 s[46:47], s{sTag}, v{g0+3}', 's_nop 1', 's_or_b64 vcc, vcc, s[46:47]',
      's_cbranch_scc0 L_h_got', f's_sub_u32 s{sT3}, s{sT3}, 1', 's_cbranch_scc1 L_h_got', backoff('s0'), gather, 's_branch L_h_chk')
    a.label('L_h_got')
    a(f'v_rcp_f32 v{g0+1}, v{g0+2}', f'v_sub_f32 v{g0}, 0, v{g0}')
    a(f's_lshl_b32 s{sT0}, s{sG}, 7', f's_add_u32 s{sT0}, s{sT0}, {L_MEAN}', f'v_lshl_add_u32 v1, v{vTok}, 2, s{sT0}',
      f'ds_write_b32 v1, v{g0}', f'ds_write_b32 v1, v{g0+1} offset:{L_ISTD-L_MEAN}', f'ds_write_b32 v1, v{g0+2} offset:{L_RSTD-L_MEAN}',
      f'v_mov_b32 v1, {L_TAG}', f'v_mov_b32 v{g0+3}, s{sTag}', f'ds_write_b32 v1, v{g0+3}')
    vRs = tmp
    a('s_mov_b32 exec_lo, 0', f'v_lshlrev_b32 v{CS[0]}, 16, v{tmp+7}', f'v_lshlrev_b32 v{CS[1]}, 16, v{tmp+8}', 's_mov_b32 exec_lo, -1')
    a(f's_lshl_b32 s{sT0}, s{sM}, 8', f's_add_u32 s{sT0}, s{sT0}, {L_MEAN}', f'v_lshl_add_u32 v{tmp+3}, v{vTok}, 3, s{sT0}', f'v_lshl_add_u32 v{tmp+2}, v2, 9, v{tmp+3}')
    a(f's_lshl_b32 s{sT0}, s{sRB}, 2', f's_lshl_b32 s{sT1}, s{sM}, 1', f's_add_u32 s{sT0}, s{sT0}, s{sT1}', f's_mul_i32 s{sT0}, s{sT0}, 108',
      f's_lshl_b32 s{sT1}, s{sFB}, 2', f's_add_u32 s{sT0}, s{sT0}, s{sT1}', f's_lshl_b32 s{sT0}, s{sT0}, 10',
      f's_add_u32 s{sOff}, s{sT0}, {WS_H}', f's_add_u32 s{sHS}, s{sOff}, {108*1024}', 'v_lshlrev_b32 v1, 4, v0', 's_waitcnt lgkmcnt(0)')
    for _ in range(9 - GC):
        bar()
    a(f's_cmp_lt_u32 s{sFB}, 27', 's_cbranch_scc1 L_h_act')
    for _ in range(11):
        bar()
    a('s_branch L_h_p2')
    a.label('L_h_act')
    a('s_setprio 1')
    mainloop('ffn', False, [f'ds_read_b64 {v(CR,2)}, v{tmp+2}', f'ds_read_b64 {v(vRs,2)}, v{tmp+3} offset:{L_RSTD-L_MEAN}'])
    a(f's_setprio {OPT.get("gprio", 2)}', 's_waitcnt lgkmcnt(0)', 's_nop 6')
    for t, u in ((0, 0), (0, 1), (1, 1), (1, 0)):
        for ap in range(2):
            r = acc + 32 * t + 16 * u + 8 * ap
            for e in range(8):
                a(f'v_max_f32 v{r+e}, 0, v{r+e}')
            for e in range(8):
                a(f'v_mul_f32 v{r+e}, v{vRs+t}, v{r+e}')
            for e in range(8):
                a(f'v_mul_f32 v{r+e}, v{r+e}, v{r+e}')
            for e in range(4):
                a(CVT(r + e, r + 2 * e))
            a(f'buffer_store_dwordx4 {v(r,4)}, v1, {WS}, s{sHS if t else sOff} offen offset:{1024*(2*u+ap)} sc1')
    a.label('L_h_p2')
    b0 = OPT.get('b0')
    bcnt = [1]
    def barB():
        c = bcnt[0]; bcnt[0] += 1
        rec = b0 is not None and b0 <= c < b0 + 6
        if rec:
            a.lock = None; a.stamp(2 + 2 * (c - b0))
        bar()
        if rec:
            a.stamp(3 + 2 * (c - b0))
        if b0 is not None:
            a.lock = tuple(range(2, 14))
    if b0 is not None:
        a.lock = tuple(range(2, 14))
    a.stamp(5)

    a.vm = ['hst']
    R = Regs(2)
    acc = R(96)
    AF = [R(8) for _ in range(4)]
    tmp = R(8)
    assert R.n <= vL16
    BF = [vWr + 4 + 4 * i for i in range(3)]
    sKVo, sH0, sH1, sW2, sWo, sMK, sMV = range(40, 47)
    W2, WO, RES = 48, 52, 56
    sM40 = 60
    a(f's_mov_b32 s{sM40}, -1', f's_mov_b32 s{sM40+1}, 0xff')
    a(f's_mul_i32 s{sKVo}, s{sHead}, 163840', f's_mul_i32 s{sT0}, s{sG}, 1280', f's_add_u32 s{sKVo}, s{sKVo}, s{sT0}', f's_add_u32 s{sKVo}, s{sKVo}, {WS_KV}')
    a(f's_add_u32 s{sMK}, s{sT0}, {L_K}', f's_mul_i32 s{sMV}, s{sG}, 1312', f's_add_u32 s{sMV}, s{sMV}, {L_V}')
    MASK, FULL = f's_mov_b64 exec, s[{sM40}:{sM40+1}]', 's_mov_b64 exec, -1'

    def kv(c):
        slot = c % 4
        ld = lambda so, off: f'buffer_load_dwordx4 v{vL16}, {WS}, s{so} offen offset:{off} sc1 lds'
        return [([f's_add_u32 m0, s{sMK}, {slot*5120}', f's_add_u32 s{sT0}, s{sKVo}, {c*10240}'], ld(sT0, 0), ('kv', c), True),
                ([], ld(sT0, 640), ('kv', c), True),
                ([f's_add_u32 m0, s{sMV}, {slot*5248}', f's_add_u32 s{sT0}, s{sT0}, 5120'], ld(sT0, 0), ('kv', c), True),
                ([f's_sub_u32 s{sT0}, s{sT0}, 16'], ld(sT0, 656), ('kv', c), True)]
    def stage(srd, base, add, voff, slot, tg):
        out = []
        for i in range(4):
            pre = [f's_add_u32 m0, s{sReg}, {slot*2560}', f's_add_u32 s{sT0}, s{base}, {add}'] if i == 0 else []
            out.append((pre, f'buffer_load_dwordx4 v{voff+i}, s[{srd}:{srd+3}], s{sT0} offen offset:{640*i} lds', tg, True))
        return out
    def f2B(st):
        return stage(W2, sW2, st * 16 * 1280, vW, st % 4, ('fb', st))
    def f2A(st):
        return [([f's_add_u32 s{sT1}, s{sH0}, {st*1024}'], f'buffer_load_dwordx4 {v(AF[st%4],4)}, v{vL16}, {WS}, s{sT1} offen sc1', ('fa', st), False),
                ([f's_add_u32 s{sT1}, s{sH1}, {st*1024}'], f'buffer_load_dwordx4 {v(AF[st%4]+4,4)}, v{vL16}, {WS}, s{sT1} offen sc1', ('fa', st), False)]
    def wo(slot):
        if slot < 8:
            return stage(WO, sWo, slot * 20 * 1280, vW, slot, ('wo', slot))
        return stage(WO, sWo, (slot - 8) * 80 * 1280, vWr, slot, ('wo', slot))
    def emit(fl):
        masked = False
        for pre, ins, tg, mk in fl:
            a(pre)
            if mk != masked:
                a(MASK if mk else FULL); masked = mk
            elif pre and 'm0' in pre[-1]:
                a('s_nop 0')
            a.vmem(ins, tg)
        if masked:
            a(FULL)

    emit(kv(2))
    a.srd(W2, 16, 1728 * 1280)
    a.srd(WO, 8, 640 * 1280)
    a(f's_cmp_eq_u32 s{sKH}, 0', f's_cselect_b32 s{RES}, s4, s18', f's_cselect_b32 s{RES+1}, s5, s19', CSEL(RES + 2, 2621440, 1280), f's_mov_b32 s{RES+3}, 0x00020000')
    a(f's_mul_i32 s{sW2}, s{sG}, {27*16*1280}', f's_mul_i32 s{sWo}, s{sG}, {160*1280}')
    a(f's_mul_i32 s{sH0}, s{sRow}, {108*1024}', f's_xor_b32 s{sT0}, s{sRow}, 1', f's_mul_i32 s{sH1}, s{sT0}, {108*1024}',
      f's_mul_i32 s{sT0}, s{sG}, {27*1024}', f's_add_u32 s{sT0}, s{sT0}, {WS_H}', f's_add_u32 s{sH0}, s{sH0}, s{sT0}', f's_add_u32 s{sH1}, s{sH1}, s{sT0}')
    a(f's_lshl_b32 s{sT3}, s{sRB}, 1', f's_add_u32 s{sT3}, s{sT3}, s{sOwn}', f's_lshl_b32 s{sT3}, s{sT3}, 4', f's_add_u32 s{sT3}, s{sT3}, s{sCG}', f's_lshl_b32 s{sT3}, s{sT3}, 7',
      f's_lshl_b32 s{sT1}, s{sKH}, 2', f's_add_u32 s{sT3}, s{sT3}, s{sT1}', f's_add_u32 s{sT3}, s{sT3}, {WS_FH}', f'v_mov_b32 v{tmp+1}, s{sTag}',
      f'v_min_u32 v{tmp}, 27, v0', f'v_and_b32 v1, 1, v{tmp}', 'v_lshlrev_b32 v1, 2, v1', f'v_lshrrev_b32 v{tmp}, 1, v{tmp}', f'v_lshl_add_u32 v1, v{tmp}, 7, v1', 's_setprio 0')
    barB()
    emit(kv(3))
    a.wait_vm('hst')
    a('s_mov_b64 exec, 1')
    a.vmem(f'buffer_store_dword v{tmp+1}, v1, {WS}, s{sT3} offen sc1', 'flag')
    a(FULL)
    a.stamp(6)
    a(f's_lshl_b32 s{sT3}, s{sHead}, 11', f's_add_u32 s{sT3}, s{sT3}, {WS_FH}', f's_mov_b32 s{sT2}, {SPIN}')
    a.wait_vm(('kv', 2))
    barB()
    res = acc + 48
    emit(kv(4))
    for gi in range(5):
        a.vmem(f'buffer_load_dwordx4 {v(res+4*gi,4)}, v{vRes}, s[{RES}:{RES+3}], 0 offen offset:{32*gi}', 'res')
    emit(f2B(0))
    poll2 = f'buffer_load_dword v{tmp}, v1, {WS}, s{sT3} offen sc1'
    a.vmem(poll2, 'poll')
    a.wait_vm(('kv', 3))
    barB()
    a.label('L_poll2')
    a('s_waitcnt vmcnt(0)', f'v_cmp_ne_u32 vcc, s{sTag}, v{tmp}', 's_nop 1', 's_cmp_eq_u64 vcc, 0', 's_cbranch_scc1 L_poll2_done',
      f's_sub_u32 s{sT2}, s{sT2}, 1', 's_cbranch_scc1 L_poll2_done', backoff('s2'), poll2, 's_branch L_poll2')
    a.label('L_poll2_done')
    a.vm = []
    a.stamp(7)
    emit(f2A(0) + kv(5) + f2B(1) + f2A(1) + f2B(2) + f2A(2))
    for gi in range(5):
        for i in range(4):
            a(f'v_lshlrev_b32 v{acc+8*gi+2*i}, 16, v{res+4*gi+i}', f'v_and_b32 v{acc+8*gi+2*i+1}, 0xffff0000, v{res+4*gi+i}')
    for i in range(40, 48, 2):
        a(f'v_mov_b64 {v(acc+i,2)}, 0')

    def tr(p, base):
        c = p % 3
        ad = vTr2 if c == 2 else vTr
        return [f'ds_read_b64_tr_b16 {v(BF[c],2)}, v{ad} offset:{base+64*c}', f'ds_read_b64_tr_b16 {v(BF[c]+2,2)}, v{ad} offset:{base+64*c+1280}']
    fq = []
    def need(tg):
        assert all(f[2] != tg for f in fq), tg
        a.wait_vm(tg)
    def f2tr(p):
        if p < 81:
            if p % 3 == 0:
                need(('fb', p // 3))
            a(tr(p, (p // 3 % 4) * 2560))
    def f2_pairs(ps):
        for j, p in enumerate(ps):
            st, c = divmod(p, 3)
            if c == 0:
                fq.extend(f2B(st + 3) + f2A(st + 3) if st + 3 < 27 else wo((st - 1) % 4))
                need(('fa', st))
            for t in range(2):
                if t == 0:
                    a(f's_waitcnt lgkmcnt({2 if p + 1 < 81 else 0})')
                a(M16(acc + 48 * t + 16 * c, BF[c], AF[st % 4] + 4 * t, '0' if st == 0 and t == 1 else None))
                if t == 0:
                    f2tr(p + 2)
                n = -(-len(fq) // 5)
                emit(fq[:n]); del fq[:n]
    f2tr(0); f2tr(1)
    barB()
    p = 0
    NP = OPT.get('np', 7)
    for c in range(4, 16):
        if c + 2 < 16:
            fq.extend(kv(c + 2))
        if c < 15 and c % 2 == 0:
            fq.extend(wo(4 + (c - 4) // 2))
        f2_pairs(list(range(p, min(81, p + NP)))); p = min(81, p + NP)
        if c == 15 and p == 81:
            fq.extend(wo(2)); emit(fq); del fq[:]
        need(('kv', c + 1))
        if c == 10: a.stamp(8)
        barB()
        if c == 10: a.stamp(9)
    if p < 81:
        f2_pairs(list(range(p, 81)))
        fq.extend(wo(2)); emit(fq); del fq[:]
    OF = acc + 48
    assert OF + 80 <= tmp
    sO0, sO1 = sH0, sH1
    OUT = W2
    a.srd(OUT, 20, 2621440)
    X0, X1 = 102400, L_V - 5120
    def areas(dst, sw):
        a(f's_mul_i32 s{sT0}, s{sw}, 5120', f's_add_u32 s{sT1}, s{sT0}, {X1}', f's_cmp_eq_u32 s{sw}, 0', f's_cmov_b32 s{sT1}, {X0+20480}', f's_add_u32 s{sT0}, s{sT0}, {X0}',
          f'v_add_u32 v{dst}, s{sT0}, v{vL16}', f'v_add_u32 v{dst+1}, s{sT1}, v{vL16}')
    areas(tmp + 2, sG)
    a('s_nop 4')
    for i in range(10):
        a(f'ds_write_b128 v{tmp+2+i//5}, {v(acc+48+4*i,4)} offset:{1024*(i%5)}')
    a(f's_xor_b32 s{sT2}, s{sG}, 1')
    areas(tmp + 2, sT2)
    a(f's_xor_b32 s{sT2}, s{sG}, 3')
    areas(tmp + 4, sT2)
    a(f's_mul_i32 s{sO0}, s{sRow}, 40960', f's_add_u32 s{sO0}, s{sO0}, {WS_O}', f's_lshl_b32 s{sT0}, s{sKH}, 12', f's_add_u32 s{sO1}, s{sO0}, s{sT0}',
      f's_add_u32 s{sO1}, s{sO1}, 32768', f's_lshl_b32 s{sT0}, s{sKH}, 14', f's_add_u32 s{sO0}, s{sO0}, s{sT0}')
    a(f's_mul_i32 s{sT0}, s{sOwn}, 25600', f'v_subrev_u32 v{vTr}, s{sT0}, v{vTr}', f'v_subrev_u32 v{vTr2}, s{sT0}, v{vTr2}')
    a(f's_lshl_b32 s{sT3}, s{sRow}, 12', f's_lshl_b32 s{sT0}, s{sKH}, {11-FOS}', f's_add_u32 s{sT3}, s{sT3}, s{sT0}', f's_add_u32 s{sT3}, s{sT3}, {WS_FO}',
      f'v_bfe_u32 v1, v0, {FOS}, {4-FOS}', 'v_lshlrev_b32 v1, 7, v1', f'v_and_b32 v{tmp}, {(1<<FOS)-1}, v0', f'v_lshl_add_u32 v1, v{tmp}, 2, v1', f's_mov_b32 s{sT2}, {SPIN}')
    a.drain_vm()
    a('s_waitcnt lgkmcnt(0)')
    a.stamp(10)
    bar()
    poll3 = f'buffer_load_dword v{tmp}, v1, {WS}, s{sT3} offen sc1'
    for i in range(10):
        a(f'ds_read_b128 {v(acc+48+4*i,4)}, v{tmp+2+i//5} offset:{1024*(i%5)}')
    for i in range(10):
        a(f's_waitcnt lgkmcnt({9-i})')
        for e in range(4):
            a(f'v_add_f32 v{acc+4*i+e}, v{acc+4*i+e}, v{acc+48+4*i+e}')
        if i == OPT.get('p3', 4):
            a(poll3)
    a.label('L_poll3')
    a('s_waitcnt vmcnt(0)', f'v_cmp_ne_u32 vcc, s{sTag}, v{tmp}', 's_nop 1', 's_cmp_eq_u64 vcc, 0', 's_cbranch_scc1 L_poll3_done',
      f's_sub_u32 s{sT2}, s{sT2}, 1', 's_cbranch_scc1 L_poll3_done', backoff('s3'), poll3, 's_branch L_poll3')
    a.label('L_poll3_done')
    a.stamp(11)
    order = [(r, sl) for r in range(2) for sl in range(10)]
    for i, (r, sl) in enumerate(order):
        if sl < 8:
            h = 8 * r + sl
            if h % 4 == 0:
                a(f's_add_u32 s{sT0}, s{sO0}, {h*1024}')
            a.vmem(f'buffer_load_dwordx4 {v(OF+4*i,4)}, v{vL16}, {WS}, s{sT0} offen offset:{(h%4)*1024} sc1', ('o', i))
        else:
            g = 2 * r + sl - 8
            a.vmem(f'buffer_load_dwordx2 {v(OF+4*i,2)}, v{vL8}, {WS}, s{sO1} offen offset:{g*1024} sc1', ('o', i))
            a.vmem(f'buffer_load_dwordx2 {v(OF+4*i+2,2)}, v{vL8}, {WS}, s{sO1} offen offset:{g*1024+512} sc1', ('o', i))
    a(tr(0, 0), tr(1, 0), tr(2, 0))
    for i in range(20):
        a.wait_vm(('o', i))
        for c in range(3):
            last = i == 19
            a(f's_waitcnt lgkmcnt({4-2*c if last else 4})', M16(acc + 16 * c, BF[c], OF + 4 * i))
            if not last:
                a(tr(c, (i + 1) * 2560))
    a.stamp(12)
    a(f's_cmp_eq_u32 s{sKH}, 0', 's_nop 10', 's_cbranch_scc0 L_hi')
    for nm, send, keep in (('lo', (3, 4), (0, 1, 2)), ('hi', (0, 1, 2), (3, 4))):
        if nm == 'hi':
            a.label('L_hi')
        for k, gi in enumerate(send):
            a(f'ds_write_b128 v{tmp+2}, {v(acc+8*gi,4)} offset:{1024*k}', f'ds_write_b128 v{tmp+3}, {v(acc+8*gi+4,4)} offset:{1024*k}')
        a('s_waitcnt lgkmcnt(0)', 's_barrier')
        for k, gi in enumerate(keep):
            a(f'ds_read_b128 {v(OF+8*k,4)}, v{tmp+4} offset:{1024*k}', f'ds_read_b128 {v(OF+8*k+4,4)}, v{tmp+5} offset:{1024*k}')
        for k, gi in enumerate(keep):
            a(f's_waitcnt lgkmcnt({2*(len(keep)-1-k)})')
            r = acc + 8 * gi
            for e in range(8):
                a(f'v_add_f32 v{r+e}, v{r+e}, v{OF+8*k+e}')
            for e in range(4):
                a(CVT(r + e, r + 2 * e))
            a(f'buffer_store_dwordx4 {v(r,4)}, v{vOut}, s[{OUT}:{OUT+3}], 0 offen offset:{32*gi}')
        if nm == 'lo':
            a(f's_or_b32 s{sT0}, s2, s{sG}', 's_cbranch_scc1 L_noep')
            a(f'v_mov_b32 v1, s{sTag}', f'v_mov_b32 v{tmp}, 0', f's_mov_b32 s{sT0}, {WS_EP}', 's_mov_b64 exec, 1', f'buffer_store_dword v1, v{tmp}, {WS}, s{sT0} offen')
            a.label('L_noep')
        if Asm.diag:
            a.stamp(13)
            a('s_waitcnt vmcnt(0)')
            a.dump(0, sW, 24)
        a('s_endpgm')
    a.label('L_done')
    a('s_endpgm')
    return kernel_header(name) + a.text(), kernel_desc(name, 168, 70)
```

```python
from asmlib import *
import struct, math

def fbits(x):
    return hex(struct.unpack('<I', struct.pack('<f', x))[0])

WS_Q   = 0x000000
WS_KV  = 0x280000
WS_H   = 0x780000
WS_O   = 0xE40000
WS_RS  = 0x10C0000
WS_F1  = 0x10D0000
WS_FH  = 0x10E0000
WS_FO  = 0x1100000
WS_EP  = 0x1140000
WS_END = 0x1141000

L_W = 0
L_K = 114688
L_V = 135168
L_MEAN, L_ISTD, L_RSTD = 156160, 156672, 157184
L_TAG = 157696
L_Q0, L_Q1 = L_K + 15360, 158720
LDS_BYTES = 163840
FAR = 0x30000

QSCALE = 20 ** -0.5 * math.log2(math.e)
MAXOFF = 80.0
SPIN = 0x20000
OPT = {}

sW, sRB, sCG, sHead, sQB, sTag, sT0, sT1, sT2, sT3 = range(28, 38)
WS = 's[24:27]'


def gen(name):
    a = Asm()
    NA = OPT.get('na', 5); NB = 9 - NA
    L_A, L_B = (0, 65536) if NA == 4 else (16384 * NB, 0)
    slotA = lambda c: (c + {4: 0, 5: 3, 6: 2}[NA]) % NA
    slotB = lambda c: (c + (3 if NA == 4 else 0)) % NB
    kpos = lambda c: c if c < 10 else (c - NA) % 10
    bar = lambda: a('s_barrier')

    a('s_cmp_ge_u32 s2, 256', 's_cbranch_scc1 L_done')
    a.stamp(0); a.stamp(1, True)
    a('s_load_dwordx2 s[22:23], s[0:1], 80', 's_load_dwordx8 s[4:11], s[0:1], 0', 's_load_dwordx8 s[12:19], s[0:1], 32', 's_load_dwordx2 s[20:21], s[0:1], 64')
    a(f's_lshr_b32 s{sT0}, s2, 3', f's_bfe_u32 s{sT1}, s2, 0x20001')
    if OPT.get('map', 0) == 0:
        a(f's_lshl_b32 s{sT1}, s{sT1}, 5', f's_add_u32 s{sT1}, s{sT1}, s{sT0}')
    else:
        a(f's_lshl_b32 s{sT2}, s{sT1}, 1', f's_add_u32 s{sT2}, s{sT2}, 90', f's_mul_i32 s{sT1}, s{sT1}, 30', f's_cmp_lt_u32 s{sT0}, 30', f's_cselect_b32 s{sT1}, s{sT1}, s{sT2}',
          f's_add_u32 s{sT1}, s{sT1}, s{sT0}')
    a(f's_lshr_b32 s{sCG}, s{sT1}, 3', f's_and_b32 s{sT1}, s{sT1}, 7', f's_and_b32 s{sRB}, s2, 1', f's_lshl_b32 s{sRB}, s{sRB}, 3', f's_add_u32 s{sRB}, s{sRB}, s{sT1}',
      f's_and_b32 s{sHead}, s2, 7', f's_lshl_b32 s{sHead}, s{sHead}, 2', f's_and_b32 s{sT0}, s{sT0}, 3', f's_add_u32 s{sHead}, s{sHead}, s{sT0}',
      f's_lshr_b32 s{sQB}, s2, 5')
    a('v_lshrrev_b32 v1, 6, v0', 'v_and_b32 v0, 63, v0', f'v_readfirstlane_b32 s{sW}, v1')
    if OPT.get('cpf', 1):
        a(f's_cmp_lg_u32 s{sW}, 0', 's_cbranch_scc1 L_nocode', 's_getpc_b64 s[40:41]')
        a.label('L_pc')
        a('s_lshr_b32 s42, s2, 3', 's_lshl_b32 s42, s42, 10', f's_mov_b32 s43, L_done-L_pc', 'v_lshlrev_b32 v2, 7, v0', 'v_add_u32 v2, s42, v2', 'v_min_u32 v2, s43, v2',
          'v_mov_b32 v3, s41', 'v_add_co_u32 v2, vcc, s40, v2', 's_mov_b64 exec, 0xff', 's_nop 0', 'v_addc_co_u32 v3, vcc, 0, v3, vcc',
          'global_load_dword v167, v[2:3], off', 's_mov_b64 exec, -1')
        a.label('L_nocode')
    a(f's_cmp_ge_u32 s{sW}, 8', 's_cbranch_scc1 L_helper', f's_cmp_lt_u32 s{sW}, 4', 's_cbranch_scc1 L_x')

    def backoff(key):
        n = OPT.get(key, {'s3': 2}.get(key, 8))
        return [f's_sleep {n}'] if n else []
    def ws_setup():
        a.srd(24, 22, WS_END)
    def lds_tag(t):
        a(f'v_mov_b32 v{t}, {L_TAG}', f'ds_read_b32 v{t}, v{t}', 's_waitcnt lgkmcnt(0)', f'v_readfirstlane_b32 s{sTag}, v{t}')
    def f1_off(d, t, n, m):
        a(f's_lshl_b32 s{d}, s{sCG}, 1', f's_add_u32 s{d}, s{d}, s{n}', f's_lshl_b32 s{d}, s{d}, 10', f's_lshr_b32 s{t}, s{sRB}, 1', f's_lshl_b32 s{t}, s{t}, 7',
          f's_add_u32 s{d}, s{d}, s{t}', f's_add_u32 s{d}, s{d}, {WS_F1}')
        if m is not None:
            a(f's_and_b32 s{t}, s{sRB}, 1', f's_lshl_b32 s{t}, s{t}, 1', f's_add_u32 s{t}, s{t}, s{m}', f's_lshl_b32 s{t}, s{t}, 2', f's_add_u32 s{d}, s{d}, s{t}')

    SD = 48
    SX = 122

    sL, sOA, sOB, sSlot, sMA, sMB, sCnt, sBstep = range(40, 48)
    XA, WB = 48, 52
    vA1, vB1, vB2 = 8, 12, 16
    vA2 = vA1
    a(f's_sub_u32 s{sL}, s{sW}, 4')
    a(f's_cmp_lt_u32 s{sCG}, 15', f's_cselect_b32 s{XA+2}, 2621440, 0', f's_cselect_b32 s{WB+2}, {640*3840}, 0')
    a(f's_mov_b32 s{XA+3}, 0x00020000', f's_mov_b32 s{WB+3}, 0x00020000')
    a(f's_lshl_b32 s{sMA}, s{sL}, 12', f's_mul_i32 s{sOA}, s{sRB}, {128*1280}', f's_lshl_b32 s{sOB}, s{sCG}, 8')
    a(f's_lshr_b32 s{sT0}, s{sL}, 1', f's_lshl_b32 s{sT0}, s{sT0}, 6', f's_and_b32 s{sT1}, s{sL}, 1', f's_add_u32 s{sT0}, s{sT0}, s{sT1}',
      f's_mul_i32 s{sT0}, s{sT0}, 1280', f's_lshl_b32 s{sT1}, s{sT1}, 6')
    a('v_lshrrev_b32 v1, 3, v0', 'v_lshrrev_b32 v2, 4, v0', 'v_and_b32 v3, 7, v0', 'v_xor_b32 v3, v3, v2', 'v_lshlrev_b32 v3, 4, v3', f'v_xor_b32 v3, s{sT1}, v3',
      'v_xor_b32 v4, 64, v3', 'v_mul_u32_u24 v5, 2560, v1', f'v_add_u32 v5, s{sT0}, v5')
    a(f'v_add_u32 v{vA1}, v5, v3', f'v_add_u32 v4, v5, v4', f'v_add_u32 v{vA1+1}, {20480-1024}, v4',
      f'v_add_u32 v{vA1+2}, {2*(20480-1024)}, v{vA1}', f'v_add_u32 v{vA1+3}, {3*(20480-1024)}, v4')
    a('v_and_b32 v6, 15, v0', 'v_lshlrev_b32 v7, 2, v2', 'v_xor_b32 v6, v6, v7', 'v_lshlrev_b32 v6, 4, v6', f's_lshl_b32 s{sT0}, s{sL}, 4', f'v_add_u32 v2, s{sT0}, v2')
    a('v_mul_u32_u24 v7, 3840, v2', f'v_add_u32 v{vB1}, v7, v6')
    for i in range(1, 4):
        a(f'v_add_u32 v{vB1+i}, {i*(4*3840-1024)}, v{vB1}')

    sRot = 47
    RW_ = [(2, 4, 20, 10), (0, 0, 0, 0), (1, 2, 20, 10), (0, 0, 20, 10), (5, 10, 2, 3), (3, 6, 20, 10), (1, 4, 20, 10), (2, 2, 20, 10)][OPT.get('rot', 7)]
    a(f's_and_b32 s{sT0}, s{sRB}, 7', f's_mul_i32 s{sRot}, s{sT0}, {RW_[0]}', f's_and_b32 s{sT0}, s{sCG}, 3', f's_mul_i32 s{sT0}, s{sT0}, {RW_[1]}', f's_add_u32 s{sRot}, s{sRot}, s{sT0}',
      f's_lshr_b32 s{sT0}, s{sRB}, 3', f's_mul_i32 s{sT0}, s{sT0}, {RW_[2]}', f's_add_u32 s{sRot}, s{sRot}, s{sT0}',
      f's_lshr_b32 s{sT0}, s{sCG}, 2', f's_mul_i32 s{sT0}, s{sT0}, {RW_[3]}', f's_add_u32 s{sRot}, s{sRot}, s{sT0}', f's_lshr_b32 s{sRot}, s{sRot}, 2')
    for _ in range((7 * RW_[0] + 3 * RW_[1] + RW_[2] + 3 * RW_[3]) // 40):
        a(f's_cmp_ge_u32 s{sRot}, 10', f's_cselect_b32 s{sT0}, 10, 0', f's_sub_u32 s{sRot}, s{sRot}, s{sT0}')
    sRA, sRB1 = 45, 46
    def koff(c, base, scale):
        k = kpos(c)
        return [f's_cmp_ge_u32 s{sRot}, {10-k}', f's_cselect_b32 s{sT0}, {10*scale}, 0', f's_sub_u32 s{sT0}, s{base}, s{sT0}', f's_add_u32 s{sT0}, s{sT0}, {scale*k}']
    a(f's_lshl_b32 s{sT0}, s{sRot}, 7', f's_add_u32 s{sOA}, s{sOA}, s{sT0}', f's_mul_i32 s{sT0}, s{sRot}, {64*3456}', f's_add_u32 s{sRB1}, s{sOB}, s{sT0}',
      f's_mul_i32 s{sT0}, s{sRot}, {64*3840}', f's_add_u32 s{sOB}, s{sOB}, s{sT0}')
    def ldA(c, lo=0, hi=4):
        a(f's_add_u32 m0, s{sMA}, {L_A + slotA(c) * 16384}', koff(c, sOA, 128))
        for i in range(lo, hi):
            a.vmem(f'buffer_load_dwordx4 v{vA1+i}, s[{XA}:{XA+3}], s{sT0} offen offset:{1024*i} lds', ('c', c))
    def ldB(c):
        a(f's_add_u32 m0, s{sMA}, {L_B + slotB(c) * 16384}', koff(c, sOB if c < 10 else sRB1, 64 * (3840 if c < 10 else 3456)))
        for i in range(4):
            a.vmem(f'buffer_load_dwordx4 v{(vB1 if c < 10 else vB2)+i}, s[{WB}:{WB+3}], s{sT0} offen offset:{1024*i} lds', ('c', c))

    a.vm = []
    a('s_waitcnt lgkmcnt(0)', f's_mov_b32 s{XA}, s4', f's_mov_b32 s{XA+1}, s5', f's_mov_b32 s{WB}, s6', f's_mov_b32 s{WB+1}, s7')
    ldA(0); ldB(0)
    ws_setup()
    ldA(1); ldB(1)
    a('v_mul_u32_u24 v7, 3456, v2', f'v_add_u32 v{vB2}, v7, v6')
    for i in range(1, 4):
        a(f'v_add_u32 v{vB2+i}, {i*(4*3456-1024)}, v{vB2}')
    cnts = {4: {11: 2, 12: 3, 13: 3, 14: 4, 15: 4, 16: 4, 17: 4}, 5: {12: 2, 13: 2, 14: 4, 15: 4, 16: 4, 17: 4}, 6: {13: 2, 14: 3, 15: 3, 16: 4, 17: 4},
            15: {11: 2, 12: 3, 13: 3, 14: 3, 15: 3, 16: 3, 17: 3}, 16: {12: 2, 13: 3, 14: 3, 15: 3, 16: 3, 17: 2}}[NA + 10 * OPT.get('late', 0)]
    lateA, n = {}, 0
    for c, cnt in cnts.items():
        lateA[c] = []
        while cnt:
            take = min(cnt, 4 - n % 4); ch = 10 + NA + n // 4
            assert ch - NA + 1 <= c <= ch - 2
            lateA[c].append((ch, n % 4, n % 4 + take)); n += take; cnt -= take
    assert n == 4 * (10 - NA)
    nb = 2
    c0 = OPT.get('c0', 99)
    for c in range(19):
        rec = c0 <= c < c0 + 4
        if rec: a.stamp(2 + 3 * (c - c0))
        a.wait_vm(('c', c))
        if rec: a.stamp(3 + 3 * (c - c0))
        bar()
        if rec: a.stamp(4 + 3 * (c - c0))
        if c == 8:
            a(f's_cmp_lt_u32 s{sCG}, 14', f's_cselect_b32 s{XA+2}, 2621440, 0', f's_cselect_b32 s{WB+2}, {640*3456}, 0', f's_mov_b32 s{WB}, s12', f's_mov_b32 s{WB+1}, s13')
        if c < 8:
            ldA(c + 2)
        for args in lateA.get(c, []):
            ldA(*args)
        for _ in range(1 if c < 8 else 2):
            if nb < 20 and nb <= c + NB - 1:
                ldB(nb); nb += 1
    assert nb == 20
    zvm = list(a.vm)
    a('s_branch L_attn_z')

    R = Regs(2)
    vH, vTok = R(), R()
    vAa = R(4); vBa = R(2)
    F = [(R(8), R(8)), (R(8), R(8))]
    FR = F[0][0]
    acc = R(64)
    tmp = R(16)
    sM, sN, sDA, sDB, sSA, sSB = range(40, 46)
    sCntC = 55
    sOff, sHS, sScale = 52, 53, 54

    def gemm_setup(wave_base, c0, maybe_v):
        a(f's_sub_u32 s{sN}, s{sW}, {wave_base}', f's_and_b32 s{sM}, s{sN}, 1', f's_lshr_b32 s{sN}, s{sN}, 1')
        a(f'v_lshrrev_b32 v{vH}, 5, v0', f'v_and_b32 v{vTok}, 31, v0', f'v_mov_b32 v{tmp}, v{vTok}')
        if maybe_v:
            a(f's_cmp_lt_u32 s{sCG}, 10', 's_cbranch_scc1 L_x_rows', f'v_and_b32 v1, 1, v0', f'v_lshrrev_b32 v{tmp}, 1, v{vTok}', f'v_lshl_add_u32 v{tmp}, v1, 5, v{tmp}')
            a.label('L_x_rows')
        a(f'v_bfe_u32 v1, v{tmp}, 1, 3', f'v_xor_b32 v1, v1, v{vH}', f'v_lshrrev_b32 v{tmp+1}, 5, v{tmp}', f'v_lshlrev_b32 v{tmp+1}, 2, v{tmp+1}', f'v_xor_b32 v1, v1, v{tmp+1}')
        a(f's_lshl_b32 s{sT0}, s{sM}, 13', f's_add_u32 s{sT0}, s{sT0}, {L_A+16384*slotA(c0)}', f'v_lshlrev_b32 v{tmp}, 7, v{tmp}', f'v_add_u32 v{tmp}, s{sT0}, v{tmp}')
        for st in range(4):
            a(f'v_xor_b32 v{tmp+1}, {2*st}, v1', f'v_lshl_add_u32 v{vAa+st}, v{tmp+1}, 4, v{tmp}')
        a('v_lshrrev_b32 v1, 2, v0', 'v_and_b32 v1, 3, v1')
        a(f'v_lshl_add_u32 v{tmp}, v{vH}, 3, v1', f'v_lshlrev_b32 v{tmp}, 8, v{tmp}')
        a(f'v_and_b32 v{tmp+1}, 3, v0', f'v_lshl_add_u32 v{tmp}, v{tmp+1}, 3, v{tmp}')
        a(f'v_and_b32 v{tmp+1}, 16, v0', f'v_lshl_add_u32 v{tmp}, v{tmp+1}, 1, v{tmp}', f'v_add_u32 v{tmp}, {L_B+16384*slotB(c0)}, v{tmp}')
        a(f's_lshl_b32 s{sT0}, s{sN}, 1', f'v_xor_b32 v1, s{sT0}, v1')
        a(f'v_lshl_add_u32 v{vBa}, v1, 6, v{tmp}', 'v_xor_b32 v1, 1, v1', f'v_lshl_add_u32 v{vBa+1}, v1, 6, v{tmp}')
        a(f's_mov_b32 s{sSA}, {slotA(c0)}', f's_mov_b32 s{sSB}, {slotB(c0)}', f's_mov_b32 s{sCntC}, 10')

    def zero_acc(lo, hi):
        for i in range(lo, hi, 2):
            a(f'v_mov_b64 {v(acc+i,2)}, 0')

    def reads(st, f, swap):
        FA, FB = F[f]
        return [f'ds_read_b128 {v(FA,4)}, v{vAa+st}',
                f'ds_read_b64_tr_b16 {v(FB,2)}, v{vBa} offset:{4096*st}',
                f'ds_read_b64_tr_b16 {v(FB+2,2)}, v{vBa} offset:{4096*st+1024}',
                f'ds_read_b64_tr_b16 {v(FB+4,2)}, v{vBa+1} offset:{4096*st}',
                f'ds_read_b64_tr_b16 {v(FB+6,2)}, v{vBa+1} offset:{4096*st+1024}',
                f'ds_read_b128 {v(FA+4,4)}, v{vAa+st} offset:2048' if swap else f'ds_read_b128 {v(FA+4,4)}, v{vAa+(st^2)} offset:4096']

    def mfmas(f, swap):
        FA, FB = F[f]
        out = []
        for t, u in ((0, 0), (0, 1), (1, 1), (1, 0)):
            x, w = FA + 4 * t, FB + 4 * u
            out.append(M16(acc + 32 * t + 16 * u, x, w) if swap else M16(acc + 32 * t + 16 * u, w, x))
        return out

    CT, CF, CR = SX, SX + 4, SX + 8
    PA, CS = SX + 32, [SX + 36, SX + 40]
    def colsum(f):
        return [f'v_mfma_f32_16x16x32_bf16 {v(CS[u],4)}, {v(PA,4)}, {v(F[f][1]+4*u,4)}, {v(CS[u],4)}' for u in range(2)]
    def colsum_setup():
        a(f'v_cmp_eq_u32 vcc, 0, v{vTok}', f'v_cmp_eq_u32 s[46:47], 20, v{vTok}', 'v_mov_b32 v1, 0x3f803f80', 's_nop 0', 's_or_b64 vcc, vcc, s[46:47]', 's_nop 1')
        for i in range(4):
            a(f'v_cndmask_b32 v{PA+i}, 0, v1, vcc')
        for i in range(8):
            a(f'v_mov_b32 v{CS[0]+i}, 0')
    def corr_split():
        out = []
        for t in range(2):
            out += [CVT(CT + 2 * t, CR + t, CR + t), CVT(CF + 2 * t, CS[t], CS[t])]
        for t in range(2):
            out += [f'v_and_b32 v{CR+4+t}, 0xffff0000, v{CT+2*t}', f'v_and_b32 v{CR+6+t}, 0xffff0000, v{CF+2*t}']
        for t in range(2):
            out += [f'v_sub_f32 v{CR+4+t}, v{CR+t}, v{CR+4+t}', f'v_sub_f32 v{CR+6+t}, v{CS[t]}, v{CR+6+t}']
        for t in range(2):
            out += [CVT(CT + 2 * t + 1, CR + 4 + t, CR + 4 + t), CVT(CF + 2 * t, CS[t], CR + 6 + t), CVT(CF + 2 * t + 1, CS[t], CR + 6 + t)]
        return out
    def corr_mfma(swap, c=None):
        out = []
        for t, u in ((0, 0), (0, 1), (1, 1), (1, 0)):
            x, w = CT + 2 * t, CF + 2 * u
            out.append(M8(acc + 32 * t + 16 * u, x, w, c) if swap else M8(acc + 32 * t + 16 * u, w, x, c))
        return out

    def mainloop(tagname, swap, pre_last):
        bar()
        a.stamp(3)
        a(reads(0, 0, swap))
        a.label(f'L_loop_{tagname}')
        for st in range(3):
            m = mfmas(st & 1, swap); rd = reads(st + 1, (st + 1) & 1, swap)
            a('s_waitcnt lgkmcnt(3)', m[0], rd[0:3], 's_waitcnt lgkmcnt(4)', m[1], rd[3:6], 's_waitcnt lgkmcnt(6)', m[2])
            if st == 0:
                a(f's_add_u32 s{sSA}, s{sSA}, 1', f's_cmp_eq_u32 s{sSA}, {NA}', CSEL(sDA, -16384*(NA-1), 16384), f's_cselect_b32 s{sSA}, 0, s{sSA}')
            if st == 1:
                a(f's_add_u32 s{sSB}, s{sSB}, 1', f's_cmp_eq_u32 s{sSB}, {NB}', CSEL(sDB, -16384*(NB-1), 16384), f's_cselect_b32 s{sSB}, 0, s{sSB}')
            if st == 2:
                a(f'v_add_u32 v{vAa}, s{sDA}, v{vAa}', f'v_add_u32 v{vBa}, s{sDB}, v{vBa}', f'v_add_u32 v{vBa+1}, s{sDB}, v{vBa+1}')
            a(colsum(st & 1), m[3])
            if st == 2:
                a(f's_sub_u32 s{sCntC}, s{sCntC}, 1')
                for r in (vAa + 1, vAa + 2, vAa + 3):
                    a(f'v_add_u32 v{r}, s{sDA}, v{r}')
        m = mfmas(1, swap); rd = reads(0, 0, swap)
        a(f's_cmp_eq_u32 s{sCntC}, 0', 's_waitcnt lgkmcnt(0)', 's_barrier', f's_cbranch_scc1 L_last_{tagname}')
        a(m[0], rd[0:3], m[1], rd[3:6], m[2], colsum(1), m[3], f's_branch L_loop_{tagname}')
        a.label(f'L_last_{tagname}')
        sp = corr_split()
        a(pre_last[:1], colsum(1), m[0], pre_last[1:], 's_nop 3', m[1], f's_waitcnt lgkmcnt({len(pre_last)-1})', sp[:5], m[2], sp[5:11], m[3], sp[11:], 's_nop 1', corr_mfma(swap))
        a.stamp(4)

    a.label('L_x')
    XBAR = {0: (1, 4), 1: (1, 3, 5), 2: (0, 2, 5), 3: (2, 5), 4: (3,), 5: (2,), 6: (2, 6), 7: (), 8: (4,)}[OPT.get('xbar', 4)]
    XSIG = OPT.get('xsig', 13)
    gemm_setup(0, 0, True)
    a('s_waitcnt lgkmcnt(0)')
    ws_setup()
    zero_acc(0, 64)
    colsum_setup()
    vAd, vSa, vSb = tmp, tmp + 8, tmp + 9
    t0, t1, t2 = tmp + 10, tmp + 11, tmp + 12
    a(f's_cmp_lt_u32 s{sCG}, 5',
      CSEL(sHS, 81920, 163840), f's_cselect_b32 s{sScale}, {fbits(QSCALE)}, 1.0',
      CSEL(sT0, 5120, 10240), CSEL(sOff, WS_Q, WS_KV), f's_cselect_b32 s{sT1}, 0, 5')
    a(f's_mul_i32 s{sT0}, s{sT0}, s{sRB}', f's_add_u32 s{sOff}, s{sOff}, s{sT0}',
      f's_mul_i32 s{sT0}, s{sM}, 2560', f's_add_u32 s{sOff}, s{sOff}, s{sT0}')
    a(f's_sub_u32 s{sT1}, s{sCG}, s{sT1}', f's_lshl_b32 s{sT1}, s{sT1}, 1', f's_add_u32 s{sT1}, s{sT1}, s{sN}', f's_lshl_b32 s{sT1}, s{sT1}, 4',
      f's_sub_u32 s{sHS}, s{sHS}, 2560')
    a(f'v_add_u32 v1, s{sT1}, v{vH}', f'v_lshlrev_b32 v{t2}, 4, v{vTok}', f'v_lshl_add_u32 v{t2}, v1, 9, v{t2}', 'v_mul_u32_u24 v1, 205, v1')
    for i in range(8):
        a(f'v_add_u32 v{t0}, {2*i*205}, v1', f'v_lshrrev_b32 v{t0}, 10, v{t0}', f'v_mad_u32_u24 v{vAd+i}, v{t0}, s{sHS}, v{t2}')
        if i >= 4:
            a(f'v_add_u32 v{vAd+i}, 4096, v{vAd+i}')
    vSc = tmp + 13
    a(f's_lshl_b32 s{sT2}, s{sM}, 8', f's_add_u32 s{sT2}, s{sT2}, {L_MEAN}', f'v_lshl_add_u32 v{vSc}, v{vTok}, 3, s{sT2}', f'v_lshl_add_u32 v{vSa}, v{vH}, 9, v{vSc}')
    a(f's_cmp_lt_u32 s{sCG}, 10', 's_cbranch_scc1 L_x_st')
    a(f's_mul_i32 s{sOff}, s{sRB}, 10240', f's_mul_i32 s{sT0}, s{sM}, 2560', f's_add_u32 s{sOff}, s{sOff}, s{sT0}', f's_add_u32 s{sOff}, s{sOff}, {WS_KV+5120}')
    a(f's_sub_u32 s{sT1}, s{sCG}, 10', f's_lshl_b32 s{sT1}, s{sT1}, 7', f's_lshl_b32 s{sT0}, s{sN}, 6', f's_add_u32 s{sT1}, s{sT1}, s{sT0}',
      f'v_add_u32 v1, s{sT1}, v{vTok}', f'v_mul_u32_u24 v{t2}, 320, v{vH}')
    for u in range(2):
        a(f'v_add_u32 v{t0}, {32*u}, v1', f'v_mul_u32_u24 v{t1}, 3277, v{t0}', f'v_lshrrev_b32 v{t1}, 16, v{t1}',
          f'v_mul_u32_u24 v{t1}, {163840-320}, v{t1}', f'v_lshl_add_u32 v{t1}, v{t0}, 4, v{t1}', f'v_add_u32 v{vAd+u}, v{t1}, v{t2}')
    a(f'v_lshl_add_u32 v{vSa}, v{vTok}, 2, s{sT2}', f'v_lshl_add_u32 v{vSa}, v{vH}, 9, v{vSa}', f'v_lshl_add_u32 v{vSc}, v{vH}, 4, s{sT2}')
    a.label('L_x_st')
    a.stamp(2)
    a(f's_cmp_lt_u32 s{sCG}, 15', 's_cbranch_scc1 L_x_act')
    PB = OPT.get('pb', 4)
    for _ in range(PB):
        bar()
    if OPT.get('ipf', 1):
        a(f's_lshl_b32 s{sT0}, s{sRB}, 2', f's_add_u32 s{sT0}, s{sT0}, s{sW}', f's_lshl_b32 s{sT0}, s{sT0}, 12', f'v_lshl_add_u32 v1, v0, 4, s{sT0}')
        parts = ((12, 640 * 3456, 4, 9), (12, 640 * 3456, 0, 4), (16, 1728 * 1280, 0, 9), (8, 640 * 1280, 0, 4))[OPT.get('ipn', 3):]
        for j, (base, nbytes, lo, hi) in enumerate(parts):
            a.srd(SD, base, nbytes)
            a(f's_mov_b32 s{sT1}, {lo << 18}')
            a.label(f'L_ipf{j}')
            for i in range(4):
                a(f'buffer_load_dwordx4 v[160:163], v1, s[{SD}:{SD+3}], s{sT1} offen offset:{1024*i}')
            a(f's_add_u32 s{sT1}, s{sT1}, {1 << 18}', f's_waitcnt vmcnt({OPT.get("ipd", 12)})', f's_cmp_lt_u32 s{sT1}, {hi << 18}', f's_cbranch_scc1 L_ipf{j}')
        a('s_waitcnt vmcnt(0)')
    for _ in range(16 - PB):
        bar()
    lds_tag(1)
    a('s_branch L_attn')
    a.label('L_x_act')
    a('s_setprio 1')
    a(f's_cmp_ge_u32 s{sCG}, 10', 's_cbranch_scc1 L_x_v')
    vRs = SX + 16
    mainloop('qk', False, [f'ds_read_b64 {v(CR,2)}, v{vSa}', f'ds_read_b64 {v(vRs,2)}, v{vSc} offset:{L_RSTD-L_MEAN}'])
    a(f's_setprio {OPT.get("xprio", 0)}', 's_waitcnt lgkmcnt(0)')
    a(f'v_mul_f32 v{vRs}, s{sScale}, v{vRs}', f'v_mul_f32 v{vRs+1}, s{sScale}, v{vRs+1}', 's_nop 5')
    for n, i in enumerate((4, 5, 6, 7, 0, 1, 2, 3)):
        u, q = i // 4, i % 4
        pk = FR + 4 * n
        for t in range(2):
            r = acc + 32 * t + 16 * u + 4 * q
            for e in range(4):
                a(f'v_mul_f32 v{r+e}, v{vRs+t}, v{r+e}')
            a(CVT(pk + 2 * t, r), CVT(pk + 2 * t + 1, r + 2))
        a(f'buffer_store_dwordx4 {v(pk,4)}, v{vAd+i}, {WS}, s{sOff} offen offset:{1024*(i%4)} sc1')
        if n in XBAR:
            bar()
    a('s_branch L_x_sig')
    a.label('L_x_v')
    def v_stats(t, dst):
        return [f'ds_read_b128 {v(dst+4*q,4)}, v{vSc} offset:{L_RSTD-L_MEAN+128*t+32*q}' for q in range(4)]
    mainloop('v', True, [f'ds_read2_b32 {v(CR,2)}, v{vSa} offset0:0 offset1:32'] + v_stats(0, vRs))
    a(f's_setprio {OPT.get("xprio", 0)}', v_stats(1, FR), 's_waitcnt lgkmcnt(4)', 's_nop 2')
    n = 0
    for t in range(2):
        st_ = FR if t else vRs
        if t:
            a('s_waitcnt lgkmcnt(0)')
        for u in range(2):
            for ap in range(2):
                r = acc + 32 * t + 16 * u + 8 * ap
                for e in range(8):
                    a(f'v_mul_f32 v{r+e}, v{st_+8*ap+e}, v{r+e}')
                for e in range(4):
                    a(CVT(r + e, r + 2 * e))
                a(f'buffer_store_dwordx4 {v(r,4)}, v{vAd+u}, {WS}, s{sOff} offen offset:{640*(2*t+ap)} sc1')
                if n in XBAR:
                    bar()
                n += 1
    a.label('L_x_sig')
    a.stamp(5)
    lds_tag(4)
    f1_off(sT0, sT1, sN, sM)
    a('v_mov_b32 v1, 0', 's_mov_b64 vcc, 1')
    for _ in range(XSIG - 10 - len(XBAR)):
        bar()
    a('s_mov_b64 exec, vcc', 's_waitcnt vmcnt(0)', f'buffer_store_dword v4, v1, {WS}, s{sT0} offen sc1', 's_mov_b64 exec, -1')
    a.stamp(6)
    for _ in range(15 - XSIG):
        bar()

    a.label('L_attn')
    if 'c0' in OPT:
        a.lock = tuple(range(2, 14))
    a.stamp(7)
    R = Regs(2)
    vH, vTokA, vVa, vK2a = R(), R(), R(), R()
    vKa = [R(), R()]
    Q1 = R(4); Q2 = [R(2), R(2)]
    S = [R(16), R(16)]
    P = R(8); O = R(16); C = R(16)
    K1 = [R(4), R(4)]; V = [R(8), R(8)]; K2 = R(2)
    tp = R(8)
    sCnt, sKV, sPass, sM40 = 40, 41, 42, 44
    vKg = tp + 6
    def a_setup():
        a(f'v_lshrrev_b32 v{vH}, 5, v0', f'v_and_b32 v{vTokA}, 31, v0', f's_mul_i32 s{sKV}, s{sHead}, 163840', f's_add_u32 s{sKV}, s{sKV}, {WS_KV}')
        a(f'v_lshlrev_b32 v{vK2a}, 3, v{vTokA}', f'v_lshl_add_u32 v{vKg}, v{vH}, 9, v{vK2a}')
        a(f'v_add_u32 v{vKa[0]}, {L_K}, v{vKg}', f'v_add_u32 v{vKa[1]}, {L_K+256}, v{vKg}', f'v_lshlrev_b32 v{vK2a}, 3, v0', f'v_add_u32 v{vK2a}, {L_K+2048}, v{vK2a}')
        a(f'v_lshlrev_b32 v{vVa}, 4, v{vTokA}', f'v_mul_u32_u24 v{K2}, 320, v{vH}', f'v_add_u32 v{vVa}, v{vVa}, v{K2}', f'v_add_u32 v{vVa}, {L_V}, v{vVa}')
        a(f'v_cmp_eq_u32 vcc, 20, v{vTokA}', f'v_mov_b32 v{K2}, {L_V+640}', f'v_mov_b32 v{K2+1}, {FAR}', f'v_cndmask_b32 v{vVa}, v{vVa}, v{K2}, vcc',
          f'v_cmp_lt_u32 vcc, 20, v{vTokA}', 's_nop 1', f'v_cndmask_b32 v{vVa}, v{vVa}, v{K2+1}, vcc')
        for i in range(16):
            a(f'v_mov_b32 v{O+i}, 0')
        for i in range(4):
            a(f'v_mov_b32 v{P+4+i}, 0', f'v_mov_b32 v{V[1]+4+i}, 0')
        a(f's_lshr_b32 s{sT0}, s{sW}, 1', f's_cmp_lt_u32 s{sT0}, 2', CSEL(sT1, L_Q0, L_Q1 - 5120), f's_mul_i32 s{sT0}, s{sT0}, 2560', f's_add_u32 s{sT0}, s{sT0}, s{sT1}',
          f's_and_b32 s{sT1}, s{sW}, 1', f's_lshl_b32 s{sT1}, s{sT1}, 3', f's_add_u32 s{sT0}, s{sT0}, s{sT1}',
          f'v_lshl_add_u32 v{vQb}, v{vTokA}, 4, s{sT0}', f'v_lshl_add_u32 v{vQa}, v{vH}, 9, v{vQb}')
    vQa, vQb = tp + 4, tp + 5
    a_setup()
    sP, sNB, sSpin = 48, 49, 50
    if True:
        a(f's_mul_i32 s{sT0}, s{sHead}, 20', f's_add_u32 s{sT1}, s{sT0}, 19', f's_lshr_b32 s{sT0}, s{sT0}, 6', f's_lshr_b32 s{sT1}, s{sT1}, 6', f's_sub_u32 s{sT1}, s{sT1}, s{sT0}',
          f's_lshl_b32 s{sT1}, s{sT1}, 10', f's_lshl_b32 s{sP}, s{sT0}, 10', f's_add_u32 s{sP}, s{sP}, {WS_F1}')
        a(f'v_min_u32 v{tp}, 47, v0', f'v_and_b32 v1, 7, v{tp}', 'v_lshlrev_b32 v1, 7, v1', f'v_bfe_u32 v{tp+1}, v{tp}, 3, 1', f'v_mad_u32_u24 v1, v{tp+1}, s{sT1}, v1',
          f'v_lshrrev_b32 v{tp}, 4, v{tp}', f'v_mul_u32_u24 v{tp}, 10240, v{tp}', f'v_add_u32 v1, v1, v{tp}')
    a(f's_mov_b32 s{sSpin}, {SPIN}')
    a(f's_mov_b32 s{sM40}, -1', f's_mov_b32 s{sM40+1}, 0xff')
    a(f's_lshl_b32 s{sT0}, s{sHead}, 5', f's_lshl_b32 s{sT1}, s{sQB}, 2', f's_add_u32 s{sT0}, s{sT0}, s{sT1}', f's_add_u32 s{sT0}, s{sT0}, s{sW}', f's_mul_i32 s51, s{sT0}, 2560',
      f's_add_u32 s51, s51, {WS_Q}', f's_cmp_lt_u32 s{sW}, 2', CSEL(sT1, L_Q0, L_Q1 - 5120), f's_mul_i32 s52, s{sW}, 2560', f's_add_u32 s52, s52, s{sT1}')
    a(f's_mul_i32 s{sT0}, s{sW}, 1280', f's_mul_i32 s{sT1}, s{sW}, 1312', f's_add_u32 s{sT2}, s{sT0}, s{sKV}')
    poll1 = f'buffer_load_dwordx4 {v(tp,4)}, v1, {WS}, s{sP} offen sc1'
    check = ['s_waitcnt vmcnt(0)'] + [f'v_xor_b32 v{tp+i}, s{sTag}, v{tp+i}' for i in range(4)] + [
        f'v_or3_b32 v{tp}, v{tp}, v{tp+1}, v{tp+2}', f'v_or_b32 v{tp}, v{tp}, v{tp+3}', f'v_cmp_ne_u32 vcc, 0, v{tp}', 's_nop 1', 's_cmp_eq_u64 vcc, 0', 's_cbranch_scc1 L_poll1_ok']
    bar()
    a(poll1, f's_mov_b32 s{sNB}, 2')
    a.label('L_poll1a')
    bar()
    a(check, poll1, f's_sub_u32 s{sNB}, s{sNB}, 1', 's_cbranch_scc0 L_poll1a', f's_mov_b32 s{sNB}, 0')
    a.label('L_poll1b')
    a(check, f's_sub_u32 s{sSpin}, s{sSpin}, 1', 's_cbranch_scc1 L_poll1_ok', backoff('s1'), poll1, 's_branch L_poll1b')
    a.label('L_poll1_ok')
    a.stamp(8)
    a('v_lshlrev_b32 v1, 4, v0', 's_mov_b32 m0, s52', f's_mov_b64 exec, s[{sM40}:{sM40+1}]')
    for i in range(4):
        a(f'buffer_load_dwordx4 v1, {WS}, s51 offen offset:{640*i} sc1 lds')
    for c in range(2):
        a(f's_add_u32 m0, s{sT0}, {L_K+5120*c}', f's_add_u32 s{sT3}, s{sT2}, {10240*c}')
        a(f'buffer_load_dwordx4 v1, {WS}, s{sT3} offen sc1 lds', f'buffer_load_dwordx4 v1, {WS}, s{sT3} offen offset:640 sc1 lds')
        a(f's_add_u32 m0, s{sT1}, {L_V+5248*c}', f's_add_u32 s{sT3}, s{sT3}, 5120')
        a(f'buffer_load_dwordx4 v1, {WS}, s{sT3} offen sc1 lds', f's_sub_u32 s{sT3}, s{sT3}, 16', f'buffer_load_dwordx4 v1, {WS}, s{sT3} offen offset:656 sc1 lds')
    a('s_mov_b64 exec, -1')
    a.label('L_rest')
    a(f's_sub_u32 s{sNB}, s{sNB}, 1', 's_cbranch_scc1 L_rest_done', 's_barrier', 's_branch L_rest')
    a.label('L_rest_done')
    a('s_waitcnt vmcnt(4)', 's_branch L_attn_j')
    a.label('L_attn_z')
    a.vm = zvm
    lds_tag(1)
    a_setup()
    a(f'v_mul_u32_u24 v1, 656, v{vTokA}', f'v_add_u32 v1, {L_V+640}, v1')
    for i in range(4):
        a(f'v_mov_b32 v{K1[0]+i}, 0x3f803f80')
    a(f's_cmp_lg_u32 s{sW}, 4', 's_cbranch_scc1 L_noones', f'ds_write_b128 v1, {v(K1[0],4)}')
    a.label('L_noones')
    a.wait_vm(('c', 19))
    bar()
    a('s_waitcnt lgkmcnt(0)')
    a.label('L_attn_j')
    sHi = 46
    a('s_mov_b32 vcc_lo, -1', 's_mov_b32 vcc_hi, 0', f's_mov_b32 s{sHi}, -1', f's_mov_b32 s{sHi+1}, 0')

    def rdK1(dst, blk):
        o = (blk // 2 % 8) * 5
        return f'ds_read2st64_b64 {v(dst,4)}, v{vKa[blk % 2]} offset0:{o} offset1:{o+2}'
    def rdK2(pair):
        return f'ds_read_b64 {v(K2,2)}, v{vK2a} offset:{(pair % 8) * 2560}'
    def rdV(dst, blk, half):
        return f'ds_read_b128 {v(dst+4*half,4)}, v{vVa} offset:{((blk % 16) * 2 + half) * 656}'

    a.stamp(9)
    bar()
    a.stamp(10)
    a(f'ds_read2st64_b64 {v(Q1,4)}, v{vQa} offset0:0 offset1:2', rdK1(K1[0], 0), rdK1(K1[1], 1), f'ds_read_b64 {v(tp,2)}, v{vQb} offset:2048', rdK2(0),
      rdV(V[0], 0, 0), rdV(V[0], 0, 1), 's_waitcnt lgkmcnt(5)')
    a(M16(S[0], K1[0], Q1, '0'), 's_waitcnt lgkmcnt(3)')
    for i in range(2):
        a(f'v_cndmask_b32 v{Q2[0]+i}, 0, v{tp+i}, vcc')
    for i in range(2):
        a(f'v_cndmask_b32 v{Q2[1]+i}, v{tp+i}, 0, s[{sHi}:{sHi+1}]')
    a(M16(S[1], K1[1], Q1, '0'), 's_waitcnt lgkmcnt(2)', M8(S[0], K2, Q2[0]), M8(S[1], K2, Q2[1]), 's_nop 10')
    a(f'v_max3_f32 v{tp}, v{S[0]}, v{S[0]+1}, v{S[0]+2}')
    for i in range(3, 15, 2):
        a(f'v_max3_f32 v{tp}, v{tp}, v{S[0]+i}, v{S[0]+i+1}')
    a(f'v_max3_f32 v{tp}, v{tp}, v{S[0]+15}, v{S[1]}')
    for i in range(1, 15, 2):
        a(f'v_max3_f32 v{tp}, v{tp}, v{S[1]+i}, v{S[1]+i+1}')
    a(f'v_max_f32 v{tp}, v{tp}, v{S[1]+15}', f'v_mov_b32 v{tp+1}, v{tp}', 's_nop 1', f'v_permlane32_swap_b32 v{tp}, v{tp+1}', 's_nop 1')
    a(f'v_max_f32 v{tp}, v{tp}, v{tp+1}', f'v_sub_f32 v{C}, {fbits(-float(OPT.get("mo", MAXOFF)))}, v{tp}')
    a(f'v_mov_b32 v{C+1}, v{C}')
    for i in range(2, 16, 2):
        a(f'v_mov_b64 {v(C+i,2)}, {v(C,2)}')
    a('s_nop 1', M16(S[0], K1[0], Q1, C), M8(S[0], K2, Q2[0]), f's_mov_b32 s{sCnt}, 4', 's_waitcnt vmcnt(0)', 's_nop 7')
    a.stamp(11)
    a.raw('.p2align 3')
    a.label('L_at_loop')
    for b in range(16):
        cur, nxt = S[b & 1], S[(b + 1) & 1]
        E = lambda i: EXP(cur + i)
        Cv = lambda i: CVT(P + i, cur + 2 * i)
        a(M16(nxt, K1[(b + 1) & 1], Q1, C))
        if b % 4 == 2:
            bar()
        a(f's_setprio {3 - (b + 2) % 4}', rdK1(K1[b & 1], b + 2))
        a(E(0), E(1), E(2), Cv(0), E(3), E(4))
        a(M16(O, V[(b + 1) & 1] + 4, P + 4), 's_waitcnt lgkmcnt(1)', rdV(V[(b + 1) & 1], b + 1, 0), rdV(V[(b + 1) & 1], b + 1, 1))
        a(Cv(1), E(5), E(6), Cv(2), E(7), E(8))
        if not OPT.get('abl_8'):
            a(M8(nxt, K2, Q2[(b + 1) & 1]))
        a(Cv(3), E(9), E(10), Cv(4), E(11), E(12))
        a(M16(O, V[b & 1], P), 's_waitcnt lgkmcnt(2)')
        if b % 2 == 0:
            a(rdK2(b // 2 + 1))
        if b == 15:
            a(f's_sub_u32 s{sCnt}, s{sCnt}, 1', f's_cmp_lg_u32 s{sCnt}, 0')
        a(Cv(5), E(13), E(14), E(15), Cv(6), Cv(7))
    a('s_cbranch_scc1 L_at_loop')
    a('s_nop 0', M16(O, V[1] + 4, P + 4), f's_mov_b32 s{sPass}, 0', 's_waitcnt lgkmcnt(0)')
    a.stamp(12)

    a.label('L_at_fin')
    a(f's_lshl_b32 s{sT0}, s{sQB}, 3', f's_add_u32 s{sT0}, s{sT0}, s{sW}', f's_mul_i32 s{sT0}, s{sT0}, 40960', f's_add_u32 s{sT0}, s{sT0}, {WS_O}',
      f's_lshl_b32 s{sT1}, s{sHead}, 10', f's_add_u32 s{sT1}, s{sT1}, s{sT0}',
      f's_lshl_b32 s{sT2}, s{sHead}, 8', f's_add_u32 s{sT2}, s{sT2}, s{sT0}', f's_add_u32 s{sT2}, s{sT2}, 32768', f's_mov_b32 s{sT3}, {fbits(2.0**-100)}', 's_nop 1')
    vL, vSum = tp, tp + 1
    a(f'v_mov_b32 v{vL}, v{O+8}', f'v_mov_b32 v{tp+2}, v{O+8}', f'v_add_f32 v{vSum}, |v{O}|, |v{O+1}|', f'v_add_f32 v{tp+3}, |v{O+8}|, |v{O+9}|')
    a(f'v_permlane32_swap_b32 v{tp+2}, v{vL}')
    for i in range(2, 8):
        a(f'v_add_f32 v{vSum}, v{vSum}, |v{O+i}|')
    a(f'v_add_f32 v{tp+3}, v{tp+3}, |v{O+10}|', f'v_add_f32 v{tp+3}, v{tp+3}, |v{O+11}|', f'v_add_f32 v{tp+3}, v{tp+3}, v{vSum}')
    a(f'v_rcp_f32 v{vL}, v{vL}')
    a(f'v_cmp_ngt_f32 vcc, {fbits(2.0**120)}, v{tp+3}', f'v_cmp_gt_f32 s[46:47], s{sT3}, v{vSum}', 's_nop 1',
      's_or_b64 s[46:47], s[46:47], vcc', f's_cmp_eq_u32 s{sPass}, 0', 's_cselect_b64 s[46:47], s[46:47], 0', 's_cmp_lg_u64 s[46:47], 0',
      's_cbranch_scc1 L_at_slow' if not OPT.get('noslow') else 's_nop 0')
    for i in range(12):
        a(f'v_mul_f32 v{O+i}, v{O+i}, v{vL}')
    for i in range(6):
        a(CVT(O + i, O + 2 * i))
    a('v_lshlrev_b32 v1, 4, v0', f'v_lshlrev_b32 v{tp}, 3, v0')
    a(f'buffer_store_dwordx4 {v(O,4)}, v1, {WS}, s{sT1} offen sc1')
    a('s_mov_b32 exec_hi, 0')
    a(f'buffer_store_dwordx2 {v(O+4,2)}, v{tp}, {WS}, s{sT2} offen sc1')
    FOS = OPT.get('fos', 2)
    a(f's_lshl_b32 s{sT0}, s{sQB}, 3', f's_add_u32 s{sT0}, s{sT0}, s{sW}', f's_lshl_b32 s{sT0}, s{sT0}, 12', f's_lshr_b32 s{sT1}, s{sHead}, {FOS}', f's_lshl_b32 s{sT1}, s{sT1}, 7',
      f's_add_u32 s{sT0}, s{sT0}, s{sT1}', f's_and_b32 s{sT1}, s{sHead}, {(1<<FOS)-1}', f's_lshl_b32 s{sT1}, s{sT1}, 2',
      f's_add_u32 s{sT0}, s{sT0}, s{sT1}', f's_add_u32 s{sT0}, s{sT0}, {WS_FO}', f'v_mov_b32 v1, s{sTag}', 'v_mov_b32 v2, 0', 's_mov_b64 exec, 1')
    a('s_waitcnt vmcnt(0)', f'buffer_store_dword v1, v2, {WS}, s{sT0} offen sc1')
    a.stamp(13)
    a.dump(0, sW, 24)
    a('s_endpgm')

    a.label('L_at_slow')
    vVg, vL8s = tp + 4, tp + 7
    a(f'v_min_u32 v1, 19, v{vTokA}', 'v_lshlrev_b32 v1, 4, v1', f'v_mul_u32_u24 v{vVg}, 320, v{vH}', f'v_add_u32 v{vVg}, v1, v{vVg}', f'v_lshlrev_b32 v{vL8s}, 3, v0')
    a(f'v_mov_b32 v{tp}, 0xff800000', f's_mov_b32 s{sCnt}, 0')
    def pair_off():
        a(f's_lshr_b32 s{sT0}, s{sCnt}, 1', f's_mul_i32 s{sT0}, s{sT0}, 10240', f's_and_b32 s{sT1}, s{sCnt}, 1', f's_mul_i32 s{sT1}, s{sT1}, 2560',
          f's_add_u32 s{sT0}, s{sT0}, s{sT1}', f's_add_u32 s{sT0}, s{sT0}, s{sKV}', f's_add_u32 s{sT1}, s{sT0}, 5120')
    def ldK():
        for b in range(2):
            a(f'buffer_load_dwordx2 {v(K1[b],2)}, v{vKg}, {WS}, s{sT0} offen offset:{256*b} sc1',
              f'buffer_load_dwordx2 {v(K1[b]+2,2)}, v{vKg}, {WS}, s{sT0} offen offset:{256*b+1024} sc1')
        a(f'buffer_load_dwordx2 {v(K2,2)}, v{vL8s}, {WS}, s{sT0} offen offset:2048 sc1')
    a.label('L_at_slow_max')
    pair_off(); ldK()
    a('s_waitcnt vmcnt(0)')
    a(M16(S[0], K1[0], Q1, '0'), M16(S[1], K1[1], Q1, '0'), M8(S[0], K2, Q2[0]), M8(S[1], K2, Q2[1]), 's_nop 12')
    for i in range(16):
        a(f'v_max3_f32 v{tp}, v{tp}, v{S[0]+i}, v{S[1]+i}')
    a(f's_add_u32 s{sCnt}, s{sCnt}, 1', f's_cmp_lt_u32 s{sCnt}, 32', 's_cbranch_scc1 L_at_slow_max')
    a(f'v_mov_b32 v{tp+1}, v{tp}', 's_nop 1', f'v_permlane32_swap_b32 v{tp}, v{tp+1}', 's_nop 1', f'v_max_f32 v{tp}, v{tp}, v{tp+1}')
    for i in range(16):
        a(f'v_sub_f32 v{C+i}, 0, v{tp}', f'v_mov_b32 v{O+i}, 0')
    a(f'v_cmp_eq_u32 s[48:49], 20, v{vTokA}', f'v_mov_b32 v{tp+5}, 0x3f803f80', f's_mov_b32 s{sCnt}, 0')
    a.label('L_at_slow_pv')
    pair_off(); ldK()
    for g in range(4):
        a(f'buffer_load_dwordx4 {v(V[g//2]+4*(g%2),4)}, v{vVg}, {WS}, s{sT1} offen offset:{640*g} sc1')
    a('s_waitcnt vmcnt(0)')
    a(M16(S[0], K1[0], Q1, C), M16(S[1], K1[1], Q1, C), M8(S[0], K2, Q2[0]), M8(S[1], K2, Q2[1]))
    for b in range(2):
        for i in range(8):
            a(f'v_cndmask_b32 v{V[b]+i}, v{V[b]+i}, v{tp+5}, s[48:49]')
    for b in range(2):
        for i in range(16):
            a(EXP(S[b] + i))
        a('s_nop 0')
        for i in range(8):
            a(CVT(P + i, S[b] + 2 * i))
        a('s_nop 1', M16(O, V[b], P), M16(O, V[b] + 4, P + 4))
    a(f's_add_u32 s{sCnt}, s{sCnt}, 1', f's_cmp_lt_u32 s{sCnt}, 32', 's_cbranch_scc1 L_at_slow_pv')
    a(f's_mov_b32 s{sPass}, 1', 's_branch L_at_fin')

    a.label('L_helper')
    a.lock = None
    sG = 38
    a(f's_sub_u32 s{sG}, s{sW}, 8')
    gemm_setup(8, 10, False)
    sFB = 39
    a(f's_lshl_b32 s{sT0}, s{sRB}, 7', f's_lshl_b32 s{sT1}, s{sCG}, 3', f's_add_u32 s{sT0}, s{sT0}, s{sT1}', f's_lshl_b32 s{sT1}, s{sG}, 1', f's_add_u32 s{sT2}, s{sT0}, s{sT1}',
      f's_mul_i32 s{sT3}, s{sT2}, 1280', f's_lshl_b32 s{sT2}, s{sT2}, 4', f's_add_u32 s{sT2}, s{sT2}, {WS_RS}')
    a(f'v_mul_u32_u24 v1, 1280, v2', f'v_lshl_add_u32 v{tmp+4}, v{vTok}, 4, v1', f'v_lshl_add_u32 v{tmp+5}, v{vTok}, 3, v1', f'v_lshlrev_b32 v{tmp+6}, 1, v{vTok}')
    a(f's_lshl_b32 s{sFB}, s{sCG}, 1', f's_add_u32 s{sFB}, s{sFB}, s{sN}', f's_lshl_b32 s{sT0}, s{sFB}, 7')
    a('s_waitcnt lgkmcnt(0)')
    if OPT.get('rl', 0) == 0:
        a.srd(SD, 4, 2621440)
        a(f'buffer_load_dwordx4 {v(SX,4)}, v{tmp+4}, s[{SD}:{SD+3}], s{sT3} offen', f'buffer_load_dwordx4 {v(SX+4,4)}, v{tmp+4}, s[{SD}:{SD+3}], s{sT3} offen offset:512',
          f'buffer_load_dwordx2 {v(SX+8,2)}, v{tmp+5}, s[{SD}:{SD+3}], s{sT3} offen offset:1024')
    ws_setup()
    a(f's_add_u32 s10, s22, {WS_EP}', 's_addc_u32 s11, s23, 0', f's_load_dword s{sTag}, s[10:11], 0')
    def touch(off, extra=(0,)):
        a(f's_and_b32 s10, s{off}, 0xffffff80', 's_add_u32 s10, s22, s10', 's_addc_u32 s11, s23, 0')
        for e in extra:
            a(f's_load_dword s61, s[10:11], {e}', f's_load_dword s61, s[10:11], {e+64}')
    if OPT.get('tch', 1):
        touch(sT2)
        f1_off(56, 57, sN, None)
        touch(56)
        a(f's_lshl_b32 s56, s{sRB}, 1', f's_add_u32 s56, s56, s{sM}', 's_lshl_b32 s56, s56, 4', f's_add_u32 s56, s56, s{sCG}', 's_lshl_b32 s56, s56, 7', f's_add_u32 s56, s56, {WS_FH}')
        touch(56)
        a(f's_lshl_b32 s56, s{sQB}, 2', f's_add_u32 s56, s56, s{sG}', 's_lshl_b32 s56, s56, 13', f's_lshr_b32 s57, s{sHead}, {OPT.get("fos", 2)}', 's_lshl_b32 s57, s57, 7',
          's_add_u32 s56, s56, s57', f's_add_u32 s56, s56, {WS_FO}')
        touch(56, (0, 4096))
    PF = 56
    a(f's_and_b32 s{sT1}, s{sRB}, 7', f's_lshl_b32 s{sT1}, s{sT1}, 2', f's_add_u32 s{sT1}, s{sT1}, s{sG}', f's_mul_i32 s{sT1}, s{sT1}, {2*3840}',
      f's_min_u32 s{PF}, s{sCG}, 14', f's_lshl_b32 s{PF}, s{PF}, 8', f's_add_u32 s{sT1}, s{sT1}, s{PF}', f's_add_u32 s{PF}, s6, s{sT1}', f's_addc_u32 s{PF+1}, s7, 0')
    PD = OPT.get('pf', 0)
    def prefetch(i):
        c = i + 2 + PD
        if PD and c < 10:
            a(f's_add_u32 s{PF+2}, s{PF}, {64*3840*c}', f's_addc_u32 s{PF+3}, s{PF+1}, 0')
            for r in range(2):
                for l in range(4):
                    a(f's_load_dword s{PF+4}, s[{PF+2}:{PF+3}], {r*3840 + l*64}')
    for i in range(-PD, 0):
        prefetch(i)
    def rowloads():
        a.srd(SD, 4, 2621440)
        a(f'buffer_load_dwordx4 {v(SX,4)}, v{tmp+4}, s[{SD}:{SD+3}], s{sT3} offen', f'buffer_load_dwordx4 {v(SX+4,4)}, v{tmp+4}, s[{SD}:{SD+3}], s{sT3} offen offset:512',
          f'buffer_load_dwordx2 {v(SX+8,2)}, v{tmp+5}, s[{SD}:{SD+3}], s{sT3} offen offset:1024')
    RL = OPT.get('rl', 0)
    if RL == 1:
        rowloads()
    bar()
    if RL == 2:
        rowloads()
    colsum_setup()
    a(f'v_lshlrev_b32 v{tmp+2}, 4, v{vTok}')
    zero_acc(0, 32)
    prefetch(0)
    bar()
    prefetch(1)
    RW = OPT.get('rw', 0)
    for i in range(RW):
        bar()
        prefetch(2 + i)
    a('s_waitcnt vmcnt(0) lgkmcnt(0)', f's_add_u32 s{sTag}, s{sTag}, 0x9e3779b1')
    a.srd(SD, 14, 3456)
    a(f'buffer_load_ushort v{tmp+7}, v{tmp+6}, s[{SD}:{SD+3}], s{sT0} offen', f'buffer_load_ushort v{tmp+8}, v{tmp+6}, s[{SD}:{SD+3}], s{sT0} offen offset:64')
    a(f's_lshl_b32 s{sT1}, s{sRB}, 11', f's_lshl_b32 s{sT0}, s{sG}, 9', f's_add_u32 s{sT1}, s{sT1}, s{sT0}', f's_add_u32 s{sT1}, s{sT1}, {WS_RS}', f's_mov_b32 s{sT3}, {SPIN}')
    r0, r1, r2, r3 = FR, FR + 1, FR + 2, FR + 3
    def reduce32(r):
        for mod in ('quad_perm:[1,0,3,2]', 'quad_perm:[2,3,0,1]', 'row_half_mirror', 'row_mirror'):
            a('s_nop 1', f'v_add_f32_dpp v{r}, v{r}, v{r} {mod} row_mask:0xf bank_mask:0xf')
        a(f'v_mov_b32 v{r3}, v{r}', 's_nop 1', f'v_permlane16_swap_b32 v{r}, v{r3}', 's_nop 1', f'v_add_f32 v{r}, v{r}, v{r3}')
    U = lambda i: (FR + 8 + i) if i < 10 else (SX + i - 10)
    for i in range(10):
        a(f'v_lshlrev_b32 v{U(i)}, 16, v{SX+i}', f'v_and_b32 v{SX+i}, 0xffff0000, v{SX+i}')
        if i < 2:
            a(f'v_add_f32 v{r0+i}, v{U(i)}, v{U(10+i)}')
        else:
            a(f'v_add_f32 v{r0}, v{r0}, v{U(i)}', f'v_add_f32 v{r1}, v{r1}, v{U(10+i)}')
    a(f'v_add_f32 v{r0}, v{r0}, v{r1}')
    reduce32(r0)
    a(f'v_mul_f32 v{r0}, {fbits(1/640)}, v{r0}', f'v_mov_b32 v{r1}, 0', f'v_mov_b32 v{r2}, 0')
    bar()
    prefetch(2 + RW)
    for i in range(0, 20, 2):
        a(f'v_sub_f32 v{U(i)}, v{U(i)}, v{r0}', f'v_sub_f32 v{U(i+1)}, v{U(i+1)}, v{r0}', f'v_fmac_f32 v{r1}, v{U(i)}, v{U(i)}', f'v_fmac_f32 v{r2}, v{U(i+1)}, v{U(i+1)}')
    a(f'v_add_f32 v{r2}, v{r1}, v{r2}')
    reduce32(r2)
    a(f'v_mov_b32 v{r3}, {fbits(1e-5)}', f'v_fmac_f32 v{r3}, {fbits(1/640)}, v{r2}', f'v_rsq_f32 v{r2}, v{r3}', f'v_mov_b32 v{r1}, s{sTag}', f'v_mov_b32 v{r3}, s{sTag}',
      'v_lshrrev_b32 v1, 1, v0', 's_mov_b32 exec_lo, 1', 's_mov_b32 exec_hi, 1', f'buffer_store_dwordx4 {v(r0,4)}, v1, {WS}, s{sT2} offen sc1', 's_mov_b64 exec, -1')
    a.stamp(2)
    vL16, vL8, vTr, vTr2, vOut, vRes = range(SX + 16, SX + 22)
    vW, vWr = SX + 22, SX + 26
    sOwn, sKH, sRow, sCol, sReg = 62, 63, 64, 65, 66
    def p2_setup(part, t):
        if part == 0:
            a(f's_and_b32 s{sOwn}, s{sG}, 1', f's_lshr_b32 s{sKH}, s{sG}, 1', f's_lshl_b32 s{sRow}, s{sHead}, 1', f's_add_u32 s{sRow}, s{sRow}, s{sOwn}',
              f's_mul_i32 s{sCol}, s{sQB}, 160', f's_mul_i32 s{sReg}, s{sG}, 25600', f's_cmp_eq_u32 s{sKH}, 0', 's_cselect_b32 s67, 1280, 0')
            a(f'v_lshlrev_b32 v{vL16}, 4, v0', f'v_lshlrev_b32 v{vL8}, 3, v0')
            a(f's_lshl_b32 s{sT0}, s{sHead}, 6', f's_add_u32 s{sT0}, s{sT0}, s{sOwn}', f'v_lshl_add_u32 v1, v{vTok}, 1, s{sT0}', f'v_lshl_add_u32 v{t}, v2, 4, s{sCol}',
              f'v_mul_u32_u24 v{vOut}, 1280, v1', f'v_add_u32 v{vOut}, v{vOut}, v{t}', f'v_mul_u32_u24 v{vRes}, s67, v1', f'v_add_u32 v{vRes}, v{vRes}, v{t}')
            a('v_bfe_u32 v1, v0, 2, 2', 'v_lshl_add_u32 v1, v1, 1, v2', 'v_mul_u32_u24 v1, 160, v1')
            a(f'v_and_b32 v{t}, 16, v0', f'v_lshl_add_u32 v1, v{t}, 1, v1', f'v_and_b32 v{t+1}, 1, v0', f'v_lshl_add_u32 v1, v{t+1}, 4, v1',
              f'v_and_b32 v{t+1}, 2, v0', f'v_lshl_add_u32 v1, v{t+1}, 2, v1', f'v_add_u32 v{vTr}, s{sReg}, v1',
              f'v_lshl_add_u32 v{vTr2}, v{t}, 14, v{vTr}')
        else:
            a(f'v_mul_u32_u24 v1, 205, v0', 'v_lshrrev_b32 v1, 11, v1')
            a(f'v_mul_u32_u24 v{t}, 10, v1', f'v_sub_u32 v{t}, v0, v{t}', f'v_lshl_add_u32 v{t}, v{t}, 4, s{sCol}')
            a(f'v_and_b32 v{t+1}, 1, v1', 'v_lshrrev_b32 v1, 1, v1')
            a(f'v_lshl_add_u32 v{t+2}, v{t+1}, 2, v1', f'v_mul_u32_u24 v{t+2}, 1280, v{t+2}', f'v_add_u32 v{vW}, v{t+2}, v{t}')
            for i, ro in ((1, 2), (2, 8), (3, 10)):
                a(f'v_add_u32 v{vW+i}, {ro*1280-640*i}, v{vW}')
            a(f'v_mul_u32_u24 v{t+1}, 20, v{t+1}', f'v_add3_u32 v{t+2}, v{t+1}, v1, 16', f'v_mul_u32_u24 v{t+2}, 1280, v{t+2}', f'v_add_u32 v{vWr}, v{t+2}, v{t}')
            for i, ro in ((1, 2), (2, 40), (3, 42)):
                a(f'v_add_u32 v{vWr+i}, {ro*1280-640*i}, v{vWr}')
    GI, GC = OPT.get('gi', 6), OPT.get('gc', 8)
    for i in range(3 + RW, GI + 1):
        bar()
        prefetch(i)
        if i - RW in (3, 4):
            p2_setup(i - RW - 3, tmp + 10)
        if i - RW == 5:
            zero_acc(32, 64)
    g0 = FR
    gather = f'buffer_load_dwordx4 {v(g0,4)}, v{tmp+2}, {WS}, s{sT1} offen sc1'
    a(gather)
    for i in range(GI + 1, GC + 1):
        bar()
        prefetch(i)
    a.label('L_h_chk')
    a('s_waitcnt vmcnt(0)', f'v_cmp_ne_u32 vcc, s{sTag}, v{g0+1}', f'v_cmp_ne_u32 s[46:47], s{sTag}, v{g0+3}', 's_nop 1', 's_or_b64 vcc, vcc, s[46:47]',
      's_cbranch_scc0 L_h_got', f's_sub_u32 s{sT3}, s{sT3}, 1', 's_cbranch_scc1 L_h_got', backoff('s0'), gather, 's_branch L_h_chk')
    a.label('L_h_got')
    a(f'v_rcp_f32 v{g0+1}, v{g0+2}', f'v_sub_f32 v{g0}, 0, v{g0}')
    a(f's_lshl_b32 s{sT0}, s{sG}, 7', f's_add_u32 s{sT0}, s{sT0}, {L_MEAN}', f'v_lshl_add_u32 v1, v{vTok}, 2, s{sT0}',
      f'ds_write_b32 v1, v{g0}', f'ds_write_b32 v1, v{g0+1} offset:{L_ISTD-L_MEAN}', f'ds_write_b32 v1, v{g0+2} offset:{L_RSTD-L_MEAN}',
      f'v_mov_b32 v1, {L_TAG}', f'v_mov_b32 v{g0+3}, s{sTag}', f'ds_write_b32 v1, v{g0+3}')
    vRs = tmp
    a('s_mov_b32 exec_lo, 0', f'v_lshlrev_b32 v{CS[0]}, 16, v{tmp+7}', f'v_lshlrev_b32 v{CS[1]}, 16, v{tmp+8}', 's_mov_b32 exec_lo, -1')
    a(f's_lshl_b32 s{sT0}, s{sM}, 8', f's_add_u32 s{sT0}, s{sT0}, {L_MEAN}', f'v_lshl_add_u32 v{tmp+3}, v{vTok}, 3, s{sT0}', f'v_lshl_add_u32 v{tmp+2}, v2, 9, v{tmp+3}')
    a(f's_lshl_b32 s{sT0}, s{sRB}, 2', f's_lshl_b32 s{sT1}, s{sM}, 1', f's_add_u32 s{sT0}, s{sT0}, s{sT1}', f's_mul_i32 s{sT0}, s{sT0}, 108',
      f's_lshl_b32 s{sT1}, s{sFB}, 2', f's_add_u32 s{sT0}, s{sT0}, s{sT1}', f's_lshl_b32 s{sT0}, s{sT0}, 10',
      f's_add_u32 s{sOff}, s{sT0}, {WS_H}', f's_add_u32 s{sHS}, s{sOff}, {108*1024}', 'v_lshlrev_b32 v1, 4, v0', 's_waitcnt lgkmcnt(0)')
    for _ in range(9 - GC):
        bar()
    a(f's_cmp_lt_u32 s{sFB}, 27', 's_cbranch_scc1 L_h_act')
    for _ in range(11):
        bar()
    a('s_branch L_h_p2')
    a.label('L_h_act')
    a('s_setprio 1')
    mainloop('ffn', False, [f'ds_read_b64 {v(CR,2)}, v{tmp+2}', f'ds_read_b64 {v(vRs,2)}, v{tmp+3} offset:{L_RSTD-L_MEAN}'])
    a(f's_setprio {OPT.get("gprio", 2)}', 's_waitcnt lgkmcnt(0)', 's_nop 6')
    for t, u in ((0, 0), (0, 1), (1, 1), (1, 0)):
        for ap in range(2):
            r = acc + 32 * t + 16 * u + 8 * ap
            for e in range(8):
                a(f'v_max_f32 v{r+e}, 0, v{r+e}')
            for e in range(8):
                a(f'v_mul_f32 v{r+e}, v{vRs+t}, v{r+e}')
            for e in range(8):
                a(f'v_mul_f32 v{r+e}, v{r+e}, v{r+e}')
            for e in range(4):
                a(CVT(r + e, r + 2 * e))
            a(f'buffer_store_dwordx4 {v(r,4)}, v1, {WS}, s{sHS if t else sOff} offen offset:{1024*(2*u+ap)} sc1')
    a.label('L_h_p2')
    b0 = OPT.get('b0')
    bcnt = [1]
    def barB():
        c = bcnt[0]; bcnt[0] += 1
        rec = b0 is not None and b0 <= c < b0 + 6
        if rec:
            a.lock = None; a.stamp(2 + 2 * (c - b0))
        bar()
        if rec:
            a.stamp(3 + 2 * (c - b0))
        if b0 is not None:
            a.lock = tuple(range(2, 14))
    if b0 is not None:
        a.lock = tuple(range(2, 14))
    a.stamp(5)

    a.vm = ['hst']
    R = Regs(2)
    acc = R(96)
    AF = [R(8) for _ in range(4)]
    tmp = R(8)
    assert R.n <= vL16
    BF = [vWr + 4 + 4 * i for i in range(3)]
    sKVo, sH0, sH1, sW2, sWo, sMK, sMV = range(40, 47)
    W2, WO, RES = 48, 52, 56
    sM40 = 60
    a(f's_mov_b32 s{sM40}, -1', f's_mov_b32 s{sM40+1}, 0xff')
    a(f's_mul_i32 s{sKVo}, s{sHead}, 163840', f's_mul_i32 s{sT0}, s{sG}, 1280', f's_add_u32 s{sKVo}, s{sKVo}, s{sT0}', f's_add_u32 s{sKVo}, s{sKVo}, {WS_KV}')
    a(f's_add_u32 s{sMK}, s{sT0}, {L_K}', f's_mul_i32 s{sMV}, s{sG}, 1312', f's_add_u32 s{sMV}, s{sMV}, {L_V}')
    MASK, FULL = f's_mov_b64 exec, s[{sM40}:{sM40+1}]', 's_mov_b64 exec, -1'

    def kv(c):
        slot = c % 4
        ld = lambda so, off: f'buffer_load_dwordx4 v{vL16}, {WS}, s{so} offen offset:{off} sc1 lds'
        return [([f's_add_u32 m0, s{sMK}, {slot*5120}', f's_add_u32 s{sT0}, s{sKVo}, {c*10240}'], ld(sT0, 0), ('kv', c), True),
                ([], ld(sT0, 640), ('kv', c), True),
                ([f's_add_u32 m0, s{sMV}, {slot*5248}', f's_add_u32 s{sT0}, s{sT0}, 5120'], ld(sT0, 0), ('kv', c), True),
                ([f's_sub_u32 s{sT0}, s{sT0}, 16'], ld(sT0, 656), ('kv', c), True)]
    sR2 = 47
    def wrap(d, base, st, scale):
        return [f's_cmp_ge_u32 s{sR2}, {27-st}', f's_cselect_b32 s{d}, {27*scale}, 0', f's_sub_u32 s{d}, s{base}, s{d}', f's_add_u32 s{d}, s{d}, {st*scale}']
    def stage(srd, base, add, voff, slot, tg):
        out = []
        for i in range(4):
            pre = [f's_add_u32 m0, s{sReg}, {slot*2560}'] + (add if isinstance(add, list) else [f's_add_u32 s{sT0}, s{base}, {add}']) if i == 0 else []
            out.append((pre, f'buffer_load_dwordx4 v{voff+i}, s[{srd}:{srd+3}], s{sT0} offen offset:{640*i} lds', tg, True))
        return out
    def f2B(st):
        return stage(W2, sW2, wrap(sT0, sW2, st, 16 * 1280), vW, st % 4, ('fb', st))
    def f2A(st):
        return [(wrap(sT1, sH0, st, 1024), f'buffer_load_dwordx4 {v(AF[st%4],4)}, v{vL16}, {WS}, s{sT1} offen sc1', ('fa', st), False),
                ([f's_add_u32 s{sT1}, s{sT1}, s{sH1}'], f'buffer_load_dwordx4 {v(AF[st%4]+4,4)}, v{vL16}, {WS}, s{sT1} offen sc1', ('fa', st), False)]
    def wo(slot):
        if slot < 8:
            return stage(WO, sWo, slot * 20 * 1280, vW, slot, ('wo', slot))
        return stage(WO, sWo, (slot - 8) * 80 * 1280, vWr, slot, ('wo', slot))
    def emit(fl):
        masked = False
        for pre, ins, tg, mk in fl:
            a(pre)
            if mk != masked:
                a(MASK if mk else FULL); masked = mk
            elif pre and 'm0' in pre[-1]:
                a('s_nop 0')
            a.vmem(ins, tg)
        if masked:
            a(FULL)

    emit(kv(2))
    a.srd(W2, 16, 1728 * 1280)
    a.srd(WO, 8, 640 * 1280)
    a(f's_cmp_eq_u32 s{sKH}, 0', f's_cselect_b32 s{RES}, s4, s18', f's_cselect_b32 s{RES+1}, s5, s19', CSEL(RES + 2, 2621440, 1280), f's_mov_b32 s{RES+3}, 0x00020000')
    R2 = [(27, 0), (0, 0), (27, 8), (27, 16)][OPT.get('r2', 0)]
    a(f's_mul_i32 s{sR2}, s{sHead}, {R2[0]}', f's_mul_i32 s{sT0}, s{sQB}, {R2[1]}', f's_add_u32 s{sR2}, s{sR2}, s{sT0}', f's_lshr_b32 s{sR2}, s{sR2}, 5',
      f's_cmp_ge_u32 s{sR2}, 27', f's_cselect_b32 s{sT0}, 27, 0', f's_sub_u32 s{sR2}, s{sR2}, s{sT0}')
    a(f's_mul_i32 s{sT0}, s{sG}, 27', f's_add_u32 s{sT0}, s{sT0}, s{sR2}', f's_mul_i32 s{sW2}, s{sT0}, {16*1280}', f's_mul_i32 s{sWo}, s{sG}, {160*1280}')
    a(f's_mul_i32 s{sH0}, s{sRow}, {108*1024}', f's_lshl_b32 s{sT0}, s{sT0}, 10', f's_add_u32 s{sH0}, s{sH0}, s{sT0}', f's_add_u32 s{sH0}, s{sH0}, {WS_H}',
      f's_cmp_eq_u32 s{sOwn}, 0', CSEL(sH1, 108 * 1024, -108 * 1024))
    a(f's_lshl_b32 s{sT3}, s{sRB}, 1', f's_add_u32 s{sT3}, s{sT3}, s{sOwn}', f's_lshl_b32 s{sT3}, s{sT3}, 4', f's_add_u32 s{sT3}, s{sT3}, s{sCG}', f's_lshl_b32 s{sT3}, s{sT3}, 7',
      f's_lshl_b32 s{sT1}, s{sKH}, 2', f's_add_u32 s{sT3}, s{sT3}, s{sT1}', f's_add_u32 s{sT3}, s{sT3}, {WS_FH}', f'v_mov_b32 v{tmp+1}, s{sTag}',
      f'v_min_u32 v{tmp}, 27, v0', f'v_and_b32 v1, 1, v{tmp}', 'v_lshlrev_b32 v1, 2, v1', f'v_lshrrev_b32 v{tmp}, 1, v{tmp}', f'v_lshl_add_u32 v1, v{tmp}, 7, v1', 's_setprio 0')
    barB()
    emit(kv(3) + f2B(0))
    a.wait_vm('hst')
    a('s_mov_b64 exec, 1')
    a.vmem(f'buffer_store_dword v{tmp+1}, v1, {WS}, s{sT3} offen sc1', 'flag')
    a(FULL)
    a.stamp(6)
    a(f's_lshl_b32 s{sT3}, s{sHead}, 11', f's_add_u32 s{sT3}, s{sT3}, {WS_FH}', f's_mov_b32 s{sT2}, {SPIN}')
    a.wait_vm(('kv', 2))
    barB()
    res = acc + 48
    emit(kv(4))
    for gi in range(5):
        a.vmem(f'buffer_load_dwordx4 {v(res+4*gi,4)}, v{vRes}, s[{RES}:{RES+3}], 0 offen offset:{32*gi}', 'res')
    emit(f2B(1))
    poll2 = f'buffer_load_dword v{tmp}, v1, {WS}, s{sT3} offen sc1'
    a.vmem(poll2, 'poll')
    a.wait_vm(('kv', 3))
    barB()
    a('s_setprio 3')
    a.label('L_poll2')
    a('s_waitcnt vmcnt(0)', f'v_cmp_ne_u32 vcc, s{sTag}, v{tmp}', 's_nop 1', 's_cmp_eq_u64 vcc, 0', 's_cbranch_scc1 L_poll2_done',
      f's_sub_u32 s{sT2}, s{sT2}, 1', 's_cbranch_scc1 L_poll2_done', backoff('s2'), poll2, 's_branch L_poll2')
    a.label('L_poll2_done')
    a.vm = []
    a.stamp(7)
    emit(f2A(0) + kv(5) + f2A(1))
    for gi in range(5):
        for i in range(4):
            a(f'v_lshlrev_b32 v{acc+8*gi+2*i}, 16, v{res+4*gi+i}', f'v_and_b32 v{acc+8*gi+2*i+1}, 0xffff0000, v{res+4*gi+i}')
    for i in range(40, 48, 2):
        a(f'v_mov_b64 {v(acc+i,2)}, 0')
    a('s_setprio 0')
    emit(f2B(2) + f2A(2))

    def tr(p, base):
        c = p % 3
        ad = vTr2 if c == 2 else vTr
        return [f'ds_read_b64_tr_b16 {v(BF[c],2)}, v{ad} offset:{base+64*c}', f'ds_read_b64_tr_b16 {v(BF[c]+2,2)}, v{ad} offset:{base+64*c+1280}']
    fq = []
    def need(tg):
        assert all(f[2] != tg for f in fq), tg
        a.wait_vm(tg)
    def f2tr(p):
        if p < 81:
            if p % 3 == 0:
                need(('fb', p // 3))
            a(tr(p, (p // 3 % 4) * 2560))
    def f2_pairs(ps):
        for j, p in enumerate(ps):
            st, c = divmod(p, 3)
            if c == 0:
                fq.extend(f2B(st + 3) + f2A(st + 3) if st + 3 < 27 else wo((st - 1) % 4))
                need(('fa', st))
            for t in range(2):
                if t == 0:
                    a(f's_waitcnt lgkmcnt({2 if p + 1 < 81 else 0})')
                if not OPT.get('abl_g'):
                    a(M16(acc + 48 * t + 16 * c, BF[c], AF[st % 4] + 4 * t, '0' if st == 0 and t == 1 else None))
                if t == 0:
                    f2tr(p + 2)
                n = -(-len(fq) // 5)
                emit(fq[:n]); del fq[:n]
    f2tr(0); f2tr(1)
    barB()
    p = 0
    NP = OPT.get('np', 7)
    for c in range(4, 16):
        if c + 2 < 16:
            fq.extend(kv(c + 2))
        if c < 15 and c % 2 == 0:
            fq.extend(wo(4 + (c - 4) // 2))
        f2_pairs(list(range(p, min(81, p + NP)))); p = min(81, p + NP)
        if c == 15 and p == 81:
            fq.extend(wo(2)); emit(fq); del fq[:]
        need(('kv', c + 1))
        if c == 10: a.stamp(8)
        barB()
        if c == 10: a.stamp(9)
    if p < 81:
        f2_pairs(list(range(p, 81)))
        fq.extend(wo(2)); emit(fq); del fq[:]
    OF = acc + 48
    assert OF + 80 <= tmp
    sO0, sO1 = sH0, sH1
    OUT = W2
    a.srd(OUT, 20, 2621440)
    X0, X1 = 102400, L_V - 5120
    def areas(dst, sw):
        a(f's_mul_i32 s{sT0}, s{sw}, 5120', f's_add_u32 s{sT1}, s{sT0}, {X1}', f's_cmp_eq_u32 s{sw}, 0', f's_cmov_b32 s{sT1}, {X0+20480}', f's_add_u32 s{sT0}, s{sT0}, {X0}',
          f'v_add_u32 v{dst}, s{sT0}, v{vL16}', f'v_add_u32 v{dst+1}, s{sT1}, v{vL16}')
    areas(tmp + 2, sG)
    a('s_nop 4')
    for i in range(10):
        a(f'ds_write_b128 v{tmp+2+i//5}, {v(acc+48+4*i,4)} offset:{1024*(i%5)}')
    a(f's_xor_b32 s{sT2}, s{sG}, 1')
    areas(tmp + 2, sT2)
    a(f's_xor_b32 s{sT2}, s{sG}, 3')
    areas(tmp + 4, sT2)
    a(f's_mul_i32 s{sO0}, s{sRow}, 40960', f's_add_u32 s{sO0}, s{sO0}, {WS_O}', f's_lshl_b32 s{sT0}, s{sKH}, 12', f's_add_u32 s{sO1}, s{sO0}, s{sT0}',
      f's_add_u32 s{sO1}, s{sO1}, 32768', f's_lshl_b32 s{sT0}, s{sKH}, 14', f's_add_u32 s{sO0}, s{sO0}, s{sT0}')
    a(f's_mul_i32 s{sT0}, s{sOwn}, 25600', f'v_subrev_u32 v{vTr}, s{sT0}, v{vTr}', f'v_subrev_u32 v{vTr2}, s{sT0}, v{vTr2}')
    a(f's_lshl_b32 s{sT3}, s{sRow}, 12', f's_lshl_b32 s{sT0}, s{sKH}, {11-FOS}', f's_add_u32 s{sT3}, s{sT3}, s{sT0}', f's_add_u32 s{sT3}, s{sT3}, {WS_FO}',
      f'v_bfe_u32 v1, v0, {FOS}, {4-FOS}', 'v_lshlrev_b32 v1, 7, v1', f'v_and_b32 v{tmp}, {(1<<FOS)-1}, v0', f'v_lshl_add_u32 v1, v{tmp}, 2, v1', f's_mov_b32 s{sT2}, {SPIN}')
    a.drain_vm()
    a('s_waitcnt lgkmcnt(0)')
    a.stamp(10)
    bar()
    poll3 = f'buffer_load_dword v{tmp}, v1, {WS}, s{sT3} offen sc1'
    for i in range(10):
        a(f'ds_read_b128 {v(acc+48+4*i,4)}, v{tmp+2+i//5} offset:{1024*(i%5)}')
    for i in range(10):
        a(f's_waitcnt lgkmcnt({9-i})')
        for e in range(4):
            a(f'v_add_f32 v{acc+4*i+e}, v{acc+4*i+e}, v{acc+48+4*i+e}')
        if i == OPT.get('p3', 4):
            a(poll3)
    a.label('L_poll3')
    a('s_waitcnt vmcnt(0)', f'v_cmp_ne_u32 vcc, s{sTag}, v{tmp}', 's_nop 1', 's_cmp_eq_u64 vcc, 0', 's_cbranch_scc1 L_poll3_done',
      f's_sub_u32 s{sT2}, s{sT2}, 1', 's_cbranch_scc1 L_poll3_done', backoff('s3'), poll3, 's_branch L_poll3')
    a.label('L_poll3_done')
    a.stamp(11)
    order = [(r, sl) for r in range(2) for sl in range(10)]
    for i, (r, sl) in enumerate(order):
        if sl < 8:
            h = 8 * r + sl
            if h % 4 == 0:
                a(f's_add_u32 s{sT0}, s{sO0}, {h*1024}')
            a.vmem(f'buffer_load_dwordx4 {v(OF+4*i,4)}, v{vL16}, {WS}, s{sT0} offen offset:{(h%4)*1024} sc1', ('o', i))
        else:
            g = 2 * r + sl - 8
            a.vmem(f'buffer_load_dwordx2 {v(OF+4*i,2)}, v{vL8}, {WS}, s{sO1} offen offset:{g*1024} sc1', ('o', i))
            a.vmem(f'buffer_load_dwordx2 {v(OF+4*i+2,2)}, v{vL8}, {WS}, s{sO1} offen offset:{g*1024+512} sc1', ('o', i))
    a(tr(0, 0), tr(1, 0), tr(2, 0))
    for i in range(20):
        a.wait_vm(('o', i))
        for c in range(3):
            last = i == 19
            a(f's_waitcnt lgkmcnt({4-2*c if last else 4})', M16(acc + 16 * c, BF[c], OF + 4 * i))
            if not last:
                a(tr(c, (i + 1) * 2560))
    a.stamp(12)
    a(f's_cmp_eq_u32 s{sKH}, 0', 's_nop 10', 's_cbranch_scc0 L_hi')
    for nm, send, keep in (('lo', (3, 4), (0, 1, 2)), ('hi', (0, 1, 2), (3, 4))):
        if nm == 'hi':
            a.label('L_hi')
        for k, gi in enumerate(send):
            a(f'ds_write_b128 v{tmp+2}, {v(acc+8*gi,4)} offset:{1024*k}', f'ds_write_b128 v{tmp+3}, {v(acc+8*gi+4,4)} offset:{1024*k}')
        a('s_waitcnt lgkmcnt(0)', 's_barrier')
        for k, gi in enumerate(keep):
            a(f'ds_read_b128 {v(OF+8*k,4)}, v{tmp+4} offset:{1024*k}', f'ds_read_b128 {v(OF+8*k+4,4)}, v{tmp+5} offset:{1024*k}')
        for k, gi in enumerate(keep):
            a(f's_waitcnt lgkmcnt({2*(len(keep)-1-k)})')
            r = acc + 8 * gi
            for e in range(8):
                a(f'v_add_f32 v{r+e}, v{r+e}, v{OF+8*k+e}')
            for e in range(4):
                a(CVT(r + e, r + 2 * e))
            a(f'buffer_store_dwordx4 {v(r,4)}, v{vOut}, s[{OUT}:{OUT+3}], 0 offen offset:{32*gi}')
        if nm == 'lo':
            a(f's_or_b32 s{sT0}, s2, s{sG}', 's_cbranch_scc1 L_noep')
            a(f'v_mov_b32 v1, s{sTag}', f'v_mov_b32 v{tmp}, 0', f's_mov_b32 s{sT0}, {WS_EP}', 's_mov_b64 exec, 1', f'buffer_store_dword v1, v{tmp}, {WS}, s{sT0} offen')
            a.label('L_noep')
        if Asm.diag:
            a.stamp(13)
            a('s_waitcnt vmcnt(0)')
            a.dump(0, sW, 24)
        a('s_endpgm')
    a.label('L_done')
    a('s_endpgm')
    return kernel_header(name) + a.text(), kernel_desc(name, 168, 70)
```

```python
from asmlib import *
import struct, math

def fbits(x):
    return hex(struct.unpack('<I', struct.pack('<f', x))[0])

WS_Q   = 0x000000
WS_KV  = 0x280000
WS_H   = 0x780000
WS_O   = 0xE40000
WS_RS  = 0x10C0000
WS_F1  = 0x10D0000
WS_FH  = 0x10E0000
WS_FO  = 0x1100000
WS_EP  = 0x1140000
WS_END = 0x1141000

L_W = 0
L_K = 114688
L_V = 135168
L_MEAN, L_ISTD, L_RSTD = 156160, 156672, 157184
L_XR, L_B2 = 102400, 112640
L_TAG = 157696
L_CX = 157952
L_Q0, L_Q1 = L_K + 15360, 158720
LDS_BYTES = 163840
FAR = 0x30000

QSCALE = 20 ** -0.5 * math.log2(math.e)
MAXOFF = 96.0
SPIN = 0x20000
OPT = {}

sW, sRB, sCG, sHead, sQB, sTag, sT0, sT1, sT2, sT3 = range(28, 38)
WS = 's[24:27]'


def gen(name):
    a = Asm()
    NA, NB, NE = 5, 4, OPT.get('ne', 3)
    L_A, L_B = 16384 * NB, 0
    JOBS = [('Q', c) for c in range(5)] + [('F', c) for c in range(5 - NE, 5)] + [('Q', c) for c in range(5, 10)] + [('F', c) for c in range(5, 15 - NE)]
    slotA = lambda c: (c + NE - 2) % NA
    slotB = lambda j: j % NB
    QE = 10 + NE
    KVB = 17
    SKIP = {0: (QE + 1, QE + 3), 1: (), 2: (QE + 1,), 3: (QE + 1, QE + 3, QE + 5), 4: (QE + 1, QE + 2)}[OPT.get('skip', 4)]
    def pbar(c):
        if c not in SKIP:
            bar()
    bar = lambda: a('s_barrier')

    a('s_cmp_ge_u32 s2, 256', 's_cbranch_scc1 L_done')
    a.stamp(0); a.stamp(1, True)
    a('s_load_dwordx8 s[4:11], s[0:1], 0', 's_load_dwordx8 s[12:19], s[0:1], 32', 's_load_dwordx2 s[20:21], s[0:1], 64', 's_load_dwordx2 s[22:23], s[0:1], 80')
    a('v_lshrrev_b32 v1, 6, v0', 'v_and_b32 v0, 63, v0', f'v_readfirstlane_b32 s{sW}, v1')
    a(f's_bfe_u32 s{sT2}, s2, 0x20001', f's_lshr_b32 s{sCG}, s2, 6', f's_lshl2_add_u32 s{sCG}, s{sT2}, s{sCG}',
      f's_bfe_u32 s{sT1}, s2, 0x30003', f's_and_b32 s{sT3}, s2, 1', f's_lshl3_add_u32 s{sRB}, s{sT3}, s{sT1}')
    a(f's_cmp_lt_u32 s{sW}, 4', 's_cbranch_scc1 L_x', f's_cmp_ge_u32 s{sW}, 8', 's_cbranch_scc1 L_helper')
    def decode2():
        a(f's_and_b32 s{sHead}, s2, 7', f's_bfe_u32 s{sQB}, s2, 0x20003', f's_lshl2_add_u32 s{sHead}, s{sHead}, s{sQB}', f's_lshr_b32 s{sQB}, s2, 5')

    def backoff(key):
        n = OPT.get(key, {'s3': 2}.get(key, 8))
        return [f's_sleep {n}'] if n else []
    def ws_setup():
        a.srd(24, 22, WS_END)
    def lds_tag(t):
        a(f'v_mov_b32 v{t}, {L_TAG}', f'ds_read_b32 v{t}, v{t}', 's_waitcnt lgkmcnt(0)', f'v_readfirstlane_b32 s{sTag}, v{t}')
    def f1_off(d, t, n, m):
        a(f's_lshl_b32 s{d}, s{sCG}, 1', f's_add_u32 s{d}, s{d}, s{n}', f's_lshl_b32 s{d}, s{d}, 10', f's_lshr_b32 s{t}, s{sRB}, 1', f's_lshl_b32 s{t}, s{t}, 7',
          f's_add_u32 s{d}, s{d}, s{t}', f's_add_u32 s{d}, s{d}, {WS_F1}')
        if m is not None:
            a(f's_and_b32 s{t}, s{sRB}, 1', f's_lshl_b32 s{t}, s{t}, 1', f's_add_u32 s{t}, s{t}, s{m}', f's_lshl_b32 s{t}, s{t}, 2', f's_add_u32 s{d}, s{d}, s{t}')

    SD = 48
    SX = 122

    sL, sOA, sOB, sSlot, sMA, sMB, sCnt, sBstep = range(40, 48)
    XA, WB = 48, 52
    vA1, vB1, vB2 = 8, 12, 16
    vA2 = vA1
    sRot, sRB1 = 47, 46
    a('s_setprio 3', f's_and_b32 s{sL}, s{sW}, 3')
    a(f's_lshl1_add_u32 s{sRot}, s{sT2}, s{sT1}', f's_mul_i32 s{sRot}, s{sRot}, 5', f's_lshl1_add_u32 s{sRot}, s{sT3}, s{sRot}', f's_lshr_b32 s{sRot}, s{sRot}, 2',
      f's_cmp_ge_u32 s{sRot}, 10', f's_cselect_b32 s{sT0}, 10, 0', f's_sub_u32 s{sRot}, s{sRot}, s{sT0}')
    a('v_lshrrev_b32 v1, 3, v0', 'v_lshrrev_b32 v2, 4, v0', 'v_and_b32 v3, 7, v0', 'v_xor_b32 v3, v3, v2')
    a(f's_lshr_b32 s{sT0}, s{sL}, 1', f's_lshl1_add_u32 s{sT0}, s{sRB}, s{sT0}', f's_lshl_b32 s{sT0}, s{sT0}, 6', f's_and_b32 s{sT1}, s{sL}, 1', f's_add_u32 s{sT0}, s{sT0}, s{sT1}',
      f's_mul_i32 s{sOA}, s{sT0}, 10', f's_add_u32 s{sOA}, s{sOA}, s{sRot}', f's_lshl_b32 s{sOA}, s{sOA}, 7', f's_lshl_b32 s{sT1}, s{sT1}, 2')
    a(f'v_xor_b32 v3, s{sT1}, v3', 'v_mul_u32_u24 v5, 0xa0, v1', 'v_xor_b32 v4, 4, v3', f'v_add_lshl_u32 v{vA1}, v5, v3, 4', 'v_add_lshl_u32 v4, v5, v4, 4')
    a(f'v_add_u32 v{vA1+1}, {20480-1024}, v4', f'v_add_u32 v{vA1+2}, {2*(20480-1024)}, v{vA1}', f'v_add_u32 v{vA1+3}, {3*(20480-1024)}, v4')
    a(f's_cmp_lt_u32 s{sCG}, 15', f's_cselect_b32 s{XA+2}, 2621440, 0', f's_cselect_b32 s{WB+2}, {640*3840}, 0', f's_mov_b32 s{XA+3}, 0x00020000', f's_lshl_b32 s{sMA}, s{sL}, 12')
    def koff(k, base, scale):
        if k == 0:
            return [f's_mov_b32 s{sT0}, s{base}']
        return [f's_cmp_ge_u32 s{sRot}, {10-k}', f's_cselect_b32 s{sT0}, {10*scale}, 0', f's_sub_u32 s{sT0}, s{base}, s{sT0}', f's_add_u32 s{sT0}, s{sT0}, {scale*k}']
    WF = 56
    firstA = {}
    lastA = {}
    for j, (t, c) in enumerate(JOBS):
        firstA.setdefault(c, j); lastA[c] = j
    def ldA(c):
        a(f's_add_u32 m0, s{sMA}, {L_A + slotA(c) * 16384}', koff(c % 10, sOA, 128))
        for i in range(4):
            a.vmem(f'buffer_load_dwordx4 v{vA1+i}, s[{XA}:{XA+3}], s{sT0} offen offset:{1024*i} lds', ('c', firstA[c]))
    def ldB(j):
        q = JOBS[j][0] == 'Q'
        a(f's_add_u32 m0, s{sMA}, {L_B + slotB(j) * 16384}', koff(JOBS[j][1] % 10, sOB if q else sRB1, 64 * (3840 if q else 3456)))
        for i in range(4):
            d = WB if q else WF
            a.vmem(f'buffer_load_dwordx4 v{(vB1 if q else vB2)+i}, s[{d}:{d+3}], s{sT0} offen offset:{1024*i} lds', ('c', j))

    a.vm = []
    a('s_waitcnt lgkmcnt(0)', f's_mov_b32 s{XA}, s4', f's_mov_b32 s{XA+1}, s5')
    if OPT.get('zst'): a.stamp(4)
    ldA(0)
    a('v_and_b32 v6, 15, v0', 'v_lshlrev_b32 v7, 2, v2', 'v_xor_b32 v6, v6, v7', 'v_mul_u32_u24 v7, 0xf0, v2', f'v_add_lshl_u32 v{vB1}, v7, v6, 4')
    for i in range(1, 4):
        a(f'v_add_u32 v{vB1+i}, {i*(4*3840-1024)}, v{vB1}')
    a(f's_lshl2_add_u32 s{sT1}, s{sRot}, s{sL}', f's_mul_i32 s{sOB}, s{sT1}, {16*3840}', f's_lshl_b32 s{sT2}, s{sCG}, 8', f's_add_u32 s{sOB}, s{sOB}, s{sT2}',
      f's_mov_b32 s{WB}, s6', f's_mov_b32 s{WB+1}, s7', f's_mov_b32 s{WB+3}, 0x00020000')
    a.label('L_p0')
    ldB(0)
    if OPT.get('zst'): a.stamp(5)
    ldA(1); ldB(1)
    if OPT.get('zst'):
        a.stamp(6); a('s_waitcnt vmcnt(8)'); a.stamp(7)
    a('s_setprio 0')
    ws_setup()
    decode2()
    a(f's_mul_i32 s{sRB1}, s{sT1}, {16*3456}', f's_add_u32 s{sRB1}, s{sRB1}, s{sT2}', 'v_mul_u32_u24 v7, 0xd8, v2', f'v_add_lshl_u32 v{vB2}, v7, v6, 4')
    for i in range(1, 4):
        a(f'v_add_u32 v{vB2+i}, {i*(4*3456-1024)}, v{vB2}')
    a(f's_cmp_lt_u32 s{sCG}, 14', f's_cselect_b32 s{WF+2}, {640*3456}, 0', f's_mov_b32 s{WF}, s12', f's_mov_b32 s{WF+1}, s13', f's_mov_b32 s{WF+3}, 0x00020000')
    units = []
    for j in range(2, 20):
        c = JOBS[j][1]
        if firstA[c] == j:
            units.append((j, lastA[c - NA] + 1 if c >= NA else 0, 'A', c))
        units.append((j, j - NB + 1, 'B', j))
    c0 = OPT.get('c0', 99)
    bars = [c for c in range(20) if c not in SKIP]
    hold = {QE - 1: 0, QE + 3: OPT.get('b3', 2), QE + 4: OPT.get('b4', 3)}
    for n, c in enumerate(bars):
        nxt = bars[n + 1] if n + 1 < len(bars) else 20
        rec = c0 <= c < c0 + 4
        if c == 19:
            break
        if rec: a.stamp(2 + 3 * (c - c0))
        assert all(u[0] >= nxt for u in units), (c, units[:2])
        a.wait_vm(*[('c', x) for x in range(c, nxt)])
        if rec: a.stamp(3 + 3 * (c - c0))
        if OPT.get('zst') and c == 0:
            a.stamp(8); a.lock = (7, 8)
        bar()
        if rec: a.stamp(4 + 3 * (c - c0))
        nn = bars[n + 2] if n + 2 < len(bars) else 20
        budget = hold.get(c, 2 if nxt == c + 1 else OPT.get('bud', 3))
        for u in list(units):
            if u[1] <= c and (budget > 0 or u[0] < nn):
                if u[2] == 'A' and u[3] == 10:
                    a(f's_cmp_lt_u32 s{sCG}, 14', f's_cselect_b32 s{XA+2}, 2621440, 0')
                (ldA if u[2] == 'A' else ldB)(u[3]); units.remove(u); budget -= 1
                a.c(f'after P({c}): {u}')
    assert not units
    zvm = list(a.vm)
    a('s_branch L_attn_z')

    R = Regs(2)
    vH, vTok = R(), R()
    vAa = R(4); vBa = R(2)
    F = [(R(8), R(8)), (R(8), R(8))]
    FR = F[0][0]
    acc = R(64)
    tmp = R(16)
    vCx = tmp + 14
    sM, sN, sDA, sDB, sSA, sSB = range(40, 46)
    sCntC = 55
    sOff, sHS, sScale = 52, 53, 54

    sMask = 69
    def gemm_setup(wave_base, j0, cnt, maybe_v):
        a(f's_sub_u32 s{sN}, s{sW}, {wave_base}', f's_and_b32 s{sM}, s{sN}, 1', f's_lshr_b32 s{sN}, s{sN}, 1')
        a(f'v_lshrrev_b32 v{vH}, 5, v0', f'v_and_b32 v{vTok}, 31, v0', f'v_mov_b32 v{tmp}, v{vTok}')
        if maybe_v:
            a(f's_cmp_lt_u32 s{sCG}, 10', 's_cbranch_scc1 L_x_rows', f'v_and_b32 v1, 1, v0', f'v_lshrrev_b32 v{tmp}, 1, v{vTok}', f'v_lshl_add_u32 v{tmp}, v1, 5, v{tmp}')
            a.label('L_x_rows')
        a(f'v_bfe_u32 v1, v{tmp}, 1, 3', f'v_xor_b32 v1, v1, v{vH}', f'v_lshrrev_b32 v{tmp+1}, 5, v{tmp}', f'v_lshlrev_b32 v{tmp+1}, 2, v{tmp+1}', f'v_xor_b32 v1, v1, v{tmp+1}')
        a(f's_lshl_b32 s{sT0}, s{sM}, 13', f's_add_u32 s{sT0}, s{sT0}, {L_A+16384*slotA(JOBS[j0][1])}', f'v_lshlrev_b32 v{tmp}, 7, v{tmp}', f'v_add_u32 v{tmp}, s{sT0}, v{tmp}')
        for st in range(4):
            a(f'v_xor_b32 v{tmp+1}, {2*st}, v1', f'v_lshl_add_u32 v{vAa+st}, v{tmp+1}, 4, v{tmp}')
        a('v_lshrrev_b32 v1, 2, v0', 'v_and_b32 v1, 3, v1')
        a(f'v_lshl_add_u32 v{tmp}, v{vH}, 3, v1', f'v_lshlrev_b32 v{tmp}, 8, v{tmp}')
        a(f'v_and_b32 v{tmp+1}, 3, v0', f'v_lshl_add_u32 v{tmp}, v{tmp+1}, 3, v{tmp}')
        a(f'v_and_b32 v{tmp+1}, 16, v0', f'v_lshl_add_u32 v{tmp}, v{tmp+1}, 1, v{tmp}', f'v_add_u32 v{tmp}, {L_B+16384*slotB(j0)}, v{tmp}')
        a(f's_lshl_b32 s{sT0}, s{sN}, 1', f's_add_u32 s{sT0}, s{sT0}, s{sM}', f'v_xor_b32 v1, s{sT0}, v1')
        a(f's_lshl_b32 s{sT0}, s{sT0}, 7', f's_add_u32 s{sT0}, s{sT0}, {L_CX}', f'v_lshl_add_u32 v{vCx}, v{vTok}, 2, s{sT0}', f'v_xor_b32 v{vCx+1}, 128, v{vCx}')
        a(f'v_lshl_add_u32 v{vBa}, v1, 6, v{tmp}', 'v_xor_b32 v1, 1, v1', f'v_lshl_add_u32 v{vBa+1}, v1, 6, v{tmp}')
        a(f's_mov_b32 s{sSA}, {slotA(JOBS[j0][1])}', f's_mov_b32 s{sSB}, {slotB(j0)}', f's_mov_b32 s{sCntC}, {cnt}', f's_mov_b32 s{sMask}, 0')

    def zero_acc(lo, hi):
        for i in range(lo, hi, 2):
            a(f'v_mov_b64 {v(acc+i,2)}, 0')

    def reads(st, f, swap):
        FA, FB = F[f]
        return [f'ds_read_b128 {v(FA,4)}, v{vAa+st}',
                f'ds_read_b64_tr_b16 {v(FB,2)}, v{vBa} offset:{4096*st}',
                f'ds_read_b64_tr_b16 {v(FB+2,2)}, v{vBa} offset:{4096*st+1024}',
                f'ds_read_b64_tr_b16 {v(FB+4,2)}, v{vBa+1} offset:{4096*st}',
                f'ds_read_b64_tr_b16 {v(FB+6,2)}, v{vBa+1} offset:{4096*st+1024}',
                f'ds_read_b128 {v(FA+4,4)}, v{vAa+st} offset:2048' if swap else f'ds_read_b128 {v(FA+4,4)}, v{vAa+(st^2)} offset:4096']

    def mfmas(f, swap):
        FA, FB = F[f]
        out = []
        for t, u in ((0, 0), (0, 1), (1, 1), (1, 0)):
            x, w = FA + 4 * t, FB + 4 * u
            out.append(M16(acc + 32 * t + 16 * u, x, w) if swap else M16(acc + 32 * t + 16 * u, w, x))
        return out

    CT, CF, CR = SX, SX + 4, SX + 8
    PA, CS = SX + 32, [SX + 36, SX + 40]
    def colsum(f):
        return [f'v_mfma_f32_16x16x32_bf16 {v(CS[u],4)}, {v(PA,4)}, {v(F[f][1]+4*u,4)}, {v(CS[u],4)}' for u in range(1)]
    def colsum_setup():
        a(f'v_cmp_eq_u32 vcc, 0, v{vTok}', f'v_cmp_eq_u32 s[46:47], 20, v{vTok}', 'v_mov_b32 v1, 0x3f803f80', 's_nop 0', 's_or_b64 vcc, vcc, s[46:47]', 's_nop 1')
        for i in range(4):
            a(f'v_cndmask_b32 v{PA+i}, 0, v1, vcc')
        for i in range(5):
            a(f'v_mov_b32 v{CS[0]+i}, 0')
    def corr_split():
        out = []
        for t in range(2):
            out += [CVT(CT + 2 * t, CR + t, CR + t), CVT(CF + 2 * t, CS[t], CS[t])]
        for t in range(2):
            out += [f'v_and_b32 v{CR+4+t}, 0xffff0000, v{CT+2*t}', f'v_and_b32 v{CR+6+t}, 0xffff0000, v{CF+2*t}']
        for t in range(2):
            out += [f'v_sub_f32 v{CR+4+t}, v{CR+t}, v{CR+4+t}', f'v_sub_f32 v{CR+6+t}, v{CS[t]}, v{CR+6+t}']
        for t in range(2):
            out += [CVT(CT + 2 * t + 1, CR + 4 + t, CR + 4 + t), CVT(CF + 2 * t, CS[t], CR + 6 + t), CVT(CF + 2 * t + 1, CS[t], CR + 6 + t)]
        return out
    def corr_mfma(swap, c=None):
        out = []
        for t, u in ((0, 0), (0, 1), (1, 1), (1, 0)):
            x, w = CT + 2 * t, CF + 2 * u
            out.append(M8(acc + 32 * t + 16 * u, x, w, c) if swap else M8(acc + 32 * t + 16 * u, w, x, c))
        return out

    def mainloop(tagname, swap, pre_last, jp, jr, je, mid):
        a.label(f'L_ent_{tagname}')
        bar()
        a(reads(0, 0, swap))
        a.label(f'L_loop_{tagname}')
        for st in range(3):
            m = mfmas(st & 1, swap); rd = reads(st + 1, (st + 1) & 1, swap)
            a('s_waitcnt lgkmcnt(3)', m[0], rd[0:3], 's_waitcnt lgkmcnt(4)', m[1], rd[3:6], 's_waitcnt lgkmcnt(6)', m[2])
            if st == 0:
                a(f's_add_u32 s{sSA}, s{sSA}, 1', f's_cmp_eq_u32 s{sSA}, {NA}', CSEL(sDA, -16384*(NA-1), 16384), f's_cselect_b32 s{sSA}, 0, s{sSA}')
            if st == 1:
                a(f's_add_u32 s{sSB}, s{sSB}, 1', f's_cmp_eq_u32 s{sSB}, {NB}', CSEL(sDB, -16384*(NB-1), 16384), f's_cselect_b32 s{sSB}, 0, s{sSB}')
            if st == 2:
                a(f'v_add_u32 v{vAa}, s{sDA}, v{vAa}', f'v_add_u32 v{vBa}, s{sDB}, v{vBa}', f'v_add_u32 v{vBa+1}, s{sDB}, v{vBa+1}')
            a(colsum(st & 1), m[3])
            if st == 2:
                a(f's_sub_u32 s{sCntC}, s{sCntC}, 1')
                for r in (vAa + 1, vAa + 2, vAa + 3):
                    a(f'v_add_u32 v{r}, s{sDA}, v{r}')
        m = mfmas(1, swap); rd = reads(0, 0, swap)
        a(f's_cmp_eq_u32 s{sCntC}, 0', 's_waitcnt lgkmcnt(0)', f's_cbranch_scc1 L_last_{tagname}')
        mask = sum(1 << (je - c) for c in SKIP if jr < c < je)
        if mask:
            a(f's_bitcmp1_b32 s{sMask}, s{sCntC}', f's_cbranch_scc1 L_nob_{tagname}')
        a('s_barrier')
        a.label(f'L_nob_{tagname}')
        a(m[0], rd[0:3], m[1], rd[3:6], m[2], colsum(1), m[3], f's_branch L_loop_{tagname}')
        a.label(f'L_pause_{tagname}')
        d = 16384 * (slotB(jr) - slotB(jp))
        a('s_barrier', m[0], f's_mov_b32 s{sMask}, {hex(mask | 1 << 31)}', m[1], f's_mov_b32 s{sSB}, {slotB(jr)}', m[2], f's_mov_b32 s{sCntC}, {je-jr}', colsum(1), m[3],
          f'v_add_u32 v{vBa}, {d}, v{vBa}', f'v_add_u32 v{vBa+1}, {d}, v{vBa+1}')
        mid()
        a.label(f'L_last_{tagname}')
        a(f's_bitcmp0_b32 s{sMask}, 31', f's_cbranch_scc1 L_pause_{tagname}')
        sp = corr_split()
        a(colsum(1), m[0], 's_nop 5', 's_mov_b32 exec_hi, 0', f'ds_write_b32 v{vCx}, v{CS[0]}', 's_mov_b32 exec_hi, -1',
          m[1], 's_waitcnt lgkmcnt(0)', 's_barrier', pre_last[:1], 's_mov_b32 exec_hi, 0', f'ds_read_b32 v{CS[1]}, v{vCx+1}', 's_mov_b32 exec_hi, -1',
          m[2], pre_last[1:], m[3], f's_waitcnt lgkmcnt({len(pre_last)-1})', sp, 's_nop 1', corr_mfma(swap))
        a.stamp(4)

    a.label('L_x')
    if OPT.get('cpf', 1):
        a('s_getpc_b64 s[40:41]')
        a.label('L_pc')
        a('s_lshr_b32 s42, s2, 3', f's_lshl2_add_u32 s42, s42, s{sW}', 's_lshl_b32 s42, s42, 8', 's_sub_u32 s40, s40, L_pc-L_p0', 's_subb_u32 s41, s41, 0', f's_mov_b32 s43, L_done-L_p0', 'v_lshlrev_b32 v2, 7, v0', 'v_add_u32 v2, s42, v2', 'v_min_u32 v2, s43, v2',
          'v_mov_b32 v3, s41', 'v_add_co_u32 v2, vcc, s40, v2', 's_mov_b64 exec, 3', 's_nop 0', 'v_addc_co_u32 v3, vcc, 0, v3, vcc',
          'global_load_dword v167, v[2:3], off', 's_mov_b64 exec, -1')
    decode2()
    XBAR = {0: (1, 4), 1: (1, 3, 5), 2: (0, 2, 5), 3: (2, 5), 4: (3,), 5: (2,), 6: (2, 6), 7: (), 8: (4,), 9: (5,), 10: (6,)}[OPT.get('xbar', 7)]
    XSIG = QE + OPT.get('xsig', 3)
    XP = QE + OPT.get('xp', 5)
    XB = [c for c in range(QE + 1, XP) if c not in SKIP]
    assert XP not in SKIP and XP >= KVB - 1 and XSIG < XP
    gemm_setup(0, 0, 5, True)
    a('s_waitcnt lgkmcnt(0)')
    ws_setup()
    zero_acc(0, 64)
    colsum_setup()
    vAd, vSa, vSb = tmp, tmp + 8, tmp + 9
    t0, t1, t2 = tmp + 10, tmp + 11, tmp + 12
    a(f's_cmp_ge_u32 s{sCG}, 10', 's_cbranch_scc1 L_x_v')
    a(f's_cmp_lt_u32 s{sCG}, 5',
      CSEL(sHS, 81920, 163840), f's_cselect_b32 s{sScale}, {fbits(QSCALE)}, 1.0',
      CSEL(sT0, 5120, 10240), CSEL(sOff, WS_Q, WS_KV), f's_cselect_b32 s{sT1}, 0, 5')
    a(f's_mul_i32 s{sT0}, s{sT0}, s{sRB}', f's_add_u32 s{sOff}, s{sOff}, s{sT0}',
      f's_mul_i32 s{sT0}, s{sM}, 2560', f's_add_u32 s{sOff}, s{sOff}, s{sT0}')
    a(f's_sub_u32 s{sT1}, s{sCG}, s{sT1}', f's_lshl_b32 s{sT1}, s{sT1}, 1', f's_add_u32 s{sT1}, s{sT1}, s{sN}', f's_lshl_b32 s{sT1}, s{sT1}, 4',
      f's_sub_u32 s{sHS}, s{sHS}, 2560')
    a(f's_lshl_b32 s{sT0}, s{sM}, 3', f's_add_u32 s{sT1}, s{sT1}, s{sT0}')
    for sl in range(2):
        if sl:
            a(f's_xor_b32 s{sT1}, s{sT1}, 8')
        a(f'v_add_u32 v1, s{sT1}, v{vH}', f'v_lshlrev_b32 v{t2}, 4, v{vTok}', f'v_lshl_add_u32 v{t2}, v1, 9, v{t2}', 'v_mul_u32_u24 v1, 205, v1')
        for q in range(4):
            a(f'v_add_u32 v{t0}, {2*q*205}, v1', f'v_lshrrev_b32 v{t0}, 10, v{t0}', f'v_mad_u32_u24 v{vAd+4*sl+q}, v{t0}, s{sHS}, v{t2}')
    vSc = tmp + 13
    a(f's_lshl_b32 s{sT2}, s{sM}, 8', f's_add_u32 s{sT2}, s{sT2}, {L_MEAN}', f'v_lshl_add_u32 v{vSc}, v{vTok}, 3, s{sT2}', f'v_lshl_add_u32 v{vSa}, v{vH}, 9, v{vSc}')
    a.stamp(2)
    a('s_setprio 1')
    vRs = SX + 16
    def xmid(tg):
        def f():
            for c in range(6, 5 + NE):
                bar()
            a(f's_branch L_ent_{tg}')
        return f
    mainloop('qk', False, [f'ds_read_b64 {v(CR,2)}, v{vSa}', f'ds_read_b64 {v(vRs,2)}, v{vSc} offset:{L_RSTD-L_MEAN}'], 5, 5 + NE, QE, xmid('qk'))
    a(f's_setprio {OPT.get("xprio", 0)}', 's_waitcnt lgkmcnt(0)')
    a(f'v_mul_f32 v{vRs}, s{sScale}, v{vRs}', f'v_mul_f32 v{vRs+1}, s{sScale}, v{vRs+1}', 's_nop 5')
    for n, i in enumerate((4, 5, 6, 7, 0, 1, 2, 3)):
        u, q = i // 4, i % 4
        pk = FR + 4 * n
        for t in range(2):
            r = acc + 32 * t + 16 * u + 4 * q
            for e in range(4):
                a(f'v_mul_f32 v{r+e}, v{vRs+t}, v{r+e}')
            a(CVT(pk + 2 * t, r), CVT(pk + 2 * t + 1, r + 2))
        a(f'buffer_store_dwordx4 {v(pk,4)}, v{vAd+i}, {WS}, s{sOff} offen offset:{1024*(i%4)} sc1')
        if n in XBAR:
            bar()
    a('s_branch L_x_sig')
    a.label('L_x_v')
    a(f's_cmp_ge_u32 s{sCG}, 15', 's_cbranch_scc1 L_x_idle', f's_lshl_b32 s{sT2}, s{sM}, 8', f's_add_u32 s{sT2}, s{sT2}, {L_MEAN}')
    a(f's_mul_i32 s{sOff}, s{sRB}, 10240', f's_mul_i32 s{sT0}, s{sM}, 2560', f's_add_u32 s{sOff}, s{sOff}, s{sT0}', f's_add_u32 s{sOff}, s{sOff}, {WS_KV+5120}')
    a(f's_sub_u32 s{sT1}, s{sCG}, 10', f's_lshl_b32 s{sT1}, s{sT1}, 7', f's_lshl_b32 s{sT0}, s{sN}, 6', f's_add_u32 s{sT1}, s{sT1}, s{sT0}',
      f's_lshl_b32 s{sT0}, s{sM}, 5', f's_add_u32 s{sT1}, s{sT1}, s{sT0}', f'v_add_u32 v1, s{sT1}, v{vTok}', f'v_mul_u32_u24 v{t2}, 320, v{vH}')
    for u in range(2):
        a(f'v_xor_b32 v{t0}, {32*u}, v1', f'v_mul_u32_u24 v{t1}, 3277, v{t0}', f'v_lshrrev_b32 v{t1}, 16, v{t1}',
          f'v_mul_u32_u24 v{t1}, {163840-320}, v{t1}', f'v_lshl_add_u32 v{t1}, v{t0}, 4, v{t1}', f'v_add_u32 v{vAd+u}, v{t1}, v{t2}')
    a(f'v_lshl_add_u32 v{vSa}, v{vTok}, 2, s{sT2}', f'v_lshl_add_u32 v{vSa}, v{vH}, 9, v{vSa}', f'v_lshl_add_u32 v{vSc}, v{vH}, 4, s{sT2}')
    a.stamp(2)
    a('s_setprio 1')
    def v_stats(t, dst):
        return [f'ds_read_b128 {v(dst+4*q,4)}, v{vSc} offset:{L_RSTD-L_MEAN+128*t+32*q}' for q in range(4)]
    mainloop('v', True, [f'ds_read2_b32 {v(CR,2)}, v{vSa} offset0:0 offset1:32'] + v_stats(0, vRs), 5, 5 + NE, QE, xmid('v'))
    a(f's_setprio {OPT.get("xprio", 0)}', v_stats(1, FR), 's_waitcnt lgkmcnt(4)', 's_nop 2')
    n = 0
    for t in range(2):
        st_ = FR if t else vRs
        if t:
            a('s_waitcnt lgkmcnt(0)')
        for u in range(2):
            for ap in range(2):
                r = acc + 32 * t + 16 * u + 8 * ap
                for e in range(8):
                    a(f'v_mul_f32 v{r+e}, v{st_+8*ap+e}, v{r+e}')
                for e in range(4):
                    a(CVT(r + e, r + 2 * e))
                a(f'buffer_store_dwordx4 {v(r,4)}, v{vAd+u}, {WS}, s{sOff} offen offset:{640*(2*t+ap)} sc1')
                if n in XBAR:
                    bar()
                n += 1
    a.label('L_x_sig')
    a.stamp(5)
    lds_tag(4)
    f1_off(sT0, sT1, sN, sM)
    a('v_mov_b32 v1, 0', 's_mov_b64 vcc, 1')
    for c in XB[len(XBAR):]:
        if c <= XSIG:
            bar()
    a('s_mov_b64 exec, vcc', 's_waitcnt vmcnt(0)', f'buffer_store_dword v4, v1, {WS}, s{sT0} offen sc1', 's_mov_b64 exec, -1')
    a.stamp(6)
    for c in XB[len(XBAR):]:
        if c > XSIG:
            bar()

    a.label('L_attn')
    if 'c0' in OPT:
        a.lock = tuple(range(2, 14))
    a.stamp(7)
    R = Regs(2)
    vH, vTokA, vVa, vK2a = R(), R(), R(), R()
    vKa = [R(), R()]
    Q1 = R(4); Q2 = [R(2), R(2)]
    S = [R(16), R(16)]
    P = R(8); O = R(16); C = R(16)
    K1 = [R(4), R(4)]; V = [R(8), R(8)]; K2 = R(2)
    tp = R(8)
    sCnt, sKV, sPass, sM40 = 40, 41, 42, 44
    vKg = tp + 6
    def a_setup():
        a(f'v_lshrrev_b32 v{vH}, 5, v0', f'v_and_b32 v{vTokA}, 31, v0', f's_mul_i32 s{sKV}, s{sHead}, 163840', f's_add_u32 s{sKV}, s{sKV}, {WS_KV}')
        a(f'v_lshlrev_b32 v{vK2a}, 3, v{vTokA}', f'v_lshl_add_u32 v{vKg}, v{vH}, 9, v{vK2a}')
        a(f'v_add_u32 v{vKa[0]}, {L_K}, v{vKg}', f'v_add_u32 v{vKa[1]}, {L_K+256}, v{vKg}', f'v_lshlrev_b32 v{vK2a}, 3, v0', f'v_add_u32 v{vK2a}, {L_K+2048}, v{vK2a}')
        a(f'v_lshlrev_b32 v{vVa}, 4, v{vTokA}', f'v_mul_u32_u24 v{K2}, 320, v{vH}', f'v_add_u32 v{vVa}, v{vVa}, v{K2}', f'v_add_u32 v{vVa}, {L_V}, v{vVa}')
        a(f'v_cmp_eq_u32 vcc, 20, v{vTokA}', f'v_mov_b32 v{K2}, {L_V+640}', f'v_mov_b32 v{K2+1}, {FAR}', f'v_cndmask_b32 v{vVa}, v{vVa}, v{K2}, vcc',
          f'v_cmp_lt_u32 vcc, 20, v{vTokA}', 's_nop 1', f'v_cndmask_b32 v{vVa}, v{vVa}, v{K2+1}, vcc')
        for i in range(16):
            a(f'v_mov_b32 v{O+i}, 0')
        for i in range(4):
            a(f'v_mov_b32 v{P+4+i}, 0', f'v_mov_b32 v{V[1]+4+i}, 0')
        a(f's_lshr_b32 s{sT0}, s{sW}, 1', f's_cmp_lt_u32 s{sT0}, 2', CSEL(sT1, L_Q0, L_Q1 - 5120), f's_mul_i32 s{sT0}, s{sT0}, 2560', f's_add_u32 s{sT0}, s{sT0}, s{sT1}',
          f's_and_b32 s{sT1}, s{sW}, 1', f's_lshl_b32 s{sT1}, s{sT1}, 3', f's_add_u32 s{sT0}, s{sT0}, s{sT1}',
          f'v_lshl_add_u32 v{vQb}, v{vTokA}, 4, s{sT0}', f'v_lshl_add_u32 v{vQa}, v{vH}, 9, v{vQb}')
    vQa, vQb = tp + 4, tp + 5
    a_setup()
    sP, sNB, sSpin = 48, 49, 50
    if True:
        a(f's_mul_i32 s{sT0}, s{sHead}, 20', f's_add_u32 s{sT1}, s{sT0}, 19', f's_lshr_b32 s{sT0}, s{sT0}, 6', f's_lshr_b32 s{sT1}, s{sT1}, 6', f's_sub_u32 s{sT1}, s{sT1}, s{sT0}',
          f's_lshl_b32 s{sT1}, s{sT1}, 10', f's_lshl_b32 s{sP}, s{sT0}, 10', f's_add_u32 s{sP}, s{sP}, {WS_F1}')
        a(f'v_bfe_u32 v{tp}, v0, 2, 2', f's_lshl_b32 s{sT0}, s{sW}, 1', f's_sub_u32 s{sT0}, s{sT0}, 1', f'v_add_u32 v1, s{sT0}, v{tp}', f'v_cmp_eq_u32 vcc, 0, v{tp}',
          f'v_bfe_u32 v{tp+1}, v0, 1, 1', f'v_add_u32 v{tp+1}, 1, v{tp+1}', 'v_cndmask_b32 v1, v1, 0, vcc' if False else f'v_cndmask_b32 v1, v1, v{tp}, vcc',
          f'v_cmp_eq_u32 vcc, 3, v{tp}', f'v_mov_b32 v{tp+2}, s{sQB}', f'v_mov_b32 v{tp+3}, 0', f'v_cndmask_b32 v1, v1, v{tp+2}, vcc', f'v_cndmask_b32 v{tp+1}, v{tp+1}, v{tp+3}, vcc',
          'v_lshlrev_b32 v1, 7, v1', f'v_mul_u32_u24 v{tp+1}, 10240, v{tp+1}', f'v_add_u32 v1, v1, v{tp+1}', f'v_and_b32 v{tp}, 1, v0', f'v_mad_u32_u24 v1, v{tp}, s{sT1}, v1')
    a(f's_mov_b32 s{sSpin}, {SPIN}')
    a(f's_mov_b32 s{sM40}, -1', f's_mov_b32 s{sM40+1}, 0xff')
    a(f's_lshl_b32 s{sT0}, s{sHead}, 5', f's_lshl_b32 s{sT1}, s{sQB}, 2', f's_add_u32 s{sT0}, s{sT0}, s{sT1}', f's_add_u32 s{sT0}, s{sT0}, s{sW}', f's_mul_i32 s51, s{sT0}, 2560',
      f's_add_u32 s51, s51, {WS_Q}', f's_cmp_lt_u32 s{sW}, 2', CSEL(sT1, L_Q0, L_Q1 - 5120), f's_mul_i32 s52, s{sW}, 2560', f's_add_u32 s52, s52, s{sT1}')
    a(f's_mul_i32 s{sT0}, s{sW}, 1280', f's_mul_i32 s{sT1}, s{sW}, 1312', f's_add_u32 s{sT2}, s{sT0}, s{sKV}')
    poll1 = ['s_mov_b64 exec, 0xffff', f'buffer_load_dwordx4 {v(tp,4)}, v1, {WS}, s{sP} offen sc1', 's_mov_b64 exec, -1']
    check = ['s_waitcnt vmcnt(0)'] + [f'v_xor_b32 v{tp+i}, s{sTag}, v{tp+i}' for i in range(4)] + [
        f'v_or3_b32 v{tp}, v{tp}, v{tp+1}, v{tp+2}', f'v_or_b32 v{tp}, v{tp}, v{tp+3}', f'v_cmp_ne_u32 vcc, 0, v{tp}', 's_nop 1', 's_and_b32 vcc_lo, vcc_lo, 0xffff', 's_cbranch_scc0 L_poll1_ok']
    bar()
    left = len([c for c in range(XP + 1, 21) if c not in SKIP])
    a(poll1, f's_mov_b32 s{sNB}, {max(0, left-1)}')
    if left:
        a.label('L_poll1a')
        bar()
        a(check, poll1, f's_sub_u32 s{sNB}, s{sNB}, 1', 's_cbranch_scc0 L_poll1a', f's_mov_b32 s{sNB}, 0')
    a.label('L_poll1b')
    a(check, f's_sub_u32 s{sSpin}, s{sSpin}, 1', 's_cbranch_scc1 L_poll1_ok', backoff('s1'), poll1, 's_branch L_poll1b')
    a.label('L_poll1_ok')
    a.stamp(8)
    a('v_lshlrev_b32 v1, 4, v0', 's_mov_b32 m0, s52', f's_mov_b64 exec, s[{sM40}:{sM40+1}]')
    for i in range(4):
        a(f'buffer_load_dwordx4 v1, {WS}, s51 offen offset:{640*i} sc1 lds')
    for c in range(2):
        a(f's_add_u32 m0, s{sT0}, {L_K+5120*c}', f's_add_u32 s{sT3}, s{sT2}, {10240*c}')
        a(f'buffer_load_dwordx4 v1, {WS}, s{sT3} offen sc1 lds', f'buffer_load_dwordx4 v1, {WS}, s{sT3} offen offset:640 sc1 lds')
        a(f's_add_u32 m0, s{sT1}, {L_V+5248*c}', f's_add_u32 s{sT3}, s{sT3}, 5120')
        a(f'buffer_load_dwordx4 v1, {WS}, s{sT3} offen sc1 lds', f's_sub_u32 s{sT3}, s{sT3}, 16', f'buffer_load_dwordx4 v1, {WS}, s{sT3} offen offset:656 sc1 lds')
    a('s_mov_b64 exec, -1')
    a.label('L_rest')
    a(f's_sub_u32 s{sNB}, s{sNB}, 1', 's_cbranch_scc1 L_rest_done', 's_barrier', 's_branch L_rest')
    a.label('L_rest_done')
    a('s_waitcnt vmcnt(4)', 's_branch L_attn_j')
    a.label('L_attn_z')
    a.vm = zvm
    lds_tag(1)
    a_setup()
    a(f'v_mul_u32_u24 v1, 656, v{vTokA}', f'v_add_u32 v1, {L_V+640}, v1')
    for i in range(4):
        a(f'v_mov_b32 v{K1[0]+i}, 0x3f803f80')
    a(f's_cmp_lg_u32 s{sW}, 4', 's_cbranch_scc1 L_noones', f'ds_write_b128 v1, {v(K1[0],4)}')
    a.label('L_noones')
    a.wait_vm(('c', 19))
    pbar(19)
    bar()
    a('s_waitcnt lgkmcnt(0)')
    a.label('L_attn_j')
    sHi = 46
    a('s_mov_b32 vcc_lo, -1', 's_mov_b32 vcc_hi, 0', f's_mov_b32 s{sHi}, -1', f's_mov_b32 s{sHi+1}, 0')

    def rdK1(dst, blk):
        o = (blk // 2 % 8) * 5
        return f'ds_read2st64_b64 {v(dst,4)}, v{vKa[blk % 2]} offset0:{o} offset1:{o+2}'
    def rdK2(pair):
        return f'ds_read_b64 {v(K2,2)}, v{vK2a} offset:{(pair % 8) * 2560}'
    def rdV(dst, blk, half):
        return f'ds_read_b128 {v(dst+4*half,4)}, v{vVa} offset:{((blk % 16) * 2 + half) * 656}'

    a.stamp(9)
    bar()
    a.stamp(10)
    a(f'ds_read2st64_b64 {v(Q1,4)}, v{vQa} offset0:0 offset1:2', rdK1(K1[0], 0), rdK1(K1[1], 1), f'ds_read_b64 {v(tp,2)}, v{vQb} offset:2048', rdK2(0),
      rdV(V[0], 0, 0), rdV(V[0], 0, 1), 's_waitcnt lgkmcnt(5)')
    a(M16(S[0], K1[0], Q1, '0'), 's_waitcnt lgkmcnt(3)')
    for i in range(2):
        a(f'v_cndmask_b32 v{Q2[0]+i}, 0, v{tp+i}, vcc')
    for i in range(2):
        a(f'v_cndmask_b32 v{Q2[1]+i}, v{tp+i}, 0, s[{sHi}:{sHi+1}]')
    a(M16(S[1], K1[1], Q1, '0'), 's_waitcnt lgkmcnt(2)', M8(S[0], K2, Q2[0]), M8(S[1], K2, Q2[1]), 's_nop 10')
    vals = [S[0] + i for i in range(16)] + [S[1] + i for i in range(16)]
    a(f'v_max3_f32 v{tp}, v{vals[0]}, v{vals[1]}, v{vals[2]}', f'v_max3_f32 v{tp+1}, v{vals[3]}, v{vals[4]}, v{vals[5]}')
    for i in range(6, 32, 2):
        r = tp + (i // 2 + 1) % 2
        a(f'v_max3_f32 v{r}, v{r}, v{vals[i]}, v{vals[i+1]}')
    a(f'v_max_f32 v{tp}, v{tp}, v{tp+1}', f'v_mov_b32 v{tp+1}, v{tp}', 's_nop 1', f'v_permlane32_swap_b32 v{tp}, v{tp+1}', 's_nop 1')
    a(f'v_max_f32 v{tp}, v{tp}, v{tp+1}', f'v_sub_f32 v{C}, {fbits(-float(OPT.get("mo", MAXOFF)))}, v{tp}')
    a(f'v_mov_b32 v{C+1}, v{C}')
    for i in range(2, 16, 2):
        a(f'v_mov_b64 {v(C+i,2)}, {v(C,2)}')
    if OPT.get('pro', 0) == 0:
        a('s_nop 1', M16(S[0], K1[0], Q1, C), M8(S[0], K2, Q2[0]), f's_mov_b32 s{sCnt}, 4', 's_waitcnt vmcnt(0)', 's_nop 7')
    else:
        for i in range(16):
            a(f'v_add_f32 v{S[0]+i}, v{S[0]+i}, v{C}')
        a(f's_mov_b32 s{sCnt}, 4', 's_waitcnt vmcnt(0)')
    a.stamp(11)
    a.raw('.p2align 3')
    a.label('L_at_loop')
    for b in range(16):
        cur, nxt = S[b & 1], S[(b + 1) & 1]
        E = lambda i: EXP(cur + i)
        Cv = lambda i: CVT(P + i, cur + 2 * i)
        a(M16(nxt, K1[(b + 1) & 1], Q1, C))
        if b % 4 == 2:
            bar()
        a(f's_setprio {3 - (b + 2) % 4}', rdK1(K1[b & 1], b + 2))
        a(E(0), E(1), E(2), Cv(0), E(3), E(4))
        a(M16(O, V[(b + 1) & 1] + 4, P + 4), 's_waitcnt lgkmcnt(1)', rdV(V[(b + 1) & 1], b + 1, 0), rdV(V[(b + 1) & 1], b + 1, 1))
        a(Cv(1), E(5), E(6), Cv(2), E(7), E(8))
        if not OPT.get('abl_8'):
            a(M8(nxt, K2, Q2[(b + 1) & 1]))
        a(Cv(3), E(9), E(10), Cv(4), E(11), E(12))
        a(M16(O, V[b & 1], P), 's_waitcnt lgkmcnt(2)')
        if b % 2 == 0:
            a(rdK2(b // 2 + 1))
        if b == 15:
            a(f's_sub_u32 s{sCnt}, s{sCnt}, 1', f's_cmp_lg_u32 s{sCnt}, 0')
        a(Cv(5), E(13), E(14), E(15), Cv(6), Cv(7))
    a('s_cbranch_scc1 L_at_loop')
    a('s_nop 0', M16(O, V[1] + 4, P + 4), f's_mov_b32 s{sPass}, 0', 's_waitcnt lgkmcnt(0)')
    a.stamp(12)

    a.label('L_at_fin')
    a(f's_lshl_b32 s{sT0}, s{sQB}, 3', f's_add_u32 s{sT0}, s{sT0}, s{sW}', f's_mul_i32 s{sT0}, s{sT0}, 40960', f's_add_u32 s{sT0}, s{sT0}, {WS_O}',
      f's_lshl_b32 s{sT1}, s{sHead}, 10', f's_add_u32 s{sT1}, s{sT1}, s{sT0}',
      f's_lshl_b32 s{sT2}, s{sHead}, 8', f's_add_u32 s{sT2}, s{sT2}, s{sT0}', f's_add_u32 s{sT2}, s{sT2}, 32768', f's_mov_b32 s{sT3}, {fbits(2.0**-102)}', 's_nop 1')
    vL, vSum, N = tp, tp + 1, S[0]
    a(f'v_mov_b32 v{vL}, v{O+8}', f'v_mov_b32 v{tp+2}, v{O+8}', 'v_lshlrev_b32 v1, 4, v0', f'v_lshlrev_b32 v{tp+4}, 3, v0')
    a(f'v_permlane32_swap_b32 v{tp+2}, v{vL}', f'v_add_f32 v{vSum}, |v{O}|, |v{O+1}|', f'v_add_f32 v{tp+3}, |v{O+8}|, |v{O+9}|', f'v_rcp_f32 v{vL}, v{vL}', f'v_add_f32 v{vSum}, v{vSum}, |v{O+2}|')
    for i in range(8):
        a(f'v_mul_f32 v{N+i}, v{O+i}, v{vL}')
    for i in range(4):
        a(CVT(N + i, N + 2 * i))
    a(f'buffer_store_dwordx4 {v(N,4)}, v1, {WS}, s{sT1} offen sc1')
    for i in range(8, 12):
        a(f'v_mul_f32 v{N+i}, v{O+i}, v{vL}')
    a(CVT(N + 8, N + 8), CVT(N + 9, N + 10), 's_mov_b32 exec_hi, 0', f'buffer_store_dwordx2 {v(N+8,2)}, v{tp+4}, {WS}, s{sT2} offen sc1', 's_mov_b32 exec_hi, -1')
    for i in range(3, 8):
        a(f'v_add_f32 v{vSum}, v{vSum}, |v{O+i}|')
    a(f'v_add_f32 v{tp+3}, v{tp+3}, |v{O+10}|', f'v_add_f32 v{tp+3}, v{tp+3}, |v{O+11}|', f'v_add_f32 v{tp+3}, v{tp+3}, v{vSum}')
    a(f'v_cmp_ngt_f32 vcc, {fbits(2.0**120)}, v{tp+3}', f'v_cmp_gt_f32 s[46:47], s{sT3}, v{vSum}', 's_nop 1',
      's_or_b64 s[46:47], s[46:47], vcc', f's_cmp_eq_u32 s{sPass}, 0', 's_cselect_b64 s[46:47], s[46:47], 0', 's_cmp_lg_u64 s[46:47], 0',
      's_cbranch_scc1 L_at_slow' if not OPT.get('noslow') else 's_nop 0')
    FOS = OPT.get('fos', 2)
    a(f's_lshl_b32 s{sT0}, s{sQB}, 3', f's_add_u32 s{sT0}, s{sT0}, s{sW}', f's_lshl_b32 s{sT0}, s{sT0}, 12', f's_lshr_b32 s{sT1}, s{sHead}, {FOS}', f's_lshl_b32 s{sT1}, s{sT1}, 7',
      f's_add_u32 s{sT0}, s{sT0}, s{sT1}', f's_and_b32 s{sT1}, s{sHead}, {(1<<FOS)-1}', f's_lshl_b32 s{sT1}, s{sT1}, 2',
      f's_add_u32 s{sT0}, s{sT0}, s{sT1}', f's_add_u32 s{sT0}, s{sT0}, {WS_FO}', f'v_mov_b32 v1, s{sTag}', 'v_mov_b32 v2, 0', 's_mov_b64 exec, 1')
    a('s_waitcnt vmcnt(0)', f'buffer_store_dword v1, v2, {WS}, s{sT0} offen sc1')
    a.stamp(13)
    a.dump(0, sW, 24)
    a('s_endpgm')

    a.label('L_at_slow')
    vVg, vL8s = tp + 4, tp + 7
    a(f'v_min_u32 v1, 19, v{vTokA}', 'v_lshlrev_b32 v1, 4, v1', f'v_mul_u32_u24 v{vVg}, 320, v{vH}', f'v_add_u32 v{vVg}, v1, v{vVg}', f'v_lshlrev_b32 v{vL8s}, 3, v0')
    a(f'v_mov_b32 v{tp}, 0xff800000', f's_mov_b32 s{sCnt}, 0')
    def pair_off():
        a(f's_lshr_b32 s{sT0}, s{sCnt}, 1', f's_mul_i32 s{sT0}, s{sT0}, 10240', f's_and_b32 s{sT1}, s{sCnt}, 1', f's_mul_i32 s{sT1}, s{sT1}, 2560',
          f's_add_u32 s{sT0}, s{sT0}, s{sT1}', f's_add_u32 s{sT0}, s{sT0}, s{sKV}', f's_add_u32 s{sT1}, s{sT0}, 5120')
    def ldK():
        for b in range(2):
            a(f'buffer_load_dwordx2 {v(K1[b],2)}, v{vKg}, {WS}, s{sT0} offen offset:{256*b} sc1',
              f'buffer_load_dwordx2 {v(K1[b]+2,2)}, v{vKg}, {WS}, s{sT0} offen offset:{256*b+1024} sc1')
        a(f'buffer_load_dwordx2 {v(K2,2)}, v{vL8s}, {WS}, s{sT0} offen offset:2048 sc1')
    a.label('L_at_slow_max')
    pair_off(); ldK()
    a('s_waitcnt vmcnt(0)')
    a(M16(S[0], K1[0], Q1, '0'), M16(S[1], K1[1], Q1, '0'), M8(S[0], K2, Q2[0]), M8(S[1], K2, Q2[1]), 's_nop 12')
    for i in range(16):
        a(f'v_max3_f32 v{tp}, v{tp}, v{S[0]+i}, v{S[1]+i}')
    a(f's_add_u32 s{sCnt}, s{sCnt}, 1', f's_cmp_lt_u32 s{sCnt}, 32', 's_cbranch_scc1 L_at_slow_max')
    a(f'v_mov_b32 v{tp+1}, v{tp}', 's_nop 1', f'v_permlane32_swap_b32 v{tp}, v{tp+1}', 's_nop 1', f'v_max_f32 v{tp}, v{tp}, v{tp+1}')
    for i in range(16):
        a(f'v_sub_f32 v{C+i}, 0, v{tp}', f'v_mov_b32 v{O+i}, 0')
    a(f'v_cmp_eq_u32 s[48:49], 20, v{vTokA}', f'v_mov_b32 v{tp+5}, 0x3f803f80', f's_mov_b32 s{sCnt}, 0')
    a.label('L_at_slow_pv')
    pair_off(); ldK()
    for g in range(4):
        a(f'buffer_load_dwordx4 {v(V[g//2]+4*(g%2),4)}, v{vVg}, {WS}, s{sT1} offen offset:{640*g} sc1')
    a('s_waitcnt vmcnt(0)')
    a(M16(S[0], K1[0], Q1, C), M16(S[1], K1[1], Q1, C), M8(S[0], K2, Q2[0]), M8(S[1], K2, Q2[1]))
    for b in range(2):
        for i in range(8):
            a(f'v_cndmask_b32 v{V[b]+i}, v{V[b]+i}, v{tp+5}, s[48:49]')
    for b in range(2):
        for i in range(16):
            a(EXP(S[b] + i))
        a('s_nop 0')
        for i in range(8):
            a(CVT(P + i, S[b] + 2 * i))
        a('s_nop 1', M16(O, V[b], P), M16(O, V[b] + 4, P + 4))
    a(f's_add_u32 s{sCnt}, s{sCnt}, 1', f's_cmp_lt_u32 s{sCnt}, 32', 's_cbranch_scc1 L_at_slow_pv')
    a(f's_mov_b32 s{sPass}, 1', 's_branch L_at_fin')

    a.label('L_x_idle')
    PB = OPT.get('pb', 4)
    for _ in range(PB):
        bar()
    if OPT.get('ipf', 1):
        a(f's_lshl_b32 s{sT0}, s{sRB}, 2', f's_add_u32 s{sT0}, s{sT0}, s{sW}', f's_lshl_b32 s{sT0}, s{sT0}, 12', f'v_lshl_add_u32 v1, v0, 4, s{sT0}')
        parts = ((12, 640 * 3456, 4, 9), (12, 640 * 3456, 0, 4), (16, 1728 * 1280, 0, 9), (8, 640 * 1280, 0, 4))[OPT.get('ipn', 3):]
        for j, (base, nbytes, lo, hi) in enumerate(parts):
            a.srd(SD, base, nbytes)
            a(f's_mov_b32 s{sT1}, {lo << 18}')
            a.label(f'L_ipf{j}')
            for i in range(4):
                a(f'buffer_load_dwordx4 v[160:163], v1, s[{SD}:{SD+3}], s{sT1} offen offset:{1024*i}')
            a(f's_add_u32 s{sT1}, s{sT1}, {1 << 18}', f's_waitcnt vmcnt({OPT.get("ipd", 12)})', f's_cmp_lt_u32 s{sT1}, {hi << 18}', f's_cbranch_scc1 L_ipf{j}')
        a('s_waitcnt vmcnt(0)')
    for c in range(PB, XP):
        pbar(c)
    lds_tag(1)
    a('s_branch L_attn')

    a.label('L_helper')
    a.lock = None
    sG = 38
    a(f's_sub_u32 s{sG}, s{sW}, 8')
    decode2()
    gemm_setup(8, 5, NE, False)
    sFB = 39
    a(f's_lshl_b32 s{sT0}, s{sRB}, 7', f's_lshl_b32 s{sT1}, s{sCG}, 3', f's_add_u32 s{sT0}, s{sT0}, s{sT1}', f's_lshl_b32 s{sT1}, s{sG}, 1', f's_add_u32 s{sT2}, s{sT0}, s{sT1}',
      f's_mul_i32 s{sT3}, s{sT2}, 1280', f's_lshl_b32 s{sT2}, s{sT2}, 4', f's_add_u32 s{sT2}, s{sT2}, {WS_RS}')
    a(f'v_mul_u32_u24 v1, 1280, v2', f'v_lshl_add_u32 v{tmp+4}, v{vTok}, 4, v1', f'v_lshl_add_u32 v{tmp+5}, v{vTok}, 3, v1', f'v_lshlrev_b32 v{tmp+6}, 1, v{vTok}')
    a(f's_lshl_b32 s{sFB}, s{sCG}, 1', f's_add_u32 s{sFB}, s{sFB}, s{sN}', f's_lshl_b32 s{sT0}, s{sFB}, 7')
    a('s_waitcnt lgkmcnt(0)')
    ws_setup()
    a(f's_add_u32 s10, s22, {WS_EP}', 's_addc_u32 s11, s23, 0', f's_load_dword s{sTag}, s[10:11], 0')
    def touch(off, extra=(0,)):
        a(f's_and_b32 s10, s{off}, 0xffffff80', 's_add_u32 s10, s22, s10', 's_addc_u32 s11, s23, 0')
        for e in extra:
            a(f's_load_dword s61, s[10:11], {e}', f's_load_dword s61, s[10:11], {e+64}')
    if OPT.get('tch', 1):
        touch(sT2)
        f1_off(56, 57, sN, None)
        touch(56)
        a(f's_lshl_b32 s56, s{sRB}, 1', f's_add_u32 s56, s56, s{sM}', 's_lshl_b32 s56, s56, 4', f's_add_u32 s56, s56, s{sCG}', 's_lshl_b32 s56, s56, 7', f's_add_u32 s56, s56, {WS_FH}')
        touch(56)
        a(f's_lshl_b32 s56, s{sQB}, 2', f's_add_u32 s56, s56, s{sG}', 's_lshl_b32 s56, s56, 13', f's_lshr_b32 s57, s{sHead}, {OPT.get("fos", 2)}', 's_lshl_b32 s57, s57, 7',
          's_add_u32 s56, s56, s57', f's_add_u32 s56, s56, {WS_FO}')
        touch(56, (0, 4096))
    vL16, vL8, vTr, vTr2, vOut, vRes = range(SX + 16, SX + 22)
    vW, vWr = SX + 22, SX + 26
    vR2 = SX + 42
    sOwn, sKH, sRow, sCol, sReg = 62, 63, 64, 65, 66
    def p2_setup(part, t):
        if part == 0:
            a(f's_and_b32 s{sOwn}, s{sG}, 1', f's_lshr_b32 s{sKH}, s{sG}, 1', f's_lshl_b32 s{sRow}, s{sHead}, 1', f's_add_u32 s{sRow}, s{sRow}, s{sOwn}',
              f's_mul_i32 s{sCol}, s{sQB}, 160', f's_mul_i32 s{sReg}, s{sG}, 25600', f's_cmp_eq_u32 s{sKH}, 0', 's_cselect_b32 s67, 160, 0', CSEL(68, L_XR, L_B2))
            a(f'v_lshlrev_b32 v{vL16}, 4, v0', f'v_lshlrev_b32 v{vL8}, 3, v0', f'v_lshlrev_b32 v{vR2}, 5, v{vTok}')
            a(f's_lshl_b32 s{sT0}, s{sHead}, 6', f's_add_u32 s{sT0}, s{sT0}, s{sOwn}', f'v_lshl_add_u32 v1, v{vTok}, 1, s{sT0}', f'v_lshl_add_u32 v{t}, v2, 4, s{sCol}',
              f'v_mul_u32_u24 v{vOut}, 1280, v1', f'v_add_u32 v{vOut}, v{vOut}, v{t}')
            a(f'v_and_b32 v{t}, 56, v1', f'v_and_b32 v{t+1}, 3, v1', f'v_lshl_add_u32 v{t}, v{t+1}, 1, v{t}', f'v_bfe_u32 v{t+1}, v1, 2, 1', f'v_add_u32 v{t}, v{t}, v{t+1}',
              f'v_mul_u32_u24 v{t}, s67, v{t}', f'v_lshl_add_u32 v{t}, v2, 4, v{t}', f'v_add_u32 v{vRes}, s68, v{t}')
            a('v_bfe_u32 v1, v0, 2, 2', 'v_lshl_add_u32 v1, v1, 1, v2', 'v_mul_u32_u24 v1, 160, v1')
            a(f'v_and_b32 v{t}, 16, v0', f'v_lshl_add_u32 v1, v{t}, 1, v1', f'v_and_b32 v{t+1}, 1, v0', f'v_lshl_add_u32 v1, v{t+1}, 4, v1',
              f'v_and_b32 v{t+1}, 2, v0', f'v_lshl_add_u32 v1, v{t+1}, 2, v1', f'v_add_u32 v{vTr}, s{sReg}, v1',
              f'v_lshl_add_u32 v{vTr2}, v{t}, 14, v{vTr}')
        else:
            a(f'v_mul_u32_u24 v1, 205, v0', 'v_lshrrev_b32 v1, 11, v1')
            a(f'v_mul_u32_u24 v{t}, 10, v1', f'v_sub_u32 v{t}, v0, v{t}', f'v_lshl_add_u32 v{t}, v{t}, 4, s{sCol}')
            a(f'v_and_b32 v{t+1}, 1, v1', 'v_lshrrev_b32 v1, 1, v1')
            a(f'v_lshl_add_u32 v{t+2}, v{t+1}, 2, v1', f'v_mul_u32_u24 v{t+2}, 1280, v{t+2}', f'v_add_u32 v{vW}, v{t+2}, v{t}')
            for i, ro in ((1, 2), (2, 8), (3, 10)):
                a(f'v_add_u32 v{vW+i}, {ro*1280-640*i}, v{vW}')
            a(f'v_mul_u32_u24 v{t+1}, 20, v{t+1}', f'v_add3_u32 v{t+2}, v{t+1}, v1, 16', f'v_mul_u32_u24 v{t+2}, 1280, v{t+2}', f'v_add_u32 v{vWr}, v{t+2}, v{t}')
            for i, ro in ((1, 2), (2, 40), (3, 42)):
                a(f'v_add_u32 v{vWr+i}, {ro*1280-640*i}, v{vWr}')
    a(f's_mov_b32 s60, s{sT0}')
    p2_setup(0, tmp + 10)
    p2_setup(1, tmp + 10)
    colsum_setup()
    zero_acc(0, 64)
    a(f's_lshl_b32 s{sT0}, s{sRB}, 2', f's_lshl_b32 s{sT1}, s{sM}, 1', f's_add_u32 s{sT0}, s{sT0}, s{sT1}', f's_mul_i32 s{sT0}, s{sT0}, 108',
      f's_lshl_b32 s{sT1}, s{sFB}, 2', f's_add_u32 s{sT0}, s{sT0}, s{sT1}', f's_lshl_b32 s{sT0}, s{sT0}, 10',
      f's_add_u32 s{sOff}, s{sT0}, {WS_H}', f's_add_u32 s{sHS}, s{sOff}, {108*1024}', f's_lshl_b32 s{sT0}, s{sM}, 11', f'v_lshl_add_u32 v{tmp}, v0, 4, s{sT0}', f'v_xor_b32 v{tmp+1}, 2048, v{tmp}')
    a(f's_lshl_b32 s{sT0}, s{sM}, 8', f's_add_u32 s{sT0}, s{sT0}, {L_MEAN}', f'v_lshl_add_u32 v{tmp+3}, v{vTok}, 3, s{sT0}', f'v_lshl_add_u32 v{tmp+3}, v2, 9, v{tmp+3}')
    a(f's_lshl_b32 s{sT0}, s{sG}, 7', f's_add_u32 s{sT0}, s{sT0}, {L_MEAN}', f'v_lshl_add_u32 v{tmp+9}, v{vTok}, 2, s{sT0}', f'v_mov_b32 v{tmp+10}, {L_TAG}',
      f'v_lshlrev_b32 v{tmp+2}, 4, v{vTok}', f's_mov_b32 s{sT0}, s60')
    a.srd(SD, 4, 2621440)
    bar()
    a(f'buffer_load_dwordx4 {v(SX,4)}, v{tmp+4}, s[{SD}:{SD+3}], s{sT3} offen', f'buffer_load_dwordx4 {v(SX+4,4)}, v{tmp+4}, s[{SD}:{SD+3}], s{sT3} offen offset:512',
      f'buffer_load_dwordx2 {v(SX+8,2)}, v{tmp+5}, s[{SD}:{SD+3}], s{sT3} offen offset:1024')
    bar(); bar()
    a('s_waitcnt vmcnt(0) lgkmcnt(0)', f's_add_u32 s{sTag}, s{sTag}, 0x9e3779b1')
    a.srd(SD, 14, 3456)
    a(f's_lshl_b32 s{sT1}, s{sM}, 6', f's_add_u32 s{sT0}, s{sT0}, s{sT1}', f's_xor_b32 s{sT1}, s{sT0}, 64')
    a(f'buffer_load_ushort v{tmp+7}, v{tmp+6}, s[{SD}:{SD+3}], s{sT0} offen', f'buffer_load_ushort v{tmp+8}, v{tmp+6}, s[{SD}:{SD+3}], s{sT1} offen')
    a(f's_lshl_b32 s{sT1}, s{sRB}, 11', f's_lshl_b32 s{sT0}, s{sG}, 9', f's_add_u32 s{sT1}, s{sT1}, s{sT0}', f's_add_u32 s{sT1}, s{sT1}, {WS_RS}', f's_mov_b32 s{sT3}, {SPIN}')
    r0, r1, r2, r3 = FR, FR + 1, FR + 2, FR + 3
    def reduce32(r):
        for mod in ('quad_perm:[1,0,3,2]', 'quad_perm:[2,3,0,1]', 'row_half_mirror', 'row_mirror'):
            a('s_nop 1', f'v_add_f32_dpp v{r}, v{r}, v{r} {mod} row_mask:0xf bank_mask:0xf')
        a(f'v_mov_b32 v{r3}, v{r}', 's_nop 1', f'v_permlane16_swap_b32 v{r}, v{r3}', 's_nop 1', f'v_add_f32 v{r}, v{r}, v{r3}')
    U = lambda i: (FR + 8 + i) if i < 10 else (SX + i - 10)
    for i in range(10):
        a(f'v_lshlrev_b32 v{U(i)}, 16, v{SX+i}', f'v_and_b32 v{SX+i}, 0xffff0000, v{SX+i}')
        if i < 2:
            a(f'v_add_f32 v{r0+i}, v{U(i)}, v{U(10+i)}')
        else:
            a(f'v_add_f32 v{r0}, v{r0}, v{U(i)}', f'v_add_f32 v{r1}, v{r1}, v{U(10+i)}')
    a(f'v_add_f32 v{r0}, v{r0}, v{r1}')
    reduce32(r0)
    a(f'v_mul_f32 v{r0}, {fbits(1/640)}, v{r0}', f'v_mov_b32 v{r1}, 0', f'v_mov_b32 v{r2}, 0')
    bar()
    for i in range(0, 20, 2):
        a(f'v_sub_f32 v{U(i)}, v{U(i)}, v{r0}', f'v_sub_f32 v{U(i+1)}, v{U(i+1)}, v{r0}', f'v_fmac_f32 v{r1}, v{U(i)}, v{U(i)}', f'v_fmac_f32 v{r2}, v{U(i+1)}, v{U(i+1)}')
    a(f'v_add_f32 v{r2}, v{r1}, v{r2}')
    reduce32(r2)
    a(f'v_mov_b32 v{r3}, {fbits(1e-5)}', f'v_fmac_f32 v{r3}, {fbits(1/640)}, v{r2}', f'v_rsq_f32 v{r2}, v{r3}', f'v_mov_b32 v{r1}, s{sTag}', f'v_mov_b32 v{r3}, s{sTag}',
      'v_lshrrev_b32 v1, 1, v0', 's_mov_b32 exec_lo, 1', 's_mov_b32 exec_hi, 1', f'buffer_store_dwordx4 {v(r0,4)}, v1, {WS}, s{sT2} offen sc1', 's_mov_b64 exec, -1')
    a.stamp(2)
    bar()
    a(f's_cmp_lt_u32 s{sFB}, 27', 's_cbranch_scc1 L_h_act')
    for c in range(5, 6 + NE):
        bar()
    a('s_branch L_h_mid')
    def gmid():
        a.label('L_h_mid')
        g0 = FR
        gather = f'buffer_load_dwordx4 {v(g0,4)}, v{tmp+2}, {WS}, s{sT1} offen sc1'
        a('s_setprio 0', gather)
        bar(); bar()
        a.label('L_h_chk')
        a('s_waitcnt vmcnt(0)', f'v_cmp_ne_u32 vcc, s{sTag}, v{g0+1}', f'v_cmp_ne_u32 s[46:47], s{sTag}, v{g0+3}', 's_nop 1', 's_or_b64 vcc, vcc, s[46:47]',
          's_cbranch_scc0 L_h_got', f's_sub_u32 s{sT3}, s{sT3}, 1', 's_cbranch_scc1 L_h_got', backoff('s0'), gather, 's_branch L_h_chk')
        a.label('L_h_got')
        a(f'v_rcp_f32 v{g0+1}, v{g0+2}', f'v_sub_f32 v{g0}, 0, v{g0}', f'v_mov_b32 v{g0+3}, s{sTag}')
        a('s_mov_b32 exec_lo, 0', f'v_lshlrev_b32 v{CS[0]}, 16, v{tmp+7}', f'v_lshlrev_b32 v{CS[1]}, 16, v{tmp+8}', 's_mov_b32 exec_lo, -1')
        bar(); bar()
        a('s_mov_b32 exec_hi, 0', f'ds_write_b32 v{tmp+9}, v{g0}', f'ds_write_b32 v{tmp+9}, v{g0+1} offset:{L_ISTD-L_MEAN}', f'ds_write_b32 v{tmp+9}, v{g0+2} offset:{L_RSTD-L_MEAN}',
          's_mov_b64 exec, 1', f'ds_write_b32 v{tmp+10}, v{g0+3}', 's_mov_b64 exec, -1', 's_waitcnt lgkmcnt(0)')
        a(f's_cmp_lt_u32 s{sFB}, 27', 's_cbranch_scc1 L_h_act')
        for c in range(QE, 22):
            pbar(c)
        a('s_branch L_h_p2')
    a.label('L_h_act')
    a('s_setprio 1')
    mainloop('ffn', False, [f'ds_read_b64 {v(CR,2)}, v{tmp+3}'], 5 + NE, QE, 20, gmid)
    a('s_nop 8')
    hst = []
    for t, u in ((0, 0), (0, 1), (1, 1), (1, 0)):
        for ap in range(2):
            r = acc + 32 * t + 16 * u + 8 * ap
            for e in range(8):
                a(f'v_mul_f32 v{r+e}, v{r+e}, |v{r+e}|')
            for e in range(4):
                a(CVT(r + e, r + 2 * e))
            for e in range(4):
                a(f'v_pk_max_i16 v{r+e}, v{r+e}, 0')
            hst.append(f'buffer_store_dwordx4 {v(r,4)}, v{tmp+u}, {WS}, s{sHS if t else sOff} offen offset:{1024*ap} sc1')
            if OPT.get('hs', 0):
                a(hst.pop())
    a.stamp(3)
    bar()
    a(hst)
    a.label('L_h_p2')
    b0 = OPT.get('b0')
    bcnt = [1]
    def barB():
        c = bcnt[0]; bcnt[0] += 1
        rec = b0 is not None and b0 <= c < b0 + 6
        if rec:
            a.lock = None; a.stamp(2 + 2 * (c - b0))
        bar()
        if rec:
            a.stamp(3 + 2 * (c - b0))
        if b0 is not None:
            a.lock = tuple(range(2, 14))
    if b0 is not None:
        a.lock = tuple(range(2, 14))
    a.stamp(5)

    a.vm = ['hst']
    R = Regs(2)
    acc = R(96)
    AF = [R(8) for _ in range(4)]
    tmp = R(8)
    assert R.n <= vL16
    BF = [vWr + 4 + 4 * i for i in range(3)]
    sKVo, sH0, sH1, sW2, sWo, sMK, sMV = range(40, 47)
    W2, WO, RES = 48, 52, 56
    sM40 = 60
    a(f's_mov_b32 s{sM40}, -1', f's_mov_b32 s{sM40+1}, 0xff')
    a(f's_mul_i32 s{sKVo}, s{sHead}, 163840', f's_mul_i32 s{sT0}, s{sG}, 1280', f's_add_u32 s{sKVo}, s{sKVo}, s{sT0}', f's_add_u32 s{sKVo}, s{sKVo}, {WS_KV}')
    a(f's_add_u32 s{sMK}, s{sT0}, {L_K}', f's_mul_i32 s{sMV}, s{sG}, 1312', f's_add_u32 s{sMV}, s{sMV}, {L_V}')
    MASK, FULL = f's_mov_b64 exec, s[{sM40}:{sM40+1}]', 's_mov_b64 exec, -1'

    def kv(c):
        slot = c % 4
        ld = lambda so, off: f'buffer_load_dwordx4 v{vL16}, {WS}, s{so} offen offset:{off} sc1 lds'
        return [([f's_add_u32 m0, s{sMK}, {slot*5120}', f's_add_u32 s{sT0}, s{sKVo}, {c*10240}'], ld(sT0, 0), ('kv', c), True),
                ([], ld(sT0, 640), ('kv', c), True),
                ([f's_add_u32 m0, s{sMV}, {slot*5248}', f's_add_u32 s{sT0}, s{sT0}, 5120'], ld(sT0, 0), ('kv', c), True),
                ([f's_sub_u32 s{sT0}, s{sT0}, 16'], ld(sT0, 656), ('kv', c), True)]
    sR2 = 47
    def wrap(d, base, st, scale):
        return [f's_cmp_ge_u32 s{sR2}, {27-st}', f's_cselect_b32 s{d}, {27*scale}, 0', f's_sub_u32 s{d}, s{base}, s{d}', f's_add_u32 s{d}, s{d}, {st*scale}']
    def stage(srd, base, add, voff, slot, tg):
        out = []
        for i in range(4):
            pre = [f's_add_u32 m0, s{sReg}, {slot*2560}'] + (add if isinstance(add, list) else [f's_add_u32 s{sT0}, s{base}, {add}']) if i == 0 else []
            out.append((pre, f'buffer_load_dwordx4 v{voff+i}, s[{srd}:{srd+3}], s{sT0} offen offset:{640*i} lds', tg, True))
        return out
    def f2B(st):
        return stage(W2, sW2, wrap(sT0, sW2, st, 16 * 1280), vW, st % 4, ('fb', st))
    def f2A(st):
        return [(wrap(sT1, sH0, st, 1024), f'buffer_load_dwordx4 {v(AF[st%4],4)}, v{vL16}, {WS}, s{sT1} offen sc1', ('fa', st), False),
                ([f's_add_u32 s{sT1}, s{sT1}, s{sH1}'], f'buffer_load_dwordx4 {v(AF[st%4]+4,4)}, v{vL16}, {WS}, s{sT1} offen sc1', ('fa', st), False)]
    def wo(slot):
        gl, i = divmod(slot, 5)
        if i < 4:
            return stage(WO, sWo, (4 * gl + i) * 20 * 1280, vW, slot, ('wo', slot))
        return stage(WO, sWo, gl * 80 * 1280, vWr, slot, ('wo', slot))
    def emit(fl):
        masked = False
        for pre, ins, tg, mk in fl:
            a(pre)
            if mk != masked:
                a(MASK if mk else FULL); masked = mk
            elif pre and 'm0' in pre[-1]:
                a('s_nop 0')
            a.vmem(ins, tg)
        if masked:
            a(FULL)

    emit(kv(2))
    a.srd(W2, 16, 1728 * 1280)
    a.srd(WO, 8, 640 * 1280)
    a.srd(RES, 4, 2621440)
    R2 = [(27, 0), (0, 0), (27, 8), (27, 16)][OPT.get('r2', 0)]
    a(f's_mul_i32 s{sR2}, s{sHead}, {R2[0]}', f's_mul_i32 s{sT0}, s{sQB}, {R2[1]}', f's_add_u32 s{sR2}, s{sR2}, s{sT0}', f's_lshr_b32 s{sR2}, s{sR2}, 5',
      f's_cmp_ge_u32 s{sR2}, 27', f's_cselect_b32 s{sT0}, 27, 0', f's_sub_u32 s{sR2}, s{sR2}, s{sT0}')
    a(f's_mul_i32 s{sT0}, s{sG}, 27', f's_add_u32 s{sT0}, s{sT0}, s{sR2}', f's_mul_i32 s{sW2}, s{sT0}, {16*1280}', f's_mul_i32 s{sWo}, s{sG}, {160*1280}')
    a(f's_mul_i32 s{sH0}, s{sRow}, {108*1024}', f's_lshl_b32 s{sT0}, s{sT0}, 10', f's_add_u32 s{sH0}, s{sH0}, s{sT0}', f's_add_u32 s{sH0}, s{sH0}, {WS_H}',
      f's_cmp_eq_u32 s{sOwn}, 0', CSEL(sH1, 108 * 1024, -108 * 1024))
    a(f's_lshl_b32 s{sT3}, s{sRB}, 1', f's_add_u32 s{sT3}, s{sT3}, s{sOwn}', f's_lshl_b32 s{sT3}, s{sT3}, 4', f's_add_u32 s{sT3}, s{sT3}, s{sCG}', f's_lshl_b32 s{sT3}, s{sT3}, 7',
      f's_lshl_b32 s{sT1}, s{sKH}, 2', f's_add_u32 s{sT3}, s{sT3}, s{sT1}', f's_add_u32 s{sT3}, s{sT3}, {WS_FH}', f'v_mov_b32 v{tmp+1}, s{sTag}',
      f'v_min_u32 v{tmp}, 27, v0', f'v_and_b32 v1, 1, v{tmp}', 'v_lshlrev_b32 v1, 2, v1', f'v_lshrrev_b32 v{tmp}, 1, v{tmp}', f'v_lshl_add_u32 v1, v{tmp}, 7, v1', 's_setprio 0')
    barB()
    emit(kv(3) + f2B(0))
    a.wait_vm('hst')
    a('s_mov_b64 exec, 1')
    a.vmem(f'buffer_store_dword v{tmp+1}, v1, {WS}, s{sT3} offen sc1', 'flag')
    a(FULL)
    a.stamp(6)
    a(f's_lshl_b32 s{sT3}, s{sHead}, 11', f's_add_u32 s{sT3}, s{sT3}, {WS_FH}', f's_mov_b32 s{sT2}, {SPIN}')
    a.wait_vm(('kv', 2))
    barB()
    xr = stage(RES, None, [f's_mul_i32 s{sT0}, s{sG}, 2560', f's_add_u32 m0, s{sT0}, {L_XR}', f's_lshl_b32 s{sT0}, s{sHead}, 2', f's_add_u32 s{sT0}, s{sT0}, s{sG}',
                           f's_mul_i32 s{sT0}, s{sT0}, {16*1280}'], vW, 0, 'xr')
    emit(kv(4) + f2B(1) + f2B(2) + xr)
    a.srd(RES, 18, 1280)
    emit(stage(RES, None, [f's_mov_b32 m0, {L_B2}', f's_mov_b32 s{sT0}, 0'], vW, 0, 'xr')[:1])
    poll2 = f'buffer_load_dword v{tmp}, v1, {WS}, s{sT3} offen sc1'
    a.vmem(poll2, 'poll')
    a.wait_vm(('kv', 3))
    barB()
    a('s_setprio 3')
    a.label('L_poll2')
    a('s_waitcnt vmcnt(0)', f'v_cmp_ne_u32 vcc, s{sTag}, v{tmp}', 's_nop 1', 's_cmp_eq_u64 vcc, 0', 's_cbranch_scc1 L_poll2_done',
      f's_sub_u32 s{sT2}, s{sT2}, 1', 's_cbranch_scc1 L_poll2_done', backoff('s2'), poll2, 's_branch L_poll2')
    a.label('L_poll2_done')
    a.vm = []
    a.stamp(7)
    a('s_setprio 0')
    emit(f2A(0) + kv(5) + f2A(1) + f2A(2) + wo(4))

    def tr(p, base):
        c = p % 3
        ad = vTr2 if c == 2 else vTr
        return [f'ds_read_b64_tr_b16 {v(BF[c],2)}, v{ad} offset:{base+64*c}', f'ds_read_b64_tr_b16 {v(BF[c]+2,2)}, v{ad} offset:{base+64*c+1280}']
    res = AF[0]
    def resload():
        a(f's_lshl_b32 s{sT0}, s{sHead}, 10', f's_lshl_b32 s{sT1}, s{sOwn}, 4', f's_add_u32 s{sT0}, s{sT0}, s{sT1}', f's_add_u32 s{sT0}, s{sT0}, {WS_RS+8}')
        a.vmem(f'buffer_load_dword v{vR2}, v{vR2}, {WS}, s{sT0} offen sc1', 'res')
    def resread():
        for gi in range(5):
            a(f'ds_read_b128 {v(res+4*gi,4)}, v{vRes} offset:{32*gi}')
    fq = []
    def need(tg):
        assert all(f[2] != tg for f in fq), tg
        a.wait_vm(tg)
    def f2tr(p):
        if p < 81:
            if p % 3 == 0:
                need(('fb', p // 3))
            a(tr(p, (p // 3 % 4) * 2560))
    def f2_pairs(ps):
        for j, p in enumerate(ps):
            st, c = divmod(p, 3)
            if c == 0:
                fq.extend(f2B(st + 3) + f2A(st + 3) if st + 3 < 27 else wo((st - 1) % 4))
                need(('fa', st))
            for t in range(2):
                if t == 0:
                    a(f's_waitcnt lgkmcnt({2 if p + 1 < 81 else 0})')
                if OPT.get('abl_o') and c == 2:
                    a(f's_bitcmp1_b32 {OPT["abl_o"]}, s69', 's_cbranch_scc1 2')
                if not OPT.get('abl_g'):
                    a(M16(acc + 48 * t + 16 * c, BF[c], AF[st % 4] + 4 * t, '0' if st == 0 else None))
                if t == 0:
                    f2tr(p + 2)
                n = -(-len(fq) // 5)
                emit(fq[:n]); del fq[:n]
    if OPT.get('abl_o'):
        a('s_and_b32 s69, s2, 7')
    resload()
    f2tr(0); f2tr(1)
    barB()
    p = 0
    NP = OPT.get('np', 7)
    for c in range(4, 16):
        if c + 2 < 16:
            fq.extend(kv(c + 2))
        if c < 15 and c % 2 == 1:
            fq.extend(wo(5 + (c - 5) // 2))
        f2_pairs(list(range(p, min(81, p + NP)))); p = min(81, p + NP)
        if c == 15 and p == 81:
            resread()
            fq.extend(wo(2)); emit(fq); del fq[:]
            a('s_waitcnt lgkmcnt(0)')
        need(('kv', c + 1))
        if c == 10: a.stamp(8)
        barB()
        if c == 10: a.stamp(9)
    assert p == 81
    if p < 81:
        f2_pairs(list(range(p, 81)))
        fq.extend(wo(2)); emit(fq); del fq[:]
        resload()
    OF = acc + 48
    assert OF + 80 <= tmp
    sO0, sO1 = sH0, sH1
    OUT = W2
    a.srd(OUT, 20, 2621440)
    X0, X1 = 102400, L_V - 5120
    def areas(dst, sw):
        a(f's_mul_i32 s{sT0}, s{sw}, 5120', f's_add_u32 s{sT1}, s{sT0}, {X1}', f's_cmp_eq_u32 s{sw}, 0', f's_cmov_b32 s{sT1}, {X0+20480}', f's_add_u32 s{sT0}, s{sT0}, {X0}',
          f'v_add_u32 v{dst}, s{sT0}, v{vL16}', f'v_add_u32 v{dst+1}, s{sT1}, v{vL16}')
    areas(tmp + 2, sG)
    a('s_nop 4')
    for i in range(10):
        a(f'ds_write_b128 v{tmp+2+i//5}, {v(acc+48+4*i,4)} offset:{1024*(i%5)}')
    a(f's_xor_b32 s{sT2}, s{sG}, 1')
    areas(tmp + 2, sT2)
    a(f's_xor_b32 s{sT2}, s{sG}, 3')
    areas(tmp + 4, sT2)
    a(f's_mul_i32 s{sO0}, s{sRow}, 40960', f's_add_u32 s{sO0}, s{sO0}, {WS_O}', f's_lshl_b32 s{sT0}, s{sKH}, 12', f's_add_u32 s{sO1}, s{sO0}, s{sT0}',
      f's_add_u32 s{sO1}, s{sO1}, 32768', f's_lshl_b32 s{sT0}, s{sKH}, 14', f's_add_u32 s{sO0}, s{sO0}, s{sT0}')
    a(f's_mul_i32 s{sT0}, s{sOwn}, 25600', f'v_subrev_u32 v{vTr}, s{sT0}, v{vTr}', f'v_subrev_u32 v{vTr2}, s{sT0}, v{vTr2}')
    a(f's_lshl_b32 s{sT3}, s{sRow}, 12', f's_lshl_b32 s{sT0}, s{sKH}, {11-FOS}', f's_add_u32 s{sT3}, s{sT3}, s{sT0}', f's_add_u32 s{sT3}, s{sT3}, {WS_FO}',
      f'v_bfe_u32 v1, v0, {FOS}, {4-FOS}', 'v_lshlrev_b32 v1, 7, v1', f'v_and_b32 v{tmp}, {(1<<FOS)-1}, v0', f'v_lshl_add_u32 v1, v{tmp}, 2, v1', f's_mov_b32 s{sT2}, {SPIN}')
    sMo, sMr = 52, 56
    for k in range(4):
        a(f's_add_u32 s{sT0}, s{sQB}, {k}' if OPT.get('orot', 0) else f's_mov_b32 s{sT0}, {k}', f's_and_b32 s{sT0}, s{sT0}, 3', f's_lshl_b32 s{sMo+k}, s{sT0}, 12', f's_add_u32 s{sMo+k}, s{sMo+k}, s{sO0}',
          f's_lshl_b32 s{sMr+k}, s{sT0}, 10', f's_add_u32 s{sMr+k}, s{sMr+k}, s{sO1}', f's_mul_i32 s{sT0}, s{sT0}, 12800',
          f'v_add_u32 v{vW+2*k}, s{sT0}, v{vTr}', f'v_add_u32 v{vW+2*k+1}, s{sT0}, v{vTr2}')
    a.drain_vm()
    a('s_waitcnt lgkmcnt(0)')
    a.stamp(10)
    bar()
    poll3 = f'buffer_load_dword v{tmp}, v1, {WS}, s{sT3} offen sc1'
    for i in range(10):
        a(f'ds_read_b128 {v(acc+48+4*i,4)}, v{tmp+2+i//5} offset:{1024*(i%5)}')
    a(f'v_mul_f32 v{vR2}, v{vR2}, v{vR2}')
    for i in range(10):
        a(f's_waitcnt lgkmcnt({9-i})')
        for e in range(4):
            a(f'v_add_f32 v{acc+4*i+e}, v{acc+4*i+e}, v{acc+48+4*i+e}')
        if i == OPT.get('p3', 0):
            a(poll3)
    for j in range(20):
        a(f'v_lshlrev_b32 v{vR2+1}, 16, v{res+j}', f'v_and_b32 v{vR2+2}, 0xffff0000, v{res+j}',
          f'v_fma_f32 v{acc+2*j}, v{acc+2*j}, v{vR2}, v{vR2+1}', f'v_fma_f32 v{acc+2*j+1}, v{acc+2*j+1}, v{vR2}, v{vR2+2}')
    def trt(i, c):
        ad = vW + 2 * (i // 5) + (1 if c == 2 else 0); base = (i % 5) * 2560 + 64 * c
        return [f'ds_read_b64_tr_b16 {v(BF[c],2)}, v{ad} offset:{base}', f'ds_read_b64_tr_b16 {v(BF[c]+2,2)}, v{ad} offset:{base+1280}']
    def oload(i):
        k, j = divmod(i, 5)
        if j < 4:
            a.vmem(f'buffer_load_dwordx4 {v(OF+4*i,4)}, v{vL16}, {WS}, s{sMo+k} offen offset:{j*1024} sc1', ('o', i))
        else:
            a.vmem(f'buffer_load_dwordx2 {v(OF+4*i,2)}, v{vL8}, {WS}, s{sMr+k} offen sc1', ('o', i))
            a.vmem(f'buffer_load_dwordx2 {v(OF+4*i+2,2)}, v{vL8}, {WS}, s{sMr+k} offen offset:512 sc1', ('o', i))
    LA = OPT.get('la', 10)
    a(f's_cmp_eq_u32 s{sKH}, 0', 's_cbranch_scc0 L_hi')
    for nm, send, keep, co in (('lo', (4, 3), (0, 1, 2), (2, 1, 0)), ('hi', (0, 1, 2), (4, 3), (0, 1, 2))):
        if nm == 'hi':
            a.label('L_hi')
        a.vm = []
        for c in co:
            a(trt(0, c))
        a.label(f'L_poll3{nm}')
        a('s_waitcnt vmcnt(0)', f'v_cmp_ne_u32 vcc, s{sTag}, v{tmp}', 's_nop 1', 's_cmp_eq_u64 vcc, 0', f's_cbranch_scc1 L_go{nm}',
          f's_sub_u32 s{sT2}, s{sT2}, 1', f's_cbranch_scc1 L_go{nm}', backoff('s3'), poll3, f's_branch L_poll3{nm}')
        a.label(f'L_go{nm}')
        a.stamp(11)
        for i in range(LA):
            oload(i)
        for i in range(20):
            a.wait_vm(('o', i))
            for n, c in enumerate(co):
                last = i == 19
                a(f's_waitcnt lgkmcnt({4-2*n if last else 4})', M16(acc + 16 * c, BF[c], OF + 4 * i))
                if not last:
                    a(trt(i + 1, c))
                if n < 2 and LA + 2 * i + n < 20:
                    oload(LA + 2 * i + n)
        a.stamp(12)
        a('s_nop 7')
        for k, gi in enumerate(send):
            a(f'ds_write_b128 v{tmp+2}, {v(acc+8*gi,4)} offset:{1024*k}', f'ds_write_b128 v{tmp+3}, {v(acc+8*gi+4,4)} offset:{1024*k}')
        a('s_waitcnt lgkmcnt(0)', 's_barrier')
        for k, gi in enumerate(keep):
            a(f'ds_read_b128 {v(OF+8*k,4)}, v{tmp+4} offset:{1024*k}', f'ds_read_b128 {v(OF+8*k+4,4)}, v{tmp+5} offset:{1024*k}')
        for k, gi in enumerate(keep):
            a(f's_waitcnt lgkmcnt({2*(len(keep)-1-k)})')
            r = acc + 8 * gi
            for e in range(0, 8, 2):
                a(f'v_pk_add_f32 {v(r+e,2)}, {v(r+e,2)}, {v(OF+8*k+e,2)}')
            for e in range(4):
                a(CVT(r + e, r + 2 * e))
            a(f'buffer_store_dwordx4 {v(r,4)}, v{vOut}, s[{OUT}:{OUT+3}], 0 offen offset:{32*gi}')
        if nm == 'lo':
            a(f's_or_b32 s{sT0}, s2, s{sG}', 's_cbranch_scc1 L_noep')
            a(f'v_mov_b32 v1, s{sTag}', f'v_mov_b32 v{tmp}, 0', f's_mov_b32 s{sT0}, {WS_EP}', 's_mov_b64 exec, 1', f'buffer_store_dword v1, v{tmp}, {WS}, s{sT0} offen')
            a.label('L_noep')
        if Asm.diag:
            a.stamp(13)
            a('s_waitcnt vmcnt(0)')
            a.dump(0, sW, 24)
        a('s_endpgm')
    a.label('L_done')
    a('s_endpgm')
    return kernel_header(name) + a.text(), kernel_desc(name, 168, 70)
```

```python
from asmlib import *
import struct, math

def fbits(x):
    return hex(struct.unpack('<I', struct.pack('<f', x))[0])

WS_Q   = 0x000000
WS_KV  = 0x280000
WS_H   = 0x780000
WS_O   = 0xE40000
WS_RS  = 0x10C0000
WS_F1  = 0x10D0000
WS_FH  = 0x10E0000
WS_FO  = 0x1100000
WS_EP  = 0x1140000
WS_END = 0x1141000

L_V = 122368
L_K = 143360
L_MEAN, L_ISTD, L_RSTD = 158720, 159232, 159744
L_TAG = 160256
L_CX = 160512
L_Q0, L_Q1 = 114688, 161024
L_XR, L_B2 = 81920, 90112
L_FX = 122880
LDS_BYTES = 163840
FAR = 0x30000

QSCALE = 20 ** -0.5 * math.log2(math.e)
MAXOFF = 96.0
SPIN = 0x20000
OPT = {}

sW, sRB, sCG, sHead, sQB, sTag, sT0, sT1, sT2, sT3 = range(28, 38)
WS = 's[24:27]'


def gen(name):
    a = Asm()
    NA, NB, NE = 5, 4, OPT.get('ne', 3)
    L_A, L_B = 16384 * NB, 0
    JOBS = [('Q', c) for c in range(5)] + [('F', c) for c in range(5 - NE, 5)] + [('Q', c) for c in range(5, 10)] + [('F', c) for c in range(5, 15 - NE)]
    slotA = lambda c: (c + NE - 2) % NA
    slotB = lambda j: j % NB
    QE = 10 + NE
    KVB = 17
    SKIP = {0: (QE + 1, QE + 3), 1: (), 2: (QE + 1,), 3: (QE + 1, QE + 3, QE + 5), 4: (QE + 1, QE + 2)}[OPT.get('skip', 4)]
    def pbar(c):
        if c not in SKIP:
            bar()
    bar = lambda: a('s_barrier')

    a('s_cmp_ge_u32 s2, 256', 's_cbranch_scc1 L_done')
    a.stamp(0); a.stamp(1, True)
    a('s_load_dwordx8 s[4:11], s[0:1], 0', 's_load_dwordx8 s[12:19], s[0:1], 32', 's_load_dwordx2 s[20:21], s[0:1], 64', 's_load_dwordx2 s[22:23], s[0:1], 80')
    a('v_lshrrev_b32 v1, 6, v0', 'v_and_b32 v0, 63, v0', f'v_readfirstlane_b32 s{sW}, v1')
    if OPT.get('map', 1) == 0:
        a(f's_bfe_u32 s{sT2}, s2, 0x20001', f's_lshr_b32 s{sCG}, s2, 6', f's_lshl2_add_u32 s{sCG}, s{sT2}, s{sCG}',
          f's_bfe_u32 s{sT1}, s2, 0x30003', f's_and_b32 s{sT3}, s2, 1', f's_lshl3_add_u32 s{sRB}, s{sT3}, s{sT1}')
    else:
        T = [[(0, 1, 2, 3), (8, 9, 10, 15), (4, 5, 6, 7), (11, 12, 13, 14)], [(8, 9, 10, 15), (0, 1, 2, 3), (11, 12, 13, 14), (4, 5, 6, 7)]][OPT.get('map', 1) - 1]
        w = lambda q: hex(sum(c << (4 * i) for i, c in enumerate(T[q] + T[q + 1])))
        a(f's_and_b32 s{sT2}, s2, 3', f's_lshr_b32 s{sCG}, s2, 6', f's_lshl2_add_u32 s{sCG}, s{sT2}, s{sCG}', f's_lshl_b32 s{sCG}, s{sCG}, 2',
          f's_bitcmp0_b32 s2, 1', CSEL(sT0, w(0), w(2)), f's_lshr_b32 s{sCG}, s{sT0}, s{sCG}', f's_and_b32 s{sCG}, s{sCG}, 15',
          f's_bfe_u32 s{sT1}, s2, 0x30003', f's_bfe_u32 s{sT3}, s2, 0x10002', f's_lshl3_add_u32 s{sRB}, s{sT3}, s{sT1}')
    a(f's_cmp_lt_u32 s{sW}, 4', 's_cbranch_scc1 L_x', f's_cmp_ge_u32 s{sW}, 8', 's_cbranch_scc1 L_helper')
    def decode2():
        a(f's_and_b32 s{sHead}, s2, 7', f's_bfe_u32 s{sQB}, s2, 0x20003', f's_lshl2_add_u32 s{sHead}, s{sHead}, s{sQB}', f's_lshr_b32 s{sQB}, s2, 5')

    def backoff(key):
        n = OPT.get(key, {'s3': 2}.get(key, 8))
        return [f's_sleep {n}'] if n else []
    def ws_setup():
        a.srd(24, 22, WS_END)
    def lds_tag(t):
        a(f'v_mov_b32 v{t}, {L_TAG}', f'ds_read_b32 v{t}, v{t}', 's_waitcnt lgkmcnt(0)', f'v_readfirstlane_b32 s{sTag}, v{t}')
    def f1_off(d, t, n, m):
        a(f's_lshl_b32 s{d}, s{sCG}, 1', f's_add_u32 s{d}, s{d}, s{n}', f's_lshl_b32 s{d}, s{d}, 10', f's_lshr_b32 s{t}, s{sRB}, 1', f's_lshl_b32 s{t}, s{t}, 7',
          f's_add_u32 s{d}, s{d}, s{t}', f's_add_u32 s{d}, s{d}, {WS_F1}')
        if m is not None:
            a(f's_and_b32 s{t}, s{sRB}, 1', f's_lshl_b32 s{t}, s{t}, 1', f's_add_u32 s{t}, s{t}, s{m}', f's_lshl_b32 s{t}, s{t}, 2', f's_add_u32 s{d}, s{d}, s{t}')

    SD = 48
    SX = 122

    sL, sOA, sOB, sSlot, sMA, sMB, sCnt, sBstep = range(40, 48)
    XA, WB = 48, 52
    vA1, vB1, vB2 = 8, 12, 16
    vA2 = vA1
    sRot, sRB1 = 47, 46
    a('s_setprio 3', f's_and_b32 s{sL}, s{sW}, 3')
    a(f's_lshl1_add_u32 s{sRot}, s{sT2}, s{sT1}', f's_mul_i32 s{sRot}, s{sRot}, 5', f's_lshl1_add_u32 s{sRot}, s{sT3}, s{sRot}', f's_lshr_b32 s{sRot}, s{sRot}, 2',
      f's_cmp_ge_u32 s{sRot}, 10', f's_cselect_b32 s{sT0}, 10, 0', f's_sub_u32 s{sRot}, s{sRot}, s{sT0}')
    a('v_lshrrev_b32 v1, 3, v0', 'v_lshrrev_b32 v2, 4, v0', 'v_and_b32 v3, 7, v0', 'v_xor_b32 v3, v3, v2')
    a(f's_lshr_b32 s{sT0}, s{sL}, 1', f's_lshl1_add_u32 s{sT0}, s{sRB}, s{sT0}', f's_lshl_b32 s{sT0}, s{sT0}, 6', f's_and_b32 s{sT1}, s{sL}, 1', f's_add_u32 s{sT0}, s{sT0}, s{sT1}',
      f's_mul_i32 s{sOA}, s{sT0}, 10', f's_add_u32 s{sOA}, s{sOA}, s{sRot}', f's_lshl_b32 s{sOA}, s{sOA}, 7', f's_lshl_b32 s{sT1}, s{sT1}, 2')
    a(f'v_xor_b32 v3, s{sT1}, v3', 'v_mul_u32_u24 v5, 0xa0, v1', 'v_xor_b32 v4, 4, v3', f'v_add_lshl_u32 v{vA1}, v5, v3, 4', 'v_add_lshl_u32 v4, v5, v4, 4')
    a(f'v_add_u32 v{vA1+1}, {20480-1024}, v4', f'v_add_u32 v{vA1+2}, {2*(20480-1024)}, v{vA1}', f'v_add_u32 v{vA1+3}, {3*(20480-1024)}, v4')
    a(f's_cmp_lt_u32 s{sCG}, 15', f's_cselect_b32 s{XA+2}, 2621440, 0', f's_cselect_b32 s{WB+2}, {640*3840}, 0', f's_mov_b32 s{XA+3}, 0x00020000', f's_lshl_b32 s{sMA}, s{sL}, 12')
    def koff(k, base, scale):
        if k == 0:
            return [f's_mov_b32 s{sT0}, s{base}']
        return [f's_cmp_ge_u32 s{sRot}, {10-k}', f's_cselect_b32 s{sT0}, {10*scale}, 0', f's_sub_u32 s{sT0}, s{base}, s{sT0}', f's_add_u32 s{sT0}, s{sT0}, {scale*k}']
    WF = 56
    firstA = {}
    lastA = {}
    for j, (t, c) in enumerate(JOBS):
        firstA.setdefault(c, j); lastA[c] = j
    def ldA(c):
        a(f's_add_u32 m0, s{sMA}, {L_A + slotA(c) * 16384}', koff(c % 10, sOA, 128))
        for i in range(4):
            a.vmem(f'buffer_load_dwordx4 v{vA1+i}, s[{XA}:{XA+3}], s{sT0} offen offset:{1024*i} lds', ('c', firstA[c]))
    def ldB(j):
        q = JOBS[j][0] == 'Q'
        a(f's_add_u32 m0, s{sMA}, {L_B + slotB(j) * 16384}', koff(JOBS[j][1] % 10, sOB if q else sRB1, 64 * (3840 if q else 3456)))
        for i in range(4):
            d = WB if q else WF
            a.vmem(f'buffer_load_dwordx4 v{(vB1 if q else vB2)+i}, s[{d}:{d+3}], s{sT0} offen offset:{1024*i} lds', ('c', j))

    a.vm = []
    a('s_waitcnt lgkmcnt(0)', f's_mov_b32 s{XA}, s4', f's_mov_b32 s{XA+1}, s5')
    if OPT.get('zst'): a.stamp(4)
    ldA(0)
    a('v_and_b32 v6, 15, v0', 'v_lshlrev_b32 v7, 2, v2', 'v_xor_b32 v6, v6, v7', 'v_mul_u32_u24 v7, 0xf0, v2', f'v_add_lshl_u32 v{vB1}, v7, v6, 4')
    for i in range(1, 4):
        a(f'v_add_u32 v{vB1+i}, {i*(4*3840-1024)}, v{vB1}')
    a(f's_lshl2_add_u32 s{sT1}, s{sRot}, s{sL}', f's_mul_i32 s{sOB}, s{sT1}, {16*3840}', f's_lshl_b32 s{sT2}, s{sCG}, 8', f's_add_u32 s{sOB}, s{sOB}, s{sT2}',
      f's_mov_b32 s{WB}, s6', f's_mov_b32 s{WB+1}, s7', f's_mov_b32 s{WB+3}, 0x00020000')
    a.label('L_p0')
    ldB(0)
    if OPT.get('zst'): a.stamp(5)
    ldA(1); ldB(1)
    if OPT.get('zst'):
        a.stamp(6); a('s_waitcnt vmcnt(8)'); a.stamp(7)
    a('s_setprio 0')
    ws_setup()
    decode2()
    a(f's_mul_i32 s{sRB1}, s{sT1}, {16*3456}', f's_add_u32 s{sRB1}, s{sRB1}, s{sT2}', 'v_mul_u32_u24 v7, 0xd8, v2', f'v_add_lshl_u32 v{vB2}, v7, v6, 4')
    for i in range(1, 4):
        a(f'v_add_u32 v{vB2+i}, {i*(4*3456-1024)}, v{vB2}')
    a(f's_cmp_lt_u32 s{sCG}, 14', f's_cselect_b32 s{WF+2}, {640*3456}, 0', f's_mov_b32 s{WF}, s12', f's_mov_b32 s{WF+1}, s13', f's_mov_b32 s{WF+3}, 0x00020000')
    units = []
    for j in range(2, 20):
        c = JOBS[j][1]
        if firstA[c] == j:
            units.append((j, lastA[c - NA] + 1 if c >= NA else 0, 'A', c))
        units.append((j, j - NB + 1, 'B', j))
    c0 = OPT.get('c0', 99)
    bars = [c for c in range(20) if c not in SKIP]
    hold = {QE - 1: 0, QE + 3: OPT.get('b3', 2), QE + 4: OPT.get('b4', 3)}
    for n, c in enumerate(bars):
        nxt = bars[n + 1] if n + 1 < len(bars) else 20
        rec = c0 <= c < c0 + 4
        if c == 19:
            break
        if rec: a.stamp(2 + 3 * (c - c0))
        assert all(u[0] >= nxt for u in units), (c, units[:2])
        a.wait_vm(*[('c', x) for x in range(c, nxt)])
        if rec: a.stamp(3 + 3 * (c - c0))
        if OPT.get('zst') and c == 0:
            a.stamp(8); a.lock = (7, 8)
        bar()
        if rec: a.stamp(4 + 3 * (c - c0))
        nn = bars[n + 2] if n + 2 < len(bars) else 20
        budget = hold.get(c, 2 if nxt == c + 1 else OPT.get('bud', 3))
        for u in list(units):
            if u[1] <= c and (budget > 0 or u[0] < nn):
                if u[2] == 'A' and u[3] == 10:
                    a(f's_cmp_lt_u32 s{sCG}, 14', f's_cselect_b32 s{XA+2}, 2621440, 0')
                (ldA if u[2] == 'A' else ldB)(u[3]); units.remove(u); budget -= 1
                a.c(f'after P({c}): {u}')
    assert not units
    zvm = list(a.vm)
    a('s_branch L_attn_z')

    R = Regs(2)
    vH, vTok = R(), R()
    vAa = R(4); vBa = R(2)
    F = [(R(8), R(8)), (R(8), R(8))]
    FR = F[0][0]
    acc = R(64)
    tmp = R(16)
    vCx = tmp + 14
    sM, sN, sDA, sDB, sSA, sSB = range(40, 46)
    sCntC = 55
    sOff, sHS, sScale = 52, 53, 54

    sMask = 69
    def gemm_setup(wave_base, j0, cnt, maybe_v):
        a(f's_sub_u32 s{sN}, s{sW}, {wave_base}', f's_and_b32 s{sM}, s{sN}, 1', f's_lshr_b32 s{sN}, s{sN}, 1')
        a(f'v_lshrrev_b32 v{vH}, 5, v0', f'v_and_b32 v{vTok}, 31, v0', f'v_mov_b32 v{tmp}, v{vTok}')
        if maybe_v:
            a(f's_cmp_lt_u32 s{sCG}, 10', 's_cbranch_scc1 L_x_rows', f'v_and_b32 v1, 1, v0', f'v_lshrrev_b32 v{tmp}, 1, v{vTok}', f'v_lshl_add_u32 v{tmp}, v1, 5, v{tmp}')
            a.label('L_x_rows')
        a(f'v_bfe_u32 v1, v{tmp}, 1, 3', f'v_xor_b32 v1, v1, v{vH}', f'v_lshrrev_b32 v{tmp+1}, 5, v{tmp}', f'v_lshlrev_b32 v{tmp+1}, 2, v{tmp+1}', f'v_xor_b32 v1, v1, v{tmp+1}')
        a(f's_lshl_b32 s{sT0}, s{sM}, 13', f's_add_u32 s{sT0}, s{sT0}, {L_A+16384*slotA(JOBS[j0][1])}', f'v_lshlrev_b32 v{tmp}, 7, v{tmp}', f'v_add_u32 v{tmp}, s{sT0}, v{tmp}')
        for st in range(4):
            a(f'v_xor_b32 v{tmp+1}, {2*st}, v1', f'v_lshl_add_u32 v{vAa+st}, v{tmp+1}, 4, v{tmp}')
        a('v_lshrrev_b32 v1, 2, v0', 'v_and_b32 v1, 3, v1')
        a(f'v_lshl_add_u32 v{tmp}, v{vH}, 3, v1', f'v_lshlrev_b32 v{tmp}, 8, v{tmp}')
        a(f'v_and_b32 v{tmp+1}, 3, v0', f'v_lshl_add_u32 v{tmp}, v{tmp+1}, 3, v{tmp}')
        a(f'v_and_b32 v{tmp+1}, 16, v0', f'v_lshl_add_u32 v{tmp}, v{tmp+1}, 1, v{tmp}', f'v_add_u32 v{tmp}, {L_B+16384*slotB(j0)}, v{tmp}')
        a(f's_lshl_b32 s{sT0}, s{sN}, 1', f's_add_u32 s{sT0}, s{sT0}, s{sM}', f'v_xor_b32 v1, s{sT0}, v1')
        a(f's_lshl_b32 s{sT0}, s{sT0}, 7', f's_add_u32 s{sT0}, s{sT0}, {L_CX}', f'v_lshl_add_u32 v{vCx}, v{vTok}, 2, s{sT0}', f'v_xor_b32 v{vCx+1}, 128, v{vCx}')
        a(f'v_lshl_add_u32 v{vBa}, v1, 6, v{tmp}', 'v_xor_b32 v1, 1, v1', f'v_lshl_add_u32 v{vBa+1}, v1, 6, v{tmp}')
        a(f's_mov_b32 s{sSA}, {slotA(JOBS[j0][1])}', f's_mov_b32 s{sSB}, {slotB(j0)}', f's_mov_b32 s{sCntC}, {cnt}', f's_mov_b32 s{sMask}, 0')

    def zero_acc(lo, hi):
        for i in range(lo, hi, 2):
            a(f'v_mov_b64 {v(acc+i,2)}, 0')

    def reads(st, f, swap):
        FA, FB = F[f]
        return [f'ds_read_b128 {v(FA,4)}, v{vAa+st}',
                f'ds_read_b64_tr_b16 {v(FB,2)}, v{vBa} offset:{4096*st}',
                f'ds_read_b64_tr_b16 {v(FB+2,2)}, v{vBa} offset:{4096*st+1024}',
                f'ds_read_b64_tr_b16 {v(FB+4,2)}, v{vBa+1} offset:{4096*st}',
                f'ds_read_b64_tr_b16 {v(FB+6,2)}, v{vBa+1} offset:{4096*st+1024}',
                f'ds_read_b128 {v(FA+4,4)}, v{vAa+st} offset:2048' if swap else f'ds_read_b128 {v(FA+4,4)}, v{vAa+(st^2)} offset:4096']

    def mfmas(f, swap):
        FA, FB = F[f]
        out = []
        for t, u in ((0, 0), (0, 1), (1, 1), (1, 0)):
            x, w = FA + 4 * t, FB + 4 * u
            out.append(M16(acc + 32 * t + 16 * u, x, w) if swap else M16(acc + 32 * t + 16 * u, w, x))
        return out

    CT, CF, CR = SX, SX + 4, SX + 8
    PA, CS = SX + 32, [SX + 36, SX + 40]
    def colsum(f):
        return [f'v_mfma_f32_16x16x32_bf16 {v(CS[u],4)}, {v(PA,4)}, {v(F[f][1]+4*u,4)}, {v(CS[u],4)}' for u in range(1)]
    def colsum_setup():
        a(f'v_cmp_eq_u32 vcc, 0, v{vTok}', f'v_cmp_eq_u32 s[46:47], 20, v{vTok}', 'v_mov_b32 v1, 0x3f803f80', 's_nop 0', 's_or_b64 vcc, vcc, s[46:47]', 's_nop 1')
        for i in range(4):
            a(f'v_cndmask_b32 v{PA+i}, 0, v1, vcc')
        for i in range(5):
            a(f'v_mov_b32 v{CS[0]+i}, 0')
    def corr_split():
        out = []
        for t in range(2):
            out += [CVT(CT + 2 * t, CR + t, CR + t), CVT(CF + 2 * t, CS[t], CS[t])]
        for t in range(2):
            out += [f'v_and_b32 v{CR+4+t}, 0xffff0000, v{CT+2*t}', f'v_and_b32 v{CR+6+t}, 0xffff0000, v{CF+2*t}']
        for t in range(2):
            out += [f'v_sub_f32 v{CR+4+t}, v{CR+t}, v{CR+4+t}', f'v_sub_f32 v{CR+6+t}, v{CS[t]}, v{CR+6+t}']
        for t in range(2):
            out += [CVT(CT + 2 * t + 1, CR + 4 + t, CR + 4 + t), CVT(CF + 2 * t, CS[t], CR + 6 + t), CVT(CF + 2 * t + 1, CS[t], CR + 6 + t)]
        return out
    def corr_mfma(swap, c=None):
        out = []
        for t, u in ((0, 0), (0, 1), (1, 1), (1, 0)):
            x, w = CT + 2 * t, CF + 2 * u
            out.append(M8(acc + 32 * t + 16 * u, x, w, c) if swap else M8(acc + 32 * t + 16 * u, w, x, c))
        return out

    def mainloop(tagname, swap, pre_last, jp, jr, je, mid):
        a.label(f'L_ent_{tagname}')
        bar()
        a(reads(0, 0, swap))
        a.label(f'L_loop_{tagname}')
        for st in range(3):
            m = mfmas(st & 1, swap); rd = reads(st + 1, (st + 1) & 1, swap)
            a('s_waitcnt lgkmcnt(3)', m[0], rd[0:3], 's_waitcnt lgkmcnt(4)', m[1], rd[3:6], 's_waitcnt lgkmcnt(6)', m[2])
            if st == 0:
                a(f's_add_u32 s{sSA}, s{sSA}, 1', f's_cmp_eq_u32 s{sSA}, {NA}', CSEL(sDA, -16384*(NA-1), 16384), f's_cselect_b32 s{sSA}, 0, s{sSA}')
            if st == 1:
                a(f's_add_u32 s{sSB}, s{sSB}, 1', f's_cmp_eq_u32 s{sSB}, {NB}', CSEL(sDB, -16384*(NB-1), 16384), f's_cselect_b32 s{sSB}, 0, s{sSB}')
            if st == 2:
                a(f'v_add_u32 v{vAa}, s{sDA}, v{vAa}', f'v_add_u32 v{vBa}, s{sDB}, v{vBa}', f'v_add_u32 v{vBa+1}, s{sDB}, v{vBa+1}')
            a(colsum(st & 1), m[3])
            if st == 2:
                a(f's_sub_u32 s{sCntC}, s{sCntC}, 1')
                for r in (vAa + 1, vAa + 2, vAa + 3):
                    a(f'v_add_u32 v{r}, s{sDA}, v{r}')
        m = mfmas(1, swap); rd = reads(0, 0, swap)
        a(f's_cmp_eq_u32 s{sCntC}, 0', 's_waitcnt lgkmcnt(0)', f's_cbranch_scc1 L_last_{tagname}')
        mask = sum(1 << (je - c) for c in SKIP if jr < c < je)
        if mask:
            a(f's_bitcmp1_b32 s{sMask}, s{sCntC}', f's_cbranch_scc1 L_nob_{tagname}')
        a('s_barrier')
        a.label(f'L_nob_{tagname}')
        a(m[0], rd[0:3], m[1], rd[3:6], m[2], colsum(1), m[3], f's_branch L_loop_{tagname}')
        a.label(f'L_pause_{tagname}')
        d = 16384 * (slotB(jr) - slotB(jp))
        a('s_barrier', m[0], f's_mov_b32 s{sMask}, {hex(mask | 1 << 31)}', m[1], f's_mov_b32 s{sSB}, {slotB(jr)}', m[2], f's_mov_b32 s{sCntC}, {je-jr}', colsum(1), m[3],
          f'v_add_u32 v{vBa}, {d}, v{vBa}', f'v_add_u32 v{vBa+1}, {d}, v{vBa+1}')
        mid()
        a.label(f'L_last_{tagname}')
        a(f's_bitcmp0_b32 s{sMask}, 31', f's_cbranch_scc1 L_pause_{tagname}')
        sp = corr_split()
        a(colsum(1), m[0], 's_nop 5', 's_mov_b32 exec_hi, 0', f'ds_write_b32 v{vCx}, v{CS[0]}', 's_mov_b32 exec_hi, -1',
          m[1], 's_waitcnt lgkmcnt(0)', 's_barrier', pre_last[:1], 's_mov_b32 exec_hi, 0', f'ds_read_b32 v{CS[1]}, v{vCx+1}', 's_mov_b32 exec_hi, -1',
          m[2], pre_last[1:], m[3], f's_waitcnt lgkmcnt({len(pre_last)-1})', sp, 's_nop 1', corr_mfma(swap))
        a.stamp(4)

    a.label('L_x')
    if OPT.get('cpf', 1):
        a('s_getpc_b64 s[40:41]')
        a.label('L_pc')
        a('s_lshr_b32 s42, s2, 3', f's_lshl2_add_u32 s42, s42, s{sW}', 's_mul_i32 s42, s42, 384', 's_sub_u32 s40, s40, L_pc-L_p0', 's_subb_u32 s41, s41, 0', f's_mov_b32 s43, L_done-L_p0', 'v_lshlrev_b32 v2, 7, v0', 'v_add_u32 v2, s42, v2', 'v_min_u32 v2, s43, v2',
          'v_mov_b32 v3, s41', 'v_add_co_u32 v2, vcc, s40, v2', 's_mov_b64 exec, 7', 's_nop 0', 'v_addc_co_u32 v3, vcc, 0, v3, vcc',
          'global_load_dword v167, v[2:3], off', 's_mov_b64 exec, -1')
    decode2()
    XBAR = {0: (1, 4), 1: (1, 3, 5), 2: (0, 2, 5), 3: (2, 5), 4: (3,), 5: (2,), 6: (2, 6), 7: (), 8: (4,), 9: (5,), 10: (6,)}[OPT.get('xbar', 7)]
    XSIG = QE + OPT.get('xsig', 3)
    XP = QE + OPT.get('xp', 5)
    XB = [c for c in range(QE + 1, XP) if c not in SKIP]
    assert XP not in SKIP and XP >= KVB - 1 and XSIG < XP
    gemm_setup(0, 0, 5, True)
    a('s_waitcnt lgkmcnt(0)')
    ws_setup()
    zero_acc(0, 64)
    colsum_setup()
    vAd, vSa, vSb = tmp, tmp + 8, tmp + 9
    t0, t1, t2 = tmp + 10, tmp + 11, tmp + 12
    a(f's_cmp_ge_u32 s{sCG}, 10', 's_cbranch_scc1 L_x_v')
    a(f's_cmp_lt_u32 s{sCG}, 5',
      CSEL(sHS, 81920, 163840), f's_cselect_b32 s{sScale}, {fbits(QSCALE)}, 1.0',
      CSEL(sT0, 5120, 10240), CSEL(sOff, WS_Q, WS_KV), f's_cselect_b32 s{sT1}, 0, 5')
    a(f's_mul_i32 s{sT0}, s{sT0}, s{sRB}', f's_add_u32 s{sOff}, s{sOff}, s{sT0}',
      f's_mul_i32 s{sT0}, s{sM}, 2560', f's_add_u32 s{sOff}, s{sOff}, s{sT0}')
    a(f's_sub_u32 s{sT1}, s{sCG}, s{sT1}', f's_lshl_b32 s{sT1}, s{sT1}, 1', f's_add_u32 s{sT1}, s{sT1}, s{sN}', f's_lshl_b32 s{sT1}, s{sT1}, 4',
      f's_sub_u32 s{sHS}, s{sHS}, 2560')
    a(f's_lshl_b32 s{sT0}, s{sM}, 3', f's_add_u32 s{sT1}, s{sT1}, s{sT0}')
    for sl in range(2):
        if sl:
            a(f's_xor_b32 s{sT1}, s{sT1}, 8')
        a(f'v_add_u32 v1, s{sT1}, v{vH}', f'v_lshlrev_b32 v{t2}, 4, v{vTok}', f'v_lshl_add_u32 v{t2}, v1, 9, v{t2}', 'v_mul_u32_u24 v1, 205, v1')
        for q in range(4):
            a(f'v_add_u32 v{t0}, {2*q*205}, v1', f'v_lshrrev_b32 v{t0}, 10, v{t0}', f'v_mad_u32_u24 v{vAd+4*sl+q}, v{t0}, s{sHS}, v{t2}')
    vSc = tmp + 13
    a(f's_lshl_b32 s{sT2}, s{sM}, 8', f's_add_u32 s{sT2}, s{sT2}, {L_MEAN}', f'v_lshl_add_u32 v{vSc}, v{vTok}, 3, s{sT2}', f'v_lshl_add_u32 v{vSa}, v{vH}, 9, v{vSc}')
    a.stamp(2)
    a('s_setprio 1')
    vRs = SX + 16
    def xmid(tg):
        def f():
            for c in range(6, 5 + NE):
                bar()
            a(f's_branch L_ent_{tg}')
        return f
    mainloop('qk', False, [f'ds_read_b64 {v(CR,2)}, v{vSa}', f'ds_read_b64 {v(vRs,2)}, v{vSc} offset:{L_RSTD-L_MEAN}'], 5, 5 + NE, QE, xmid('qk'))
    a(f's_setprio {OPT.get("xprio", 0)}', 's_waitcnt lgkmcnt(0)')
    a(f'v_mul_f32 v{vRs}, s{sScale}, v{vRs}', f'v_mul_f32 v{vRs+1}, s{sScale}, v{vRs+1}', 's_nop 5')
    for n, i in enumerate((4, 5, 6, 7, 0, 1, 2, 3)):
        u, q = i // 4, i % 4
        pk = FR + 4 * n
        for t in range(2):
            r = acc + 32 * t + 16 * u + 4 * q
            for e in range(4):
                a(f'v_mul_f32 v{r+e}, v{vRs+t}, v{r+e}')
            a(CVT(pk + 2 * t, r), CVT(pk + 2 * t + 1, r + 2))
        a(f'buffer_store_dwordx4 {v(pk,4)}, v{vAd+i}, {WS}, s{sOff} offen offset:{1024*(i%4)} sc1')
        if n in XBAR:
            bar()
    a('s_branch L_x_sig')
    a.label('L_x_v')
    a(f's_cmp_ge_u32 s{sCG}, 15', 's_cbranch_scc1 L_x_idle', f's_lshl_b32 s{sT2}, s{sM}, 8', f's_add_u32 s{sT2}, s{sT2}, {L_MEAN}')
    a(f's_mul_i32 s{sOff}, s{sRB}, 10240', f's_mul_i32 s{sT0}, s{sM}, 2560', f's_add_u32 s{sOff}, s{sOff}, s{sT0}', f's_add_u32 s{sOff}, s{sOff}, {WS_KV+5120}')
    a(f's_sub_u32 s{sT1}, s{sCG}, 10', f's_lshl_b32 s{sT1}, s{sT1}, 7', f's_lshl_b32 s{sT0}, s{sN}, 6', f's_add_u32 s{sT1}, s{sT1}, s{sT0}',
      f's_lshl_b32 s{sT0}, s{sM}, 5', f's_add_u32 s{sT1}, s{sT1}, s{sT0}', f'v_add_u32 v1, s{sT1}, v{vTok}', f'v_mul_u32_u24 v{t2}, 320, v{vH}')
    for u in range(2):
        a(f'v_xor_b32 v{t0}, {32*u}, v1', f'v_mul_u32_u24 v{t1}, 3277, v{t0}', f'v_lshrrev_b32 v{t1}, 16, v{t1}',
          f'v_mul_u32_u24 v{t1}, {163840-320}, v{t1}', f'v_lshl_add_u32 v{t1}, v{t0}, 4, v{t1}', f'v_add_u32 v{vAd+u}, v{t1}, v{t2}')
    a(f'v_lshl_add_u32 v{vSa}, v{vTok}, 2, s{sT2}', f'v_lshl_add_u32 v{vSa}, v{vH}, 9, v{vSa}', f'v_lshl_add_u32 v{vSc}, v{vH}, 4, s{sT2}')
    a.stamp(2)
    a('s_setprio 1')
    def v_stats(t, dst):
        return [f'ds_read_b128 {v(dst+4*q,4)}, v{vSc} offset:{L_RSTD-L_MEAN+128*t+32*q}' for q in range(4)]
    mainloop('v', True, [f'ds_read2_b32 {v(CR,2)}, v{vSa} offset0:0 offset1:32'] + v_stats(0, vRs), 5, 5 + NE, QE, xmid('v'))
    a(f's_setprio {OPT.get("xprio", 0)}', v_stats(1, FR), 's_waitcnt lgkmcnt(4)', 's_nop 2')
    n = 0
    for t in range(2):
        st_ = FR if t else vRs
        if t:
            a('s_waitcnt lgkmcnt(0)')
        for u in range(2):
            for ap in range(2):
                r = acc + 32 * t + 16 * u + 8 * ap
                for e in range(8):
                    a(f'v_mul_f32 v{r+e}, v{st_+8*ap+e}, v{r+e}')
                for e in range(4):
                    a(CVT(r + e, r + 2 * e))
                a(f'buffer_store_dwordx4 {v(r,4)}, v{vAd+u}, {WS}, s{sOff} offen offset:{640*(2*t+ap)} sc1')
                if n in XBAR:
                    bar()
                n += 1
    a.label('L_x_sig')
    a.stamp(5)
    lds_tag(4)
    f1_off(sT0, sT1, sN, sM)
    a('v_mov_b32 v1, 0', 's_mov_b64 vcc, 1')
    for c in XB[len(XBAR):]:
        if c <= XSIG:
            bar()
    a('s_mov_b64 exec, vcc', 's_waitcnt vmcnt(0)', f'buffer_store_dword v4, v1, {WS}, s{sT0} offen sc1', 's_mov_b64 exec, -1')
    a.stamp(6)
    for c in XB[len(XBAR):]:
        if c > XSIG:
            bar()

    a.label('L_attn')
    if 'c0' in OPT:
        a.lock = tuple(range(2, 14))
    a.stamp(7)
    R = Regs(2)
    vH, vTokA, vVa, vK2a = R(), R(), R(), R()
    vKa = [R(), R()]
    Q1 = R(4); Q2 = [R(2), R(2)]
    S = [R(16), R(16)]
    P = R(8); O = R(16); C = R(16)
    K1 = [R(4), R(4)]; V = [R(8), R(8)]; K2 = R(2)
    tp = R(8)
    sCnt, sKV, sPass, sM40 = 40, 41, 42, 44
    vKg = tp + 6
    def a_setup():
        a(f'v_lshrrev_b32 v{vH}, 5, v0', f'v_and_b32 v{vTokA}, 31, v0', f's_mul_i32 s{sKV}, s{sHead}, 163840', f's_add_u32 s{sKV}, s{sKV}, {WS_KV}')
        a(f'v_lshlrev_b32 v{vK2a}, 3, v{vTokA}', f'v_lshl_add_u32 v{vKg}, v{vH}, 9, v{vK2a}')
        a(f'v_add_u32 v{vKa[0]}, {L_K}, v{vKg}', f'v_add_u32 v{vKa[1]}, {L_K+256}, v{vKg}', f'v_lshlrev_b32 v{vK2a}, 3, v0', f'v_add_u32 v{vK2a}, {L_K+2048}, v{vK2a}')
        a(f'v_lshlrev_b32 v{vVa}, 4, v{vTokA}', f'v_mul_u32_u24 v{K2}, 320, v{vH}', f'v_add_u32 v{vVa}, v{vVa}, v{K2}', f'v_add_u32 v{vVa}, {L_V}, v{vVa}')
        a(f'v_cmp_eq_u32 vcc, 20, v{vTokA}', f'v_mov_b32 v{K2}, {L_V+640}', f'v_mov_b32 v{K2+1}, {FAR}', f'v_cndmask_b32 v{vVa}, v{vVa}, v{K2}, vcc',
          f'v_cmp_lt_u32 vcc, 20, v{vTokA}', 's_nop 1', f'v_cndmask_b32 v{vVa}, v{vVa}, v{K2+1}, vcc')
        for i in range(16):
            a(f'v_mov_b32 v{O+i}, 0')
        for i in range(4):
            a(f'v_mov_b32 v{P+4+i}, 0', f'v_mov_b32 v{V[1]+4+i}, 0')
        a(f's_lshr_b32 s{sT0}, s{sW}, 1', f's_cmp_lt_u32 s{sT0}, 3', CSEL(sT1, L_Q0, L_Q1 - 7680), f's_mul_i32 s{sT0}, s{sT0}, 2560', f's_add_u32 s{sT0}, s{sT0}, s{sT1}',
          f's_and_b32 s{sT1}, s{sW}, 1', f's_lshl_b32 s{sT1}, s{sT1}, 3', f's_add_u32 s{sT0}, s{sT0}, s{sT1}',
          f'v_lshl_add_u32 v{vQb}, v{vTokA}, 4, s{sT0}', f'v_lshl_add_u32 v{vQa}, v{vH}, 9, v{vQb}')
    vQa, vQb = tp + 4, tp + 5
    a_setup()
    sP, sNB, sSpin = 48, 49, 50
    if True:
        a(f's_mul_i32 s{sT0}, s{sHead}, 20', f's_add_u32 s{sT1}, s{sT0}, 19', f's_lshr_b32 s{sT0}, s{sT0}, 6', f's_lshr_b32 s{sT1}, s{sT1}, 6', f's_sub_u32 s{sT1}, s{sT1}, s{sT0}',
          f's_lshl_b32 s{sT1}, s{sT1}, 10', f's_lshl_b32 s{sP}, s{sT0}, 10', f's_add_u32 s{sP}, s{sP}, {WS_F1}')
        a(f'v_bfe_u32 v{tp}, v0, 2, 2', f's_lshl_b32 s{sT0}, s{sW}, 1', f's_sub_u32 s{sT0}, s{sT0}, 1', f'v_add_u32 v1, s{sT0}, v{tp}', f'v_cmp_eq_u32 vcc, 0, v{tp}',
          f'v_bfe_u32 v{tp+1}, v0, 1, 1', f'v_add_u32 v{tp+1}, 1, v{tp+1}', 'v_cndmask_b32 v1, v1, 0, vcc' if False else f'v_cndmask_b32 v1, v1, v{tp}, vcc',
          f'v_cmp_eq_u32 vcc, 3, v{tp}', f'v_mov_b32 v{tp+2}, s{sQB}', f'v_mov_b32 v{tp+3}, 0', f'v_cndmask_b32 v1, v1, v{tp+2}, vcc', f'v_cndmask_b32 v{tp+1}, v{tp+1}, v{tp+3}, vcc',
          'v_lshlrev_b32 v1, 7, v1', f'v_mul_u32_u24 v{tp+1}, 10240, v{tp+1}', f'v_add_u32 v1, v1, v{tp+1}', f'v_and_b32 v{tp}, 1, v0', f'v_mad_u32_u24 v1, v{tp}, s{sT1}, v1')
    a(f's_mov_b32 s{sSpin}, {SPIN}')
    a(f's_mov_b32 s{sM40}, -1', f's_mov_b32 s{sM40+1}, 0xff')
    a(f's_lshl_b32 s{sT0}, s{sHead}, 5', f's_lshl_b32 s{sT1}, s{sQB}, 2', f's_add_u32 s{sT0}, s{sT0}, s{sT1}', f's_add_u32 s{sT0}, s{sT0}, s{sW}', f's_mul_i32 s51, s{sT0}, 2560',
      f's_add_u32 s51, s51, {WS_Q}', f's_cmp_lt_u32 s{sW}, 3', CSEL(sT1, L_Q0, L_Q1 - 7680), f's_mul_i32 s52, s{sW}, 2560', f's_add_u32 s52, s52, s{sT1}')
    a(f's_mul_i32 s{sT0}, s{sW}, 1280', f's_mul_i32 s{sT1}, s{sW}, 1312', f's_add_u32 s{sT2}, s{sT0}, s{sKV}')
    poll1 = ['s_mov_b64 exec, 0xffff', f'buffer_load_dwordx4 {v(tp,4)}, v1, {WS}, s{sP} offen sc1', 's_mov_b64 exec, -1']
    check = ['s_waitcnt vmcnt(0)'] + [f'v_xor_b32 v{tp+i}, s{sTag}, v{tp+i}' for i in range(4)] + [
        f'v_or3_b32 v{tp}, v{tp}, v{tp+1}, v{tp+2}', f'v_or_b32 v{tp}, v{tp}, v{tp+3}', f'v_cmp_ne_u32 vcc, 0, v{tp}', 's_nop 1', 's_and_b32 vcc_lo, vcc_lo, 0xffff', 's_cbranch_scc0 L_poll1_ok']
    bar()
    left = len([c for c in range(XP + 1, 21) if c not in SKIP])
    a(poll1, f's_mov_b32 s{sNB}, {max(0, left-1)}')
    if left:
        a.label('L_poll1a')
        bar()
        a(check, poll1, f's_sub_u32 s{sNB}, s{sNB}, 1', 's_cbranch_scc0 L_poll1a', f's_mov_b32 s{sNB}, 0')
    a.label('L_poll1b')
    a(check, f's_sub_u32 s{sSpin}, s{sSpin}, 1', 's_cbranch_scc1 L_poll1_ok', backoff('s1'), poll1, 's_branch L_poll1b')
    a.label('L_poll1_ok')
    a.stamp(8)
    a('v_lshlrev_b32 v1, 4, v0', 's_mov_b32 m0, s52', f's_mov_b64 exec, s[{sM40}:{sM40+1}]')
    for i in range(4):
        a(f'buffer_load_dwordx4 v1, {WS}, s51 offen offset:{640*i} sc1 lds')
    for c in range(2):
        a(f's_add_u32 m0, s{sT0}, {L_K+5120*c}', f's_add_u32 s{sT3}, s{sT2}, {10240*c}')
        a(f'buffer_load_dwordx4 v1, {WS}, s{sT3} offen sc1 lds', f'buffer_load_dwordx4 v1, {WS}, s{sT3} offen offset:640 sc1 lds')
        a(f's_add_u32 m0, s{sT1}, {L_V+5248*c}', f's_add_u32 s{sT3}, s{sT3}, 5120')
        a(f'buffer_load_dwordx4 v1, {WS}, s{sT3} offen sc1 lds', f's_sub_u32 s{sT3}, s{sT3}, 16', f'buffer_load_dwordx4 v1, {WS}, s{sT3} offen offset:656 sc1 lds')
    a('s_mov_b64 exec, -1')
    a.label('L_rest')
    a(f's_sub_u32 s{sNB}, s{sNB}, 1', 's_cbranch_scc1 L_rest_done', 's_barrier', 's_branch L_rest')
    a.label('L_rest_done')
    a('s_waitcnt vmcnt(4)', 's_branch L_attn_j')
    a.label('L_attn_z')
    a.vm = zvm
    lds_tag(1)
    a_setup()
    a(f'v_mul_u32_u24 v1, 656, v{vTokA}', f'v_add_u32 v1, {L_V+640}, v1')
    for i in range(4):
        a(f'v_mov_b32 v{K1[0]+i}, 0x3f803f80')
    a(f's_cmp_lg_u32 s{sW}, 4', 's_cbranch_scc1 L_noones', f'ds_write_b128 v1, {v(K1[0],4)}')
    a.label('L_noones')
    a.wait_vm(('c', 19))
    pbar(19)
    bar()
    a('s_waitcnt lgkmcnt(0)')
    a.label('L_attn_j')
    sHi = 46
    a('s_mov_b32 vcc_lo, -1', 's_mov_b32 vcc_hi, 0', f's_mov_b32 s{sHi}, -1', f's_mov_b32 s{sHi+1}, 0')

    def rdK1(dst, blk):
        o = (blk // 2 % 8) * 5
        return f'ds_read2st64_b64 {v(dst,4)}, v{vKa[blk % 2]} offset0:{o} offset1:{o+2}'
    def rdK2(pair):
        return f'ds_read_b64 {v(K2,2)}, v{vK2a} offset:{(pair % 8) * 2560}'
    def rdV(dst, blk, half):
        return f'ds_read_b128 {v(dst+4*half,4)}, v{vVa} offset:{((blk % 16) * 2 + half) * 656}'

    a.stamp(9)
    bar()
    a.stamp(10)
    a(f'ds_read2st64_b64 {v(Q1,4)}, v{vQa} offset0:0 offset1:2', rdK1(K1[0], 0), rdK1(K1[1], 1), f'ds_read_b64 {v(tp,2)}, v{vQb} offset:2048', rdK2(0),
      rdV(V[0], 0, 0), rdV(V[0], 0, 1), 's_waitcnt lgkmcnt(5)')
    a(M16(S[0], K1[0], Q1, '0'), 's_waitcnt lgkmcnt(3)')
    for i in range(2):
        a(f'v_cndmask_b32 v{Q2[0]+i}, 0, v{tp+i}, vcc')
    for i in range(2):
        a(f'v_cndmask_b32 v{Q2[1]+i}, v{tp+i}, 0, s[{sHi}:{sHi+1}]')
    a(M16(S[1], K1[1], Q1, '0'), 's_waitcnt lgkmcnt(2)', M8(S[0], K2, Q2[0]), M8(S[1], K2, Q2[1]), 's_nop 10')
    vals = [S[0] + i for i in range(16)] + [S[1] + i for i in range(16)]
    a(f'v_max3_f32 v{tp}, v{vals[0]}, v{vals[1]}, v{vals[2]}', f'v_max3_f32 v{tp+1}, v{vals[3]}, v{vals[4]}, v{vals[5]}')
    for i in range(6, 32, 2):
        r = tp + (i // 2 + 1) % 2
        a(f'v_max3_f32 v{r}, v{r}, v{vals[i]}, v{vals[i+1]}')
    a(f'v_max_f32 v{tp}, v{tp}, v{tp+1}', f'v_mov_b32 v{tp+1}, v{tp}', 's_nop 1', f'v_permlane32_swap_b32 v{tp}, v{tp+1}', 's_nop 1')
    a(f'v_max_f32 v{tp}, v{tp}, v{tp+1}', f'v_sub_f32 v{C}, {fbits(-float(OPT.get("mo", MAXOFF)))}, v{tp}')
    a(f'v_mov_b32 v{C+1}, v{C}')
    for i in range(2, 16, 2):
        a(f'v_mov_b64 {v(C+i,2)}, {v(C,2)}')
    if OPT.get('pro', 0) == 0:
        a('s_nop 1', M16(S[0], K1[0], Q1, C), M8(S[0], K2, Q2[0]), f's_mov_b32 s{sCnt}, 4', 's_waitcnt vmcnt(0)', 's_nop 7')
    else:
        for i in range(16):
            a(f'v_add_f32 v{S[0]+i}, v{S[0]+i}, v{C}')
        a(f's_mov_b32 s{sCnt}, 4', 's_waitcnt vmcnt(0)')
    a.stamp(11)
    a.raw('.p2align 3')
    a.label('L_at_loop')
    LAD = [(3, 2, 1, 0), (3, 2, 1, 1), (2, 1, 0, 0), (3, 3, 2, 1), (2, 2, 1, 0)][OPT.get('lad', 0)]
    for b in range(16):
        cur, nxt = S[b & 1], S[(b + 1) & 1]
        E = lambda i: EXP(cur + i)
        Cv = lambda i: CVT(P + i, cur + 2 * i)
        a(M16(nxt, K1[(b + 1) & 1], Q1, C))
        if b % 4 == 2:
            bar()
        a(f's_setprio {LAD[(b + 2) % 4]}', rdK1(K1[b & 1], b + 2))
        a(E(0), E(1), E(2), Cv(0), E(3), E(4))
        a(M16(O, V[(b + 1) & 1] + 4, P + 4), 's_waitcnt lgkmcnt(1)', rdV(V[(b + 1) & 1], b + 1, 0), rdV(V[(b + 1) & 1], b + 1, 1))
        a(Cv(1), E(5), E(6), Cv(2), E(7), E(8))
        if not OPT.get('abl_8'):
            a(M8(nxt, K2, Q2[(b + 1) & 1]))
        a(Cv(3), E(9), E(10), Cv(4), E(11), E(12))
        a(M16(O, V[b & 1], P), 's_waitcnt lgkmcnt(2)')
        if b % 2 == 0:
            a(rdK2(b // 2 + 1))
        if b == 15:
            a(f's_sub_u32 s{sCnt}, s{sCnt}, 1', f's_cmp_lg_u32 s{sCnt}, 0')
        a(Cv(5), E(13), E(14), E(15), Cv(6), Cv(7))
    a('s_cbranch_scc1 L_at_loop')
    a('s_nop 0', M16(O, V[1] + 4, P + 4), f's_mov_b32 s{sPass}, 0', 's_waitcnt lgkmcnt(0)')
    a.stamp(12)

    a.label('L_at_fin')
    a(f's_lshl_b32 s{sT0}, s{sQB}, 3', f's_add_u32 s{sT0}, s{sT0}, s{sW}', f's_mul_i32 s{sT0}, s{sT0}, 40960', f's_add_u32 s{sT0}, s{sT0}, {WS_O}',
      f's_lshl_b32 s{sT1}, s{sHead}, 10', f's_add_u32 s{sT1}, s{sT1}, s{sT0}',
      f's_lshl_b32 s{sT2}, s{sHead}, 8', f's_add_u32 s{sT2}, s{sT2}, s{sT0}', f's_add_u32 s{sT2}, s{sT2}, 32768', f's_mov_b32 s{sT3}, {fbits(2.0**-102)}', 's_nop 1')
    vL, vSum, N = tp, tp + 1, S[0]
    a(f'v_mov_b32 v{vL}, v{O+8}', f'v_mov_b32 v{tp+2}, v{O+8}', 'v_lshlrev_b32 v1, 4, v0', f'v_lshlrev_b32 v{tp+4}, 3, v0')
    a(f'v_permlane32_swap_b32 v{tp+2}, v{vL}', f'v_add_f32 v{vSum}, |v{O}|, |v{O+1}|', f'v_add_f32 v{tp+3}, |v{O+8}|, |v{O+9}|', f'v_rcp_f32 v{vL}, v{vL}', f'v_add_f32 v{vSum}, v{vSum}, |v{O+2}|')
    for i in range(8):
        a(f'v_mul_f32 v{N+i}, v{O+i}, v{vL}')
    for i in range(4):
        a(CVT(N + i, N + 2 * i))
    a(f'buffer_store_dwordx4 {v(N,4)}, v1, {WS}, s{sT1} offen sc1')
    for i in range(8, 12):
        a(f'v_mul_f32 v{N+i}, v{O+i}, v{vL}')
    a(CVT(N + 8, N + 8), CVT(N + 9, N + 10), 's_mov_b32 exec_hi, 0', f'buffer_store_dwordx2 {v(N+8,2)}, v{tp+4}, {WS}, s{sT2} offen sc1', 's_mov_b32 exec_hi, -1')
    for i in range(3, 8):
        a(f'v_add_f32 v{vSum}, v{vSum}, |v{O+i}|')
    a(f'v_add_f32 v{tp+3}, v{tp+3}, |v{O+10}|', f'v_add_f32 v{tp+3}, v{tp+3}, |v{O+11}|', f'v_add_f32 v{tp+3}, v{tp+3}, v{vSum}')
    a(f'v_cmp_ngt_f32 vcc, {fbits(2.0**120)}, v{tp+3}', f'v_cmp_gt_f32 s[46:47], s{sT3}, v{vSum}', 's_nop 1',
      's_or_b64 s[46:47], s[46:47], vcc', f's_cmp_eq_u32 s{sPass}, 0', 's_cselect_b64 s[46:47], s[46:47], 0', 's_cmp_lg_u64 s[46:47], 0',
      's_cbranch_scc1 L_at_slow' if not OPT.get('noslow') else 's_nop 0')
    FOS = OPT.get('fos', 2)
    a(f's_lshl_b32 s{sT0}, s{sQB}, 3', f's_add_u32 s{sT0}, s{sT0}, s{sW}', f's_lshl_b32 s{sT0}, s{sT0}, 12', f's_lshr_b32 s{sT1}, s{sHead}, {FOS}', f's_lshl_b32 s{sT1}, s{sT1}, 7',
      f's_add_u32 s{sT0}, s{sT0}, s{sT1}', f's_and_b32 s{sT1}, s{sHead}, {(1<<FOS)-1}', f's_lshl_b32 s{sT1}, s{sT1}, 2',
      f's_add_u32 s{sT0}, s{sT0}, s{sT1}', f's_add_u32 s{sT0}, s{sT0}, {WS_FO}', f'v_mov_b32 v1, s{sTag}', 'v_mov_b32 v2, 0', 's_mov_b64 exec, 1')
    a('s_waitcnt vmcnt(0)', f'buffer_store_dword v1, v2, {WS}, s{sT0} offen sc1')
    a.stamp(13)
    a.dump(0, sW, 24)
    a('s_endpgm')

    a.label('L_at_slow')
    vVg, vL8s = tp + 4, tp + 7
    a(f'v_min_u32 v1, 19, v{vTokA}', 'v_lshlrev_b32 v1, 4, v1', f'v_mul_u32_u24 v{vVg}, 320, v{vH}', f'v_add_u32 v{vVg}, v1, v{vVg}', f'v_lshlrev_b32 v{vL8s}, 3, v0')
    a(f'v_mov_b32 v{tp}, 0xff800000', f's_mov_b32 s{sCnt}, 0')
    def pair_off():
        a(f's_lshr_b32 s{sT0}, s{sCnt}, 1', f's_mul_i32 s{sT0}, s{sT0}, 10240', f's_and_b32 s{sT1}, s{sCnt}, 1', f's_mul_i32 s{sT1}, s{sT1}, 2560',
          f's_add_u32 s{sT0}, s{sT0}, s{sT1}', f's_add_u32 s{sT0}, s{sT0}, s{sKV}', f's_add_u32 s{sT1}, s{sT0}, 5120')
    def ldK():
        for b in range(2):
            a(f'buffer_load_dwordx2 {v(K1[b],2)}, v{vKg}, {WS}, s{sT0} offen offset:{256*b} sc1',
              f'buffer_load_dwordx2 {v(K1[b]+2,2)}, v{vKg}, {WS}, s{sT0} offen offset:{256*b+1024} sc1')
        a(f'buffer_load_dwordx2 {v(K2,2)}, v{vL8s}, {WS}, s{sT0} offen offset:2048 sc1')
    a.label('L_at_slow_max')
    pair_off(); ldK()
    a('s_waitcnt vmcnt(0)')
    a(M16(S[0], K1[0], Q1, '0'), M16(S[1], K1[1], Q1, '0'), M8(S[0], K2, Q2[0]), M8(S[1], K2, Q2[1]), 's_nop 12')
    for i in range(16):
        a(f'v_max3_f32 v{tp}, v{tp}, v{S[0]+i}, v{S[1]+i}')
    a(f's_add_u32 s{sCnt}, s{sCnt}, 1', f's_cmp_lt_u32 s{sCnt}, 32', 's_cbranch_scc1 L_at_slow_max')
    a(f'v_mov_b32 v{tp+1}, v{tp}', 's_nop 1', f'v_permlane32_swap_b32 v{tp}, v{tp+1}', 's_nop 1', f'v_max_f32 v{tp}, v{tp}, v{tp+1}')
    for i in range(16):
        a(f'v_sub_f32 v{C+i}, 0, v{tp}', f'v_mov_b32 v{O+i}, 0')
    a(f'v_cmp_eq_u32 s[48:49], 20, v{vTokA}', f'v_mov_b32 v{tp+5}, 0x3f803f80', f's_mov_b32 s{sCnt}, 0')
    a.label('L_at_slow_pv')
    pair_off(); ldK()
    for g in range(4):
        a(f'buffer_load_dwordx4 {v(V[g//2]+4*(g%2),4)}, v{vVg}, {WS}, s{sT1} offen offset:{640*g} sc1')
    a('s_waitcnt vmcnt(0)')
    a(M16(S[0], K1[0], Q1, C), M16(S[1], K1[1], Q1, C), M8(S[0], K2, Q2[0]), M8(S[1], K2, Q2[1]))
    for b in range(2):
        for i in range(8):
            a(f'v_cndmask_b32 v{V[b]+i}, v{V[b]+i}, v{tp+5}, s[48:49]')
    for b in range(2):
        for i in range(16):
            a(EXP(S[b] + i))
        a('s_nop 0')
        for i in range(8):
            a(CVT(P + i, S[b] + 2 * i))
        a('s_nop 1', M16(O, V[b], P), M16(O, V[b] + 4, P + 4))
    a(f's_add_u32 s{sCnt}, s{sCnt}, 1', f's_cmp_lt_u32 s{sCnt}, 32', 's_cbranch_scc1 L_at_slow_pv')
    a(f's_mov_b32 s{sPass}, 1', 's_branch L_at_fin')

    a.label('L_x_idle')
    PB = OPT.get('pb', 4)
    for _ in range(PB):
        bar()
    if OPT.get('ipf', 1):
        a(f's_lshl_b32 s{sT0}, s{sRB}, 2', f's_add_u32 s{sT0}, s{sT0}, s{sW}', f's_lshl_b32 s{sT0}, s{sT0}, 12', f'v_lshl_add_u32 v1, v0, 4, s{sT0}')
        parts = ((12, 640 * 3456, 4, 9), (12, 640 * 3456, 0, 4), (16, 1728 * 1280, 0, 9), (8, 640 * 1280, 0, 4))[OPT.get('ipn', 3):]
        for j, (base, nbytes, lo, hi) in enumerate(parts):
            a.srd(SD, base, nbytes)
            a(f's_mov_b32 s{sT1}, {lo << 18}')
            a.label(f'L_ipf{j}')
            for i in range(4):
                a(f'buffer_load_dwordx4 v[160:163], v1, s[{SD}:{SD+3}], s{sT1} offen offset:{1024*i}')
            a(f's_add_u32 s{sT1}, s{sT1}, {1 << 18}', f's_waitcnt vmcnt({OPT.get("ipd", 12)})', f's_cmp_lt_u32 s{sT1}, {hi << 18}', f's_cbranch_scc1 L_ipf{j}')
        a('s_waitcnt vmcnt(0)')
    for c in range(PB, XP):
        pbar(c)
    lds_tag(1)
    a('s_branch L_attn')

    a.label('L_helper')
    a.lock = None
    sG = 38
    a(f's_sub_u32 s{sG}, s{sW}, 8')
    decode2()
    gemm_setup(8, 5, NE, False)
    sFB = 39
    a(f's_lshl_b32 s{sT0}, s{sRB}, 7', f's_lshl_b32 s{sT1}, s{sCG}, 3', f's_add_u32 s{sT0}, s{sT0}, s{sT1}', f's_lshl_b32 s{sT1}, s{sG}, 1', f's_add_u32 s{sT2}, s{sT0}, s{sT1}',
      f's_mul_i32 s{sT3}, s{sT2}, 1280', f's_lshl_b32 s{sT2}, s{sT2}, 4', f's_add_u32 s{sT2}, s{sT2}, {WS_RS}')
    a(f'v_mul_u32_u24 v1, 1280, v2', f'v_lshl_add_u32 v{tmp+4}, v{vTok}, 4, v1', f'v_lshl_add_u32 v{tmp+5}, v{vTok}, 3, v1', f'v_lshlrev_b32 v{tmp+6}, 1, v{vTok}')
    a(f's_lshl_b32 s{sFB}, s{sCG}, 1', f's_add_u32 s{sFB}, s{sFB}, s{sN}', f's_lshl_b32 s{sT0}, s{sFB}, 7')
    a('s_waitcnt lgkmcnt(0)')
    ws_setup()
    a(f's_add_u32 s10, s22, {WS_EP}', 's_addc_u32 s11, s23, 0', f's_load_dword s{sTag}, s[10:11], 0')
    def touch(off, extra=(0,)):
        a(f's_and_b32 s10, s{off}, 0xffffff80', 's_add_u32 s10, s22, s10', 's_addc_u32 s11, s23, 0')
        for e in extra:
            a(f's_load_dword s61, s[10:11], {e}', f's_load_dword s61, s[10:11], {e+64}')
    if OPT.get('tch', 1):
        touch(sT2)
        f1_off(56, 57, sN, None)
        touch(56)
        a(f's_lshl_b32 s56, s{sRB}, 1', f's_add_u32 s56, s56, s{sM}', 's_lshl_b32 s56, s56, 4', f's_add_u32 s56, s56, s{sCG}', 's_lshl_b32 s56, s56, 7', f's_add_u32 s56, s56, {WS_FH}')
        touch(56)
        a(f's_lshl_b32 s56, s{sQB}, 2', f's_add_u32 s56, s56, s{sG}', 's_lshl_b32 s56, s56, 13', f's_lshr_b32 s57, s{sHead}, {OPT.get("fos", 2)}', 's_lshl_b32 s57, s57, 7',
          's_add_u32 s56, s56, s57', f's_add_u32 s56, s56, {WS_FO}')
        touch(56, (0, 4096))
    vL16, vL8, vTr, vTr2, vOut, vRes = range(SX + 16, SX + 22)
    vW, vWr = SX + 22, SX + 26
    vR2 = SX + 42
    sOwn, sKH, sRow, sCol, sReg, sRG = 62, 63, 64, 65, 66, 3
    t = tmp + 10
    a(f's_mov_b32 s60, s{sT0}')
    a(f's_bfe_u32 s{sRG}, s2, 0x20001', f's_bfe_u32 s{sT0}, s2, 0x30003', f's_lshl3_add_u32 s{sRG}, s{sRG}, s{sT0}',
      f's_and_b32 s{sOwn}, s{sG}, 1', f's_lshr_b32 s{sKH}, s{sG}, 1', f's_lshl1_add_u32 s{sRow}, s{sRG}, s{sOwn}', f's_lshr_b32 s{sCol}, s2, 6')
    a(f'v_lshlrev_b32 v{vL16}, 4, v0', f'v_lshlrev_b32 v{vL8}, 3, v0', f'v_lshlrev_b32 v{vR2}, 5, v{vTok}')
    a(f's_lshl_b32 s{sT0}, s{sRG}, 6', f's_add_u32 s{sT0}, s{sT0}, s{sOwn}', f'v_and_b32 v1, 15, v0', f'v_lshl_add_u32 v1, v1, 1, s{sT0}', f'v_mul_u32_u24 v{vOut}, 1280, v1',
      f'v_and_b32 v{t}, 16, v0', f'v_lshl_add_u32 v{vOut}, v{t}, 1, v{vOut}', f'v_lshl_add_u32 v{vOut}, v2, 4, v{vOut}')
    a(f'v_lshlrev_b32 v{vTr}, 1, v{t}', f'v_and_b32 v{t}, 1, v0', f'v_lshl_add_u32 v{vTr}, v{t}, 4, v{vTr}', f'v_and_b32 v{t}, 2, v0', f'v_lshl_add_u32 v{vTr}, v{t}, 2, v{vTr}',
      f'v_bfe_u32 v{t}, v0, 2, 2', f'v_lshl_add_u32 v{t}, v2, 2, v{t}')
    def rows(i, row, piece):
        a(f'v_lshl_add_u32 v{piece}, v{piece}, 4, s{sCol}', f'v_mul_u32_u24 v{vW+i}, 1280, v{row}', f'v_add_u32 v{vW+i}, v{vW+i}, v{piece}',
          f'v_lshrrev_b32 v{row}, 2, v{row}', f'v_add_u32 v{row}, 1, v{row}', f'v_mul_u32_u24 v{row}, {16*1280}, v{row}')
        if i:
            a(f'v_subrev_u32 v{vW+i}, {1024*i}, v{vW+i}')
        a(f'v_add_u32 v{vWr+i}, v{vW+i}, v{row}')
    a('s_bitcmp1_b32 s2, 0', 's_cbranch_scc1 L_su2')
    a(f's_mul_i32 s{sCol}, s{sCol}, 192', f's_mul_i32 s{sReg}, s{sG}, 30720', f'v_mul_u32_u24 v{t}, 192, v{t}', f'v_add3_u32 v{vTr}, v{vTr}, v{t}, s{sReg}', f'v_mov_b32 v{vTr2}, v{vTr}')
    a(f's_cmp_eq_u32 s{sKH}, 0', 's_cselect_b32 s67, 1280, 0', f'v_lshl_add_u32 v1, v{vTok}, 1, s{sT0}', f'v_mul_u32_u24 v{vRes}, s67, v1', f'v_lshl_add_u32 v1, v2, 4, s{sCol}', f'v_add_u32 v{vRes}, v{vRes}, v1')
    for i in range(3):
        a(f'v_add_u32 v{t}, {64*i}, v0', f'v_mul_u32_u24 v1, 171, v{t}', 'v_lshrrev_b32 v1, 11, v1', f'v_mul_u32_u24 v{t+1}, 12, v1', f'v_sub_u32 v{t}, v{t}, v{t+1}')
        rows(i, 1, t)
    a('s_branch L_su3')
    a.label('L_su2')
    a(f's_lshl_b32 s{sCol}, s{sCol}, 7', f's_add_u32 s{sCol}, s{sCol}, 768', f's_mul_i32 s{sReg}, s{sG}, 20480', f'v_lshlrev_b32 v1, 7, v{t}', f'v_add3_u32 v{vTr}, v{vTr}, v1, s{sReg}',
      f'v_and_b32 v1, 2, v{t}', f'v_lshl_add_u32 v{vTr}, v1, 5, v{vTr}', f'v_xor_b32 v{vTr2}, 64, v{vTr}')
    a(f's_cmp_eq_u32 s{sKH}, 0', 's_cselect_b32 s67, -1, 0', CSEL(68, L_XR, L_B2), f's_lshl_b32 s{sT1}, s{sOwn}, 7', f'v_lshl_add_u32 v1, v{vTok}, 8, s{sT1}', f'v_and_b32 v{t}, 1, v0', f'v_lshl_add_u32 v1, v{t}, 6, v1',
      'v_and_b32 v1, s67, v1', 'v_lshl_add_u32 v1, v2, 4, v1', f'v_add_u32 v{vRes}, s68, v1')
    for i in range(2):
        a('v_lshrrev_b32 v1, 3, v0', f'v_and_b32 v{t}, 7, v0', f'v_and_b32 v{t+1}, 16, v0', f'v_lshrrev_b32 v{t+1}, 2, v{t+1}', f'v_xor_b32 v{t}, v{t}, v{t+1}', f'v_add_u32 v1, {8*i}, v1')
        rows(i, 1, t)
    a(f'v_mov_b32 v{vW+2}, 0', f'v_mov_b32 v{vWr+2}, 0')
    a.label('L_su3')
    colsum_setup()
    zero_acc(0, 64)
    a(f's_lshl_b32 s{sT0}, s{sRB}, 2', f's_lshl_b32 s{sT1}, s{sM}, 1', f's_add_u32 s{sT0}, s{sT0}, s{sT1}', f's_mul_i32 s{sT0}, s{sT0}, 108',
      f's_lshl_b32 s{sT1}, s{sFB}, 2', f's_add_u32 s{sT0}, s{sT0}, s{sT1}', f's_lshl_b32 s{sT0}, s{sT0}, 10',
      f's_add_u32 s{sOff}, s{sT0}, {WS_H}', f's_add_u32 s{sHS}, s{sOff}, {108*1024}', f's_lshl_b32 s{sT0}, s{sM}, 11', f'v_lshl_add_u32 v{tmp}, v0, 4, s{sT0}', f'v_xor_b32 v{tmp+1}, 2048, v{tmp}')
    a(f's_lshl_b32 s{sT0}, s{sM}, 8', f's_add_u32 s{sT0}, s{sT0}, {L_MEAN}', f'v_lshl_add_u32 v{tmp+3}, v{vTok}, 3, s{sT0}', f'v_lshl_add_u32 v{tmp+3}, v2, 9, v{tmp+3}')
    a(f's_lshl_b32 s{sT0}, s{sG}, 7', f's_add_u32 s{sT0}, s{sT0}, {L_MEAN}', f'v_lshl_add_u32 v{tmp+9}, v{vTok}, 2, s{sT0}', f'v_mov_b32 v{tmp+10}, {L_TAG}',
      f'v_lshlrev_b32 v{tmp+2}, 4, v{vTok}', f's_mov_b32 s{sT0}, s60')
    a.srd(SD, 4, 2621440)
    bar()
    a(f'buffer_load_dwordx4 {v(SX,4)}, v{tmp+4}, s[{SD}:{SD+3}], s{sT3} offen', f'buffer_load_dwordx4 {v(SX+4,4)}, v{tmp+4}, s[{SD}:{SD+3}], s{sT3} offen offset:512',
      f'buffer_load_dwordx2 {v(SX+8,2)}, v{tmp+5}, s[{SD}:{SD+3}], s{sT3} offen offset:1024')
    bar(); bar()
    a('s_waitcnt vmcnt(0) lgkmcnt(0)', f's_add_u32 s{sTag}, s{sTag}, 0x9e3779b1')
    a.srd(SD, 14, 3456)
    a(f's_lshl_b32 s{sT1}, s{sM}, 6', f's_add_u32 s{sT0}, s{sT0}, s{sT1}', f's_xor_b32 s{sT1}, s{sT0}, 64')
    a(f'buffer_load_ushort v{tmp+7}, v{tmp+6}, s[{SD}:{SD+3}], s{sT0} offen', f'buffer_load_ushort v{tmp+8}, v{tmp+6}, s[{SD}:{SD+3}], s{sT1} offen')
    a(f's_lshl_b32 s{sT1}, s{sRB}, 11', f's_lshl_b32 s{sT0}, s{sG}, 9', f's_add_u32 s{sT1}, s{sT1}, s{sT0}', f's_add_u32 s{sT1}, s{sT1}, {WS_RS}', f's_mov_b32 s{sT3}, {SPIN}')
    r0, r1, r2, r3 = FR, FR + 1, FR + 2, FR + 3
    def reduce32(r):
        for mod in ('quad_perm:[1,0,3,2]', 'quad_perm:[2,3,0,1]', 'row_half_mirror', 'row_mirror'):
            a('s_nop 1', f'v_add_f32_dpp v{r}, v{r}, v{r} {mod} row_mask:0xf bank_mask:0xf')
        a(f'v_mov_b32 v{r3}, v{r}', 's_nop 1', f'v_permlane16_swap_b32 v{r}, v{r3}', 's_nop 1', f'v_add_f32 v{r}, v{r}, v{r3}')
    U = lambda i: (FR + 8 + i) if i < 10 else (SX + i - 10)
    for i in range(10):
        a(f'v_lshlrev_b32 v{U(i)}, 16, v{SX+i}', f'v_and_b32 v{SX+i}, 0xffff0000, v{SX+i}')
        if i < 2:
            a(f'v_add_f32 v{r0+i}, v{U(i)}, v{U(10+i)}')
        else:
            a(f'v_add_f32 v{r0}, v{r0}, v{U(i)}', f'v_add_f32 v{r1}, v{r1}, v{U(10+i)}')
    a(f'v_add_f32 v{r0}, v{r0}, v{r1}')
    reduce32(r0)
    a(f'v_mul_f32 v{r0}, {fbits(1/640)}, v{r0}', f'v_mov_b32 v{r1}, 0', f'v_mov_b32 v{r2}, 0')
    bar()
    for i in range(0, 20, 2):
        a(f'v_sub_f32 v{U(i)}, v{U(i)}, v{r0}', f'v_sub_f32 v{U(i+1)}, v{U(i+1)}, v{r0}', f'v_fmac_f32 v{r1}, v{U(i)}, v{U(i)}', f'v_fmac_f32 v{r2}, v{U(i+1)}, v{U(i+1)}')
    a(f'v_add_f32 v{r2}, v{r1}, v{r2}')
    reduce32(r2)
    a(f'v_mov_b32 v{r3}, {fbits(1e-5)}', f'v_fmac_f32 v{r3}, {fbits(1/640)}, v{r2}', f'v_rsq_f32 v{r2}, v{r3}', f'v_mov_b32 v{r1}, s{sTag}', f'v_mov_b32 v{r3}, s{sTag}',
      'v_lshrrev_b32 v1, 1, v0', 's_mov_b32 exec_lo, 1', 's_mov_b32 exec_hi, 1', f'buffer_store_dwordx4 {v(r0,4)}, v1, {WS}, s{sT2} offen sc1', 's_mov_b64 exec, -1')
    a.stamp(2)
    bar()
    a(f's_cmp_lt_u32 s{sFB}, 27', 's_cbranch_scc1 L_h_act')
    for c in range(5, 6 + NE):
        bar()
    a('s_branch L_h_mid')
    def gmid():
        a.label('L_h_mid')
        g0 = FR
        gather = f'buffer_load_dwordx4 {v(g0,4)}, v{tmp+2}, {WS}, s{sT1} offen sc1'
        a('s_setprio 0', gather)
        bar(); bar()
        a.label('L_h_chk')
        a('s_waitcnt vmcnt(0)', f'v_cmp_ne_u32 vcc, s{sTag}, v{g0+1}', f'v_cmp_ne_u32 s[46:47], s{sTag}, v{g0+3}', 's_nop 1', 's_or_b64 vcc, vcc, s[46:47]',
          's_cbranch_scc0 L_h_got', f's_sub_u32 s{sT3}, s{sT3}, 1', 's_cbranch_scc1 L_h_got', backoff('s0'), gather, 's_branch L_h_chk')
        a.label('L_h_got')
        a(f'v_rcp_f32 v{g0+1}, v{g0+2}', f'v_sub_f32 v{g0}, 0, v{g0}', f'v_mov_b32 v{g0+3}, s{sTag}')
        a('s_mov_b32 exec_lo, 0', f'v_lshlrev_b32 v{CS[0]}, 16, v{tmp+7}', f'v_lshlrev_b32 v{CS[1]}, 16, v{tmp+8}', 's_mov_b32 exec_lo, -1')
        bar(); bar()
        a('s_mov_b32 exec_hi, 0', f'ds_write_b32 v{tmp+9}, v{g0}', f'ds_write_b32 v{tmp+9}, v{g0+1} offset:{L_ISTD-L_MEAN}', f'ds_write_b32 v{tmp+9}, v{g0+2} offset:{L_RSTD-L_MEAN}',
          's_mov_b64 exec, 1', f'ds_write_b32 v{tmp+10}, v{g0+3}', 's_mov_b64 exec, -1', 's_waitcnt lgkmcnt(0)')
        a(f's_cmp_lt_u32 s{sFB}, 27', 's_cbranch_scc1 L_h_act')
        for c in range(QE, 22):
            pbar(c)
        a('s_branch L_h_p2')
    a.label('L_h_act')
    a('s_setprio 1')
    mainloop('ffn', False, [f'ds_read_b64 {v(CR,2)}, v{tmp+3}'], 5 + NE, QE, 20, gmid)
    a('s_nop 8')
    hst = []
    for t, u in ((0, 0), (0, 1), (1, 1), (1, 0)):
        for ap in range(2):
            r = acc + 32 * t + 16 * u + 8 * ap
            for e in range(8):
                a(f'v_mul_f32 v{r+e}, v{r+e}, |v{r+e}|')
            for e in range(4):
                a(CVT(r + e, r + 2 * e))
            for e in range(4):
                a(f'v_pk_max_i16 v{r+e}, v{r+e}, 0')
            hst.append(f'buffer_store_dwordx4 {v(r,4)}, v{tmp+u}, {WS}, s{sHS if t else sOff} offen offset:{1024*ap} sc1')
            if OPT.get('hs', 0):
                a(hst.pop())
    a.stamp(3)
    bar()
    a(hst)
    a.label('L_h_p2')
    a.stamp(5)
    R = Regs(2)
    acc = R(96)
    AF = [R(8) for _ in range(4)]
    tmp = R(8)
    assert R.n <= vL16
    BF = [vWr + 4 + 4 * i for i in range(3)]
    sKVo, sH0, sH1, sW2, sWo, sMK, sMV, sR2 = range(40, 48)
    W2, WO, RES = 48, 52, 56
    sM40 = 60
    MASK, FULL = f's_mov_b64 exec, s[{sM40}:{sM40+1}]', 's_mov_b64 exec, -1'

    def kv(c):
        slot = c % 4
        ld = lambda so, off: f'buffer_load_dwordx4 v{vL16}, {WS}, s{so} offen offset:{off} sc1 lds'
        return [([f's_add_u32 m0, s{sMK}, {slot*5120}', f's_add_u32 s{sT0}, s{sKVo}, {c*10240}'], ld(sT0, 0), ('kv', c), True),
                ([], ld(sT0, 640), ('kv', c), True),
                ([f's_add_u32 m0, s{sMV}, {slot*5248}', f's_add_u32 s{sT0}, s{sT0}, 5120'], ld(sT0, 0), ('kv', c), True),
                ([f's_sub_u32 s{sT0}, s{sT0}, 16'], ld(sT0, 656), ('kv', c), True)]
    def emit(fl):
        masked = False
        for pre, ins, tg, mk in fl:
            a(pre)
            if mk != masked:
                a(MASK if mk else FULL); masked = mk
            a.vmem(ins, tg)
        if masked:
            a(FULL)

    a.vm = ['hst']
    a(f's_mov_b32 s{sM40}, -1', f's_mov_b32 s{sM40+1}, 0xff')
    a(f's_mul_i32 s{sKVo}, s{sHead}, 163840', f's_mul_i32 s{sT0}, s{sG}, 1280', f's_add_u32 s{sKVo}, s{sKVo}, s{sT0}', f's_add_u32 s{sKVo}, s{sKVo}, {WS_KV}')
    a(f's_add_u32 s{sMK}, s{sT0}, {L_K}', f's_mul_i32 s{sMV}, s{sG}, 1312', f's_add_u32 s{sMV}, s{sMV}, {L_V}')
    emit(kv(2))
    a.srd(W2, 16, 1728 * 1280)
    a.srd(WO, 8, 640 * 1280)
    a(f's_mul_i32 s{sR2}, s{sRG}, 27', f's_lshr_b32 s{sR2}, s{sR2}, 5')
    a(f's_mul_i32 s{sT0}, s{sG}, 27', f's_add_u32 s{sT0}, s{sT0}, s{sR2}', f's_mul_i32 s{sW2}, s{sT0}, {16*1280}', f's_mul_i32 s{sWo}, s{sG}, {160*1280}')
    a(f's_mul_i32 s{sH0}, s{sRow}, {108*1024}', f's_lshl_b32 s{sT0}, s{sT0}, 10', f's_add_u32 s{sH0}, s{sH0}, s{sT0}', f's_add_u32 s{sH0}, s{sH0}, {WS_H}',
      f's_cmp_eq_u32 s{sOwn}, 0', CSEL(sH1, 108 * 1024, -108 * 1024))
    a(f's_lshl_b32 s{sT3}, s{sRB}, 1', f's_add_u32 s{sT3}, s{sT3}, s{sOwn}', f's_lshl_b32 s{sT3}, s{sT3}, 4', f's_add_u32 s{sT3}, s{sT3}, s{sCG}', f's_lshl_b32 s{sT3}, s{sT3}, 7',
      f's_lshl_b32 s{sT1}, s{sKH}, 2', f's_add_u32 s{sT3}, s{sT3}, s{sT1}', f's_add_u32 s{sT3}, s{sT3}, {WS_FH}', f'v_mov_b32 v{tmp+1}, s{sTag}',
      f'v_min_u32 v{tmp}, 27, v0', f'v_and_b32 v1, 1, v{tmp}', 'v_lshlrev_b32 v1, 2, v1', f'v_lshrrev_b32 v{tmp}, 1, v{tmp}', f'v_lshl_add_u32 v1, v{tmp}, 7, v1')
    a(f'v_add_u32 v{tmp+2}, s{sReg}, v{vL16}', 's_bitcmp1_b32 s2, 0', CSEL(sT0, 20480, 30720), f's_xor_b32 s{sT1}, s{sG}, 1', f's_mul_i32 s{sT1}, s{sT1}, s{sT0}',
      f'v_add_u32 v{tmp+3}, s{sT1}, v{vL16}', f'v_xor_b32 v{tmp+4}, 64, v{vRes}', 's_setprio 0')
    vm0 = list(a.vm)
    a('s_bitcmp1_b32 s2, 0', 's_cbranch_scc1 L_p2_2')

    def phase2(NT):
        PITCH, STEP, NPAIR = 64 * NT, 1024 * NT, 27 * NT
        a.label(f'L_p2_{NT}')
        a.vm = list(vm0)
        b0 = OPT.get('b0')
        bcnt = [1]
        def barB():
            c = bcnt[0]; bcnt[0] += 1
            rec = b0 is not None and b0 <= c < b0 + 6
            if rec:
                a.lock = None; a.stamp(2 + 2 * (c - b0))
            bar()
            if rec:
                a.stamp(3 + 2 * (c - b0))
            if b0 is not None:
                a.lock = tuple(range(2, 14))
        if b0 is not None:
            a.lock = tuple(range(2, 14))
        def wrap(d, base, st, scale):
            return [f's_cmp_ge_u32 s{sR2}, {27-st}', f's_cselect_b32 s{d}, {27*scale}, 0', f's_sub_u32 s{d}, s{base}, s{d}', f's_add_u32 s{d}, s{d}, {st*scale}']
        def stage(srd, pre, voff, tg):
            assert 'm0' not in pre[-1]
            return [(pre if i == 0 else [], f'buffer_load_dwordx4 v{voff+i}, s[{srd}:{srd+3}], s{sT0} offen offset:{1024*i} lds', tg, False) for i in range(NT)]
        slotm0 = lambda slot: [f's_add_u32 m0, s{sReg}, {slot*STEP}']
        def f2B(st):
            return stage(W2, slotm0(st % 4) + wrap(sT0, sW2, st, 16 * 1280), vW, ('fb', st))
        def f2A(st):
            return [(wrap(sT1, sH0, st, 1024), f'buffer_load_dwordx4 {v(AF[st%4],4)}, v{vL16}, {WS}, s{sT1} offen sc1', ('fa', st), False),
                    ([f's_add_u32 s{sT1}, s{sT1}, s{sH1}'], f'buffer_load_dwordx4 {v(AF[st%4]+4,4)}, v{vL16}, {WS}, s{sT1} offen sc1', ('fa', st), False)]
        def wo(slot):
            gl, i = divmod(slot, 5)
            return stage(WO, slotm0(slot) + [f's_add_u32 s{sT0}, s{sWo}, {(80*gl + (20*i if i < 4 else 0))*1280}'], vW if i < 4 else vWr, ('wo', slot))

        barB()
        emit(kv(3) + f2B(0))
        a.wait_vm('hst')
        a('s_mov_b64 exec, 1')
        a.vmem(f'buffer_store_dword v{tmp+1}, v1, {WS}, s{sT3} offen sc1', 'flag')
        a(FULL)
        a.stamp(6)
        a(f's_lshl_b32 s{sT3}, s{sRG}, 11', f's_add_u32 s{sT3}, s{sT3}, {WS_FH}', f's_mov_b32 s{sT2}, {SPIN}')
        a.wait_vm(('kv', 2))
        barB()
        emit(kv(4) + f2B(1) + f2B(2) + wo(4))
        if NT == 2:
            a.srd(RES, 4, 2621440)
            emit(stage(RES, [f's_lshl_b32 s{sT0}, s{sG}, 11', f's_add_u32 m0, s{sT0}, {L_XR}', f's_lshl2_add_u32 s{sT0}, s{sRG}, s{sG}', f's_mul_i32 s{sT0}, s{sT0}, {16*1280}'], vW, 'xr'))
            a.srd(RES, 18, 1280)
            emit(stage(RES, [f's_mov_b32 m0, {L_B2}', f's_mov_b32 s{sT0}, 0'], vW, 'xr')[:1])
        else:
            a(f's_cmp_eq_u32 s{sKH}, 0', f's_cselect_b32 s{RES}, s4, s18', f's_cselect_b32 s{RES+1}, s5, s19', CSEL(RES + 2, 2621440, 1280), f's_mov_b32 s{RES+3}, 0x00020000')
        poll2 = f'buffer_load_dword v{tmp}, v1, {WS}, s{sT3} offen sc1'
        a.vmem(poll2, 'poll')
        a.wait_vm(('kv', 3))
        barB()
        a('s_setprio 3')
        a.label(f'L_poll2_{NT}')
        a('s_waitcnt vmcnt(0)', f'v_cmp_ne_u32 vcc, s{sTag}, v{tmp}', 's_nop 1', 's_cmp_eq_u64 vcc, 0', f's_cbranch_scc1 L_poll2x_{NT}',
          f's_sub_u32 s{sT2}, s{sT2}, 1', f's_cbranch_scc1 L_poll2x_{NT}', backoff('s2'), poll2, f's_branch L_poll2_{NT}')
        a.label(f'L_poll2x_{NT}')
        a.vm = []
        a.stamp(7)
        a('s_setprio 0')
        emit(f2A(0) + kv(5) + f2A(1) + f2A(2) + wo(5))
        a(f's_lshl_b32 s{sT0}, s{sRG}, 10', f's_lshl_b32 s{sT1}, s{sOwn}, 4', f's_add_u32 s{sT0}, s{sT0}, s{sT1}', f's_add_u32 s{sT0}, s{sT0}, {WS_RS+8}')
        a.vmem(f'buffer_load_dword v{vR2}, v{vR2}, {WS}, s{sT0} offen sc1', 'res')

        LATE = NT == 3 and OPT.get('late', 0)
        def tr(b, c, base):
            ad, off = (vTr, base + 64 * c) if NT == 3 else (vTr2 if c else vTr, base)
            return [f'ds_read_b64_tr_b16 {v(BF[b],2)}, v{ad} offset:{off}', f'ds_read_b64_tr_b16 {v(BF[b]+2,2)}, v{ad} offset:{off+8*PITCH}']
        fq = []
        def need(tg):
            assert all(f[2] != tg for f in fq), tg
            a.wait_vm(tg)
        def f2tr(p):
            if p < NPAIR:
                st, c = divmod(p, NT)
                if c == 0:
                    need(('fb', st))
                a(tr(p % 3, c, (st % 4) * STEP))
        def f2_pairs(ps):
            for p in ps:
                st, c = divmod(p, NT)
                if c == 0:
                    if st + 3 < 27:
                        fq.extend(f2B(st + 3) + f2A(st + 3))
                    elif LATE:
                        fq.extend(wo((st - 1) % 4))
                    need(('fa', st))
                for t in range(2):
                    if t == 0:
                        a(f's_waitcnt lgkmcnt({2 if p + 1 < NPAIR else 0})')
                    a(M16(acc + 48 * t + 16 * c, BF[p % 3], AF[st % 4] + 4 * t, '0' if st == 0 else None))
                    if t == 0:
                        f2tr(p + 2)
                    n = -(-len(fq) // (2 * NT - 1))
                    emit(fq[:n]); del fq[:n]
        f2tr(0); f2tr(1)
        barB()
        E = 15 if LATE else OPT.get(f'ex{NT}', 14 if NT == 3 else 13)
        res, p = AF[0], 0
        for c in range(4, 16):
            if c + 2 < 16:
                fq.extend(kv(c + 2))
            if c in (6, 9, 12):
                fq.extend(wo(6 + (c - 6) // 3))
            if c == 14 and LATE:
                fq.extend(wo(9))
            if c <= E:
                left = E - c + OPT.get('lastw', 50 if LATE else 70) / 100
                n = NPAIR - p if c == E else round((NPAIR - p) / left)
                f2_pairs(range(p, p + n)); p += n
            if c == E and LATE:
                emit(fq + wo(2)); del fq[:]
                for gi in range(6):
                    a.vmem(f'buffer_load_dwordx4 {v(res+4*gi,4)}, v{vRes}, s[{RES}:{RES+3}], 0 offen offset:{32*gi}', 'res')
            elif c == E:
                emit(fq); del fq[:]
                a('s_nop 7', 's_nop 3')
                for i in range(4 * NT):
                    a(f'ds_write_b128 v{tmp+2}, {v(acc+48+4*i,4)} offset:{1024*i}')
                a('s_waitcnt lgkmcnt(0)')
            if c == E + 1:
                for i in range(4 * NT):
                    a(f'ds_read_b128 {v(acc+48+4*i,4)}, v{tmp+3} offset:{1024*i}')
                if NT == 2:
                    for gi in range(4):
                        a(f'ds_read_b128 {v(res+4*gi,4)}, v{tmp+4 if gi >= 2 else vRes} offset:{32*(gi&1)}')
                else:
                    for gi in range(6):
                        a.vmem(f'buffer_load_dwordx4 {v(res+4*gi,4)}, v{vRes}, s[{RES}:{RES+3}], 0 offen offset:{32*gi}', 'res')
            if c == max(E + 1, 14):
                fq.extend(wo(9))
            if c == E + 2:
                fq.extend(wo(0) + wo(1) + wo(2) + wo(3))
            if c > E:
                emit(fq); del fq[:]
                a('s_waitcnt lgkmcnt(0)')
            need(('kv', c + 1))
            if c == 10: a.stamp(8)
            barB()
            if c == 10: a.stamp(9)
        assert p == NPAIR
        if E == 14:
            emit(wo(0) + wo(1) + wo(2) + wo(3))
        OF = acc + 48
        assert OF + 80 <= tmp
        sO0, sO1, OUT = sH0, sH1, W2
        a.srd(OUT, 20, 2621440)
        a(f's_mul_i32 s{sO0}, s{sRow}, 40960', f's_add_u32 s{sO0}, s{sO0}, {WS_O}', f's_lshl_b32 s{sT0}, s{sKH}, 12', f's_add_u32 s{sO1}, s{sO0}, s{sT0}',
          f's_add_u32 s{sO1}, s{sO1}, 32768', f's_lshl_b32 s{sT0}, s{sKH}, 14', f's_add_u32 s{sO0}, s{sO0}, s{sT0}')
        a(f's_lshl_b32 s{sT3}, s{sRow}, 12', f's_lshl_b32 s{sT0}, s{sKH}, {11-FOS}', f's_add_u32 s{sT3}, s{sT3}, s{sT0}', f's_add_u32 s{sT3}, s{sT3}, {WS_FO}', f's_mov_b32 s{sT2}, {SPIN}')
        for k in range(1, 4):
            a(f's_add_u32 s{WO+k}, s{sO0}, {4096*k}')
        a(f's_mov_b32 s{WO}, s{sO0}', f's_add_u32 s67, s{sCol}, {32*1280}', f's_mul_i32 s43, s{sOwn}, {10*STEP}', f's_mul_i32 s44, s{sG}, 10240', f's_add_u32 s44, s44, {L_FX}',
          f's_xor_b32 s45, s{sG}, 2', f's_mul_i32 s45, s45, 10240', f's_add_u32 s45, s45, {L_FX}')
        a.drain_vm()
        a.stamp(10)
        bar()
        poll3 = f'buffer_load_dword v{tmp}, v1, {WS}, s{sT3} offen sc1'
        a(f'v_bfe_u32 v1, v0, {FOS}, {4-FOS}', 'v_lshlrev_b32 v1, 7, v1', f'v_and_b32 v{tmp}, {(1<<FOS)-1}, v0', f'v_lshl_add_u32 v1, v{tmp}, 2, v1', poll3)
        if LATE:
            a(f's_xor_b32 s46, s{sG}, 1', 's_mul_i32 s46, s46, 10240', f's_add_u32 s46, s46, {L_FX}', f'v_add_u32 v{tmp+2}, s44, v{vL16}', f'v_add_u32 v{tmp+3}, s46, v{vL16}')
            for i in range(10):
                a(f'ds_write_b128 v{tmp+2}, {v(acc+48+4*i,4)} offset:{1024*i}')
            a('s_waitcnt lgkmcnt(0)', 's_barrier')
            for i in range(10):
                a(f'ds_read_b128 {v(acc+48+4*i,4)}, v{tmp+3} offset:{1024*i}')
            for i in range(2):
                a(f'ds_write_b128 v{tmp+3}, {v(acc+88+4*i,4)} offset:{1024*i}')
            a('s_waitcnt lgkmcnt(0)', 's_barrier')
            for i in range(2):
                a(f'ds_read_b128 {v(acc+88+4*i,4)}, v{tmp+2} offset:{1024*i}')
        a(f'v_subrev_u32 v{vTr}, s43, v{vTr}', f'v_subrev_u32 v{vTr2}, s43, v{vTr2}', f'v_add_u32 v{tmp+2}, s44, v{vL16}', f'v_add_u32 v{tmp+3}, s45, v{vL16}', f'v_mul_f32 v{vR2}, v{vR2}, v{vR2}')
        for j in range(8 * NT):
            if LATE and j == 20:
                a('s_waitcnt lgkmcnt(0)')
            a(f'v_pk_add_f32 {v(acc+2*j,2)}, {v(acc+2*j,2)}, {v(acc+48+2*j,2)}', f'v_lshlrev_b32 v{vR2+1}, 16, v{res+j}', f'v_and_b32 v{vR2+2}, 0xffff0000, v{res+j}',
              f'v_fma_f32 v{acc+2*j}, v{acc+2*j}, v{vR2}, v{vR2+1}', f'v_fma_f32 v{acc+2*j+1}, v{acc+2*j+1}, v{vR2}, v{vR2+2}')
        TWO = OPT.get(f'two{NT}', 0)
        ORD = (0, 2, 1, 3) if TWO else (0, 1, 2, 3)
        pos = lambda i: (5 * ORD[i // 5] + i % 5) * STEP
        def oload(i):
            k, j = ORD[i // 5], i % 5
            if j < 4:
                a.vmem(f'buffer_load_dwordx4 {v(OF+4*i,4)}, v{vL16}, {WS}, s{WO+k} offen offset:{j*1024} sc1', ('o', i))
            else:
                a.vmem(f'buffer_load_dwordx2 {v(OF+4*i,2)}, v{vL8}, {WS}, s{sO1} offen offset:{1024*k} sc1', ('o', i))
                a.vmem(f'buffer_load_dwordx2 {v(OF+4*i+2,2)}, v{vL8}, {WS}, s{sO1} offen offset:{1024*k+512} sc1', ('o', i))
        def flags(lab, mask):
            a.label(f'L_p{lab}')
            a('s_waitcnt vmcnt(0)', f'v_cmp_ne_u32 vcc, s{sTag}, v{tmp}', 's_nop 1', f's_and_b32 s{sT0}, vcc_lo, {hex(mask)}', f's_cbranch_scc0 L_g{lab}',
              f's_sub_u32 s{sT2}, s{sT2}, 1', f's_cbranch_scc1 L_g{lab}', backoff('s3'), poll3, f's_branch L_p{lab}')
            a.label(f'L_g{lab}')
            a.vm = []
        LA = 10 if TWO else OPT.get('la', 8)
        a(f's_cmp_eq_u32 s{sKH}, 0', f's_cbranch_scc0 L_hi{NT}')
        lo, hi = tuple(range(NT - 1)), (NT - 1,)
        for nm, send, keep in (('lo', hi, lo), ('hi', lo, hi)):
            nm = f'{nm}{NT}'
            a.label(f'L_{nm}')
            seq = [(i, c) for i in range(20) for c in send + keep]
            for q in range(3):
                a(tr(q, seq[q][1], pos(seq[q][0])))
            flags('a' + nm, 0x0f0f if TWO else 0xffff)
            a.stamp(11)
            for i in range(LA):
                oload(i)
            if TWO:
                a.vmem(poll3, 'poll')
                a(f's_mov_b32 s{sT2}, {SPIN}')
            nl = LA
            for q, (i, c) in enumerate(seq):
                if q % NT == 0:
                    if TWO and i == TWO:
                        flags('b' + nm, 0xf0f0)
                        for _ in range(OPT.get('lb', 4)):
                            oload(nl); nl += 1
                    a.wait_vm(('o', i))
                a(f's_waitcnt lgkmcnt({2*min(2, len(seq)-1-q)})', M16(acc + 16 * c, BF[q % 3], OF + 4 * i))
                if q + 3 < len(seq):
                    a(tr(q % 3, seq[q + 3][1], pos(seq[q + 3][0])))
                if q % NT < 2 and nl < 20 and i >= TWO:
                    oload(nl); nl += 1
            a.stamp(12)
            a(f's_nop {11 - 2*(NT-1)}')
            for k, c in enumerate(send):
                for i in range(4):
                    a(f'ds_write_b128 v{tmp+2}, {v(acc+16*c+4*i,4)} offset:{4096*k+1024*i}')
            a('s_waitcnt lgkmcnt(0)', 's_barrier')
            for k, c in enumerate(keep):
                for i in range(4):
                    a(f'ds_read_b128 {v(OF+16*k+4*i,4)}, v{tmp+3} offset:{4096*k+1024*i}')
            for k, c in enumerate(keep):
                r = acc + 16 * c
                for hf in range(2):
                    a(f's_waitcnt lgkmcnt({4*(len(keep)-1-k) + 2*(1-hf)})')
                    for e in range(8 * hf, 8 * hf + 8, 2):
                        a(f'v_pk_add_f32 {v(r+e,2)}, {v(r+e,2)}, {v(OF+16*k+e,2)}')
                    for e in range(4):
                        a(CVT(r + 8 * hf + e, r + 8 * hf + 2 * e))
                a('s_nop 1')
                for e in range(4):
                    a(f'v_permlane16_swap_b32 v{r+e}, v{r+8+e}')
                a(f'buffer_store_dwordx4 {v(r,4)}, v{vOut}, s[{OUT}:{OUT+3}], s{sCol} offen offset:{64*c} sc1', f'buffer_store_dwordx4 {v(r+8,4)}, v{vOut}, s[{OUT}:{OUT+3}], s67 offen offset:{64*c} sc1')
            if nm == 'hi3':
                a(f's_or_b32 s{sT0}, s2, s{sOwn}', 's_cbranch_scc1 L_noep')
                a(f'v_mov_b32 v1, s{sTag}', f'v_mov_b32 v{tmp}, 0', f's_mov_b32 s{sT0}, {WS_EP}', 's_mov_b64 exec, 1', f'buffer_store_dword v1, v{tmp}, {WS}, s{sT0} offen sc1')
                a.label('L_noep')
            if Asm.diag:
                a.stamp(13)
                a('s_waitcnt vmcnt(0)')
                a.dump(0, sW, 24)
            a('s_endpgm')

    phase2(3)
    phase2(2)
    a.label('L_done')
    a('s_endpgm')
    return kernel_header(name) + a.text(), kernel_desc(name, 168, 70)
```

```python
from asmlib import *
import struct, math

def fbits(x):
    return hex(struct.unpack('<I', struct.pack('<f', x))[0])

WS_Q   = 0x000000
WS_KV  = 0x280000
WS_H   = 0x780000
WS_O   = 0xE40000
WS_RS  = 0x10C0000
WS_CS  = 0x10C8000
WS_F1  = 0x10D0000
WS_FH  = 0x10E0000
WS_FO  = 0x1100000
WS_EP  = 0x1140000
WS_END = 0x1141000

L_V = 122368
L_K = 143360
L_MEAN, L_ISTD, L_RSTD = 158720, 159232, 159744
L_TAG = 160256
L_Q0, L_Q1 = 114688, 161024
L_XR, L_B2 = 81920, 90112
L_FX = 122880
LDS_BYTES = 163840
FAR = 0x30000

QSCALE = 20 ** -0.5 * math.log2(math.e)
MAXOFF = 96.0
SPIN = 0x20000
OPT = {}

sW, sRB, sCG, sHead, sQB, sTag, sT0, sT1, sT2, sT3 = range(28, 38)
WS = 's[24:27]'


def gen(name):
    a = Asm()
    NA, NB, NE = 5, 4, OPT.get('ne', 3)
    L_A, L_B = 16384 * NB, 0
    SP = OPT.get('sp', 5)
    JOBS = [('Q', c) for c in range(SP)] + [('F', c) for c in range(SP - NE, SP)] + [('Q', c) for c in range(SP, 10)] + [('F', c) for c in range(5, 15 - NE)]
    REL = list(range(SP - NE)) + list(range(SP, 5))
    kof = lambda c: c if c < 10 else REL[c - 10]
    slotA = lambda c: (c + NE - 2) % NA
    slotB = lambda j: j % NB
    QE = 10 + NE
    KVB = 17
    SKIP = {0: (QE + 1, QE + 3), 1: (), 2: (QE + 1,), 3: (QE + 1, QE + 3, QE + 5), 4: (QE + 1, QE + 2), 5: (QE + 2, QE + 3)}[OPT.get('skip', 4)]
    def pbar(c):
        if c not in SKIP:
            bar()
    bar = lambda: a('s_barrier')

    a.c('One launch, 256 workgroups of 12 waves. Phase 1: x @ [wqkv | w1] on raw x with the LayerNorm applied as a rank-2 correction')
    a.c('(-mean x column sum, std x bias) and a per-row scale. Phase 2: attention for one head x 256 queries (waves 0..7) while waves 8..11')
    a.c('stream K/V and run the second FFN GEMM. Last stage: output projection into the same accumulators, residual, store.')
    a.c('Hand-offs between workgroups go through d_ws with write-through stores; flags and statistics carry a tag that differs from')
    a.c("the previous launch's tag.")
    a('s_cmp_ge_u32 s2, 256', 's_cbranch_scc1 L_done')
    a.stamp(0); a.stamp(1, True)
    a('s_load_dwordx8 s[4:11], s[0:1], 0', 's_load_dwordx8 s[12:19], s[0:1], 32', 's_load_dwordx2 s[20:21], s[0:1], 64', 's_load_dwordx2 s[22:23], s[0:1], 80')
    a('v_lshrrev_b32 v1, 6, v0', 'v_and_b32 v0, 63, v0', f'v_readfirstlane_b32 s{sW}, v1')
    if OPT.get('map', 1) == 0:
        a(f's_bfe_u32 s{sT2}, s2, 0x20001', f's_lshr_b32 s{sCG}, s2, 6', f's_lshl2_add_u32 s{sCG}, s{sT2}, s{sCG}',
          f's_bfe_u32 s{sT1}, s2, 0x30003', f's_and_b32 s{sT3}, s2, 1', f's_lshl3_add_u32 s{sRB}, s{sT3}, s{sT1}')
    else:
        T = [[(0, 1, 2, 3), (8, 9, 10, 15), (4, 5, 6, 7), (11, 12, 13, 14)], [(8, 9, 10, 15), (0, 1, 2, 3), (11, 12, 13, 14), (4, 5, 6, 7)]][OPT.get('map', 1) - 1]
        w = lambda q: hex(sum(c << (4 * i) for i, c in enumerate(T[q] + T[q + 1])))
        a(f's_and_b32 s{sT2}, s2, 3', f's_lshr_b32 s{sCG}, s2, 6', f's_lshl2_add_u32 s{sCG}, s{sT2}, s{sCG}', f's_lshl_b32 s{sCG}, s{sCG}, 2',
          f's_bitcmp0_b32 s2, 1', CSEL(sT0, w(0), w(2)), f's_lshr_b32 s{sCG}, s{sT0}, s{sCG}', f's_and_b32 s{sCG}, s{sCG}, 15',
          f's_bfe_u32 s{sT1}, s2, 0x30003', f's_bfe_u32 s{sT3}, s2, 0x10002', f's_lshl3_add_u32 s{sRB}, s{sT3}, s{sT1}')
    a(f's_cmp_lt_u32 s{sW}, 4', 's_cbranch_scc1 L_x', f's_cmp_ge_u32 s{sW}, 8', 's_cbranch_scc1 L_helper')
    def decode2():
        a(f's_and_b32 s{sHead}, s2, 7', f's_bfe_u32 s{sQB}, s2, 0x20003', f's_lshl2_add_u32 s{sHead}, s{sHead}, s{sQB}', f's_lshr_b32 s{sQB}, s2, 5')

    jn = [0]
    def jitter():
        if not OPT.get('jit'):
            return
        jn[0] += 1
        a(f's_mul_i32 s100, s2, {37 + 2 * jn[0] * OPT["jit"]}', f's_mul_i32 s101, s{sW}, {11 + 6 * jn[0]}', 's_add_u32 s100, s100, s101', 's_lshr_b32 s100, s100, 2', 's_and_b32 s100, s100, 15')
        a.label(f'L_j{jn[0]}')
        a('s_sleep 6', 's_sub_u32 s100, s100, 1', f's_cbranch_scc0 L_j{jn[0]}')
    def backoff(key):
        n = OPT.get(key, {'s3': 2}.get(key, 8))
        return [f's_sleep {n}'] if n else []
    def ws_setup():
        a.srd(24, 22, WS_END)
    def lds_tag(t):
        a(f'v_mov_b32 v{t}, {L_TAG}', f'ds_read_b32 v{t}, v{t}', 's_waitcnt lgkmcnt(0)', f'v_readfirstlane_b32 s{sTag}, v{t}')
    def f1_off(d, t, n, m):
        a(f's_lshl_b32 s{d}, s{sCG}, 1', f's_add_u32 s{d}, s{d}, s{n}', f's_lshl_b32 s{d}, s{d}, 10', f's_lshr_b32 s{t}, s{sRB}, 1', f's_lshl_b32 s{t}, s{t}, 7',
          f's_add_u32 s{d}, s{d}, s{t}', f's_add_u32 s{d}, s{d}, {WS_F1}')
        if m is not None:
            a(f's_and_b32 s{t}, s{sRB}, 1', f's_lshl_b32 s{t}, s{t}, 1', f's_add_u32 s{t}, s{t}, s{m}', f's_lshl_b32 s{t}, s{t}, 2', f's_add_u32 s{d}, s{d}, s{t}')

    SD = 48
    SX = 122

    sL, sOA, sOB, sSlot, sMA, sMB, sCnt, sBstep = range(40, 48)
    XA, WB = 48, 52
    vA1, vB1, vB2 = 8, 12, 16
    vA2 = vA1
    sRot, sRB1 = 47, 46
    a.c('waves 4..7: stream activation and weight chunks into the LDS rings')
    a('s_setprio 3', f's_and_b32 s{sL}, s{sW}, 3')
    if 'rw' not in OPT:
        a(f's_lshl1_add_u32 s{sRot}, s{sT2}, s{sT1}', f's_mul_i32 s{sRot}, s{sRot}, 5', f's_lshl1_add_u32 s{sRot}, s{sT3}, s{sRot}', f's_lshr_b32 s{sRot}, s{sRot}, 2',
          f's_cmp_ge_u32 s{sRot}, 10', f's_cselect_b32 s{sT0}, 10, 0', f's_sub_u32 s{sRot}, s{sRot}, s{sT0}')
    else:
        wr, wc, wh, wp = [(5, 20, 2, 5), (5, 4, 2, 10), (5, 10, 2, 3), (5, 2, 2, 10), (2, 2, 20, 10), (3, 0, 20, 10), (5, 0, 2, 0), (10, 0, 5, 10),
                          (20, 0, 10, 10), (20, 0, 10, 5), (10, 0, 5, 20), (10, 2, 5, 10), (13, 0, 7, 10), (10, 0, 0, 10), (10, 20, 5, 10)][OPT['rw']]
        a(f's_mul_i32 s{sRot}, s{sT1}, {wr}', f's_lshr_b32 s{sT0}, s2, 6', f's_mul_i32 s{sT0}, s{sT0}, {wc}', f's_add_u32 s{sRot}, s{sRot}, s{sT0}', f's_mul_i32 s{sT0}, s{sT3}, {wh}',
          f's_add_u32 s{sRot}, s{sRot}, s{sT0}', f's_mul_i32 s{sT0}, s{sT2}, {wp}', f's_add_u32 s{sRot}, s{sRot}, s{sT0}', f's_lshr_b32 s{sRot}, s{sRot}, 2',
          f's_mul_i32 s{sT0}, s{sRot}, 26', f's_lshr_b32 s{sT0}, s{sT0}, 8', f's_mul_i32 s{sT0}, s{sT0}, 10', f's_sub_u32 s{sRot}, s{sRot}, s{sT0}')
    a('v_lshrrev_b32 v1, 3, v0', 'v_lshrrev_b32 v2, 4, v0', 'v_and_b32 v3, 7, v0', 'v_xor_b32 v3, v3, v2')
    a(f's_lshr_b32 s{sT0}, s{sL}, 1', f's_lshl1_add_u32 s{sT0}, s{sRB}, s{sT0}', f's_lshl_b32 s{sT0}, s{sT0}, 6', f's_and_b32 s{sT1}, s{sL}, 1', f's_add_u32 s{sT0}, s{sT0}, s{sT1}',
      f's_mul_i32 s{sOA}, s{sT0}, 10', f's_add_u32 s{sOA}, s{sOA}, s{sRot}', f's_lshl_b32 s{sOA}, s{sOA}, 7', f's_lshl_b32 s{sT1}, s{sT1}, 2')
    a(f'v_xor_b32 v3, s{sT1}, v3', 'v_mul_u32_u24 v5, 0xa0, v1', 'v_xor_b32 v4, 4, v3', f'v_add_lshl_u32 v{vA1}, v5, v3, 4', 'v_add_lshl_u32 v4, v5, v4, 4')
    a(f'v_add_u32 v{vA1+1}, {20480-1024}, v4', f'v_add_u32 v{vA1+2}, {2*(20480-1024)}, v{vA1}', f'v_add_u32 v{vA1+3}, {3*(20480-1024)}, v4')
    sCL = 45
    a(f's_cmp_lt_u32 s{sCG}, 15', f's_cselect_b32 s{XA+2}, 2621440, 0', f's_cselect_b32 s{sCL}, s{sCG}, s{sRB}', f's_mov_b32 s{XA+3}, 0x00020000', f's_lshl_b32 s{sMA}, s{sL}, 12')
    def koff(k, base, scale):
        if k == 0:
            return [f's_mov_b32 s{sT0}, s{base}']
        return [f's_cmp_ge_u32 s{sRot}, {10-k}', f's_cselect_b32 s{sT0}, {10*scale}, 0', f's_sub_u32 s{sT0}, s{base}, s{sT0}', f's_add_u32 s{sT0}, s{sT0}, {scale*k}']
    WF = 56
    firstA = {}
    lastA = {}
    for j, (t, c) in enumerate(JOBS):
        firstA.setdefault(c, j); lastA[c] = j
    def ldA(c, lo=0, hi=4):
        a(f's_add_u32 m0, s{sMA}, {L_A + slotA(c) * 16384}', koff(kof(c), sOA, 128))
        for i in range(lo, hi):
            a.vmem(f'buffer_load_dwordx4 v{vA1+i}, s[{XA}:{XA+3}], s{sT0} offen offset:{1024*i} lds', ('c', firstA[c]))
    SUMS = [('Q', c) for c in range(10)] + [('F', c) for c in range(10)]
    def ldB(j, lo=0, hi=4, JOBS=JOBS):
        q = JOBS[j][0] == 'Q'
        a(f's_add_u32 m0, s{sMA}, {L_B + slotB(j) * 16384}', koff(kof(JOBS[j][1]), sOB if q else sRB1, 64 * (3840 if q else 3456)))
        for i in range(lo, hi):
            d = WB if q else WF
            a.vmem(f'buffer_load_dwordx4 v{(vB1 if q else vB2)+i}, s[{d}:{d+3}], s{sT0} offen offset:{1024*i} lds', ('c', j))

    a.vm = []
    a('s_waitcnt lgkmcnt(0)', f's_mov_b32 s{XA}, s4', f's_mov_b32 s{XA+1}, s5')
    if OPT.get('zst'): a.stamp(4)
    ldA(0)
    a('v_and_b32 v6, 15, v0', 'v_lshlrev_b32 v7, 2, v2', 'v_xor_b32 v6, v6, v7', 'v_mul_u32_u24 v7, 0xf0, v2', f'v_add_lshl_u32 v{vB1}, v7, v6, 4')
    for i in range(1, 4):
        a(f'v_add_u32 v{vB1+i}, {i*(4*3840-1024)}, v{vB1}')
    a(f's_lshl2_add_u32 s{sT1}, s{sRot}, s{sL}', f's_mul_i32 s{sOB}, s{sT1}, {16*3840}', f's_lshl_b32 s{sT2}, s{sCL}, 8', f's_add_u32 s{sOB}, s{sOB}, s{sT2}',
      f's_cmp_lt_u32 s{sCL}, 15', f's_cselect_b32 s{WB+2}, {640*3840}, 0', f's_mov_b32 s{WB}, s6', f's_mov_b32 s{WB+1}, s7', f's_mov_b32 s{WB+3}, 0x00020000')
    a.label('L_p0')
    ldB(0)
    if OPT.get('zst'): a.stamp(5)
    ldA(1); ldB(1)
    if OPT.get('zst'):
        a.stamp(6); a('s_waitcnt vmcnt(8)'); a.stamp(7)
    a('s_setprio 0')
    ws_setup()
    decode2()
    a(f's_mul_i32 s{sRB1}, s{sT1}, {16*3456}', f's_add_u32 s{sRB1}, s{sRB1}, s{sT2}', 'v_mul_u32_u24 v7, 0xd8, v2', f'v_add_lshl_u32 v{vB2}, v7, v6, 4')
    for i in range(1, 4):
        a(f'v_add_u32 v{vB2+i}, {i*(4*3456-1024)}, v{vB2}')
    a(f's_cmp_lt_u32 s{sCL}, 14', f's_cselect_b32 s{WF+2}, {640*3456}, 0', f's_mov_b32 s{WF}, s12', f's_mov_b32 s{WF+1}, s13', f's_mov_b32 s{WF+3}, 0x00020000')
    vm1 = list(a.vm)
    if OPT.get('so', 1):
        a(f's_cmp_eq_u32 s{sCG}, 15', 's_cbranch_scc1 L_z_sum')
    units = []
    for j in range(2, 20):
        c = JOBS[j][1]
        if firstA[c] == j:
            units.append((j, lastA[c - NA] + 1 if c >= NA else 0, 'A', c))
        units.append((j, j - NB + 1, 'B', j))
    c0 = OPT.get('c0', 99)
    bars = [c for c in range(20) if c not in SKIP]
    part = {}
    hold = {QE - 1: 0, QE + 3: OPT.get('b3', 2), QE + 4: OPT.get('b4', 3)}
    for n, c in enumerate(bars):
        nxt = bars[n + 1] if n + 1 < len(bars) else 20
        rec = c0 <= c < c0 + 4
        if c == 19:
            break
        if rec: a.stamp(2 + 3 * (c - c0))
        assert all(u[0] >= nxt for u in units), (c, units[:2])
        a.wait_vm(*[('c', x) for x in range(c, nxt)])
        if rec: a.stamp(3 + 3 * (c - c0))
        if OPT.get('zst') and c == 0:
            a.stamp(8); a.lock = (7, 8)
        bar()
        if rec: a.stamp(4 + 3 * (c - c0))
        nn = bars[n + 2] if n + 2 < len(bars) else 20
        must = max(nn, c + 3) if c < QE else nn
        budget = OPT.get('bq', 7) if c < QE else 4 * hold.get(c, 2 if nxt == c + 1 else 3)
        for u in list(units):
            if u[1] <= c and (budget > 0 or u[0] < must):
                lo = part.get(u, 0)
                hi = 4 if u[0] < must else min(4, lo + budget)
                if u[2] == 'A' and u[3] == 10:
                    a(f's_cmp_lt_u32 s{sCG}, 14', f's_cselect_b32 s{XA+2}, 2621440, 0')
                (ldA if u[2] == 'A' else ldB)(u[3], lo, hi); budget -= hi - lo; part[u] = hi
                if hi == 4:
                    units.remove(u)
                if Asm.diag: a.c(f'after P({c}): {u[2]}{u[3]} {lo}:{hi}')
    assert not units
    zvm = list(a.vm)
    a('s_branch L_attn_z')

    R = Regs(2)
    vH, vTok = R(), R()
    vAa = R(4); vBa = R(2)
    F = [(R(8), R(8)), (R(8), R(8))]
    FR = F[0][0]
    acc = R(64)
    tmp = R(16)
    vCx = tmp + 14
    sCs, sLd = 58, 59
    sM, sN, sDA, sDB, sSA, sSB = range(40, 46)
    sCntC = 55
    sOff, sHS, sScale = 52, 53, 54

    sMask = 69
    def gemm_setup(wave_base, j0, cnt, maybe_v):
        a(f's_sub_u32 s{sN}, s{sW}, {wave_base}', f's_and_b32 s{sM}, s{sN}, 1', f's_lshr_b32 s{sN}, s{sN}, 1')
        a(f'v_lshrrev_b32 v{vH}, 5, v0', f'v_and_b32 v{vTok}, 31, v0', f'v_mov_b32 v{tmp}, v{vTok}')
        if maybe_v:
            a(f's_cmp_lt_u32 s{sCG}, 10', 's_cbranch_scc1 L_x_rows', f'v_and_b32 v1, 1, v0', f'v_lshrrev_b32 v{tmp}, 1, v{vTok}', f'v_lshl_add_u32 v{tmp}, v1, 5, v{tmp}')
            a.label('L_x_rows')
        a(f'v_bfe_u32 v1, v{tmp}, 1, 3', f'v_xor_b32 v1, v1, v{vH}', f'v_lshrrev_b32 v{tmp+1}, 5, v{tmp}', f'v_lshlrev_b32 v{tmp+1}, 2, v{tmp+1}', f'v_xor_b32 v1, v1, v{tmp+1}')
        a(f's_lshl_b32 s{sT0}, s{sM}, 13', f's_add_u32 s{sT0}, s{sT0}, {L_A+16384*slotA(JOBS[j0][1])}', f'v_lshlrev_b32 v{tmp}, 7, v{tmp}', f'v_add_u32 v{tmp}, s{sT0}, v{tmp}')
        for st in range(4):
            a(f'v_xor_b32 v{tmp+1}, {2*st}, v1', f'v_lshl_add_u32 v{vAa+st}, v{tmp+1}, 4, v{tmp}')
        a('v_lshrrev_b32 v1, 2, v0', 'v_and_b32 v1, 3, v1')
        a(f'v_lshl_add_u32 v{tmp}, v{vH}, 3, v1', f'v_lshlrev_b32 v{tmp}, 8, v{tmp}')
        a(f'v_and_b32 v{tmp+1}, 3, v0', f'v_lshl_add_u32 v{tmp}, v{tmp+1}, 3, v{tmp}')
        a(f'v_and_b32 v{tmp+1}, 16, v0', f'v_lshl_add_u32 v{tmp}, v{tmp+1}, 1, v{tmp}', f'v_add_u32 v{tmp}, {L_B+16384*slotB(j0)}, v{tmp}')
        a(f's_lshl_b32 s{sT0}, s{sN}, 1', f's_add_u32 s{sT0}, s{sT0}, s{sM}', f'v_xor_b32 v1, s{sT0}, v1')
        a(f's_lshl_b32 s{sT0}, s{sT0}, 8', f'v_lshl_add_u32 v{vCx}, v{vTok}, 3, s{sT0}', f'v_xor_b32 v{vCx+1}, 256, v{vCx}',
          f's_lshl_b32 s{sCs}, s{sCG}, 10', f's_add_u32 s{sCs}, s{sCs}, {WS_CS + (16384 if wave_base else 0)}', f's_mov_b32 s{sLd}, -1')
        a(f'v_lshl_add_u32 v{vBa}, v1, 6, v{tmp}', 'v_xor_b32 v1, 1, v1', f'v_lshl_add_u32 v{vBa+1}, v1, 6, v{tmp}')
        a(f's_mov_b32 s{sSA}, {slotA(JOBS[j0][1])}', f's_mov_b32 s{sSB}, {slotB(j0)}', f's_mov_b32 s{sCntC}, {cnt}', f's_mov_b32 s{sMask}, 0')

    def zero_acc(lo, hi):
        for i in range(lo, hi, 2):
            a(f'v_mov_b64 {v(acc+i,2)}, 0')

    def reads(st, f, swap):
        FA, FB = F[f]
        return [f'ds_read_b128 {v(FA,4)}, v{vAa+st}',
                f'ds_read_b64_tr_b16 {v(FB,2)}, v{vBa} offset:{4096*st}',
                f'ds_read_b64_tr_b16 {v(FB+2,2)}, v{vBa} offset:{4096*st+1024}',
                f'ds_read_b64_tr_b16 {v(FB+4,2)}, v{vBa+1} offset:{4096*st}',
                f'ds_read_b64_tr_b16 {v(FB+6,2)}, v{vBa+1} offset:{4096*st+1024}',
                f'ds_read_b128 {v(FA+4,4)}, v{vAa+st} offset:2048' if swap else f'ds_read_b128 {v(FA+4,4)}, v{vAa+(st^2)} offset:4096']

    def mfmas(f, swap):
        FA, FB = F[f]
        out = []
        for t, u in ((0, 0), (0, 1), (1, 1), (1, 0)):
            x, w = FA + 4 * t, FB + 4 * u
            out.append(M16(acc + 32 * t + 16 * u, x, w) if swap else M16(acc + 32 * t + 16 * u, w, x))
        return out

    CT, CF, CR = SX, SX + 4, SX + 8
    CS, vTg = [SX + 36, SX + 38], SX + 40
    csload = ['s_mov_b32 exec_hi, 0'] + [f'buffer_load_dwordx2 {v(CS[u],2)}, v{vCx+u}, {WS}, s{sCs} offen sc1' for u in range(2)] + ['s_mov_b32 exec_hi, -1']
    def colsum_setup():
        a(f'v_mov_b64 {v(CS[0],2)}, 0', f'v_mov_b64 {v(CS[1],2)}, 0', f'v_mov_b32 v{vTg}, {L_TAG}')
    def corr_split():
        out = []
        for t in range(2):
            out += [CVT(CT + 2 * t, CR + t, CR + t), CVT(CF + 2 * t, CS[t], CS[t])]
        for t in range(2):
            out += [f'v_and_b32 v{CR+4+t}, 0xffff0000, v{CT+2*t}', f'v_and_b32 v{CR+6+t}, 0xffff0000, v{CF+2*t}']
        for t in range(2):
            out += [f'v_sub_f32 v{CR+4+t}, v{CR+t}, v{CR+4+t}', f'v_sub_f32 v{CR+6+t}, v{CS[t]}, v{CR+6+t}']
        for t in range(2):
            out += [CVT(CT + 2 * t + 1, CR + 4 + t, CR + 4 + t), CVT(CF + 2 * t, CS[t], CR + 6 + t), CVT(CF + 2 * t + 1, CS[t], CR + 6 + t)]
        return out
    def corr_mfma(swap, c=None):
        out = []
        for t, u in ((0, 0), (0, 1), (1, 1), (1, 0)):
            x, w = CT + 2 * t, CF + 2 * u
            out.append(M8(acc + 32 * t + 16 * u, x, w, c) if swap else M8(acc + 32 * t + 16 * u, w, x, c))
        return out

    def mainloop(tagname, swap, pre_last, jp, jr, je, mid):
        a.label(f'L_ent_{tagname}')
        jitter()
        bar()
        a(reads(0, 0, swap))
        a.label(f'L_loop_{tagname}')
        for st in range(3):
            m = mfmas(st & 1, swap); rd = reads(st + 1, (st + 1) & 1, swap)
            a('s_waitcnt lgkmcnt(3)', m[0], rd[0:3], 's_waitcnt lgkmcnt(4)', m[1], rd[3:6], 's_waitcnt lgkmcnt(6)', m[2])
            if st == 0:
                a(f's_add_u32 s{sSA}, s{sSA}, 1', f's_cmp_eq_u32 s{sSA}, {NA}', CSEL(sDA, -16384*(NA-1), 16384), f's_cselect_b32 s{sSA}, 0, s{sSA}')
            if st == 1:
                a(f's_add_u32 s{sSB}, s{sSB}, 1', f's_cmp_eq_u32 s{sSB}, {NB}', CSEL(sDB, -16384*(NB-1), 16384), f's_cselect_b32 s{sSB}, 0, s{sSB}')
            if st == 2:
                a(f'v_add_u32 v{vAa}, s{sDA}, v{vAa}', f'v_add_u32 v{vBa}, s{sDB}, v{vBa}', f'v_add_u32 v{vBa+1}, s{sDB}, v{vBa+1}')
            a(m[3])
            if st == 0:
                a(f's_cmp_eq_u32 s{sCntC}, s{sLd}', f's_cbranch_scc1 L_ld_{tagname}')
                a.label(f'L_ldx_{tagname}')
            if st == 2:
                a(f's_sub_u32 s{sCntC}, s{sCntC}, 1')
                for r in (vAa + 1, vAa + 2, vAa + 3):
                    a(f'v_add_u32 v{r}, s{sDA}, v{r}')
        m = mfmas(1, swap); rd = reads(0, 0, swap)
        a(f's_cmp_eq_u32 s{sCntC}, 0', 's_waitcnt lgkmcnt(0)', f's_cbranch_scc1 L_last_{tagname}')
        mask = sum(1 << (je - c) for c in SKIP if jr < c < je)
        if mask:
            a(f's_bitcmp1_b32 s{sMask}, s{sCntC}', f's_cbranch_scc1 L_nob_{tagname}')
        a('s_barrier')
        a.label(f'L_nob_{tagname}')
        a(m[0], rd[0:3], m[1], rd[3:6], m[2], m[3], f's_branch L_loop_{tagname}')
        a.label(f'L_ld_{tagname}')
        a(csload, f's_branch L_ldx_{tagname}')
        a.label(f'L_pause_{tagname}')
        d = 16384 * (slotB(jr) - slotB(jp))
        a('s_barrier', m[0], f's_mov_b32 s{sMask}, {hex(mask | 1 << 31)}', m[1], f's_mov_b32 s{sSB}, {slotB(jr)}', m[2], f's_mov_b32 s{sCntC}, {je-jr}', m[3], f's_mov_b32 s{sLd}, {OPT.get("ld" + tagname[0], 2)}',
          f'v_add_u32 v{vBa}, {d}, v{vBa}', f'v_add_u32 v{vBa+1}, {d}, v{vBa+1}')
        d = 16384 * (slotA(JOBS[jr][1]) - slotA(SP))
        if d:
            a(f's_mov_b32 s{sSA}, {slotA(JOBS[jr][1])}', [f'v_add_u32 v{vAa+i}, {d}, v{vAa+i}' for i in range(4)])
        mid()
        a.label(f'L_last_{tagname}')
        a(f's_bitcmp0_b32 s{sMask}, 31', f's_cbranch_scc1 L_pause_{tagname}')
        sp = corr_split()
        if je == QE:
            bar()
        a(f'ds_read_b32 v{vTg}, v{vTg}', pre_last[:1], m[0], pre_last[1:], m[1], f's_mov_b32 s{sLd}, {SPIN}', f's_waitcnt lgkmcnt({len(pre_last)-1})')
        tok = [x for x in sp if not any(f'v{r}' in x.replace(',', ' ').split() for r in (CF, CF + 1, CF + 2, CF + 3, CS[0], CS[1]))]
        col = [x for x in sp if x not in tok]
        a(tok[:5], m[2], tok[5:])
        a.label(f'L_cs_{tagname}')
        a('s_waitcnt vmcnt(0)', f'v_cmp_ne_u32 vcc, v{vTg}, v{CS[0]+1}', f'v_cmp_ne_u32 s[46:47], v{vTg}, v{CS[1]+1}', 's_nop 1', 's_or_b32 vcc_lo, vcc_lo, s46', f's_cbranch_scc0 L_csx_{tagname}',
          f's_sub_u32 s{sLd}, s{sLd}, 1', f's_cbranch_scc1 L_csx_{tagname}', backoff('s0'), csload, f's_branch L_cs_{tagname}')
        a.label(f'L_csx_{tagname}')
        a(m[3], col, 's_nop 1', corr_mfma(swap))
        a.stamp(4)

    a.label('L_x')
    a.c('waves 0..3: QKV projection tile (128 tokens x 128 columns)')
    if OPT.get('cpf', 1):
        a('s_getpc_b64 s[40:41]')
        a.label('L_pc')
        a('s_lshr_b32 s42, s2, 3', f's_lshl2_add_u32 s42, s42, s{sW}', 's_mul_i32 s42, s42, 384', 's_sub_u32 s40, s40, L_pc-L_p0', 's_subb_u32 s41, s41, 0', f's_mov_b32 s43, L_done-L_p0', 'v_lshlrev_b32 v2, 7, v0', 'v_add_u32 v2, s42, v2', 'v_min_u32 v2, s43, v2',
          'v_mov_b32 v3, s41', 'v_add_co_u32 v2, vcc, s40, v2', 's_mov_b64 exec, 7', 's_nop 0', 'v_addc_co_u32 v3, vcc, 0, v3, vcc',
          'global_load_dword v167, v[2:3], off', 's_mov_b64 exec, -1')
    decode2()
    XBAR = {0: (1, 4), 1: (1, 3, 5), 2: (0, 2, 5), 3: (2, 5), 4: (3,), 5: (2,), 6: (2, 6), 7: (), 8: (4,), 9: (5,), 10: (6,), 11: (0,), 12: (1,)}[OPT.get('xbar', 7)]
    XSIG = QE + OPT.get('xsig', 3)
    XP = QE + OPT.get('xp', 5)
    XB = [c for c in range(QE + 1, XP) if c not in SKIP]
    assert XP not in SKIP and XP >= KVB - 1 and XSIG < XP
    gemm_setup(0, 0, SP, True)
    a('s_waitcnt lgkmcnt(0)')
    ws_setup()
    zero_acc(0, 64)
    colsum_setup()
    vAd, vSa, vSb = tmp, tmp + 8, tmp + 9
    t0, t1, t2 = tmp + 10, tmp + 11, tmp + 12
    a(f's_cmp_ge_u32 s{sCG}, 10', 's_cbranch_scc1 L_x_v')
    a(f's_cmp_lt_u32 s{sCG}, 5',
      CSEL(sHS, 81920, 163840), f's_cselect_b32 s{sScale}, {fbits(QSCALE)}, 1.0',
      CSEL(sT0, 5120, 10240), CSEL(sOff, WS_Q, WS_KV), f's_cselect_b32 s{sT1}, 0, 5')
    a(f's_mul_i32 s{sT0}, s{sT0}, s{sRB}', f's_add_u32 s{sOff}, s{sOff}, s{sT0}',
      f's_mul_i32 s{sT0}, s{sM}, 2560', f's_add_u32 s{sOff}, s{sOff}, s{sT0}')
    a(f's_sub_u32 s{sT1}, s{sCG}, s{sT1}', f's_lshl_b32 s{sT1}, s{sT1}, 1', f's_add_u32 s{sT1}, s{sT1}, s{sN}', f's_lshl_b32 s{sT1}, s{sT1}, 4',
      f's_sub_u32 s{sHS}, s{sHS}, 2560')
    a(f's_lshl_b32 s{sT0}, s{sM}, 3', f's_add_u32 s{sT1}, s{sT1}, s{sT0}')
    for sl in range(2):
        if sl:
            a(f's_xor_b32 s{sT1}, s{sT1}, 8')
        a(f'v_add_u32 v1, s{sT1}, v{vH}', f'v_lshlrev_b32 v{t2}, 4, v{vTok}', f'v_lshl_add_u32 v{t2}, v1, 9, v{t2}', 'v_mul_u32_u24 v1, 205, v1')
        for q in range(4):
            a(f'v_add_u32 v{t0}, {2*q*205}, v1', f'v_lshrrev_b32 v{t0}, 10, v{t0}', f'v_mad_u32_u24 v{vAd+4*sl+q}, v{t0}, s{sHS}, v{t2}')
    vSc = tmp + 13
    a(f's_lshl_b32 s{sT2}, s{sM}, 8', f's_add_u32 s{sT2}, s{sT2}, {L_MEAN}', f'v_lshl_add_u32 v{vSc}, v{vTok}, 3, s{sT2}', f'v_lshl_add_u32 v{vSa}, v{vH}, 9, v{vSc}')
    a.stamp(2)
    a('s_setprio 1')
    vRs = SX + 16
    def xmid(tg):
        def f():
            for c in range(SP + 1, SP + NE):
                bar()
            a(f's_branch L_ent_{tg}')
        return f
    mainloop('qk', False, [f'ds_read_b64 {v(CR,2)}, v{vSa}', f'ds_read_b64 {v(vRs,2)}, v{vSc} offset:{L_RSTD-L_MEAN}'], SP, SP + NE, QE, xmid('qk'))
    a(f's_setprio {OPT.get("xprio", 0)}', 's_waitcnt lgkmcnt(0)')
    a(f'v_mul_f32 v{vRs}, s{sScale}, v{vRs}', f'v_mul_f32 v{vRs+1}, s{sScale}, v{vRs+1}', 's_nop 5')
    for n, i in enumerate((4, 5, 6, 7, 0, 1, 2, 3)):
        u, q = i // 4, i % 4
        pk = FR + 4 * n
        for t in range(2):
            r = acc + 32 * t + 16 * u + 4 * q
            for e in range(4):
                a(f'v_mul_f32 v{r+e}, v{vRs+t}, v{r+e}')
            a(CVT(pk + 2 * t, r), CVT(pk + 2 * t + 1, r + 2))
        a(f'buffer_store_dwordx4 {v(pk,4)}, v{vAd+i}, {WS}, s{sOff} offen offset:{1024*(i%4)} sc1')
        if n in XBAR:
            bar()
    a('s_branch L_x_sig')
    a.label('L_x_v')
    a(f's_cmp_ge_u32 s{sCG}, 15', 's_cbranch_scc1 L_x_idle', f's_lshl_b32 s{sT2}, s{sM}, 8', f's_add_u32 s{sT2}, s{sT2}, {L_MEAN}')
    a(f's_mul_i32 s{sOff}, s{sRB}, 10240', f's_mul_i32 s{sT0}, s{sM}, 2560', f's_add_u32 s{sOff}, s{sOff}, s{sT0}', f's_add_u32 s{sOff}, s{sOff}, {WS_KV+5120}')
    a(f's_sub_u32 s{sT1}, s{sCG}, 10', f's_lshl_b32 s{sT1}, s{sT1}, 7', f's_lshl_b32 s{sT0}, s{sN}, 6', f's_add_u32 s{sT1}, s{sT1}, s{sT0}',
      f's_lshl_b32 s{sT0}, s{sM}, 5', f's_add_u32 s{sT1}, s{sT1}, s{sT0}', f'v_add_u32 v1, s{sT1}, v{vTok}', f'v_mul_u32_u24 v{t2}, 320, v{vH}')
    for u in range(2):
        a(f'v_xor_b32 v{t0}, {32*u}, v1', f'v_mul_u32_u24 v{t1}, 3277, v{t0}', f'v_lshrrev_b32 v{t1}, 16, v{t1}',
          f'v_mul_u32_u24 v{t1}, {163840-320}, v{t1}', f'v_lshl_add_u32 v{t1}, v{t0}, 4, v{t1}', f'v_add_u32 v{vAd+u}, v{t1}, v{t2}')
    a(f'v_lshl_add_u32 v{vSa}, v{vTok}, 2, s{sT2}', f'v_lshl_add_u32 v{vSa}, v{vH}, 9, v{vSa}', f'v_lshl_add_u32 v{vSc}, v{vH}, 4, s{sT2}')
    a.stamp(2)
    a('s_setprio 1')
    def v_stats(t, dst):
        return [f'ds_read_b128 {v(dst+4*q,4)}, v{vSc} offset:{L_RSTD-L_MEAN+128*t+32*q}' for q in range(4)]
    mainloop('v', True, [f'ds_read2_b32 {v(CR,2)}, v{vSa} offset0:0 offset1:32'] + v_stats(0, vRs), SP, SP + NE, QE, xmid('v'))
    a(f's_setprio {OPT.get("xprio", 0)}', v_stats(1, FR), 's_waitcnt lgkmcnt(4)', 's_nop 2')
    n = 0
    for t in range(2):
        st_ = FR if t else vRs
        if t:
            a('s_waitcnt lgkmcnt(0)')
        for u in range(2):
            for ap in range(2):
                r = acc + 32 * t + 16 * u + 8 * ap
                for e in range(8):
                    a(f'v_mul_f32 v{r+e}, v{st_+8*ap+e}, v{r+e}')
                for e in range(4):
                    a(CVT(r + e, r + 2 * e))
                a(f'buffer_store_dwordx4 {v(r,4)}, v{vAd+u}, {WS}, s{sOff} offen offset:{640*(2*t+ap)} sc1')
                if n in XBAR:
                    bar()
                n += 1
    a.label('L_x_sig')
    jitter()
    a.stamp(5)
    lds_tag(4)
    f1_off(sT0, sT1, sN, sM)
    a('v_mov_b32 v1, 0', 's_mov_b64 vcc, 1')
    for c in XB[len(XBAR):]:
        if c <= XSIG:
            bar()
    a('s_mov_b64 exec, vcc', 's_waitcnt vmcnt(0)', f'buffer_store_dword v4, v1, {WS}, s{sT0} offen sc1', 's_mov_b64 exec, -1')
    a.stamp(6)
    for c in XB[len(XBAR):]:
        if c > XSIG:
            bar()

    a.label('L_attn')
    a.c('attention set-up; waves 0..3 wait for the projections and stage Q and the first K/V chunks')
    if 'c0' in OPT:
        a.lock = tuple(range(2, 14))
    a.stamp(7)
    R = Regs(2)
    vH, vTokA, vVa, vK2a = R(), R(), R(), R()
    vKa = [R(), R()]
    Q1 = R(4); Q2 = [R(2), R(2)]
    S = [R(16), R(16)]
    P = R(8); O = R(16); C = R(16)
    K1 = [R(4), R(4)]; V = [R(8), R(8)]; K2 = R(2)
    tp = R(8)
    sCnt, sKV, sPass, sM40 = 40, 41, 42, 44
    vKg = tp + 6
    def a_setup():
        a(f'v_lshrrev_b32 v{vH}, 5, v0', f'v_and_b32 v{vTokA}, 31, v0', f's_mul_i32 s{sKV}, s{sHead}, 163840', f's_add_u32 s{sKV}, s{sKV}, {WS_KV}')
        a(f'v_lshlrev_b32 v{vK2a}, 3, v{vTokA}', f'v_lshl_add_u32 v{vKg}, v{vH}, 9, v{vK2a}')
        a(f'v_add_u32 v{vKa[0]}, {L_K}, v{vKg}', f'v_add_u32 v{vKa[1]}, {L_K+256}, v{vKg}', f'v_lshlrev_b32 v{vK2a}, 3, v0', f'v_add_u32 v{vK2a}, {L_K+2048}, v{vK2a}')
        a(f'v_lshlrev_b32 v{vVa}, 4, v{vTokA}', f'v_mul_u32_u24 v{K2}, 320, v{vH}', f'v_add_u32 v{vVa}, v{vVa}, v{K2}', f'v_add_u32 v{vVa}, {L_V}, v{vVa}')
        a(f'v_cmp_eq_u32 vcc, 20, v{vTokA}', f'v_mov_b32 v{K2}, {L_V+640}', f'v_mov_b32 v{K2+1}, {FAR}', f'v_cndmask_b32 v{vVa}, v{vVa}, v{K2}, vcc',
          f'v_cmp_lt_u32 vcc, 20, v{vTokA}', 's_nop 1', f'v_cndmask_b32 v{vVa}, v{vVa}, v{K2+1}, vcc')
        for i in range(16):
            a(f'v_mov_b32 v{O+i}, 0')
        for i in range(4):
            a(f'v_mov_b32 v{P+4+i}, 0', f'v_mov_b32 v{V[1]+4+i}, 0')
        a(f's_lshr_b32 s{sT0}, s{sW}, 1', f's_cmp_lt_u32 s{sT0}, 3', CSEL(sT1, L_Q0, L_Q1 - 7680), f's_mul_i32 s{sT0}, s{sT0}, 2560', f's_add_u32 s{sT0}, s{sT0}, s{sT1}',
          f's_and_b32 s{sT1}, s{sW}, 1', f's_lshl_b32 s{sT1}, s{sT1}, 3', f's_add_u32 s{sT0}, s{sT0}, s{sT1}',
          f'v_lshl_add_u32 v{vQb}, v{vTokA}, 4, s{sT0}', f'v_lshl_add_u32 v{vQa}, v{vH}, 9, v{vQb}')
    vQa, vQb = tp + 4, tp + 5
    a_setup()
    sP, sNB, sSpin = 48, 49, 50
    if True:
        a(f's_mul_i32 s{sT0}, s{sHead}, 20', f's_add_u32 s{sT1}, s{sT0}, 19', f's_lshr_b32 s{sT0}, s{sT0}, 6', f's_lshr_b32 s{sT1}, s{sT1}, 6', f's_sub_u32 s{sT1}, s{sT1}, s{sT0}',
          f's_lshl_b32 s{sT1}, s{sT1}, 10', f's_lshl_b32 s{sP}, s{sT0}, 10', f's_add_u32 s{sP}, s{sP}, {WS_F1}')
        a(f'v_bfe_u32 v{tp}, v0, 2, 2', f's_lshl_b32 s{sT0}, s{sW}, 1', f's_sub_u32 s{sT0}, s{sT0}, 1', f'v_add_u32 v1, s{sT0}, v{tp}', f'v_cmp_eq_u32 vcc, 0, v{tp}',
          f'v_bfe_u32 v{tp+1}, v0, 1, 1', f'v_add_u32 v{tp+1}, 1, v{tp+1}', 'v_cndmask_b32 v1, v1, 0, vcc' if False else f'v_cndmask_b32 v1, v1, v{tp}, vcc',
          f'v_cmp_eq_u32 vcc, 3, v{tp}', f'v_mov_b32 v{tp+2}, s{sQB}', f'v_mov_b32 v{tp+3}, 0', f'v_cndmask_b32 v1, v1, v{tp+2}, vcc', f'v_cndmask_b32 v{tp+1}, v{tp+1}, v{tp+3}, vcc',
          'v_lshlrev_b32 v1, 7, v1', f'v_mul_u32_u24 v{tp+1}, 10240, v{tp+1}', f'v_add_u32 v1, v1, v{tp+1}', f'v_and_b32 v{tp}, 1, v0', f'v_mad_u32_u24 v1, v{tp}, s{sT1}, v1')
    a(f's_mov_b32 s{sSpin}, {SPIN}')
    a(f's_mov_b32 s{sM40}, -1', f's_mov_b32 s{sM40+1}, 0xff')
    a(f's_lshl_b32 s{sT0}, s{sHead}, 5', f's_lshl_b32 s{sT1}, s{sQB}, 2', f's_add_u32 s{sT0}, s{sT0}, s{sT1}', f's_add_u32 s{sT0}, s{sT0}, s{sW}', f's_mul_i32 s51, s{sT0}, 2560',
      f's_add_u32 s51, s51, {WS_Q}', f's_cmp_lt_u32 s{sW}, 3', CSEL(sT1, L_Q0, L_Q1 - 7680), f's_mul_i32 s52, s{sW}, 2560', f's_add_u32 s52, s52, s{sT1}')
    a(f's_mul_i32 s{sT0}, s{sW}, 1280', f's_mul_i32 s{sT1}, s{sW}, 1312', f's_add_u32 s{sT2}, s{sT0}, s{sKV}')
    poll1 = ['s_mov_b64 exec, 0xffff', f'buffer_load_dwordx4 {v(tp,4)}, v1, {WS}, s{sP} offen sc1', 's_mov_b64 exec, -1']
    check = ['s_waitcnt vmcnt(0)'] + [f'v_xor_b32 v{tp+i}, s{sTag}, v{tp+i}' for i in range(4)] + [
        f'v_or3_b32 v{tp}, v{tp}, v{tp+1}, v{tp+2}', f'v_or_b32 v{tp}, v{tp}, v{tp+3}', f'v_cmp_ne_u32 vcc, 0, v{tp}', 's_nop 1', 's_and_b32 vcc_lo, vcc_lo, 0xffff', 's_cbranch_scc0 L_poll1_ok']
    a(f's_mov_b32 s{sNB}, 0', f's_cmp_ge_u32 s{sCG}, 15', 's_cbranch_scc1 L_poll1c')
    bar()
    left = len([c for c in range(XP + 1, 20) if c not in SKIP])
    a(poll1, f's_mov_b32 s{sNB}, {max(0, left-1)}')
    if left:
        a.label('L_poll1a')
        bar()
        a(check, poll1, f's_sub_u32 s{sNB}, s{sNB}, 1', 's_cbranch_scc0 L_poll1a', f's_mov_b32 s{sNB}, 0')
    a.label('L_poll1b')
    a(check, f's_sub_u32 s{sSpin}, s{sSpin}, 1', 's_cbranch_scc1 L_poll1_ok', backoff('s1'))
    a.label('L_poll1c')
    a(poll1, 's_branch L_poll1b')
    a.label('L_poll1_ok')
    jitter()
    a.stamp(8)
    a('v_lshlrev_b32 v1, 4, v0', 's_mov_b32 m0, s52', f's_mov_b64 exec, s[{sM40}:{sM40+1}]')
    for i in range(4):
        a(f'buffer_load_dwordx4 v1, {WS}, s51 offen offset:{640*i} sc1 lds')
    for c in range(2):
        a(f's_add_u32 m0, s{sT0}, {L_K+5120*c}', f's_add_u32 s{sT3}, s{sT2}, {10240*c}')
        a(f'buffer_load_dwordx4 v1, {WS}, s{sT3} offen sc1 lds', f'buffer_load_dwordx4 v1, {WS}, s{sT3} offen offset:640 sc1 lds')
        a(f's_add_u32 m0, s{sT1}, {L_V+5248*c}', f's_add_u32 s{sT3}, s{sT3}, 5120')
        a(f'buffer_load_dwordx4 v1, {WS}, s{sT3} offen sc1 lds', f's_sub_u32 s{sT3}, s{sT3}, 16', f'buffer_load_dwordx4 v1, {WS}, s{sT3} offen offset:656 sc1 lds')
    a('s_mov_b64 exec, -1')
    a.label('L_rest')
    a(f's_sub_u32 s{sNB}, s{sNB}, 1', 's_cbranch_scc1 L_rest_done', 's_barrier', 's_branch L_rest')
    a.label('L_rest_done')
    a('s_waitcnt vmcnt(4)', 's_branch L_attn_j')
    a.label('L_attn_z')
    jitter()
    a.vm = zvm
    lds_tag(1)
    a_setup()
    a(f'v_mul_u32_u24 v1, 656, v{vTokA}', f'v_add_u32 v1, {L_V+640}, v1')
    for i in range(4):
        a(f'v_mov_b32 v{K1[0]+i}, 0x3f803f80')
    a(f's_cmp_lg_u32 s{sW}, 4', 's_cbranch_scc1 L_noones', f'ds_write_b128 v1, {v(K1[0],4)}')
    a.label('L_noones')
    a.wait_vm(('c', 19))
    pbar(19)
    a('s_waitcnt lgkmcnt(0)')
    a.label('L_attn_j')
    sHi = 46
    a('s_mov_b32 vcc_lo, -1', 's_mov_b32 vcc_hi, 0', f's_mov_b32 s{sHi}, -1', f's_mov_b32 s{sHi+1}, 0')

    def rdK1(dst, blk):
        o = (blk // 2 % 8) * 5
        return f'ds_read2st64_b64 {v(dst,4)}, v{vKa[blk % 2]} offset0:{o} offset1:{o+2}'
    def rdK2(pair):
        return f'ds_read_b64 {v(K2,2)}, v{vK2a} offset:{(pair % 8) * 2560}'
    def rdV(dst, blk, half):
        return f'ds_read_b128 {v(dst+4*half,4)}, v{vVa} offset:{((blk % 16) * 2 + half) * 656}'

    a.stamp(9)
    bar()
    a.stamp(10)
    a(f'ds_read2st64_b64 {v(Q1,4)}, v{vQa} offset0:0 offset1:2', rdK1(K1[0], 0), rdK1(K1[1], 1), f'ds_read_b64 {v(tp,2)}, v{vQb} offset:2048', rdK2(0),
      rdV(V[0], 0, 0), rdV(V[0], 0, 1), 's_waitcnt lgkmcnt(5)')
    a(M16(S[0], K1[0], Q1, '0'), 's_waitcnt lgkmcnt(3)')
    for i in range(2):
        a(f'v_cndmask_b32 v{Q2[0]+i}, 0, v{tp+i}, vcc')
    for i in range(2):
        a(f'v_cndmask_b32 v{Q2[1]+i}, v{tp+i}, 0, s[{sHi}:{sHi+1}]')
    a(M16(S[1], K1[1], Q1, '0'), 's_waitcnt lgkmcnt(2)', M8(S[0], K2, Q2[0]), M8(S[1], K2, Q2[1]), 's_nop 10')
    a.c('stand-in for the row maximum: maximum over the first 64 keys plus 96 (log2 units); checked after the loop')
    vals = [S[0] + i for i in range(16)] + [S[1] + i for i in range(16)]
    a(f'v_max3_f32 v{tp}, v{vals[0]}, v{vals[1]}, v{vals[2]}', f'v_max3_f32 v{tp+1}, v{vals[3]}, v{vals[4]}, v{vals[5]}')
    for i in range(6, 32, 2):
        r = tp + (i // 2 + 1) % 2
        a(f'v_max3_f32 v{r}, v{r}, v{vals[i]}, v{vals[i+1]}')
    a(f'v_max_f32 v{tp}, v{tp}, v{tp+1}', f'v_mov_b32 v{tp+1}, v{tp}', 's_nop 1', f'v_permlane32_swap_b32 v{tp}, v{tp+1}', 's_nop 1')
    a(f'v_max_f32 v{tp}, v{tp}, v{tp+1}', f'v_sub_f32 v{C}, {fbits(-float(OPT.get("mo", MAXOFF)))}, v{tp}')
    a(f'v_mov_b32 v{C+1}, v{C}')
    for i in range(2, 16, 2):
        a(f'v_mov_b64 {v(C+i,2)}, {v(C,2)}')
    if OPT.get('pro', 0) == 0:
        a('s_nop 1', M16(S[0], K1[0], Q1, C), M8(S[0], K2, Q2[0]), f's_mov_b32 s{sCnt}, 4', 's_waitcnt vmcnt(0)', 's_nop 7')
    else:
        for i in range(16):
            a(f'v_add_f32 v{S[0]+i}, v{S[0]+i}, v{C}')
        a(f's_mov_b32 s{sCnt}, 4', 's_waitcnt vmcnt(0)')
    a.stamp(11)
    a.raw('.p2align 3')
    a.label('L_at_loop')
    LAD = [(3, 2, 1, 0), (3, 2, 1, 1), (2, 1, 0, 0), (3, 3, 2, 1), (2, 2, 1, 0)][OPT.get('lad', 0)]
    for b in range(16):
        cur, nxt = S[b & 1], S[(b + 1) & 1]
        E = lambda i: EXP(cur + i)
        Cv = lambda i: CVT(P + i, cur + 2 * i)
        a(M16(nxt, K1[(b + 1) & 1], Q1, C))
        if b % 4 == 2:
            bar()
        a(f's_setprio {LAD[(b + 2) % 4]}', rdK1(K1[b & 1], b + 2))
        vs = [E(0), E(1), E(2), Cv(0), E(3), E(4), Cv(1), E(5), E(6), Cv(2), E(7), E(8), Cv(3), E(9), E(10), Cv(4), E(11), E(12), Cv(5), E(13), E(14), E(15), Cv(6), Cv(7)]
        c1, c2, c3 = [(6, 12, 18), (4, 8, 15), (4, 10, 15), (5, 10, 16), (7, 13, 19), (6, 11, 17), (5, 12, 18), (8, 12, 20)][OPT.get('sch', 0)]
        a(vs[:c1])
        a(M16(O, V[(b + 1) & 1] + 4, P + 4), 's_waitcnt lgkmcnt(1)', rdV(V[(b + 1) & 1], b + 1, 0), rdV(V[(b + 1) & 1], b + 1, 1))
        a(vs[c1:c2])
        a(M8(nxt, K2, Q2[(b + 1) & 1]))
        a(vs[c2:c3])
        a(M16(O, V[b & 1], P), 's_waitcnt lgkmcnt(2)')
        if b % 2 == 0:
            a(rdK2(b // 2 + 1))
        if b == 15:
            a(f's_sub_u32 s{sCnt}, s{sCnt}, 1', f's_cmp_lg_u32 s{sCnt}, 0')
        a(vs[c3:])
    a('s_cbranch_scc1 L_at_loop')
    a('s_nop 0', M16(O, V[1] + 4, P + 4), f's_mov_b32 s{sPass}, 0', 's_waitcnt lgkmcnt(0)')
    a.stamp(12)

    a.label('L_at_fin')
    a.c('normalise and store; if a sum overflowed or came near the flush range, redo this wave with the true row maximum')
    jitter()
    a(f's_lshl_b32 s{sT0}, s{sQB}, 3', f's_add_u32 s{sT0}, s{sT0}, s{sW}', f's_mul_i32 s{sT0}, s{sT0}, 40960', f's_add_u32 s{sT0}, s{sT0}, {WS_O}',
      f's_lshl_b32 s{sT1}, s{sHead}, 10', f's_add_u32 s{sT1}, s{sT1}, s{sT0}',
      f's_lshl_b32 s{sT2}, s{sHead}, 8', f's_add_u32 s{sT2}, s{sT2}, s{sT0}', f's_add_u32 s{sT2}, s{sT2}, 32768', f's_mov_b32 s{sT3}, {fbits(2.0**-102)}', 's_nop 1')
    vL, vSum, N = tp, tp + 1, S[0]
    a(f'v_mov_b32 v{vL}, v{O+8}', f'v_mov_b32 v{tp+2}, v{O+8}', 'v_lshlrev_b32 v1, 4, v0', f'v_lshlrev_b32 v{tp+4}, 3, v0')
    a(f'v_permlane32_swap_b32 v{tp+2}, v{vL}', f'v_add_f32 v{vSum}, |v{O}|, |v{O+1}|', f'v_add_f32 v{tp+3}, |v{O+8}|, |v{O+9}|', f'v_rcp_f32 v{vL}, v{vL}', f'v_add_f32 v{vSum}, v{vSum}, |v{O+2}|')
    for i in range(8):
        a(f'v_mul_f32 v{N+i}, v{O+i}, v{vL}')
    for i in range(4):
        a(CVT(N + i, N + 2 * i))
    a(f'buffer_store_dwordx4 {v(N,4)}, v1, {WS}, s{sT1} offen sc1')
    for i in range(8, 12):
        a(f'v_mul_f32 v{N+i}, v{O+i}, v{vL}')
    a(CVT(N + 8, N + 8), CVT(N + 9, N + 10), 's_mov_b32 exec_hi, 0', f'buffer_store_dwordx2 {v(N+8,2)}, v{tp+4}, {WS}, s{sT2} offen sc1', 's_mov_b32 exec_hi, -1')
    for i in range(3, 8):
        a(f'v_add_f32 v{vSum}, v{vSum}, |v{O+i}|')
    a(f'v_add_f32 v{tp+3}, v{tp+3}, |v{O+10}|', f'v_add_f32 v{tp+3}, v{tp+3}, |v{O+11}|', f'v_add_f32 v{tp+3}, v{tp+3}, v{vSum}')
    a(f'v_cmp_ngt_f32 vcc, {fbits(2.0**120)}, v{tp+3}', f'v_cmp_gt_f32 s[46:47], s{sT3}, v{vSum}', 's_nop 1',
      's_or_b64 s[46:47], s[46:47], vcc', f's_cmp_eq_u32 s{sPass}, 0', 's_cselect_b64 s[46:47], s[46:47], 0', 's_cmp_lg_u64 s[46:47], 0',
      's_cbranch_scc1 L_at_slow' if not OPT.get('noslow') else 's_nop 0')
    FOS = OPT.get('fos', 2)
    a(f's_lshl_b32 s{sT0}, s{sQB}, 3', f's_add_u32 s{sT0}, s{sT0}, s{sW}', f's_lshl_b32 s{sT0}, s{sT0}, 12', f's_lshr_b32 s{sT1}, s{sHead}, {FOS}', f's_lshl_b32 s{sT1}, s{sT1}, 7',
      f's_add_u32 s{sT0}, s{sT0}, s{sT1}', f's_and_b32 s{sT1}, s{sHead}, {(1<<FOS)-1}', f's_lshl_b32 s{sT1}, s{sT1}, 2',
      f's_add_u32 s{sT0}, s{sT0}, s{sT1}', f's_add_u32 s{sT0}, s{sT0}, {WS_FO}', f'v_mov_b32 v1, s{sTag}', 'v_mov_b32 v2, 0', 's_mov_b64 exec, 1')
    a('s_waitcnt vmcnt(0)', f'buffer_store_dword v1, v2, {WS}, s{sT0} offen sc1')
    a.stamp(13)
    a.dump(0, sW, 24)
    a('s_endpgm')

    a.label('L_at_slow')
    a.c('true row maximum over all keys, then the weighted sum again')
    vVg, vL8s = tp + 4, tp + 7
    a(f'v_min_u32 v1, 19, v{vTokA}', 'v_lshlrev_b32 v1, 4, v1', f'v_mul_u32_u24 v{vVg}, 320, v{vH}', f'v_add_u32 v{vVg}, v1, v{vVg}', f'v_lshlrev_b32 v{vL8s}, 3, v0')
    a(f'v_mov_b32 v{tp}, 0xff800000', f's_mov_b32 s{sCnt}, 0')
    def pair_off():
        a(f's_lshr_b32 s{sT0}, s{sCnt}, 1', f's_mul_i32 s{sT0}, s{sT0}, 10240', f's_and_b32 s{sT1}, s{sCnt}, 1', f's_mul_i32 s{sT1}, s{sT1}, 2560',
          f's_add_u32 s{sT0}, s{sT0}, s{sT1}', f's_add_u32 s{sT0}, s{sT0}, s{sKV}', f's_add_u32 s{sT1}, s{sT0}, 5120')
    def ldK():
        for b in range(2):
            a(f'buffer_load_dwordx2 {v(K1[b],2)}, v{vKg}, {WS}, s{sT0} offen offset:{256*b} sc1',
              f'buffer_load_dwordx2 {v(K1[b]+2,2)}, v{vKg}, {WS}, s{sT0} offen offset:{256*b+1024} sc1')
        a(f'buffer_load_dwordx2 {v(K2,2)}, v{vL8s}, {WS}, s{sT0} offen offset:2048 sc1')
    a.label('L_at_slow_max')
    pair_off(); ldK()
    a('s_waitcnt vmcnt(0)')
    a(M16(S[0], K1[0], Q1, '0'), M16(S[1], K1[1], Q1, '0'), M8(S[0], K2, Q2[0]), M8(S[1], K2, Q2[1]), 's_nop 12')
    for i in range(16):
        a(f'v_max3_f32 v{tp}, v{tp}, v{S[0]+i}, v{S[1]+i}')
    a(f's_add_u32 s{sCnt}, s{sCnt}, 1', f's_cmp_lt_u32 s{sCnt}, 32', 's_cbranch_scc1 L_at_slow_max')
    a(f'v_mov_b32 v{tp+1}, v{tp}', 's_nop 1', f'v_permlane32_swap_b32 v{tp}, v{tp+1}', 's_nop 1', f'v_max_f32 v{tp}, v{tp}, v{tp+1}')
    for i in range(16):
        a(f'v_sub_f32 v{C+i}, 0, v{tp}', f'v_mov_b32 v{O+i}, 0')
    a(f'v_cmp_eq_u32 s[48:49], 20, v{vTokA}', f'v_mov_b32 v{tp+5}, 0x3f803f80', f's_mov_b32 s{sCnt}, 0')
    a.label('L_at_slow_pv')
    pair_off(); ldK()
    for g in range(4):
        a(f'buffer_load_dwordx4 {v(V[g//2]+4*(g%2),4)}, v{vVg}, {WS}, s{sT1} offen offset:{640*g} sc1')
    a('s_waitcnt vmcnt(0)')
    a(M16(S[0], K1[0], Q1, C), M16(S[1], K1[1], Q1, C), M8(S[0], K2, Q2[0]), M8(S[1], K2, Q2[1]))
    for b in range(2):
        for i in range(8):
            a(f'v_cndmask_b32 v{V[b]+i}, v{V[b]+i}, v{tp+5}, s[48:49]')
    for b in range(2):
        for i in range(16):
            a(EXP(S[b] + i))
        a('s_nop 0')
        for i in range(8):
            a(CVT(P + i, S[b] + 2 * i))
        a('s_nop 1', M16(O, V[b], P), M16(O, V[b] + 4, P + 4))
    a(f's_add_u32 s{sCnt}, s{sCnt}, 1', f's_cmp_lt_u32 s{sCnt}, 32', 's_cbranch_scc1 L_at_slow_pv')
    a(f's_mov_b32 s{sPass}, 1', 's_branch L_at_fin')

    if OPT.get('so', 1):
        a.label('L_z_sum')
        a.vm = vm1
        nb = 2
        for n, c in enumerate(bars[:-1]):
            a.wait_vm(*[('c', x) for x in range(c, bars[n + 1])])
            bar()
            while nb < min(20, c + NB):
                ldB(nb, JOBS=SUMS); nb += 1
        a('s_waitcnt vmcnt(0)', 's_branch L_attn_z')
    a.label('L_x_idle')
    a.c('workgroups without a projection tile: column sums of the weights of column group rb')
    jitter()
    PA = acc
    def sum_setup():
        a('v_cmp_eq_u32 vcc, 0, v3', 'v_cmp_eq_u32 s[46:47], 20, v3', 'v_mov_b32 v1, 0x3f803f80', 's_nop 0', 's_or_b64 vcc, vcc, s[46:47]', 's_nop 1')
        for i in range(4):
            a(f'v_cndmask_b32 v{PA+i}, 0, v1, vcc')
    def sum_job(j):
        SS = acc + (4 if SUMS[j][0] == 'Q' else 8)
        for st in range(4):
            o = slotB(j) * 16384 + 4096 * st
            a(f'ds_read_b64_tr_b16 {v(FR+16+4*st,2)}, v{vBa} offset:{o}', f'ds_read_b64_tr_b16 {v(FR+16+4*st+2,2)}, v{vBa} offset:{o+1024}')
        for st in range(4):
            a(f's_waitcnt lgkmcnt({6-2*st})', f'v_mfma_f32_16x16x32_bf16 {v(SS,4)}, {v(PA,4)}, {v(FR+16+4*st,4)}, {v(SS,4)}')
    def publish(SS, off):
        a(f's_lshl_b32 s{sCs}, s{sRB}, 10', f's_add_u32 s{sCs}, s{sCs}, {off}', 's_nop 5', f'v_mov_b32 v{SS+1}, s{sTag}', 's_mov_b32 exec_hi, 0',
          f'buffer_store_dwordx2 {v(SS,2)}, v{vCx}, {WS}, s{sCs} offen sc1', 's_mov_b32 exec_hi, -1')
    sum_setup()
    for j, (ty, c) in enumerate(JOBS):
        pbar(j)
        if j == (10 if OPT.get('so', 1) else QE):
            lds_tag(1)
            publish(acc + 4, WS_CS)
            a.stamp(2)
        sum_job(j)
    publish(acc + 8, WS_CS + 16384)
    a.stamp(3)
    a('s_branch L_attn')

    a.label('L_helper')
    a.c('waves 8..11: row statistics, first FFN GEMM')
    jitter()
    a.lock = None
    sG = 38
    a(f's_sub_u32 s{sG}, s{sW}, 8')
    decode2()
    gemm_setup(8, SP, NE, False)
    sFB = 39
    a(f's_lshl_b32 s{sT0}, s{sRB}, 7', f's_lshl_b32 s{sT1}, s{sCG}, 3', f's_add_u32 s{sT0}, s{sT0}, s{sT1}', f's_lshl_b32 s{sT1}, s{sG}, 1', f's_add_u32 s{sT2}, s{sT0}, s{sT1}',
      f's_mul_i32 s{sT3}, s{sT2}, 1280', f's_lshl_b32 s{sT2}, s{sT2}, 4', f's_add_u32 s{sT2}, s{sT2}, {WS_RS}')
    a(f'v_mul_u32_u24 v1, 1280, v2', f'v_lshl_add_u32 v{tmp+4}, v{vTok}, 4, v1', f'v_lshl_add_u32 v{tmp+5}, v{vTok}, 3, v1', f'v_lshlrev_b32 v{tmp+6}, 1, v{vTok}')
    a(f's_lshl_b32 s{sFB}, s{sCG}, 1', f's_add_u32 s{sFB}, s{sFB}, s{sN}', f's_lshl_b32 s{sT0}, s{sFB}, 7')
    a('s_waitcnt lgkmcnt(0)')
    ws_setup()
    a(f's_add_u32 s10, s22, {WS_EP}', 's_addc_u32 s11, s23, 0', f's_load_dword s{sTag}, s[10:11], 0')
    def touch(off, extra=(0,)):
        a(f's_and_b32 s10, s{off}, 0xffffff80', 's_add_u32 s10, s22, s10', 's_addc_u32 s11, s23, 0')
        for e in extra:
            a(f's_load_dword s61, s[10:11], {e}', f's_load_dword s61, s[10:11], {e+64}')
    if OPT.get('tch', 1):
        touch(sT2)
        f1_off(56, 57, sN, None)
        touch(56)
        a(f's_lshl_b32 s56, s{sRB}, 1', f's_add_u32 s56, s56, s{sM}', 's_lshl_b32 s56, s56, 4', f's_add_u32 s56, s56, s{sCG}', 's_lshl_b32 s56, s56, 7', f's_add_u32 s56, s56, {WS_FH}')
        touch(56)
        a(f's_lshl_b32 s56, s{sQB}, 2', f's_add_u32 s56, s56, s{sG}', 's_lshl_b32 s56, s56, 13', f's_lshr_b32 s57, s{sHead}, {OPT.get("fos", 2)}', 's_lshl_b32 s57, s57, 7',
          's_add_u32 s56, s56, s57', f's_add_u32 s56, s56, {WS_FO}')
        touch(56, (0, 4096))
    vL16, vL8, vTr, vTr2, vOut, vRes = range(SX + 16, SX + 22)
    vW, vWr = SX + 22, SX + 26
    vR2 = SX + 42
    sOwn, sKH, sRow, sCol, sReg, sRG = 62, 63, 64, 65, 66, 3
    t = tmp + 10
    a(f's_mov_b32 s60, s{sT0}')
    a(f's_bfe_u32 s{sRG}, s2, 0x20001', f's_bfe_u32 s{sT0}, s2, 0x30003', f's_lshl3_add_u32 s{sRG}, s{sRG}, s{sT0}',
      f's_and_b32 s{sOwn}, s{sG}, 1', f's_lshr_b32 s{sKH}, s{sG}, 1', f's_lshl1_add_u32 s{sRow}, s{sRG}, s{sOwn}', f's_lshr_b32 s{sCol}, s2, 6')
    a(f'v_lshlrev_b32 v{vL16}, 4, v0', f'v_lshlrev_b32 v{vL8}, 3, v0', f'v_lshlrev_b32 v{vR2+3}, 5, v{vTok}')
    a(f's_lshl_b32 s{sT0}, s{sRG}, 6', f's_add_u32 s{sT0}, s{sT0}, s{sOwn}', f'v_and_b32 v1, 15, v0', f'v_lshl_add_u32 v1, v1, 1, s{sT0}', f'v_mul_u32_u24 v{vOut}, 1280, v1',
      f'v_and_b32 v{t}, 16, v0', f'v_lshl_add_u32 v{vOut}, v{t}, 1, v{vOut}', f'v_lshl_add_u32 v{vOut}, v2, 4, v{vOut}')
    a(f'v_lshlrev_b32 v{vTr}, 1, v{t}', f'v_and_b32 v{t}, 1, v0', f'v_lshl_add_u32 v{vTr}, v{t}, 4, v{vTr}', f'v_and_b32 v{t}, 2, v0', f'v_lshl_add_u32 v{vTr}, v{t}, 2, v{vTr}',
      f'v_bfe_u32 v{t}, v0, 2, 2', f'v_lshl_add_u32 v{t}, v2, 2, v{t}')
    def rows(i, row, piece):
        a(f'v_lshl_add_u32 v{piece}, v{piece}, 4, s{sCol}', f'v_mul_u32_u24 v{vW+i}, 1280, v{row}', f'v_add_u32 v{vW+i}, v{vW+i}, v{piece}',
          f'v_lshrrev_b32 v{row}, 2, v{row}', f'v_add_u32 v{row}, 1, v{row}', f'v_mul_u32_u24 v{row}, {16*1280}, v{row}')
        if i:
            a(f'v_subrev_u32 v{vW+i}, {1024*i}, v{vW+i}')
        a(f'v_add_u32 v{vWr+i}, v{vW+i}, v{row}')
    a('s_bitcmp1_b32 s2, 0', 's_cbranch_scc1 L_su2')
    a(f's_mul_i32 s{sCol}, s{sCol}, 192', f's_mul_i32 s{sReg}, s{sG}, 30720', f'v_mul_u32_u24 v{t}, 192, v{t}', f'v_add3_u32 v{vTr}, v{vTr}, v{t}, s{sReg}', f'v_mov_b32 v{vTr2}, v{vTr}')
    a(f's_cmp_eq_u32 s{sKH}, 0', 's_cselect_b32 s67, 1280, 0', f'v_lshl_add_u32 v1, v{vTok}, 1, s{sT0}', f'v_mul_u32_u24 v{vRes}, s67, v1', f'v_lshl_add_u32 v1, v2, 4, s{sCol}', f'v_add_u32 v{vRes}, v{vRes}, v1')
    for i in range(3):
        a(f'v_add_u32 v{t}, {64*i}, v0', f'v_mul_u32_u24 v1, 171, v{t}', 'v_lshrrev_b32 v1, 11, v1', f'v_mul_u32_u24 v{t+1}, 12, v1', f'v_sub_u32 v{t}, v{t}, v{t+1}')
        rows(i, 1, t)
    a('s_branch L_su3')
    a.label('L_su2')
    a(f's_lshl_b32 s{sCol}, s{sCol}, 7', f's_add_u32 s{sCol}, s{sCol}, 768', f's_mul_i32 s{sReg}, s{sG}, 20480', f'v_lshlrev_b32 v1, 7, v{t}', f'v_add3_u32 v{vTr}, v{vTr}, v1, s{sReg}',
      f'v_and_b32 v1, 2, v{t}', f'v_lshl_add_u32 v{vTr}, v1, 5, v{vTr}', f'v_xor_b32 v{vTr2}, 64, v{vTr}')
    a(f's_cmp_eq_u32 s{sKH}, 0', 's_cselect_b32 s67, -1, 0', CSEL(68, L_XR, L_B2), f's_lshl_b32 s{sT1}, s{sOwn}, 7', f'v_lshl_add_u32 v1, v{vTok}, 8, s{sT1}', f'v_and_b32 v{t}, 1, v0', f'v_lshl_add_u32 v1, v{t}, 6, v1',
      'v_and_b32 v1, s67, v1', 'v_lshl_add_u32 v1, v2, 4, v1', f'v_add_u32 v{vRes}, s68, v1')
    for i in range(2):
        a('v_lshrrev_b32 v1, 3, v0', f'v_and_b32 v{t}, 7, v0', f'v_and_b32 v{t+1}, 16, v0', f'v_lshrrev_b32 v{t+1}, 2, v{t+1}', f'v_xor_b32 v{t}, v{t}, v{t+1}', f'v_add_u32 v1, {8*i}, v1')
        rows(i, 1, t)
    a(f'v_mov_b32 v{vW+2}, 0', f'v_mov_b32 v{vWr+2}, 0')
    a.label('L_su3')
    colsum_setup()
    zero_acc(0, 64)
    a(f's_lshl_b32 s{sT0}, s{sRB}, 2', f's_lshl_b32 s{sT1}, s{sM}, 1', f's_add_u32 s{sT0}, s{sT0}, s{sT1}', f's_mul_i32 s{sT0}, s{sT0}, 108',
      f's_lshl_b32 s{sT1}, s{sFB}, 2', f's_add_u32 s{sT0}, s{sT0}, s{sT1}', f's_lshl_b32 s{sT0}, s{sT0}, 10',
      f's_add_u32 s{sOff}, s{sT0}, {WS_H}', f's_add_u32 s{sHS}, s{sOff}, {108*1024}', f's_lshl_b32 s{sT0}, s{sM}, 11', f'v_lshl_add_u32 v{tmp}, v0, 4, s{sT0}', f'v_xor_b32 v{tmp+1}, 2048, v{tmp}')
    a(f's_lshl_b32 s{sT0}, s{sM}, 8', f's_add_u32 s{sT0}, s{sT0}, {L_MEAN}', f'v_lshl_add_u32 v{tmp+3}, v{vTok}, 3, s{sT0}', f'v_lshl_add_u32 v{tmp+3}, v2, 9, v{tmp+3}')
    a(f's_lshl_b32 s{sT0}, s{sG}, 7', f's_add_u32 s{sT0}, s{sT0}, {L_MEAN}', f'v_lshl_add_u32 v{tmp+9}, v{vTok}, 2, s{sT0}', f'v_mov_b32 v{tmp+10}, {L_TAG}',
      f'v_lshlrev_b32 v{tmp+2}, 4, v{vTok}', f's_mov_b32 s{sT0}, s60')
    a.srd(SD, 4, 2621440)
    bar()
    a(f'buffer_load_dwordx4 {v(SX,4)}, v{tmp+4}, s[{SD}:{SD+3}], s{sT3} offen', f'buffer_load_dwordx4 {v(SX+4,4)}, v{tmp+4}, s[{SD}:{SD+3}], s{sT3} offen offset:512',
      f'buffer_load_dwordx2 {v(SX+8,2)}, v{tmp+5}, s[{SD}:{SD+3}], s{sT3} offen offset:1024')
    bar(); bar()
    def rowstats():
        a('s_waitcnt vmcnt(0) lgkmcnt(0)', f's_add_u32 s{sTag}, s{sTag}, 0x9e3779b1')
        a('s_mov_b64 exec, 1', f'v_mov_b32 v1, s{sTag}', f'ds_write_b32 v{tmp+10}, v1', 's_mov_b64 exec, -1')
        a.srd(SD, 14, 3456)
        a(f's_lshl_b32 s{sT1}, s{sM}, 6', f's_add_u32 s{sT0}, s{sT0}, s{sT1}', f's_xor_b32 s{sT1}, s{sT0}, 64')
        a(f'buffer_load_ushort v{tmp+7}, v{tmp+6}, s[{SD}:{SD+3}], s{sT0} offen', f'buffer_load_ushort v{tmp+8}, v{tmp+6}, s[{SD}:{SD+3}], s{sT1} offen')
        a(f's_lshl_b32 s{sT1}, s{sRB}, 11', f's_lshl_b32 s{sT0}, s{sG}, 9', f's_add_u32 s{sT1}, s{sT1}, s{sT0}', f's_add_u32 s{sT1}, s{sT1}, {WS_RS}', f's_mov_b32 s{sT3}, {SPIN}')
        r0, r1, r2, r3 = FR, FR + 1, FR + 2, FR + 3
        def reduce32(r):
            for mod in ('quad_perm:[1,0,3,2]', 'quad_perm:[2,3,0,1]', 'row_half_mirror', 'row_mirror'):
                a('s_nop 1', f'v_add_f32_dpp v{r}, v{r}, v{r} {mod} row_mask:0xf bank_mask:0xf')
            a(f'v_mov_b32 v{r3}, v{r}', 's_nop 1', f'v_permlane16_swap_b32 v{r}, v{r3}', 's_nop 1', f'v_add_f32 v{r}, v{r}, v{r3}')
        U = lambda i: (FR + 8 + i) if i < 10 else (SX + i - 10)
        for i in range(10):
            a(f'v_lshlrev_b32 v{U(i)}, 16, v{SX+i}', f'v_and_b32 v{SX+i}, 0xffff0000, v{SX+i}')
            if i < 2:
                a(f'v_add_f32 v{r0+i}, v{U(i)}, v{U(10+i)}')
            else:
                a(f'v_add_f32 v{r0}, v{r0}, v{U(i)}', f'v_add_f32 v{r1}, v{r1}, v{U(10+i)}')
        a(f'v_add_f32 v{r0}, v{r0}, v{r1}')
        reduce32(r0)
        a(f'v_mul_f32 v{r0}, {fbits(1/640)}, v{r0}', f'v_mov_b32 v{r1}, 0', f'v_mov_b32 v{r2}, 0')
        bar()
        for i in range(0, 20, 2):
            a(f'v_sub_f32 v{U(i)}, v{U(i)}, v{r0}', f'v_sub_f32 v{U(i+1)}, v{U(i+1)}, v{r0}', f'v_fmac_f32 v{r1}, v{U(i)}, v{U(i)}', f'v_fmac_f32 v{r2}, v{U(i+1)}, v{U(i+1)}')
        a(f'v_add_f32 v{r2}, v{r1}, v{r2}')
        reduce32(r2)
        a(f'v_mov_b32 v{r3}, {fbits(1e-5)}', f'v_fmac_f32 v{r3}, {fbits(1/640)}, v{r2}', f'v_rsq_f32 v{r2}, v{r3}', f'v_mov_b32 v{r1}, s{sTag}', f'v_mov_b32 v{r3}, s{sTag}',
          'v_lshrrev_b32 v1, 1, v0', 's_mov_b32 exec_lo, 1', 's_mov_b32 exec_hi, 1', f'buffer_store_dwordx4 {v(r0,4)}, v1, {WS}, s{sT2} offen sc1', 's_mov_b64 exec, -1')
        a.stamp(2)
    if SP == 5:
        rowstats()
        bar()
    else:
        for c in range(3, SP):
            bar()
    a('s_waitcnt lgkmcnt(0)')
    a(f's_cmp_lt_u32 s{sFB}, 27', 's_cbranch_scc1 L_h_act')
    for c in range(SP, SP + NE + 1):
        bar()
    a('s_branch L_h_mid')
    def gmid():
        a.label('L_h_mid')
        jitter()
        g0 = FR
        gather = f'buffer_load_dwordx4 {v(g0,4)}, v{tmp+2}, {WS}, s{sT1} offen sc1'
        a('s_setprio 0')
        nb_ = QE - 1 - (SP + NE)
        if SP != 5:
            rowstats(); nb_ -= 1
            for _ in range(nb_ - 3):
                bar()
            a('s_waitcnt lgkmcnt(0)')
            nb_ = 3
        a(gather)
        bar(); bar()
        a(f's_cmp_eq_u32 s{sCG}, 15', f's_cselect_b32 s{sT3}, 0, s{sT3}')
        a.label('L_h_chk')
        a('s_waitcnt vmcnt(0)', f'v_cmp_ne_u32 vcc, s{sTag}, v{g0+1}', f'v_cmp_ne_u32 s[46:47], s{sTag}, v{g0+3}', 's_nop 1', 's_or_b64 vcc, vcc, s[46:47]',
          's_cbranch_scc0 L_h_got', f's_sub_u32 s{sT3}, s{sT3}, 1', 's_cbranch_scc1 L_h_got', backoff('s0'), gather, 's_branch L_h_chk')
        a.label('L_h_got')
        a(f'v_rcp_f32 v{g0+1}, v{g0+2}', f'v_sub_f32 v{g0}, 0, v{g0}')
        a('s_mov_b32 exec_lo, 0', f'v_lshlrev_b32 v{CS[0]}, 16, v{tmp+7}', f'v_lshlrev_b32 v{CS[1]}, 16, v{tmp+8}', 's_mov_b32 exec_lo, -1')
        for _ in range(nb_ - 2):
            bar()
        a('s_mov_b32 exec_hi, 0', f'ds_write_b32 v{tmp+9}, v{g0}', f'ds_write_b32 v{tmp+9}, v{g0+1} offset:{L_ISTD-L_MEAN}', f'ds_write_b32 v{tmp+9}, v{g0+2} offset:{L_RSTD-L_MEAN}',
          's_mov_b64 exec, -1', 's_waitcnt lgkmcnt(0)')
        a(f's_cmp_lt_u32 s{sFB}, 27', 's_cbranch_scc1 L_h_act')
        for c in range(QE, 20):
            pbar(c)
        bar()
        a('s_branch L_h_p2')
    a.label('L_h_act')
    a('s_setprio 1')
    mainloop('ffn', False, [f'ds_read_b64 {v(CR,2)}, v{tmp+3}'], SP + NE, QE, 20, gmid)
    a('s_nop 8')
    hst = []
    for t, u in ((0, 0), (0, 1), (1, 1), (1, 0)):
        for ap in range(2):
            r = acc + 32 * t + 16 * u + 8 * ap
            for e in range(8):
                a(f'v_mul_f32 v{r+e}, v{r+e}, |v{r+e}|')
            for e in range(4):
                a(CVT(r + e, r + 2 * e))
            for e in range(4):
                a(f'v_pk_max_i16 v{r+e}, v{r+e}, 0')
            hst.append(f'buffer_store_dwordx4 {v(r,4)}, v{tmp+u}, {WS}, s{sHS if t else sOff} offen offset:{1024*ap} sc1')
            if OPT.get('hs', 0):
                a(hst.pop())
    a.stamp(3)
    bar()
    a(hst)
    a.label('L_h_p2')
    a.c('waves 8..11: K/V stream, second FFN GEMM (64 x 96 tiles on even workgroups, 64 x 64 on odd ones), output projection')
    jitter()
    a.stamp(5)
    R = Regs(2)
    acc = R(96)
    AF = [R(8) for _ in range(4)]
    tmp = R(8)
    assert R.n <= vL16
    BF = [vWr + 4 + 4 * i for i in range(3)]
    sKVo, sH0, sH1, sW2, sWo, sMK, sMV, sR2 = range(40, 48)
    W2, WO, RES = 48, 52, 56
    sM40 = 60
    MASK, FULL = f's_mov_b64 exec, s[{sM40}:{sM40+1}]', 's_mov_b64 exec, -1'

    def kv(c):
        slot = c % 4
        ld = lambda so, off: f'buffer_load_dwordx4 v{vL16}, {WS}, s{so} offen offset:{off} sc1 lds'
        return [([f's_add_u32 m0, s{sMK}, {slot*5120}', f's_add_u32 s{sT0}, s{sKVo}, {c*10240}'], ld(sT0, 0), ('kv', c), True),
                ([], ld(sT0, 640), ('kv', c), True),
                ([f's_add_u32 m0, s{sMV}, {slot*5248}', f's_add_u32 s{sT0}, s{sT0}, 5120'], ld(sT0, 0), ('kv', c), True),
                ([f's_sub_u32 s{sT0}, s{sT0}, 16'], ld(sT0, 656), ('kv', c), True)]
    def emit(fl):
        masked = False
        for pre, ins, tg, mk in fl:
            a(pre)
            if mk != masked:
                a(MASK if mk else FULL); masked = mk
            a.vmem(ins, tg)
        if masked:
            a(FULL)

    a.vm = ['hst']
    a(f's_mov_b32 s{sM40}, -1', f's_mov_b32 s{sM40+1}, 0xff')
    a(f's_mul_i32 s{sKVo}, s{sHead}, 163840', f's_mul_i32 s{sT0}, s{sG}, 1280', f's_add_u32 s{sKVo}, s{sKVo}, s{sT0}', f's_add_u32 s{sKVo}, s{sKVo}, {WS_KV}')
    a(f's_add_u32 s{sMK}, s{sT0}, {L_K}', f's_mul_i32 s{sMV}, s{sG}, 1312', f's_add_u32 s{sMV}, s{sMV}, {L_V}')
    emit(kv(2))
    a.srd(W2, 16, 1728 * 1280)
    a.srd(WO, 8, 640 * 1280)
    a(f's_mul_i32 s{sR2}, s{sRG}, 27', f's_lshr_b32 s{sR2}, s{sR2}, 5')
    a(f's_mul_i32 s{sT0}, s{sG}, 27', f's_add_u32 s{sT0}, s{sT0}, s{sR2}', f's_mul_i32 s{sW2}, s{sT0}, {16*1280}', f's_and_b32 s69, s{sRG}, {OPT.get("sw", 1)}')
    a(f's_lshl1_add_u32 s{sWo}, s{sG}, s69', f's_xor_b32 s68, s{sWo}, 1', f's_mul_i32 s{sWo}, s{sWo}, {80*1280}', f's_mul_i32 s68, s68, {80*1280}')
    a(f's_mul_i32 s{sH0}, s{sRow}, {108*1024}', f's_lshl_b32 s{sT0}, s{sT0}, 10', f's_add_u32 s{sH0}, s{sH0}, s{sT0}', f's_add_u32 s{sH0}, s{sH0}, {WS_H}',
      f's_cmp_eq_u32 s{sOwn}, 0', CSEL(sH1, 108 * 1024, -108 * 1024))
    a(f's_lshl_b32 s{sT3}, s{sRB}, 1', f's_add_u32 s{sT3}, s{sT3}, s{sOwn}', f's_lshl_b32 s{sT3}, s{sT3}, 4', f's_add_u32 s{sT3}, s{sT3}, s{sCG}', f's_lshl_b32 s{sT3}, s{sT3}, 7',
      f's_lshl_b32 s{sT1}, s{sKH}, 2', f's_add_u32 s{sT3}, s{sT3}, s{sT1}', f's_add_u32 s{sT3}, s{sT3}, {WS_FH}', f'v_mov_b32 v{tmp+1}, s{sTag}',
      f'v_min_u32 v{tmp}, 27, v0', f'v_and_b32 v1, 1, v{tmp}', 'v_lshlrev_b32 v1, 2, v1', f'v_lshrrev_b32 v{tmp}, 1, v{tmp}', f'v_lshl_add_u32 v1, v{tmp}, 7, v1')
    a(f'v_add_u32 v{tmp+2}, s{sReg}, v{vL16}', 's_bitcmp1_b32 s2, 0', CSEL(sT0, 20480, 30720), f's_xor_b32 s{sT1}, s{sG}, 1', f's_mul_i32 s{sT1}, s{sT1}, s{sT0}',
      f'v_add_u32 v{tmp+3}, s{sT1}, v{vL16}', f'v_xor_b32 v{tmp+4}, 64, v{vRes}', 's_setprio 0')
    vm0 = list(a.vm)
    a('s_bitcmp1_b32 s2, 0', 's_cbranch_scc1 L_p2_2')

    def phase2(NT):
        PITCH, STEP, NPAIR = 64 * NT, 1024 * NT, 27 * NT
        a.label(f'L_p2_{NT}')
        a.vm = list(vm0)
        b0 = OPT.get('b0')
        bcnt = [1]
        def barB():
            c = bcnt[0]; bcnt[0] += 1
            rec = b0 is not None and b0 <= c < b0 + 6
            if rec:
                a.lock = None; a.stamp(2 + 2 * (c - b0))
            bar()
            if rec:
                a.stamp(3 + 2 * (c - b0))
            if b0 is not None:
                a.lock = tuple(range(2, 14))
        if b0 is not None:
            a.lock = tuple(range(2, 14))
        def wrap(d, base, st, scale):
            return [f's_cmp_ge_u32 s{sR2}, {27-st}', f's_cselect_b32 s{d}, {27*scale}, 0', f's_sub_u32 s{d}, s{base}, s{d}', f's_add_u32 s{d}, s{d}, {st*scale}']
        def stage(srd, pre, voff, tg):
            assert 'm0' not in pre[-1]
            return [(pre if i == 0 else [], f'buffer_load_dwordx4 v{voff+i}, s[{srd}:{srd+3}], s{sT0} offen offset:{1024*i} lds', tg, False) for i in range(NT)]
        slotm0 = lambda slot: [f's_add_u32 m0, s{sReg}, {slot*STEP}']
        def f2B(st):
            return stage(W2, slotm0(st % 4) + wrap(sT0, sW2, st, 16 * 1280), vW, ('fb', st))
        def f2A(st):
            return [(wrap(sT1, sH0, st, 1024), f'buffer_load_dwordx4 {v(AF[st%4],4)}, v{vL16}, {WS}, s{sT1} offen sc1', ('fa', st), False),
                    ([f's_add_u32 s{sT1}, s{sT1}, s{sH1}'], f'buffer_load_dwordx4 {v(AF[st%4]+4,4)}, v{vL16}, {WS}, s{sT1} offen sc1', ('fa', st), False)]
        def wo(slot):
            gl, i = divmod(slot, 5)
            return stage(WO, slotm0(slot) + [f's_add_u32 s{sT0}, s{68 if gl else sWo}, {(20*i if i < 4 else 0)*1280}'], vW if i < 4 else vWr, ('wo', slot))

        barB()
        emit(kv(3) + f2B(0))
        a.wait_vm('hst')
        a('s_mov_b64 exec, 1')
        a.vmem(f'buffer_store_dword v{tmp+1}, v1, {WS}, s{sT3} offen sc1', 'flag')
        a(FULL)
        a.stamp(6)
        a(f's_lshl_b32 s{sT3}, s{sRG}, 11', f's_add_u32 s{sT3}, s{sT3}, {WS_FH}', f's_mov_b32 s{sT2}, {SPIN}')
        a.wait_vm(('kv', 2))
        barB()
        emit(kv(4) + f2B(1) + f2B(2) + wo(4))
        if NT == 2:
            a.srd(RES, 4, 2621440)
            emit(stage(RES, [f's_lshl_b32 s{sT0}, s{sG}, 11', f's_add_u32 m0, s{sT0}, {L_XR}', f's_lshl2_add_u32 s{sT0}, s{sRG}, s{sG}', f's_mul_i32 s{sT0}, s{sT0}, {16*1280}'], vW, 'xr'))
            a.srd(RES, 18, 1280)
            emit(stage(RES, [f's_mov_b32 m0, {L_B2}', f's_mov_b32 s{sT0}, 0'], vW, 'xr')[:1])
        else:
            a(f's_cmp_eq_u32 s{sKH}, 0', f's_cselect_b32 s{RES}, s4, s18', f's_cselect_b32 s{RES+1}, s5, s19', CSEL(RES + 2, 2621440, 1280), f's_mov_b32 s{RES+3}, 0x00020000')
        poll2 = f'buffer_load_dword v{tmp}, v1, {WS}, s{sT3} offen sc1'
        a.vmem(poll2, 'poll')
        a.wait_vm(('kv', 3))
        barB()
        a('s_setprio 3')
        a.label(f'L_poll2_{NT}')
        a('s_waitcnt vmcnt(0)', f'v_cmp_ne_u32 vcc, s{sTag}, v{tmp}', 's_nop 1', 's_cmp_eq_u64 vcc, 0', f's_cbranch_scc1 L_poll2x_{NT}',
          f's_sub_u32 s{sT2}, s{sT2}, 1', f's_cbranch_scc1 L_poll2x_{NT}', backoff('s2'), poll2, f's_branch L_poll2_{NT}')
        a.label(f'L_poll2x_{NT}')
        jitter()
        a.vm = []
        a.stamp(7)
        a('s_setprio 0')
        emit(f2A(0) + kv(5) + f2A(1) + f2A(2) + wo(5))
        rsoff = [f's_lshl_b32 s{sT0}, s{sRG}, 10', f's_lshl4_add_u32 s{sT0}, s{sOwn}, s{sT0}', f's_add_u32 s{sT0}, s{sT0}, {WS_RS}']
        rsld = f'buffer_load_dwordx2 {v(vR2,2)}, v{vR2+3}, {WS}, s{sT0} offen offset:8 sc1'
        a(rsoff)
        a.vmem(rsld, 'res')

        LATE = NT == 3 and OPT.get('late', 0)
        def tr(b, c, base):
            ad, off = (vTr, base + 64 * c) if NT == 3 else (vTr2 if c else vTr, base)
            return [f'ds_read_b64_tr_b16 {v(BF[b],2)}, v{ad} offset:{off}', f'ds_read_b64_tr_b16 {v(BF[b]+2,2)}, v{ad} offset:{off+8*PITCH}']
        fq = []
        def need(tg):
            assert all(f[2] != tg for f in fq), tg
            a.wait_vm(tg)
        def f2tr(p):
            if p < NPAIR:
                st, c = divmod(p, NT)
                if c == 0:
                    need(('fb', st))
                a(tr(p % 3, c, (st % 4) * STEP))
        def f2_pairs(ps):
            for p in ps:
                st, c = divmod(p, NT)
                if c == 0:
                    if st + 3 < 27:
                        fq.extend(f2B(st + 3) + f2A(st + 3))
                    elif LATE:
                        fq.extend(wo((st - 1) % 4))
                    need(('fa', st))
                for t in range(2):
                    if t == 0:
                        a(f's_waitcnt lgkmcnt({2 if p + 1 < NPAIR else 0})')
                    a(M16(acc + 48 * t + 16 * c, BF[p % 3], AF[st % 4] + 4 * t, '0' if st == 0 else None))
                    if t == 0:
                        f2tr(p + 2)
                    n = -(-len(fq) // (2 * NT - 1))
                    emit(fq[:n]); del fq[:n]
        f2tr(0); f2tr(1)
        barB()
        E = 15 if LATE else OPT.get(f'ex{NT}', 14 if NT == 3 else 13)
        res, p = AF[0], 0
        for c in range(4, 16):
            if c + 2 < 16:
                fq.extend(kv(c + 2))
            if c in (6, 9, 12):
                fq.extend(wo(6 + (c - 6) // 3))
            if c == 14 and LATE:
                fq.extend(wo(9))
            if c <= E:
                left = E - c + OPT.get('lastw', 50 if LATE else 70) / 100
                n = NPAIR - p if c == E else round((NPAIR - p) / left)
                f2_pairs(range(p, p + n)); p += n
            if c == E and LATE:
                emit(fq + wo(2)); del fq[:]
                for gi in range(6):
                    a.vmem(f'buffer_load_dwordx4 {v(res+4*gi,4)}, v{vRes}, s[{RES}:{RES+3}], 0 offen offset:{32*gi}', 'res')
            elif c == E:
                emit(fq); del fq[:]
                a('s_nop 7', 's_nop 3')
                for i in range(4 * NT):
                    a(f'ds_write_b128 v{tmp+2}, {v(acc+48+4*i,4)} offset:{1024*i}')
                a('s_waitcnt lgkmcnt(0)')
            if c == E + 1:
                for i in range(4 * NT):
                    a(f'ds_read_b128 {v(acc+48+4*i,4)}, v{tmp+3} offset:{1024*i}')
                if NT == 2:
                    for gi in range(4):
                        a(f'ds_read_b128 {v(res+4*gi,4)}, v{tmp+4 if gi >= 2 else vRes} offset:{32*(gi&1)}')
                else:
                    for gi in range(6):
                        a.vmem(f'buffer_load_dwordx4 {v(res+4*gi,4)}, v{vRes}, s[{RES}:{RES+3}], 0 offen offset:{32*gi}', 'res')
            if c == max(E + 1, 14):
                fq.extend(wo(9))
            if c == E + 2:
                fq.extend(wo(0) + wo(1) + wo(2) + wo(3))
            if c > E:
                emit(fq); del fq[:]
                a('s_waitcnt lgkmcnt(0)')
            need(('kv', c + 1))
            if c == 10: a.stamp(8)
            barB()
            if c == 10: a.stamp(9)
        assert p == NPAIR
        if E == 14:
            emit(wo(0) + wo(1) + wo(2) + wo(3))
        OF = acc + 48
        assert OF + 80 <= tmp
        sO0, sO1, OUT = sH0, sH1, W2
        a.srd(OUT, 20, 2621440)
        a(f's_mul_i32 s{sO0}, s{sRow}, 40960', f's_add_u32 s{sO0}, s{sO0}, {WS_O}', f's_lshl_b32 s{sT0}, s{sKH}, 12', f's_add_u32 s{sO1}, s{sO0}, s{sT0}',
          f's_add_u32 s{sO1}, s{sO1}, 32768', f's_lshl_b32 s{sT0}, s{sKH}, 14', f's_add_u32 s{sO0}, s{sO0}, s{sT0}')
        a(f's_lshl_b32 s{sT3}, s{sRow}, 12', f's_lshl_b32 s{sT0}, s{sKH}, {11-FOS}', f's_add_u32 s{sT3}, s{sT3}, s{sT0}', f's_add_u32 s{sT3}, s{sT3}, {WS_FO}', f's_mov_b32 s{sT2}, {SPIN}')
        for k in range(4):
            a(f's_xor_b32 s{sT0}, s69, {k}', f's_lshl_b32 s{sT0}, s{sT0}, 10', f's_add_u32 s{RES+k}, s{sO1}, s{sT0}', f's_lshl2_add_u32 s{WO+k}, s{sT0}, s{sO0}')
        a(f's_add_u32 s67, s{sCol}, {32*1280}', f's_mul_i32 s43, s{sOwn}, {10*STEP}', f's_mul_i32 s44, s{sG}, 10240', f's_add_u32 s44, s44, {L_FX}',
          f's_xor_b32 s45, s{sG}, 2', f's_mul_i32 s45, s45, 10240', f's_add_u32 s45, s45, {L_FX}')
        a(rsoff)
        a.label(f'L_rs{NT}')
        a.drain_vm()
        a(f'v_cmp_ne_u32 vcc, s{sTag}, v{vR2+1}', f's_cbranch_vccz L_rsx{NT}', f's_sub_u32 s{sT2}, s{sT2}, 1', f's_cbranch_scc1 L_rsx{NT}', rsld, f's_branch L_rs{NT}')
        a.label(f'L_rsx{NT}')
        jitter()
        a(f's_mov_b32 s{sT2}, {SPIN}')
        a.stamp(10)
        bar()
        poll3 = f'buffer_load_dword v{tmp}, v1, {WS}, s{sT3} offen sc1'
        a(f'v_bfe_u32 v1, v0, {FOS}, {4-FOS}', 'v_lshlrev_b32 v1, 7, v1', f'v_and_b32 v{tmp}, {(1<<FOS)-1}, v0', f'v_lshl_add_u32 v1, v{tmp}, 2, v1', poll3)
        if LATE:
            a(f's_xor_b32 s46, s{sG}, 1', 's_mul_i32 s46, s46, 10240', f's_add_u32 s46, s46, {L_FX}', f'v_add_u32 v{tmp+2}, s44, v{vL16}', f'v_add_u32 v{tmp+3}, s46, v{vL16}')
            for i in range(10):
                a(f'ds_write_b128 v{tmp+2}, {v(acc+48+4*i,4)} offset:{1024*i}')
            a('s_waitcnt lgkmcnt(0)', 's_barrier')
            for i in range(10):
                a(f'ds_read_b128 {v(acc+48+4*i,4)}, v{tmp+3} offset:{1024*i}')
            for i in range(2):
                a(f'ds_write_b128 v{tmp+3}, {v(acc+88+4*i,4)} offset:{1024*i}')
            a('s_waitcnt lgkmcnt(0)', 's_barrier')
            for i in range(2):
                a(f'ds_read_b128 {v(acc+88+4*i,4)}, v{tmp+2} offset:{1024*i}')
        a(f'v_subrev_u32 v{vTr}, s43, v{vTr}', f'v_subrev_u32 v{vTr2}, s43, v{vTr2}', f'v_add_u32 v{tmp+2}, s44, v{vL16}', f'v_add_u32 v{tmp+3}, s45, v{vL16}', f'v_mul_f32 v{vR2}, v{vR2}, v{vR2}')
        for j in range(8 * NT):
            if LATE and j == 20:
                a('s_waitcnt lgkmcnt(0)')
            a(f'v_pk_add_f32 {v(acc+2*j,2)}, {v(acc+2*j,2)}, {v(acc+48+2*j,2)}', f'v_lshlrev_b32 v{vR2+1}, 16, v{res+j}', f'v_and_b32 v{vR2+2}, 0xffff0000, v{res+j}',
              f'v_fma_f32 v{acc+2*j}, v{acc+2*j}, v{vR2}, v{vR2+1}', f'v_fma_f32 v{acc+2*j+1}, v{acc+2*j+1}, v{vR2}, v{vR2+2}')
        TWO = OPT.get(f'two{NT}', 0)
        ORD = (0, 2, 1, 3) if TWO else (0, 1, 2, 3)
        pos = lambda i: (5 * ORD[i // 5] + i % 5) * STEP
        def oload(i):
            k, j = ORD[i // 5], i % 5
            if j < 4:
                a.vmem(f'buffer_load_dwordx4 {v(OF+4*i,4)}, v{vL16}, {WS}, s{WO+k} offen offset:{j*1024} sc1', ('o', i))
            else:
                a.vmem(f'buffer_load_dwordx2 {v(OF+4*i,2)}, v{vL8}, {WS}, s{RES+k} offen sc1', ('o', i))
                a.vmem(f'buffer_load_dwordx2 {v(OF+4*i+2,2)}, v{vL8}, {WS}, s{RES+k} offen offset:512 sc1', ('o', i))
        def flags(lab, mask):
            a.label(f'L_p{lab}')
            a('s_waitcnt vmcnt(0)', f'v_cmp_ne_u32 vcc, s{sTag}, v{tmp}', 's_nop 1', f's_and_b32 s{sT0}, vcc_lo, {hex(mask)}', f's_cbranch_scc0 L_g{lab}',
              f's_sub_u32 s{sT2}, s{sT2}, 1', f's_cbranch_scc1 L_g{lab}', backoff('s3'), poll3, f's_branch L_p{lab}')
            a.label(f'L_g{lab}')
            a.vm = []
        LA = 10 if TWO else OPT.get('la', 8)
        a(f's_cmp_eq_u32 s{sKH}, 0', f's_cbranch_scc0 L_hi{NT}')
        lo, hi = tuple(range(NT - 1)), (NT - 1,)
        for nm, send, keep in (('lo', hi, lo), ('hi', lo, hi)):
            nm = f'{nm}{NT}'
            a.label(f'L_{nm}')
            seq = [(i, c) for i in range(20) for c in send + keep]
            for q in range(3):
                a(tr(q, seq[q][1], pos(seq[q][0])))
            flags('a' + nm, 0x0f0f if TWO else 0xffff)
            a.stamp(11)
            for i in range(LA):
                oload(i)
            if TWO:
                a.vmem(poll3, 'poll')
                a(f's_mov_b32 s{sT2}, {SPIN}')
            nl = LA
            for q, (i, c) in enumerate(seq):
                if q % NT == 0:
                    if TWO and i == TWO:
                        flags('b' + nm, 0xf0f0)
                        for _ in range(OPT.get('lb', 4)):
                            oload(nl); nl += 1
                    a.wait_vm(('o', i))
                a(f's_waitcnt lgkmcnt({2*min(2, len(seq)-1-q)})', M16(acc + 16 * c, BF[q % 3], OF + 4 * i))
                if q + 3 < len(seq):
                    a(tr(q % 3, seq[q + 3][1], pos(seq[q + 3][0])))
                if q % NT < 2 and nl < 20 and i >= TWO:
                    oload(nl); nl += 1
            a.stamp(12)
            jitter()
            a(f's_nop {11 - 2*(NT-1)}')
            for k, c in enumerate(send):
                for i in range(4):
                    a(f'ds_write_b128 v{tmp+2}, {v(acc+16*c+4*i,4)} offset:{4096*k+1024*i}')
            a('s_waitcnt lgkmcnt(0)', 's_barrier')
            for k, c in enumerate(keep):
                for i in range(4):
                    a(f'ds_read_b128 {v(OF+16*k+4*i,4)}, v{tmp+3} offset:{4096*k+1024*i}')
            for k, c in enumerate(keep):
                r = acc + 16 * c
                for hf in range(2):
                    a(f's_waitcnt lgkmcnt({4*(len(keep)-1-k) + 2*(1-hf)})')
                    for e in range(8 * hf, 8 * hf + 8, 2):
                        a(f'v_pk_add_f32 {v(r+e,2)}, {v(r+e,2)}, {v(OF+16*k+e,2)}')
                    for e in range(4):
                        a(CVT(r + 8 * hf + e, r + 8 * hf + 2 * e))
                a('s_nop 1')
                for e in range(4):
                    a(f'v_permlane16_swap_b32 v{r+e}, v{r+8+e}')
                a(f'buffer_store_dwordx4 {v(r,4)}, v{vOut}, s[{OUT}:{OUT+3}], s{sCol} offen offset:{64*c} sc1', f'buffer_store_dwordx4 {v(r+8,4)}, v{vOut}, s[{OUT}:{OUT+3}], s67 offen offset:{64*c} sc1')
            if nm == 'hi3':
                a(f's_or_b32 s{sT0}, s2, s{sOwn}', 's_cbranch_scc1 L_noep')
                a(f'v_mov_b32 v1, s{sTag}', f'v_mov_b32 v{tmp}, 0', f's_mov_b32 s{sT0}, {WS_EP}', 's_mov_b64 exec, 1', f'buffer_store_dword v1, v{tmp}, {WS}, s{sT0} offen sc1')
                a.label('L_noep')
            if Asm.diag:
                a.stamp(13)
                a('s_waitcnt vmcnt(0)')
                a.dump(0, sW, 24)
            a('s_endpgm')

    phase2(3)
    phase2(2)
    a.label('L_done')
    a('s_endpgm')
    return kernel_header(name) + a.text(), kernel_desc(name, 168, 102 if OPT.get('jit') else 70)
```

```python
from asmlib import *
import struct, math

def fbits(x):
    return hex(struct.unpack('<I', struct.pack('<f', x))[0])

WS_Q   = 0x000000
WS_KV  = 0x280000
WS_H   = 0x780000
WS_O   = 0xE40000
WS_RS  = 0x10C0000
WS_CS  = 0x10C8000
WS_F1  = 0x10D0000
WS_FH  = 0x10E0000
WS_FO  = 0x1100000
WS_EP  = 0x1140000
WS_END = 0x1141000

L_V = 122368
L_K = 143360
L_MEAN, L_ISTD, L_RSTD = 158720, 159232, 159744
L_TAG = 160256
L_Q0, L_Q1 = 114688, 161024
L_XR, L_B2 = 81920, 90112
L_FX = 122880
LDS_BYTES = 163840
FAR = 0x30000

QSCALE = 20 ** -0.5 * math.log2(math.e)
MAXOFF = 96.0
SPIN = 0x20000
OPT = {}

sW, sRB, sCG, sHead, sQB, sTag, sT0, sT1, sT2, sT3 = range(28, 38)
WS = 's[24:27]'


def gen(name):
    a = Asm()
    NA, NB, NE = 5, 4, OPT.get('ne', 3)
    L_A, L_B = 16384 * NB, 0
    SP = OPT.get('sp', 5)
    JOBS = [('Q', c) for c in range(SP)] + [('F', c) for c in range(SP - NE, SP)] + [('Q', c) for c in range(SP, 10)] + [('F', c) for c in range(5, 15 - NE)]
    REL = list(range(SP - NE)) + list(range(SP, 5))
    kof = lambda c: c if c < 10 else REL[c - 10]
    slotA = lambda c: (c + NE - 2) % NA
    slotB = lambda j: j % NB
    QE = 10 + NE
    KVB = 17
    SKIP = {0: (QE + 1, QE + 3), 1: (), 2: (QE + 1,), 3: (QE + 1, QE + 3, QE + 5), 4: (QE + 1, QE + 2), 5: (QE + 2, QE + 3)}[OPT.get('skip', 4)]
    def pbar(c):
        if c not in SKIP:
            bar()
    bar = lambda: a('s_barrier')

    a.c('One launch, 256 workgroups of 12 waves. Phase 1: x @ [wqkv | w1] on raw x with the LayerNorm applied as a rank-2 correction')
    a.c('(-mean x column sum, std x bias) and a per-row scale. Phase 2: attention for one head x 256 queries (waves 0..7) while waves 8..11')
    a.c('stream K/V and run the second FFN GEMM. Last stage: output projection into the same accumulators, residual, store.')
    a.c('Hand-offs between workgroups go through d_ws with write-through stores; flags and statistics carry a tag that differs from')
    a.c("the previous launch's tag.")
    a('s_cmp_ge_u32 s2, 256', 's_cbranch_scc1 L_done')
    a.stamp(0); a.stamp(1, True)
    KA = OPT.get('ka', 0)
    rest = ['s_load_dwordx2 s[8:9], s[0:1], 16', 's_load_dwordx8 s[12:19], s[0:1], 32', 's_load_dwordx2 s[20:21], s[0:1], 64', 's_load_dwordx2 s[22:23], s[0:1], 80']
    a('s_load_dwordx4 s[4:7], s[0:1], 0', [] if KA else rest)
    a('v_lshrrev_b32 v1, 6, v0', 'v_and_b32 v0, 63, v0', f'v_readfirstlane_b32 s{sW}, v1')
    if OPT.get('map', 1) == 0:
        a(f's_bfe_u32 s{sT2}, s2, 0x20001', f's_lshr_b32 s{sCG}, s2, 6', f's_lshl2_add_u32 s{sCG}, s{sT2}, s{sCG}',
          f's_bfe_u32 s{sT1}, s2, 0x30003', f's_and_b32 s{sT3}, s2, 1', f's_lshl3_add_u32 s{sRB}, s{sT3}, s{sT1}')
    else:
        T = [[(0, 1, 2, 3), (8, 9, 10, 15), (4, 5, 6, 7), (11, 12, 13, 14)], [(8, 9, 10, 15), (0, 1, 2, 3), (11, 12, 13, 14), (4, 5, 6, 7)]][OPT.get('map', 1) - 1]
        w = lambda q: hex(sum(c << (4 * i) for i, c in enumerate(T[q] + T[q + 1])))
        a(f's_and_b32 s{sT2}, s2, 3', f's_lshr_b32 s{sCG}, s2, 6', f's_lshl2_add_u32 s{sCG}, s{sT2}, s{sCG}', f's_lshl_b32 s{sCG}, s{sCG}, 2',
          f's_bitcmp0_b32 s2, 1', CSEL(sT0, w(0), w(2)), f's_lshr_b32 s{sCG}, s{sT0}, s{sCG}', f's_and_b32 s{sCG}, s{sCG}, 15',
          f's_bfe_u32 s{sT1}, s2, 0x30003', f's_bfe_u32 s{sT3}, s2, 0x10002', f's_lshl3_add_u32 s{sRB}, s{sT3}, s{sT1}')
    a(f's_cmp_lt_u32 s{sW}, 4', 's_cbranch_scc1 L_x', f's_cmp_ge_u32 s{sW}, 8', 's_cbranch_scc1 L_helper')
    def decode2():
        a(f's_and_b32 s{sHead}, s2, 7', f's_bfe_u32 s{sQB}, s2, 0x20003', f's_lshl2_add_u32 s{sHead}, s{sHead}, s{sQB}', f's_lshr_b32 s{sQB}, s2, 5')

    jn = [0]
    def jitter():
        if not OPT.get('jit'):
            return
        jn[0] += 1
        a(f's_mul_i32 s100, s2, {37 + 2 * jn[0] * OPT["jit"]}', f's_mul_i32 s101, s{sW}, {11 + 6 * jn[0]}', 's_add_u32 s100, s100, s101', 's_lshr_b32 s100, s100, 2', 's_and_b32 s100, s100, 15')
        a.label(f'L_j{jn[0]}')
        a('s_sleep 6', 's_sub_u32 s100, s100, 1', f's_cbranch_scc0 L_j{jn[0]}')
    def page(label, nbytes, jump=True):
        if OPT.get('al', 1) >= 2:
            if jump:
                a(f's_branch {label}')
            a.raw(f'.p2align 12,,{nbytes}')
        a.label(label)
    def backoff(key):
        n = OPT.get(key, {'s3': 2}.get(key, 8))
        return [f's_sleep {n}'] if n else []
    def ws_setup():
        a.srd(24, 22, WS_END)
    def lds_tag(t):
        a(f'v_mov_b32 v{t}, {L_TAG}', f'ds_read_b32 v{t}, v{t}', 's_waitcnt lgkmcnt(0)', f'v_readfirstlane_b32 s{sTag}, v{t}')
    def f1_off(d, t, n, m):
        a(f's_lshl_b32 s{d}, s{sCG}, 1', f's_add_u32 s{d}, s{d}, s{n}', f's_lshl_b32 s{d}, s{d}, 10', f's_lshr_b32 s{t}, s{sRB}, 1', f's_lshl_b32 s{t}, s{t}, 7',
          f's_add_u32 s{d}, s{d}, s{t}', f's_add_u32 s{d}, s{d}, {WS_F1}')
        if m is not None:
            a(f's_and_b32 s{t}, s{sRB}, 1', f's_lshl_b32 s{t}, s{t}, 1', f's_add_u32 s{t}, s{t}, s{m}', f's_lshl_b32 s{t}, s{t}, 2', f's_add_u32 s{d}, s{d}, s{t}')

    SD = 48
    SX = 122

    sL, sOA, sOB, sSlot, sMA, sMB, sCnt, sBstep = range(40, 48)
    XA, WB = 48, 52
    vA1, vB1, vB2 = 8, 12, 16
    vA2 = vA1
    sRot, sRB1 = 47, 46
    a.c('waves 4..7: stream activation and weight chunks into the LDS rings')
    a('s_setprio 3', f's_and_b32 s{sL}, s{sW}, 3')
    if 'rw' not in OPT:
        a(f's_lshl1_add_u32 s{sRot}, s{sT2}, s{sT1}', f's_mul_i32 s{sRot}, s{sRot}, 5', f's_lshl1_add_u32 s{sRot}, s{sT3}, s{sRot}', f's_lshr_b32 s{sRot}, s{sRot}, 2',
          f's_cmp_ge_u32 s{sRot}, 10', f's_cselect_b32 s{sT0}, 10, 0', f's_sub_u32 s{sRot}, s{sRot}, s{sT0}')
    else:
        wr, wc, wh, wp = [(5, 20, 2, 5), (5, 4, 2, 10), (5, 10, 2, 3), (5, 2, 2, 10), (2, 2, 20, 10), (3, 0, 20, 10), (5, 0, 2, 0), (10, 0, 5, 10),
                          (20, 0, 10, 10), (20, 0, 10, 5), (10, 0, 5, 20), (10, 2, 5, 10), (13, 0, 7, 10), (10, 0, 0, 10), (10, 20, 5, 10)][OPT['rw']]
        a(f's_mul_i32 s{sRot}, s{sT1}, {wr}', f's_lshr_b32 s{sT0}, s2, 6', f's_mul_i32 s{sT0}, s{sT0}, {wc}', f's_add_u32 s{sRot}, s{sRot}, s{sT0}', f's_mul_i32 s{sT0}, s{sT3}, {wh}',
          f's_add_u32 s{sRot}, s{sRot}, s{sT0}', f's_mul_i32 s{sT0}, s{sT2}, {wp}', f's_add_u32 s{sRot}, s{sRot}, s{sT0}', f's_lshr_b32 s{sRot}, s{sRot}, 2',
          f's_mul_i32 s{sT0}, s{sRot}, 26', f's_lshr_b32 s{sT0}, s{sT0}, 8', f's_mul_i32 s{sT0}, s{sT0}, 10', f's_sub_u32 s{sRot}, s{sRot}, s{sT0}')
    a('v_lshrrev_b32 v1, 3, v0', 'v_lshrrev_b32 v2, 4, v0', 'v_and_b32 v3, 7, v0', 'v_xor_b32 v3, v3, v2')
    a(f's_lshr_b32 s{sT0}, s{sL}, 1', f's_lshl1_add_u32 s{sT0}, s{sRB}, s{sT0}', f's_lshl_b32 s{sT0}, s{sT0}, 6', f's_and_b32 s{sT1}, s{sL}, 1', f's_add_u32 s{sT0}, s{sT0}, s{sT1}',
      f's_mul_i32 s{sOA}, s{sT0}, 10', f's_add_u32 s{sOA}, s{sOA}, s{sRot}', f's_lshl_b32 s{sOA}, s{sOA}, 7', f's_lshl_b32 s{sT1}, s{sT1}, 2')
    a(f'v_xor_b32 v3, s{sT1}, v3', 'v_mul_u32_u24 v5, 0xa0, v1', 'v_xor_b32 v4, 4, v3', f'v_add_lshl_u32 v{vA1}, v5, v3, 4', 'v_add_lshl_u32 v4, v5, v4, 4')
    a(f'v_add_u32 v{vA1+1}, {20480-1024}, v4', f'v_add_u32 v{vA1+2}, {2*(20480-1024)}, v{vA1}', f'v_add_u32 v{vA1+3}, {3*(20480-1024)}, v4')
    sCL = 45
    a(f's_cmp_lt_u32 s{sCG}, 15', f's_cselect_b32 s{XA+2}, 2621440, 0', f's_cselect_b32 s{sCL}, s{sCG}, s{sRB}', f's_mov_b32 s{XA+3}, 0x00020000', f's_lshl_b32 s{sMA}, s{sL}, 12')
    def koff(k, base, scale):
        if k == 0:
            return [f's_mov_b32 s{sT0}, s{base}']
        return [f's_cmp_ge_u32 s{sRot}, {10-k}', f's_cselect_b32 s{sT0}, {10*scale}, 0', f's_sub_u32 s{sT0}, s{base}, s{sT0}', f's_add_u32 s{sT0}, s{sT0}, {scale*k}']
    WF = 56
    firstA = {}
    lastA = {}
    for j, (t, c) in enumerate(JOBS):
        firstA.setdefault(c, j); lastA[c] = j
    def ldA(c, lo=0, hi=4):
        a(f's_add_u32 m0, s{sMA}, {L_A + slotA(c) * 16384}', koff(kof(c), sOA, 128))
        for i in range(lo, hi):
            a.vmem(f'buffer_load_dwordx4 v{vA1+i}, s[{XA}:{XA+3}], s{sT0} offen offset:{1024*i} lds', ('c', firstA[c]))
    SUMS = [('Q', c) for c in range(10)] + [('F', c) for c in range(10)]
    def ldB(j, lo=0, hi=4, JOBS=JOBS):
        q = JOBS[j][0] == 'Q'
        a(f's_add_u32 m0, s{sMA}, {L_B + slotB(j) * 16384}', koff(kof(JOBS[j][1]), sOB if q else sRB1, 64 * (3840 if q else 3456)))
        for i in range(lo, hi):
            d = WB if q else WF
            a.vmem(f'buffer_load_dwordx4 v{(vB1 if q else vB2)+i}, s[{d}:{d+3}], s{sT0} offen offset:{1024*i} lds', ('c', j))

    a.vm = []
    a('s_waitcnt lgkmcnt(0)', f's_mov_b32 s{XA}, s4', f's_mov_b32 s{XA+1}, s5')
    if OPT.get('zst'): a.stamp(4)
    ldA(0)
    a(rest if KA else [])
    a('v_and_b32 v6, 15, v0', 'v_lshlrev_b32 v7, 2, v2', 'v_xor_b32 v6, v6, v7', 'v_mul_u32_u24 v7, 0xf0, v2', f'v_add_lshl_u32 v{vB1}, v7, v6, 4')
    for i in range(1, 4):
        a(f'v_add_u32 v{vB1+i}, {i*(4*3840-1024)}, v{vB1}')
    a(f's_lshl2_add_u32 s{sT1}, s{sRot}, s{sL}', f's_mul_i32 s{sOB}, s{sT1}, {16*3840}', f's_lshl_b32 s{sT2}, s{sCL}, 8', f's_add_u32 s{sOB}, s{sOB}, s{sT2}',
      f's_cmp_lt_u32 s{sCL}, 15', f's_cselect_b32 s{WB+2}, {640*3840}, 0', f's_mov_b32 s{WB}, s6', f's_mov_b32 s{WB+1}, s7', f's_mov_b32 s{WB+3}, 0x00020000')
    a.label('L_p0')
    ldB(0)
    if OPT.get('zst'): a.stamp(5)
    ldA(1); ldB(1)
    if OPT.get('zst'):
        a.stamp(6); a('s_waitcnt vmcnt(8)'); a.stamp(7)
    a('s_setprio 0', 's_waitcnt lgkmcnt(0)')
    ws_setup()
    decode2()
    a(f's_mul_i32 s{sRB1}, s{sT1}, {16*3456}', f's_add_u32 s{sRB1}, s{sRB1}, s{sT2}', 'v_mul_u32_u24 v7, 0xd8, v2', f'v_add_lshl_u32 v{vB2}, v7, v6, 4')
    for i in range(1, 4):
        a(f'v_add_u32 v{vB2+i}, {i*(4*3456-1024)}, v{vB2}')
    a(f's_cmp_lt_u32 s{sCL}, 14', f's_cselect_b32 s{WF+2}, {640*3456}, 0', f's_mov_b32 s{WF}, s12', f's_mov_b32 s{WF+1}, s13', f's_mov_b32 s{WF+3}, 0x00020000')
    vm1 = list(a.vm)
    if OPT.get('so', 1):
        a(f's_cmp_eq_u32 s{sCG}, 15', 's_cbranch_scc1 L_z_sum')
    units = []
    for j in range(2, 20):
        c = JOBS[j][1]
        if firstA[c] == j:
            units.append((j, lastA[c - NA] + 1 if c >= NA else 0, 'A', c))
        units.append((j, j - NB + 1, 'B', j))
    c0 = OPT.get('c0', 99)
    bars = [c for c in range(20) if c not in SKIP]
    part = {}
    hold = {QE - 1: 0, QE + 3: OPT.get('b3', 2), QE + 4: OPT.get('b4', 3)}
    for n, c in enumerate(bars):
        nxt = bars[n + 1] if n + 1 < len(bars) else 20
        rec = c0 <= c < c0 + 4
        if c == 19:
            break
        if rec: a.stamp(2 + 3 * (c - c0))
        assert all(u[0] >= nxt for u in units), (c, units[:2])
        a.wait_vm(*[('c', x) for x in range(c, nxt)])
        if rec: a.stamp(3 + 3 * (c - c0))
        if OPT.get('zst') and c == 0:
            a.stamp(8); a.lock = (7, 8)
        bar()
        if rec: a.stamp(4 + 3 * (c - c0))
        nn = bars[n + 2] if n + 2 < len(bars) else 20
        must = max(nn, c + 3) if c < QE else nn
        budget = OPT.get('bq', 7) if c < QE else 4 * hold.get(c, 2 if nxt == c + 1 else 3)
        for u in list(units):
            if u[1] <= c and (budget > 0 or u[0] < must):
                lo = part.get(u, 0)
                hi = 4 if u[0] < must else min(4, lo + budget)
                if u[2] == 'A' and u[3] == 10:
                    a(f's_cmp_lt_u32 s{sCG}, 14', f's_cselect_b32 s{XA+2}, 2621440, 0')
                (ldA if u[2] == 'A' else ldB)(u[3], lo, hi); budget -= hi - lo; part[u] = hi
                if hi == 4:
                    units.remove(u)
                if Asm.diag: a.c(f'after P({c}): {u[2]}{u[3]} {lo}:{hi}')
    assert not units
    zvm = list(a.vm)
    a('s_branch L_attn_z')

    R = Regs(2)
    vH, vTok = R(), R()
    vAa = R(4); vBa = R(2)
    F = [(R(8), R(8)), (R(8), R(8))]
    FR = F[0][0]
    acc = R(64)
    tmp = R(16)
    vCx = tmp + 14
    sCs, sLd = 58, 59
    sM, sN, sDA, sDB, sSA, sSB = range(40, 46)
    sCntC = 55
    sOff, sHS, sScale = 52, 53, 54

    sMask = 69
    def gemm_setup(wave_base, j0, cnt, maybe_v):
        a(f's_sub_u32 s{sN}, s{sW}, {wave_base}', f's_and_b32 s{sM}, s{sN}, 1', f's_lshr_b32 s{sN}, s{sN}, 1')
        a(f'v_lshrrev_b32 v{vH}, 5, v0', f'v_and_b32 v{vTok}, 31, v0', f'v_mov_b32 v{tmp}, v{vTok}')
        if maybe_v:
            a(f's_cmp_lt_u32 s{sCG}, 10', 's_cbranch_scc1 L_x_rows', f'v_and_b32 v1, 1, v0', f'v_lshrrev_b32 v{tmp}, 1, v{vTok}', f'v_lshl_add_u32 v{tmp}, v1, 5, v{tmp}')
            a.label('L_x_rows')
        a(f'v_bfe_u32 v1, v{tmp}, 1, 3', f'v_xor_b32 v1, v1, v{vH}', f'v_lshrrev_b32 v{tmp+1}, 5, v{tmp}', f'v_lshlrev_b32 v{tmp+1}, 2, v{tmp+1}', f'v_xor_b32 v1, v1, v{tmp+1}')
        a(f's_lshl_b32 s{sT0}, s{sM}, 13', f's_add_u32 s{sT0}, s{sT0}, {L_A+16384*slotA(JOBS[j0][1])}', f'v_lshlrev_b32 v{tmp}, 7, v{tmp}', f'v_add_u32 v{tmp}, s{sT0}, v{tmp}')
        for st in range(4):
            a(f'v_xor_b32 v{tmp+1}, {2*st}, v1', f'v_lshl_add_u32 v{vAa+st}, v{tmp+1}, 4, v{tmp}')
        a('v_lshrrev_b32 v1, 2, v0', 'v_and_b32 v1, 3, v1')
        a(f'v_lshl_add_u32 v{tmp}, v{vH}, 3, v1', f'v_lshlrev_b32 v{tmp}, 8, v{tmp}')
        a(f'v_and_b32 v{tmp+1}, 3, v0', f'v_lshl_add_u32 v{tmp}, v{tmp+1}, 3, v{tmp}')
        a(f'v_and_b32 v{tmp+1}, 16, v0', f'v_lshl_add_u32 v{tmp}, v{tmp+1}, 1, v{tmp}', f'v_add_u32 v{tmp}, {L_B+16384*slotB(j0)}, v{tmp}')
        a(f's_lshl_b32 s{sT0}, s{sN}, 1', f's_add_u32 s{sT0}, s{sT0}, s{sM}', f'v_xor_b32 v1, s{sT0}, v1')
        a(f's_lshl_b32 s{sT0}, s{sT0}, 8', f'v_lshl_add_u32 v{vCx}, v{vTok}, 3, s{sT0}', f'v_xor_b32 v{vCx+1}, 256, v{vCx}',
          f's_lshl_b32 s{sCs}, s{sCG}, 10', f's_add_u32 s{sCs}, s{sCs}, {WS_CS + (16384 if wave_base else 0)}', f's_mov_b32 s{sLd}, -1')
        a(f'v_lshl_add_u32 v{vBa}, v1, 6, v{tmp}', 'v_xor_b32 v1, 1, v1', f'v_lshl_add_u32 v{vBa+1}, v1, 6, v{tmp}')
        a(f's_mov_b32 s{sSA}, {slotA(JOBS[j0][1])}', f's_mov_b32 s{sSB}, {slotB(j0)}', f's_mov_b32 s{sCntC}, {cnt}', f's_mov_b32 s{sMask}, 0')

    def zero_acc(lo, hi):
        for i in range(lo, hi, 2):
            a(f'v_mov_b64 {v(acc+i,2)}, 0')

    def reads(st, f, swap):
        FA, FB = F[f]
        return [f'ds_read_b128 {v(FA,4)}, v{vAa+st}',
                f'ds_read_b64_tr_b16 {v(FB,2)}, v{vBa} offset:{4096*st}',
                f'ds_read_b64_tr_b16 {v(FB+2,2)}, v{vBa} offset:{4096*st+1024}',
                f'ds_read_b64_tr_b16 {v(FB+4,2)}, v{vBa+1} offset:{4096*st}',
                f'ds_read_b64_tr_b16 {v(FB+6,2)}, v{vBa+1} offset:{4096*st+1024}',
                f'ds_read_b128 {v(FA+4,4)}, v{vAa+st} offset:2048' if swap else f'ds_read_b128 {v(FA+4,4)}, v{vAa+(st^2)} offset:4096']

    def mfmas(f, swap):
        FA, FB = F[f]
        out = []
        for t, u in ((0, 0), (0, 1), (1, 1), (1, 0)):
            x, w = FA + 4 * t, FB + 4 * u
            out.append(M16(acc + 32 * t + 16 * u, x, w) if swap else M16(acc + 32 * t + 16 * u, w, x))
            if OPT.get('abl16'):
                d = acc + 32 * t + 16 * u + 8 * f
                out[-1] = [f'v_mfma_f32_16x16x32_bf16 {v(d,4)}, {v(w,4)}, {v(x,4)}, {v(d,4)}', f'v_mfma_f32_16x16x32_bf16 {v(d+4,4)}, {v(x,4)}, {v(w,4)}, {v(d+4,4)}']
        return out

    CT, CF, CR = SX, SX + 4, SX + 8
    CS, vTg = [SX + 36, SX + 38], SX + 40
    csload = ['s_mov_b32 exec_hi, 0'] + [f'buffer_load_dwordx2 {v(CS[u],2)}, v{vCx+u}, {WS}, s{sCs} offen sc1' for u in range(2)] + ['s_mov_b32 exec_hi, -1']
    def colsum_setup():
        a(f'v_mov_b64 {v(CS[0],2)}, 0', f'v_mov_b64 {v(CS[1],2)}, 0', f'v_mov_b32 v{vTg}, {L_TAG}')
    def corr_split():
        out = []
        for t in range(2):
            out += [CVT(CT + 2 * t, CR + t, CR + t), CVT(CF + 2 * t, CS[t], CS[t])]
        for t in range(2):
            out += [f'v_and_b32 v{CR+4+t}, 0xffff0000, v{CT+2*t}', f'v_and_b32 v{CR+6+t}, 0xffff0000, v{CF+2*t}']
        for t in range(2):
            out += [f'v_sub_f32 v{CR+4+t}, v{CR+t}, v{CR+4+t}', f'v_sub_f32 v{CR+6+t}, v{CS[t]}, v{CR+6+t}']
        for t in range(2):
            out += [CVT(CT + 2 * t + 1, CR + 4 + t, CR + 4 + t), CVT(CF + 2 * t, CS[t], CR + 6 + t), CVT(CF + 2 * t + 1, CS[t], CR + 6 + t)]
        return out
    def corr_mfma(swap, c=None):
        out = []
        for t, u in ((0, 0), (0, 1), (1, 1), (1, 0)):
            x, w = CT + 2 * t, CF + 2 * u
            out.append(M8(acc + 32 * t + 16 * u, x, w, c) if swap else M8(acc + 32 * t + 16 * u, w, x, c))
        return out

    def mainloop(tagname, swap, pre_last, jp, jr, je, mid):
        a.label(f'L_ent_{tagname}')
        jitter()
        bar()
        a(reads(0, 0, swap))
        a.label(f'L_loop_{tagname}')
        for st in range(3):
            m = mfmas(st & 1, swap); rd = reads(st + 1, (st + 1) & 1, swap)
            a('s_waitcnt lgkmcnt(3)', m[0], rd[0:3], 's_waitcnt lgkmcnt(4)', m[1], rd[3:6], 's_waitcnt lgkmcnt(6)', m[2])
            if st == 0:
                a(f's_add_u32 s{sSA}, s{sSA}, 1', f's_cmp_eq_u32 s{sSA}, {NA}', CSEL(sDA, -16384*(NA-1), 16384), f's_cselect_b32 s{sSA}, 0, s{sSA}')
            if st == 1:
                a(f's_add_u32 s{sSB}, s{sSB}, 1', f's_cmp_eq_u32 s{sSB}, {NB}', CSEL(sDB, -16384*(NB-1), 16384), f's_cselect_b32 s{sSB}, 0, s{sSB}')
            if st == 2:
                a(f'v_add_u32 v{vAa}, s{sDA}, v{vAa}', f'v_add_u32 v{vBa}, s{sDB}, v{vBa}', f'v_add_u32 v{vBa+1}, s{sDB}, v{vBa+1}')
            a(m[3])
            if st == 0:
                a(f's_cmp_eq_u32 s{sCntC}, s{sLd}', f's_cbranch_scc1 L_ld_{tagname}')
                a.label(f'L_ldx_{tagname}')
            if st == 2:
                a(f's_sub_u32 s{sCntC}, s{sCntC}, 1')
                for r in (vAa + 1, vAa + 2, vAa + 3):
                    a(f'v_add_u32 v{r}, s{sDA}, v{r}')
        m = mfmas(1, swap); rd = reads(0, 0, swap)
        a(f's_cmp_eq_u32 s{sCntC}, 0', 's_waitcnt lgkmcnt(0)', f's_cbranch_scc1 L_last_{tagname}')
        mask = sum(1 << (je - c) for c in SKIP if jr < c < je)
        if mask:
            a(f's_bitcmp1_b32 s{sMask}, s{sCntC}', f's_cbranch_scc1 L_nob_{tagname}')
        a('s_barrier')
        a.label(f'L_nob_{tagname}')
        a(m[0], rd[0:3], m[1], rd[3:6], m[2], m[3], f's_branch L_loop_{tagname}')
        a.label(f'L_ld_{tagname}')
        a(csload, f's_branch L_ldx_{tagname}')
        a.label(f'L_pause_{tagname}')
        d = 16384 * (slotB(jr) - slotB(jp))
        a('s_barrier', m[0], f's_mov_b32 s{sMask}, {hex(mask | 1 << 31)}', m[1], f's_mov_b32 s{sSB}, {slotB(jr)}', m[2], f's_mov_b32 s{sCntC}, {je-jr}', m[3], f's_mov_b32 s{sLd}, {OPT.get("ld" + tagname[0], 2)}',
          f'v_add_u32 v{vBa}, {d}, v{vBa}', f'v_add_u32 v{vBa+1}, {d}, v{vBa+1}')
        d = 16384 * (slotA(JOBS[jr][1]) - slotA(SP))
        if d:
            a(f's_mov_b32 s{sSA}, {slotA(JOBS[jr][1])}', [f'v_add_u32 v{vAa+i}, {d}, v{vAa+i}' for i in range(4)])
        mid()
        a.label(f'L_last_{tagname}')
        a(f's_bitcmp0_b32 s{sMask}, 31', f's_cbranch_scc1 L_pause_{tagname}')
        sp = corr_split()
        if je == QE:
            bar()
        a(f'ds_read_b32 v{vTg}, v{vTg}', pre_last[:1], m[0], pre_last[1:], m[1], f's_mov_b32 s{sLd}, {SPIN}', f's_waitcnt lgkmcnt({len(pre_last)-1})')
        tok = [x for x in sp if not any(f'v{r}' in x.replace(',', ' ').split() for r in (CF, CF + 1, CF + 2, CF + 3, CS[0], CS[1]))]
        col = [x for x in sp if x not in tok]
        a(tok[:5], m[2], tok[5:])
        a.label(f'L_cs_{tagname}')
        a('s_waitcnt vmcnt(0)', f'v_cmp_ne_u32 vcc, v{vTg}, v{CS[0]+1}', f'v_cmp_ne_u32 s[46:47], v{vTg}, v{CS[1]+1}', 's_nop 1', 's_or_b32 vcc_lo, vcc_lo, s46', f's_cbranch_scc0 L_csx_{tagname}',
          f's_sub_u32 s{sLd}, s{sLd}, 1', f's_cbranch_scc1 L_csx_{tagname}', backoff('s0'), csload, f's_branch L_cs_{tagname}')
        a.label(f'L_csx_{tagname}')
        a(m[3], col, 's_nop 1', corr_mfma(swap))
        a.stamp(4)

    a.label('L_x')
    a.c('waves 0..3: QKV projection tile (128 tokens x 128 columns)')
    a(rest if KA else [])
    if OPT.get('cpf', 1):
        a('s_getpc_b64 s[40:41]')
        a.label('L_pc')
        a('s_lshr_b32 s42, s2, 3', f's_lshl2_add_u32 s42, s42, s{sW}', 's_lshl_b32 s42, s42, 9', 's_sub_u32 s40, s40, L_pc-L_p0', 's_subb_u32 s41, s41, 0', f's_mov_b32 s43, L_done-L_p0', 'v_lshlrev_b32 v2, 7, v0', 'v_add_u32 v2, s42, v2', 'v_min_u32 v2, s43, v2',
          'v_mov_b32 v3, s41', 'v_add_co_u32 v2, vcc, s40, v2', 's_mov_b64 exec, 15', 's_nop 0', 'v_addc_co_u32 v3, vcc, 0, v3, vcc',
          'global_load_dword v167, v[2:3], off', 's_mov_b64 exec, -1')
    decode2()
    XBAR = {0: (1, 4), 1: (1, 3, 5), 2: (0, 2, 5), 3: (2, 5), 4: (3,), 5: (2,), 6: (2, 6), 7: (), 8: (4,), 9: (5,), 10: (6,), 11: (0,), 12: (1,)}[OPT.get('xbar', 7)]
    XSIG = QE + OPT.get('xsig', 3)
    XP = QE + OPT.get('xp', 5)
    XB = [c for c in range(QE + 1, XP) if c not in SKIP]
    assert XP not in SKIP and XP >= KVB - 1 and XSIG < XP
    gemm_setup(0, 0, SP, True)
    a('s_waitcnt lgkmcnt(0)')
    ws_setup()
    zero_acc(0, 64)
    colsum_setup()
    vAd, vSa, vSb = tmp, tmp + 8, tmp + 9
    t0, t1, t2 = tmp + 10, tmp + 11, tmp + 12
    a(f's_cmp_ge_u32 s{sCG}, 10', 's_cbranch_scc1 L_x_v')
    a(f's_cmp_lt_u32 s{sCG}, 5',
      CSEL(sHS, 81920, 163840), f's_cselect_b32 s{sScale}, {fbits(QSCALE)}, 1.0',
      CSEL(sT0, 5120, 10240), CSEL(sOff, WS_Q, WS_KV), f's_cselect_b32 s{sT1}, 0, 5')
    a(f's_mul_i32 s{sT0}, s{sT0}, s{sRB}', f's_add_u32 s{sOff}, s{sOff}, s{sT0}',
      f's_mul_i32 s{sT0}, s{sM}, 2560', f's_add_u32 s{sOff}, s{sOff}, s{sT0}')
    a(f's_sub_u32 s{sT1}, s{sCG}, s{sT1}', f's_lshl_b32 s{sT1}, s{sT1}, 1', f's_add_u32 s{sT1}, s{sT1}, s{sN}', f's_lshl_b32 s{sT1}, s{sT1}, 4',
      f's_sub_u32 s{sHS}, s{sHS}, 2560')
    a(f's_lshl_b32 s{sT0}, s{sM}, 3', f's_add_u32 s{sT1}, s{sT1}, s{sT0}')
    for sl in range(2):
        if sl:
            a(f's_xor_b32 s{sT1}, s{sT1}, 8')
        a(f'v_add_u32 v1, s{sT1}, v{vH}', f'v_lshlrev_b32 v{t2}, 4, v{vTok}', f'v_lshl_add_u32 v{t2}, v1, 9, v{t2}', 'v_mul_u32_u24 v1, 205, v1')
        for q in range(4):
            a(f'v_add_u32 v{t0}, {2*q*205}, v1', f'v_lshrrev_b32 v{t0}, 10, v{t0}', f'v_mad_u32_u24 v{vAd+4*sl+q}, v{t0}, s{sHS}, v{t2}')
    vSc = tmp + 13
    a(f's_lshl_b32 s{sT2}, s{sM}, 8', f's_add_u32 s{sT2}, s{sT2}, {L_MEAN}', f'v_lshl_add_u32 v{vSc}, v{vTok}, 3, s{sT2}', f'v_lshl_add_u32 v{vSa}, v{vH}, 9, v{vSc}')
    a.stamp(2)
    a('s_setprio 1')
    vRs = SX + 16
    def xmid(tg):
        def f():
            for c in range(SP + 1, SP + NE):
                bar()
            a(f's_branch L_ent_{tg}')
        return f
    mainloop('qk', False, [f'ds_read_b64 {v(CR,2)}, v{vSa}', f'ds_read_b64 {v(vRs,2)}, v{vSc} offset:{L_RSTD-L_MEAN}'], SP, SP + NE, QE, xmid('qk'))
    a(f's_setprio {OPT.get("xprio", 0)}', 's_waitcnt lgkmcnt(0)')
    a(f'v_mul_f32 v{vRs}, s{sScale}, v{vRs}', f'v_mul_f32 v{vRs+1}, s{sScale}, v{vRs+1}', 's_nop 5')
    for n, i in enumerate((4, 5, 6, 7, 0, 1, 2, 3)):
        u, q = i // 4, i % 4
        pk = FR + 4 * n
        for t in range(2):
            r = acc + 32 * t + 16 * u + 4 * q
            for e in range(4):
                a(f'v_mul_f32 v{r+e}, v{vRs+t}, v{r+e}')
            a(CVT(pk + 2 * t, r), CVT(pk + 2 * t + 1, r + 2))
        a(f'buffer_store_dwordx4 {v(pk,4)}, v{vAd+i}, {WS}, s{sOff} offen offset:{1024*(i%4)} sc1')
        if n in XBAR:
            bar()
    a('s_branch L_x_sig')
    a.label('L_x_v')
    a(f's_cmp_ge_u32 s{sCG}, 15', 's_cbranch_scc1 L_x_idle', f's_lshl_b32 s{sT2}, s{sM}, 8', f's_add_u32 s{sT2}, s{sT2}, {L_MEAN}')
    a(f's_mul_i32 s{sOff}, s{sRB}, 10240', f's_mul_i32 s{sT0}, s{sM}, 2560', f's_add_u32 s{sOff}, s{sOff}, s{sT0}', f's_add_u32 s{sOff}, s{sOff}, {WS_KV+5120}')
    a(f's_sub_u32 s{sT1}, s{sCG}, 10', f's_lshl_b32 s{sT1}, s{sT1}, 7', f's_lshl_b32 s{sT0}, s{sN}, 6', f's_add_u32 s{sT1}, s{sT1}, s{sT0}',
      f's_lshl_b32 s{sT0}, s{sM}, 5', f's_add_u32 s{sT1}, s{sT1}, s{sT0}', f'v_add_u32 v1, s{sT1}, v{vTok}', f'v_mul_u32_u24 v{t2}, 320, v{vH}')
    for u in range(2):
        a(f'v_xor_b32 v{t0}, {32*u}, v1', f'v_mul_u32_u24 v{t1}, 3277, v{t0}', f'v_lshrrev_b32 v{t1}, 16, v{t1}',
          f'v_mul_u32_u24 v{t1}, {163840-320}, v{t1}', f'v_lshl_add_u32 v{t1}, v{t0}, 4, v{t1}', f'v_add_u32 v{vAd+u}, v{t1}, v{t2}')
    a(f'v_lshl_add_u32 v{vSa}, v{vTok}, 2, s{sT2}', f'v_lshl_add_u32 v{vSa}, v{vH}, 9, v{vSa}', f'v_lshl_add_u32 v{vSc}, v{vH}, 4, s{sT2}')
    a.stamp(2)
    a('s_setprio 1')
    def v_stats(t, dst):
        return [f'ds_read_b128 {v(dst+4*q,4)}, v{vSc} offset:{L_RSTD-L_MEAN+128*t+32*q}' for q in range(4)]
    mainloop('v', True, [f'ds_read2_b32 {v(CR,2)}, v{vSa} offset0:0 offset1:32'] + v_stats(0, vRs), SP, SP + NE, QE, xmid('v'))
    a(f's_setprio {OPT.get("xprio", 0)}', v_stats(1, FR), 's_waitcnt lgkmcnt(4)', 's_nop 2')
    n = 0
    for t in range(2):
        st_ = FR if t else vRs
        if t:
            a('s_waitcnt lgkmcnt(0)')
        for u in range(2):
            for ap in range(2):
                r = acc + 32 * t + 16 * u + 8 * ap
                for e in range(8):
                    a(f'v_mul_f32 v{r+e}, v{st_+8*ap+e}, v{r+e}')
                for e in range(4):
                    a(CVT(r + e, r + 2 * e))
                a(f'buffer_store_dwordx4 {v(r,4)}, v{vAd+u}, {WS}, s{sOff} offen offset:{640*(2*t+ap)} sc1')
                if n in XBAR:
                    bar()
                n += 1
    a.label('L_x_sig')
    jitter()
    a.stamp(5)
    lds_tag(4)
    f1_off(sT0, sT1, sN, sM)
    a('v_mov_b32 v1, 0', 's_mov_b64 vcc, 1')
    for c in XB[len(XBAR):]:
        if c <= XSIG:
            bar()
    a('s_mov_b64 exec, vcc', 's_waitcnt vmcnt(0)', f'buffer_store_dword v4, v1, {WS}, s{sT0} offen sc1', 's_mov_b64 exec, -1')
    a.stamp(6)
    for c in XB[len(XBAR):]:
        if c > XSIG:
            bar()

    a.label('L_attn')
    a.c('attention set-up; waves 0..3 wait for the projections and stage Q and the first K/V chunks')
    if 'c0' in OPT:
        a.lock = tuple(range(2, 14))
    a.stamp(7)
    R = Regs(2)
    vH, vTokA, vVa, vK2a = R(), R(), R(), R()
    vKa = [R(), R()]
    Q1 = R(4); Q2 = [R(2), R(2)]
    S = [R(16), R(16)]
    P = R(8); O = R(16); C = R(16)
    K1 = [R(4), R(4)]; V = [R(8), R(8)]; K2 = R(2)
    tp = R(8)
    sCnt, sKV, sPass, sM40 = 40, 41, 42, 44
    vKg = tp + 6
    def a_setup():
        a(f'v_lshrrev_b32 v{vH}, 5, v0', f'v_and_b32 v{vTokA}, 31, v0', f's_mul_i32 s{sKV}, s{sHead}, 163840', f's_add_u32 s{sKV}, s{sKV}, {WS_KV}')
        a(f'v_lshlrev_b32 v{vK2a}, 3, v{vTokA}', f'v_lshl_add_u32 v{vKg}, v{vH}, 9, v{vK2a}')
        a(f'v_add_u32 v{vKa[0]}, {L_K}, v{vKg}', f'v_add_u32 v{vKa[1]}, {L_K+256}, v{vKg}', f'v_lshlrev_b32 v{vK2a}, 3, v0', f'v_add_u32 v{vK2a}, {L_K+2048}, v{vK2a}')
        a(f'v_lshlrev_b32 v{vVa}, 4, v{vTokA}', f'v_mul_u32_u24 v{K2}, 320, v{vH}', f'v_add_u32 v{vVa}, v{vVa}, v{K2}', f'v_add_u32 v{vVa}, {L_V}, v{vVa}')
        a(f'v_cmp_eq_u32 vcc, 20, v{vTokA}', f'v_mov_b32 v{K2}, {L_V+640}', f'v_mov_b32 v{K2+1}, {FAR}', f'v_cndmask_b32 v{vVa}, v{vVa}, v{K2}, vcc',
          f'v_cmp_lt_u32 vcc, 20, v{vTokA}', 's_nop 1', f'v_cndmask_b32 v{vVa}, v{vVa}, v{K2+1}, vcc')
        for i in range(16):
            a(f'v_mov_b32 v{O+i}, 0')
        for i in range(4):
            a(f'v_mov_b32 v{P+4+i}, 0', f'v_mov_b32 v{V[1]+4+i}, 0')
        a(f's_lshr_b32 s{sT0}, s{sW}, 1', f's_cmp_lt_u32 s{sT0}, 3', CSEL(sT1, L_Q0, L_Q1 - 7680), f's_mul_i32 s{sT0}, s{sT0}, 2560', f's_add_u32 s{sT0}, s{sT0}, s{sT1}',
          f's_and_b32 s{sT1}, s{sW}, 1', f's_lshl_b32 s{sT1}, s{sT1}, 3', f's_add_u32 s{sT0}, s{sT0}, s{sT1}',
          f'v_lshl_add_u32 v{vQb}, v{vTokA}, 4, s{sT0}', f'v_lshl_add_u32 v{vQa}, v{vH}, 9, v{vQb}')
    vQa, vQb = tp + 4, tp + 5
    a_setup()
    sP, sNB, sSpin = 48, 49, 50
    if True:
        a(f's_mul_i32 s{sT0}, s{sHead}, 20', f's_add_u32 s{sT1}, s{sT0}, 19', f's_lshr_b32 s{sT0}, s{sT0}, 6', f's_lshr_b32 s{sT1}, s{sT1}, 6', f's_sub_u32 s{sT1}, s{sT1}, s{sT0}',
          f's_lshl_b32 s{sT1}, s{sT1}, 10', f's_lshl_b32 s{sP}, s{sT0}, 10', f's_add_u32 s{sP}, s{sP}, {WS_F1}')
        a(f'v_bfe_u32 v{tp}, v0, 2, 2', f's_lshl_b32 s{sT0}, s{sW}, 1', f's_sub_u32 s{sT0}, s{sT0}, 1', f'v_add_u32 v1, s{sT0}, v{tp}', f'v_cmp_eq_u32 vcc, 0, v{tp}',
          f'v_bfe_u32 v{tp+1}, v0, 1, 1', f'v_add_u32 v{tp+1}, 1, v{tp+1}', 'v_cndmask_b32 v1, v1, 0, vcc' if False else f'v_cndmask_b32 v1, v1, v{tp}, vcc',
          f'v_cmp_eq_u32 vcc, 3, v{tp}', f'v_mov_b32 v{tp+2}, s{sQB}', f'v_mov_b32 v{tp+3}, 0', f'v_cndmask_b32 v1, v1, v{tp+2}, vcc', f'v_cndmask_b32 v{tp+1}, v{tp+1}, v{tp+3}, vcc',
          'v_lshlrev_b32 v1, 7, v1', f'v_mul_u32_u24 v{tp+1}, 10240, v{tp+1}', f'v_add_u32 v1, v1, v{tp+1}', f'v_and_b32 v{tp}, 1, v0', f'v_mad_u32_u24 v1, v{tp}, s{sT1}, v1')
    a(f's_mov_b32 s{sSpin}, {SPIN}')
    a(f's_mov_b32 s{sM40}, -1', f's_mov_b32 s{sM40+1}, 0xff')
    a(f's_lshl_b32 s{sT0}, s{sHead}, 5', f's_lshl_b32 s{sT1}, s{sQB}, 2', f's_add_u32 s{sT0}, s{sT0}, s{sT1}', f's_add_u32 s{sT0}, s{sT0}, s{sW}', f's_mul_i32 s51, s{sT0}, 2560',
      f's_add_u32 s51, s51, {WS_Q}', f's_cmp_lt_u32 s{sW}, 3', CSEL(sT1, L_Q0, L_Q1 - 7680), f's_mul_i32 s52, s{sW}, 2560', f's_add_u32 s52, s52, s{sT1}')
    a(f's_mul_i32 s{sT0}, s{sW}, 1280', f's_mul_i32 s{sT1}, s{sW}, 1312', f's_add_u32 s{sT2}, s{sT0}, s{sKV}')
    poll1 = ['s_mov_b64 exec, 0xffff', f'buffer_load_dwordx4 {v(tp,4)}, v1, {WS}, s{sP} offen sc1', 's_mov_b64 exec, -1']
    check = ['s_waitcnt vmcnt(0)'] + [f'v_xor_b32 v{tp+i}, s{sTag}, v{tp+i}' for i in range(4)] + [
        f'v_or3_b32 v{tp}, v{tp}, v{tp+1}, v{tp+2}', f'v_or_b32 v{tp}, v{tp}, v{tp+3}', f'v_cmp_ne_u32 vcc, 0, v{tp}', 's_nop 1', 's_and_b32 vcc_lo, vcc_lo, 0xffff', 's_cbranch_scc0 L_poll1_ok']
    a(f's_mov_b32 s{sNB}, 0', f's_cmp_ge_u32 s{sCG}, 15', 's_cbranch_scc1 L_poll1c')
    bar()
    left = len([c for c in range(XP + 1, 20) if c not in SKIP])
    a(poll1, f's_mov_b32 s{sNB}, {max(0, left-1)}')
    if left:
        a.label('L_poll1a')
        bar()
        a(check, poll1, f's_sub_u32 s{sNB}, s{sNB}, 1', 's_cbranch_scc0 L_poll1a', f's_mov_b32 s{sNB}, 0')
    a.label('L_poll1b')
    a(check, f's_sub_u32 s{sSpin}, s{sSpin}, 1', 's_cbranch_scc1 L_poll1_ok', backoff('s1'))
    a.label('L_poll1c')
    a(poll1, 's_branch L_poll1b')
    a.label('L_poll1_ok')
    jitter()
    a.stamp(8)
    a('v_lshlrev_b32 v1, 4, v0', 's_mov_b32 m0, s52', f's_mov_b64 exec, s[{sM40}:{sM40+1}]')
    for i in range(4):
        a(f'buffer_load_dwordx4 v1, {WS}, s51 offen offset:{640*i} sc1 lds')
    for c in range(2):
        a(f's_add_u32 m0, s{sT0}, {L_K+5120*c}', f's_add_u32 s{sT3}, s{sT2}, {10240*c}')
        a(f'buffer_load_dwordx4 v1, {WS}, s{sT3} offen sc1 lds', f'buffer_load_dwordx4 v1, {WS}, s{sT3} offen offset:640 sc1 lds')
        a(f's_add_u32 m0, s{sT1}, {L_V+5248*c}', f's_add_u32 s{sT3}, s{sT3}, 5120')
        a(f'buffer_load_dwordx4 v1, {WS}, s{sT3} offen sc1 lds', f's_sub_u32 s{sT3}, s{sT3}, 16', f'buffer_load_dwordx4 v1, {WS}, s{sT3} offen offset:656 sc1 lds')
    a('s_mov_b64 exec, -1')
    a.label('L_rest')
    a(f's_sub_u32 s{sNB}, s{sNB}, 1', 's_cbranch_scc1 L_rest_done', 's_barrier', 's_branch L_rest')
    a.label('L_rest_done')
    a('s_waitcnt vmcnt(4)', 's_branch L_attn_j')
    a.label('L_attn_z')
    jitter()
    a.vm = zvm
    lds_tag(1)
    a_setup()
    a(f'v_mul_u32_u24 v1, 656, v{vTokA}', f'v_add_u32 v1, {L_V+640}, v1')
    for i in range(4):
        a(f'v_mov_b32 v{K1[0]+i}, 0x3f803f80')
    a(f's_cmp_lg_u32 s{sW}, 4', 's_cbranch_scc1 L_noones', f'ds_write_b128 v1, {v(K1[0],4)}')
    a.label('L_noones')
    a.wait_vm(('c', 19))
    pbar(19)
    a('s_waitcnt lgkmcnt(0)')
    page('L_attn_j', 4092)
    sHi = 46
    a('s_mov_b32 vcc_lo, -1', 's_mov_b32 vcc_hi, 0', f's_mov_b32 s{sHi}, -1', f's_mov_b32 s{sHi+1}, 0')

    def rdK1(dst, blk):
        o = (blk // 2 % 8) * 5
        return f'ds_read2st64_b64 {v(dst,4)}, v{vKa[blk % 2]} offset0:{o} offset1:{o+2}'
    def rdK2(pair):
        return f'ds_read_b64 {v(K2,2)}, v{vK2a} offset:{(pair % 8) * 2560}'
    def rdV(dst, blk, half):
        return f'ds_read_b128 {v(dst+4*half,4)}, v{vVa} offset:{((blk % 16) * 2 + half) * 656}'

    a.stamp(9)
    bar()
    a.stamp(10)
    a(f'ds_read2st64_b64 {v(Q1,4)}, v{vQa} offset0:0 offset1:2', rdK1(K1[0], 0), rdK1(K1[1], 1), f'ds_read_b64 {v(tp,2)}, v{vQb} offset:2048', rdK2(0),
      rdV(V[0], 0, 0), rdV(V[0], 0, 1), 's_waitcnt lgkmcnt(5)')
    a(M16(S[0], K1[0], Q1, '0'), 's_waitcnt lgkmcnt(3)')
    for i in range(2):
        a(f'v_cndmask_b32 v{Q2[0]+i}, 0, v{tp+i}, vcc')
    for i in range(2):
        a(f'v_cndmask_b32 v{Q2[1]+i}, v{tp+i}, 0, s[{sHi}:{sHi+1}]')
    a(M16(S[1], K1[1], Q1, '0'), 's_waitcnt lgkmcnt(2)', M8(S[0], K2, Q2[0]), M8(S[1], K2, Q2[1]), 's_nop 10')
    a.c('stand-in for the row maximum: maximum over the first 64 keys plus 96 (log2 units); checked after the loop')
    vals = [S[0] + i for i in range(16)] + [S[1] + i for i in range(16)]
    a(f'v_max3_f32 v{tp}, v{vals[0]}, v{vals[1]}, v{vals[2]}', f'v_max3_f32 v{tp+1}, v{vals[3]}, v{vals[4]}, v{vals[5]}')
    for i in range(6, 32, 2):
        r = tp + (i // 2 + 1) % 2
        a(f'v_max3_f32 v{r}, v{r}, v{vals[i]}, v{vals[i+1]}')
    a(f'v_max_f32 v{tp}, v{tp}, v{tp+1}', f'v_mov_b32 v{tp+1}, v{tp}', 's_nop 1', f'v_permlane32_swap_b32 v{tp}, v{tp+1}', 's_nop 1')
    a(f'v_max_f32 v{tp}, v{tp}, v{tp+1}', f'v_sub_f32 v{C}, {fbits(-float(OPT.get("mo", MAXOFF)))}, v{tp}')
    a(f'v_mov_b32 v{C+1}, v{C}')
    for i in range(2, 16, 2):
        a(f'v_mov_b64 {v(C+i,2)}, {v(C,2)}')
    if OPT.get('pro', 0) == 0:
        a('s_nop 1', M16(S[0], K1[0], Q1, C), M8(S[0], K2, Q2[0]), f's_mov_b32 s{sCnt}, 4', 's_waitcnt vmcnt(0)', 's_nop 7')
    else:
        for i in range(16):
            a(f'v_add_f32 v{S[0]+i}, v{S[0]+i}, v{C}')
        a(f's_mov_b32 s{sCnt}, 4', 's_waitcnt vmcnt(0)')
    a.stamp(11)
    a.raw('.p2align 3')
    a.label('L_at_loop')
    LAD = [(3, 2, 1, 0), (3, 2, 1, 1), (2, 1, 0, 0), (3, 3, 2, 1), (2, 2, 1, 0)][OPT.get('lad', 0)]
    for b in range(16):
        cur, nxt = S[b & 1], S[(b + 1) & 1]
        E = lambda i: EXP(cur + i)
        Cv = lambda i: CVT(P + i, cur + 2 * i)
        a(M16(nxt, K1[(b + 1) & 1], Q1, C))
        if b % 4 == 2:
            bar()
        a(f's_setprio {LAD[(b + 2) % 4]}', rdK1(K1[b & 1], b + 2))
        vs = [E(0), E(1), E(2), Cv(0), E(3), E(4), Cv(1), E(5), E(6), Cv(2), E(7), E(8), Cv(3), E(9), E(10), Cv(4), E(11), E(12), Cv(5), E(13), E(14), E(15), Cv(6), Cv(7)]
        c1, c2, c3 = [(6, 12, 18), (4, 8, 15), (4, 10, 15), (5, 10, 16), (7, 13, 19), (6, 11, 17), (5, 12, 18), (8, 12, 20)][OPT.get('sch', 0)]
        a(vs[:c1])
        a(M16(O, V[(b + 1) & 1] + 4, P + 4), 's_waitcnt lgkmcnt(1)', rdV(V[(b + 1) & 1], b + 1, 0), rdV(V[(b + 1) & 1], b + 1, 1))
        a(vs[c1:c2])
        a(M8(nxt, K2, Q2[(b + 1) & 1]))
        a(vs[c2:c3])
        a(M16(O, V[b & 1], P), 's_waitcnt lgkmcnt(2)')
        if b % 2 == 0:
            a(rdK2(b // 2 + 1))
        if b == 15:
            a(f's_sub_u32 s{sCnt}, s{sCnt}, 1', f's_cmp_lg_u32 s{sCnt}, 0')
        a(vs[c3:])
    a('s_cbranch_scc1 L_at_loop')
    a('s_nop 0', M16(O, V[1] + 4, P + 4), f's_mov_b32 s{sPass}, 0', 's_waitcnt lgkmcnt(0)')
    if OPT.get('ep', 1) == 2:
        a('s_setprio 1')
    a.stamp(12)

    a.label('L_at_fin')
    a.c('normalise and store; if a sum overflowed or came near the flush range, redo this wave with the true row maximum')
    jitter()
    a(f's_lshl_b32 s{sT0}, s{sQB}, 3', f's_add_u32 s{sT0}, s{sT0}, s{sW}', f's_mul_i32 s{sT0}, s{sT0}, 40960', f's_add_u32 s{sT0}, s{sT0}, {WS_O}',
      f's_lshl_b32 s{sT1}, s{sHead}, 10', f's_add_u32 s{sT1}, s{sT1}, s{sT0}',
      f's_lshl_b32 s{sT2}, s{sHead}, 8', f's_add_u32 s{sT2}, s{sT2}, s{sT0}', f's_add_u32 s{sT2}, s{sT2}, 32768', f's_mov_b32 s{sT3}, {fbits(2.0**-102)}', 's_nop 1')
    vL, vSum, N = tp, tp + 1, S[0]
    a(f'v_mov_b32 v{vL}, v{O+8}', f'v_mov_b32 v{tp+2}, v{O+8}', 'v_lshlrev_b32 v1, 4, v0', f'v_lshlrev_b32 v{tp+4}, 3, v0')
    a(f'v_permlane32_swap_b32 v{tp+2}, v{vL}', f'v_add_f32 v{vSum}, |v{O}|, |v{O+1}|', f'v_add_f32 v{tp+3}, |v{O+8}|, |v{O+9}|', f'v_rcp_f32 v{vL}, v{vL}', f'v_add_f32 v{vSum}, v{vSum}, |v{O+2}|')
    for i in range(8):
        a(f'v_mul_f32 v{N+i}, v{O+i}, v{vL}')
    for i in range(4):
        a(CVT(N + i, N + 2 * i))
    a(f'buffer_store_dwordx4 {v(N,4)}, v1, {WS}, s{sT1} offen sc1')
    for i in range(8, 12):
        a(f'v_mul_f32 v{N+i}, v{O+i}, v{vL}')
    a(CVT(N + 8, N + 8), CVT(N + 9, N + 10), 's_mov_b32 exec_hi, 0', f'buffer_store_dwordx2 {v(N+8,2)}, v{tp+4}, {WS}, s{sT2} offen sc1', 's_mov_b32 exec_hi, -1', 's_setprio 0' if OPT.get('ep', 1) else 's_nop 0')
    for i in range(3, 8):
        a(f'v_add_f32 v{vSum}, v{vSum}, |v{O+i}|')
    a(f'v_add_f32 v{tp+3}, v{tp+3}, |v{O+10}|', f'v_add_f32 v{tp+3}, v{tp+3}, |v{O+11}|', f'v_add_f32 v{tp+3}, v{tp+3}, v{vSum}')
    a(f'v_cmp_ngt_f32 vcc, {fbits(2.0**120)}, v{tp+3}', f'v_cmp_gt_f32 s[46:47], s{sT3}, v{vSum}', 's_nop 1',
      's_or_b64 s[46:47], s[46:47], vcc', f's_cmp_eq_u32 s{sPass}, 0', 's_cselect_b64 s[46:47], s[46:47], 0', 's_cmp_lg_u64 s[46:47], 0',
      's_cbranch_scc1 L_at_slow' if not OPT.get('noslow') else 's_nop 0')
    FOS = OPT.get('fos', 2)
    a(f's_lshl_b32 s{sT0}, s{sQB}, 3', f's_add_u32 s{sT0}, s{sT0}, s{sW}', f's_lshl_b32 s{sT0}, s{sT0}, 12', f's_lshr_b32 s{sT1}, s{sHead}, {FOS}', f's_lshl_b32 s{sT1}, s{sT1}, 7',
      f's_add_u32 s{sT0}, s{sT0}, s{sT1}', f's_and_b32 s{sT1}, s{sHead}, {(1<<FOS)-1}', f's_lshl_b32 s{sT1}, s{sT1}, 2',
      f's_add_u32 s{sT0}, s{sT0}, s{sT1}', f's_add_u32 s{sT0}, s{sT0}, {WS_FO}', f'v_mov_b32 v1, s{sTag}', 'v_mov_b32 v2, 0', 's_mov_b64 exec, 1')
    a('s_waitcnt vmcnt(0)', f'buffer_store_dword v1, v2, {WS}, s{sT0} offen sc1')
    a.stamp(13)
    a.dump(0, sW, 24)
    a('s_endpgm')

    a.label('L_at_slow')
    a.c('true row maximum over all keys, then the weighted sum again')
    vVg, vL8s = tp + 4, tp + 7
    a(f'v_min_u32 v1, 19, v{vTokA}', 'v_lshlrev_b32 v1, 4, v1', f'v_mul_u32_u24 v{vVg}, 320, v{vH}', f'v_add_u32 v{vVg}, v1, v{vVg}', f'v_lshlrev_b32 v{vL8s}, 3, v0')
    a(f'v_mov_b32 v{tp}, 0xff800000', f's_mov_b32 s{sCnt}, 0')
    def pair_off():
        a(f's_lshr_b32 s{sT0}, s{sCnt}, 1', f's_mul_i32 s{sT0}, s{sT0}, 10240', f's_and_b32 s{sT1}, s{sCnt}, 1', f's_mul_i32 s{sT1}, s{sT1}, 2560',
          f's_add_u32 s{sT0}, s{sT0}, s{sT1}', f's_add_u32 s{sT0}, s{sT0}, s{sKV}', f's_add_u32 s{sT1}, s{sT0}, 5120')
    def ldK():
        for b in range(2):
            a(f'buffer_load_dwordx2 {v(K1[b],2)}, v{vKg}, {WS}, s{sT0} offen offset:{256*b} sc1',
              f'buffer_load_dwordx2 {v(K1[b]+2,2)}, v{vKg}, {WS}, s{sT0} offen offset:{256*b+1024} sc1')
        a(f'buffer_load_dwordx2 {v(K2,2)}, v{vL8s}, {WS}, s{sT0} offen offset:2048 sc1')
    a.label('L_at_slow_max')
    pair_off(); ldK()
    a('s_waitcnt vmcnt(0)')
    a(M16(S[0], K1[0], Q1, '0'), M16(S[1], K1[1], Q1, '0'), M8(S[0], K2, Q2[0]), M8(S[1], K2, Q2[1]), 's_nop 12')
    for i in range(16):
        a(f'v_max3_f32 v{tp}, v{tp}, v{S[0]+i}, v{S[1]+i}')
    a(f's_add_u32 s{sCnt}, s{sCnt}, 1', f's_cmp_lt_u32 s{sCnt}, 32', 's_cbranch_scc1 L_at_slow_max')
    a(f'v_mov_b32 v{tp+1}, v{tp}', 's_nop 1', f'v_permlane32_swap_b32 v{tp}, v{tp+1}', 's_nop 1', f'v_max_f32 v{tp}, v{tp}, v{tp+1}')
    for i in range(16):
        a(f'v_sub_f32 v{C+i}, 0, v{tp}', f'v_mov_b32 v{O+i}, 0')
    a(f'v_cmp_eq_u32 s[48:49], 20, v{vTokA}', f'v_mov_b32 v{tp+5}, 0x3f803f80', f's_mov_b32 s{sCnt}, 0')
    a.label('L_at_slow_pv')
    pair_off(); ldK()
    for g in range(4):
        a(f'buffer_load_dwordx4 {v(V[g//2]+4*(g%2),4)}, v{vVg}, {WS}, s{sT1} offen offset:{640*g} sc1')
    a('s_waitcnt vmcnt(0)')
    a(M16(S[0], K1[0], Q1, C), M16(S[1], K1[1], Q1, C), M8(S[0], K2, Q2[0]), M8(S[1], K2, Q2[1]))
    for b in range(2):
        for i in range(8):
            a(f'v_cndmask_b32 v{V[b]+i}, v{V[b]+i}, v{tp+5}, s[48:49]')
    for b in range(2):
        for i in range(16):
            a(EXP(S[b] + i))
        a('s_nop 0')
        for i in range(8):
            a(CVT(P + i, S[b] + 2 * i))
        a('s_nop 1', M16(O, V[b], P), M16(O, V[b] + 4, P + 4))
    a(f's_add_u32 s{sCnt}, s{sCnt}, 1', f's_cmp_lt_u32 s{sCnt}, 32', 's_cbranch_scc1 L_at_slow_pv')
    a(f's_mov_b32 s{sPass}, 1', 's_branch L_at_fin')

    if OPT.get('so', 1):
        a.label('L_z_sum')
        a.vm = vm1
        nb = 2
        for n, c in enumerate(bars[:-1]):
            a.wait_vm(*[('c', x) for x in range(c, bars[n + 1])])
            bar()
            while nb < min(20, c + NB):
                ldB(nb, JOBS=SUMS); nb += 1
        a('s_waitcnt vmcnt(0)', 's_branch L_attn_z')
    a.label('L_x_idle')
    a.c('workgroups without a projection tile: column sums of the weights of column group rb')
    jitter()
    PA = acc
    def sum_setup():
        a('v_cmp_eq_u32 vcc, 0, v3', 'v_cmp_eq_u32 s[46:47], 20, v3', 'v_mov_b32 v1, 0x3f803f80', 's_nop 0', 's_or_b64 vcc, vcc, s[46:47]', 's_nop 1')
        for i in range(4):
            a(f'v_cndmask_b32 v{PA+i}, 0, v1, vcc')
    def sum_job(j):
        SS = acc + (4 if SUMS[j][0] == 'Q' else 8)
        for st in range(4):
            o = slotB(j) * 16384 + 4096 * st
            a(f'ds_read_b64_tr_b16 {v(FR+16+4*st,2)}, v{vBa} offset:{o}', f'ds_read_b64_tr_b16 {v(FR+16+4*st+2,2)}, v{vBa} offset:{o+1024}')
        for st in range(4):
            a(f's_waitcnt lgkmcnt({6-2*st})', f'v_mfma_f32_16x16x32_bf16 {v(SS,4)}, {v(PA,4)}, {v(FR+16+4*st,4)}, {v(SS,4)}')
    def publish(SS, off):
        a(f's_lshl_b32 s{sCs}, s{sRB}, 10', f's_add_u32 s{sCs}, s{sCs}, {off}', 's_nop 5', f'v_mov_b32 v{SS+1}, s{sTag}', 's_mov_b32 exec_hi, 0',
          f'buffer_store_dwordx2 {v(SS,2)}, v{vCx}, {WS}, s{sCs} offen sc1', 's_mov_b32 exec_hi, -1')
    sum_setup()
    for j, (ty, c) in enumerate(JOBS):
        pbar(j)
        if j == (10 if OPT.get('so', 1) else QE):
            lds_tag(1)
            publish(acc + 4, WS_CS)
            a.stamp(2)
        sum_job(j)
    publish(acc + 8, WS_CS + 16384)
    a.stamp(3)
    a('s_branch L_attn')

    a.label('L_helper')
    a.c('waves 8..11: row statistics, first FFN GEMM')
    a(rest if KA else [])
    jitter()
    a.lock = None
    sG = 38
    a(f's_sub_u32 s{sG}, s{sW}, 8')
    decode2()
    gemm_setup(8, SP, NE, False)
    sFB = 39
    a(f's_lshl_b32 s{sT0}, s{sRB}, 7', f's_lshl_b32 s{sT1}, s{sCG}, 3', f's_add_u32 s{sT0}, s{sT0}, s{sT1}', f's_lshl_b32 s{sT1}, s{sG}, 1', f's_add_u32 s{sT2}, s{sT0}, s{sT1}',
      f's_mul_i32 s{sT3}, s{sT2}, 1280', f's_lshl_b32 s{sT2}, s{sT2}, 4', f's_add_u32 s{sT2}, s{sT2}, {WS_RS}')
    a(f'v_mul_u32_u24 v1, 1280, v2', f'v_lshl_add_u32 v{tmp+4}, v{vTok}, 4, v1', f'v_lshl_add_u32 v{tmp+5}, v{vTok}, 3, v1', f'v_lshlrev_b32 v{tmp+6}, 1, v{vTok}')
    a(f's_lshl_b32 s{sFB}, s{sCG}, 1', f's_add_u32 s{sFB}, s{sFB}, s{sN}', f's_lshl_b32 s{sT0}, s{sFB}, 7')
    a('s_waitcnt lgkmcnt(0)')
    ws_setup()
    a(f's_add_u32 s10, s22, {WS_EP}', 's_addc_u32 s11, s23, 0', f's_load_dword s{sTag}, s[10:11], 0')
    def touch(off, extra=(0,)):
        a(f's_and_b32 s10, s{off}, 0xffffff80', 's_add_u32 s10, s22, s10', 's_addc_u32 s11, s23, 0')
        for e in extra:
            a(f's_load_dword s61, s[10:11], {e}', f's_load_dword s61, s[10:11], {e+64}')
    if OPT.get('tch', 1):
        touch(sT2)
        f1_off(56, 57, sN, None)
        touch(56)
        a(f's_lshl_b32 s56, s{sRB}, 1', f's_add_u32 s56, s56, s{sM}', 's_lshl_b32 s56, s56, 4', f's_add_u32 s56, s56, s{sCG}', 's_lshl_b32 s56, s56, 7', f's_add_u32 s56, s56, {WS_FH}')
        touch(56)
        a(f's_lshl_b32 s56, s{sQB}, 2', f's_add_u32 s56, s56, s{sG}', 's_lshl_b32 s56, s56, 13', f's_lshr_b32 s57, s{sHead}, {OPT.get("fos", 2)}', 's_lshl_b32 s57, s57, 7',
          's_add_u32 s56, s56, s57', f's_add_u32 s56, s56, {WS_FO}')
        touch(56, (0, 4096))
    vL16, vL8, vTr, vTr2, vOut, vRes = range(SX + 16, SX + 22)
    vW, vWr = SX + 22, SX + 26
    vR2 = SX + 42
    sOwn, sKH, sRow, sCol, sReg, sRG = 62, 63, 64, 65, 66, 3
    t = tmp + 10
    a(f's_mov_b32 s60, s{sT0}')
    a(f's_bfe_u32 s{sRG}, s2, 0x20001', f's_bfe_u32 s{sT0}, s2, 0x30003', f's_lshl3_add_u32 s{sRG}, s{sRG}, s{sT0}',
      f's_and_b32 s{sOwn}, s{sG}, 1', f's_lshr_b32 s{sKH}, s{sG}, 1', f's_lshl1_add_u32 s{sRow}, s{sRG}, s{sOwn}', f's_lshr_b32 s{sCol}, s2, 6')
    a(f'v_lshlrev_b32 v{vL16}, 4, v0', f'v_lshlrev_b32 v{vL8}, 3, v0', f'v_lshlrev_b32 v{vR2+3}, 5, v{vTok}')
    a(f's_lshl_b32 s{sT0}, s{sRG}, 6', f's_add_u32 s{sT0}, s{sT0}, s{sOwn}', f'v_and_b32 v1, 15, v0', f'v_lshl_add_u32 v1, v1, 1, s{sT0}', f'v_mul_u32_u24 v{vOut}, 1280, v1',
      f'v_and_b32 v{t}, 16, v0', f'v_lshl_add_u32 v{vOut}, v{t}, 1, v{vOut}', f'v_lshl_add_u32 v{vOut}, v2, 4, v{vOut}')
    a(f'v_lshlrev_b32 v{vTr}, 1, v{t}', f'v_and_b32 v{t}, 1, v0', f'v_lshl_add_u32 v{vTr}, v{t}, 4, v{vTr}', f'v_and_b32 v{t}, 2, v0', f'v_lshl_add_u32 v{vTr}, v{t}, 2, v{vTr}',
      f'v_bfe_u32 v{t}, v0, 2, 2', f'v_lshl_add_u32 v{t}, v2, 2, v{t}')
    def rows(i, row, piece):
        a(f'v_lshl_add_u32 v{piece}, v{piece}, 4, s{sCol}', f'v_mul_u32_u24 v{vW+i}, 1280, v{row}', f'v_add_u32 v{vW+i}, v{vW+i}, v{piece}',
          f'v_lshrrev_b32 v{row}, 2, v{row}', f'v_add_u32 v{row}, 1, v{row}', f'v_mul_u32_u24 v{row}, {16*1280}, v{row}')
        if i:
            a(f'v_subrev_u32 v{vW+i}, {1024*i}, v{vW+i}')
        a(f'v_add_u32 v{vWr+i}, v{vW+i}, v{row}')
    a('s_bitcmp1_b32 s2, 0', 's_cbranch_scc1 L_su2')
    a(f's_mul_i32 s{sCol}, s{sCol}, 192', f's_mul_i32 s{sReg}, s{sG}, 30720', f'v_mul_u32_u24 v{t}, 192, v{t}', f'v_add3_u32 v{vTr}, v{vTr}, v{t}, s{sReg}', f'v_mov_b32 v{vTr2}, v{vTr}')
    a(f's_cmp_eq_u32 s{sKH}, 0', 's_cselect_b32 s67, 1280, 0', f'v_lshl_add_u32 v1, v{vTok}, 1, s{sT0}', f'v_mul_u32_u24 v{vRes}, s67, v1', f'v_lshl_add_u32 v1, v2, 4, s{sCol}', f'v_add_u32 v{vRes}, v{vRes}, v1')
    for i in range(3):
        a(f'v_add_u32 v{t}, {64*i}, v0', f'v_mul_u32_u24 v1, 171, v{t}', 'v_lshrrev_b32 v1, 11, v1', f'v_mul_u32_u24 v{t+1}, 12, v1', f'v_sub_u32 v{t}, v{t}, v{t+1}')
        rows(i, 1, t)
    a('s_branch L_su3')
    a.label('L_su2')
    a(f's_lshl_b32 s{sCol}, s{sCol}, 7', f's_add_u32 s{sCol}, s{sCol}, 768', f's_mul_i32 s{sReg}, s{sG}, 20480', f'v_lshlrev_b32 v1, 7, v{t}', f'v_add3_u32 v{vTr}, v{vTr}, v1, s{sReg}',
      f'v_and_b32 v1, 2, v{t}', f'v_lshl_add_u32 v{vTr}, v1, 5, v{vTr}', f'v_xor_b32 v{vTr2}, 64, v{vTr}')
    a(f's_cmp_eq_u32 s{sKH}, 0', 's_cselect_b32 s67, -1, 0', CSEL(68, L_XR, L_B2), f's_lshl_b32 s{sT1}, s{sOwn}, 7', f'v_lshl_add_u32 v1, v{vTok}, 8, s{sT1}', f'v_and_b32 v{t}, 1, v0', f'v_lshl_add_u32 v1, v{t}, 6, v1',
      'v_and_b32 v1, s67, v1', 'v_lshl_add_u32 v1, v2, 4, v1', f'v_add_u32 v{vRes}, s68, v1')
    for i in range(2):
        a('v_lshrrev_b32 v1, 3, v0', f'v_and_b32 v{t}, 7, v0', f'v_and_b32 v{t+1}, 16, v0', f'v_lshrrev_b32 v{t+1}, 2, v{t+1}', f'v_xor_b32 v{t}, v{t}, v{t+1}', f'v_add_u32 v1, {8*i}, v1')
        rows(i, 1, t)
    a(f'v_mov_b32 v{vW+2}, 0', f'v_mov_b32 v{vWr+2}, 0')
    a.label('L_su3')
    colsum_setup()
    zero_acc(0, 64)
    a(f's_lshl_b32 s{sT0}, s{sRB}, 2', f's_lshl_b32 s{sT1}, s{sM}, 1', f's_add_u32 s{sT0}, s{sT0}, s{sT1}', f's_mul_i32 s{sT0}, s{sT0}, 108',
      f's_lshl_b32 s{sT1}, s{sFB}, 2', f's_add_u32 s{sT0}, s{sT0}, s{sT1}', f's_lshl_b32 s{sT0}, s{sT0}, 10',
      f's_add_u32 s{sOff}, s{sT0}, {WS_H}', f's_add_u32 s{sHS}, s{sOff}, {108*1024}', f's_lshl_b32 s{sT0}, s{sM}, 11', f'v_lshl_add_u32 v{tmp}, v0, 4, s{sT0}', f'v_xor_b32 v{tmp+1}, 2048, v{tmp}')
    a(f's_lshl_b32 s{sT0}, s{sM}, 8', f's_add_u32 s{sT0}, s{sT0}, {L_MEAN}', f'v_lshl_add_u32 v{tmp+3}, v{vTok}, 3, s{sT0}', f'v_lshl_add_u32 v{tmp+3}, v2, 9, v{tmp+3}')
    a(f's_lshl_b32 s{sT0}, s{sG}, 7', f's_add_u32 s{sT0}, s{sT0}, {L_MEAN}', f'v_lshl_add_u32 v{tmp+9}, v{vTok}, 2, s{sT0}', f'v_mov_b32 v{tmp+10}, {L_TAG}',
      f'v_lshlrev_b32 v{tmp+2}, 4, v{vTok}', f's_mov_b32 s{sT0}, s60')
    a.srd(SD, 4, 2621440)
    bar()
    a(f'buffer_load_dwordx4 {v(SX,4)}, v{tmp+4}, s[{SD}:{SD+3}], s{sT3} offen', f'buffer_load_dwordx4 {v(SX+4,4)}, v{tmp+4}, s[{SD}:{SD+3}], s{sT3} offen offset:512',
      f'buffer_load_dwordx2 {v(SX+8,2)}, v{tmp+5}, s[{SD}:{SD+3}], s{sT3} offen offset:1024')
    bar(); bar()
    def rowstats():
        a('s_waitcnt vmcnt(0) lgkmcnt(0)', f's_add_u32 s{sTag}, s{sTag}, 0x9e3779b1')
        a('s_mov_b64 exec, 1', f'v_mov_b32 v1, s{sTag}', f'ds_write_b32 v{tmp+10}, v1', 's_mov_b64 exec, -1')
        a.srd(SD, 14, 3456)
        a(f's_lshl_b32 s{sT1}, s{sM}, 6', f's_add_u32 s{sT0}, s{sT0}, s{sT1}', f's_xor_b32 s{sT1}, s{sT0}, 64')
        a(f'buffer_load_ushort v{tmp+7}, v{tmp+6}, s[{SD}:{SD+3}], s{sT0} offen', f'buffer_load_ushort v{tmp+8}, v{tmp+6}, s[{SD}:{SD+3}], s{sT1} offen')
        a(f's_lshl_b32 s{sT1}, s{sRB}, 11', f's_lshl_b32 s{sT0}, s{sG}, 9', f's_add_u32 s{sT1}, s{sT1}, s{sT0}', f's_add_u32 s{sT1}, s{sT1}, {WS_RS}', f's_mov_b32 s{sT3}, {SPIN}')
        r0, r1, r2, r3 = FR, FR + 1, FR + 2, FR + 3
        def reduce32(r):
            for mod in ('quad_perm:[1,0,3,2]', 'quad_perm:[2,3,0,1]', 'row_half_mirror', 'row_mirror'):
                a('s_nop 1', f'v_add_f32_dpp v{r}, v{r}, v{r} {mod} row_mask:0xf bank_mask:0xf')
            a(f'v_mov_b32 v{r3}, v{r}', 's_nop 1', f'v_permlane16_swap_b32 v{r}, v{r3}', 's_nop 1', f'v_add_f32 v{r}, v{r}, v{r3}')
        U = lambda i: (FR + 8 + i) if i < 10 else (SX + i - 10)
        for i in range(10):
            a(f'v_lshlrev_b32 v{U(i)}, 16, v{SX+i}', f'v_and_b32 v{SX+i}, 0xffff0000, v{SX+i}')
            if i < 2:
                a(f'v_add_f32 v{r0+i}, v{U(i)}, v{U(10+i)}')
            else:
                a(f'v_add_f32 v{r0}, v{r0}, v{U(i)}', f'v_add_f32 v{r1}, v{r1}, v{U(10+i)}')
        a(f'v_add_f32 v{r0}, v{r0}, v{r1}')
        reduce32(r0)
        a(f'v_mul_f32 v{r0}, {fbits(1/640)}, v{r0}', f'v_mov_b32 v{r1}, 0', f'v_mov_b32 v{r2}, 0')
        bar()
        for i in range(0, 20, 2):
            a(f'v_sub_f32 v{U(i)}, v{U(i)}, v{r0}', f'v_sub_f32 v{U(i+1)}, v{U(i+1)}, v{r0}', f'v_fmac_f32 v{r1}, v{U(i)}, v{U(i)}', f'v_fmac_f32 v{r2}, v{U(i+1)}, v{U(i+1)}')
        a(f'v_add_f32 v{r2}, v{r1}, v{r2}')
        reduce32(r2)
        a(f'v_mov_b32 v{r3}, {fbits(1e-5)}', f'v_fmac_f32 v{r3}, {fbits(1/640)}, v{r2}', f'v_rsq_f32 v{r2}, v{r3}', f'v_mov_b32 v{r1}, s{sTag}', f'v_mov_b32 v{r3}, s{sTag}',
          'v_lshrrev_b32 v1, 1, v0', 's_mov_b32 exec_lo, 1', 's_mov_b32 exec_hi, 1', f'buffer_store_dwordx4 {v(r0,4)}, v1, {WS}, s{sT2} offen sc1', 's_mov_b64 exec, -1')
        a.stamp(2)
    if SP == 5:
        rowstats()
        bar()
    else:
        for c in range(3, SP):
            bar()
    a('s_waitcnt lgkmcnt(0)')
    a(f's_cmp_lt_u32 s{sFB}, 27', 's_cbranch_scc1 L_h_act')
    for c in range(SP, SP + NE + 1):
        bar()
    a('s_branch L_h_mid')
    def gmid():
        a.label('L_h_mid')
        jitter()
        g0 = FR
        gather = f'buffer_load_dwordx4 {v(g0,4)}, v{tmp+2}, {WS}, s{sT1} offen sc1'
        a('s_setprio 0')
        nb_ = QE - 1 - (SP + NE)
        if SP != 5:
            rowstats(); nb_ -= 1
            for _ in range(nb_ - 3):
                bar()
            a('s_waitcnt lgkmcnt(0)')
            nb_ = 3
        a(gather)
        bar(); bar()
        a(f's_cmp_eq_u32 s{sCG}, 15', f's_cselect_b32 s{sT3}, 0, s{sT3}')
        a.label('L_h_chk')
        a('s_waitcnt vmcnt(0)', f'v_cmp_ne_u32 vcc, s{sTag}, v{g0+1}', f'v_cmp_ne_u32 s[46:47], s{sTag}, v{g0+3}', 's_nop 1', 's_or_b64 vcc, vcc, s[46:47]',
          's_cbranch_scc0 L_h_got', f's_sub_u32 s{sT3}, s{sT3}, 1', 's_cbranch_scc1 L_h_got', backoff('s0'), gather, 's_branch L_h_chk')
        a.label('L_h_got')
        a(f'v_rcp_f32 v{g0+1}, v{g0+2}', f'v_sub_f32 v{g0}, 0, v{g0}')
        a('s_mov_b32 exec_lo, 0', f'v_lshlrev_b32 v{CS[0]}, 16, v{tmp+7}', f'v_lshlrev_b32 v{CS[1]}, 16, v{tmp+8}', 's_mov_b32 exec_lo, -1')
        for _ in range(nb_ - 2):
            bar()
        a('s_mov_b32 exec_hi, 0', f'ds_write_b32 v{tmp+9}, v{g0}', f'ds_write_b32 v{tmp+9}, v{g0+1} offset:{L_ISTD-L_MEAN}', f'ds_write_b32 v{tmp+9}, v{g0+2} offset:{L_RSTD-L_MEAN}',
          's_mov_b64 exec, -1', 's_waitcnt lgkmcnt(0)')
        a(f's_cmp_lt_u32 s{sFB}, 27', 's_cbranch_scc1 L_h_act')
        for c in range(QE, 20):
            pbar(c)
        bar()
        a('s_branch L_h_p2')
    page('L_h_act', 2400, False)
    a('s_setprio 1')
    mainloop('ffn', False, [f'ds_read_b64 {v(CR,2)}, v{tmp+3}'], SP + NE, QE, 20, gmid)
    a('s_nop 8')
    hst = []
    for t, u in ((0, 0), (0, 1), (1, 1), (1, 0)):
        for ap in range(2):
            r = acc + 32 * t + 16 * u + 8 * ap
            for e in range(8):
                a(f'v_mul_f32 v{r+e}, v{r+e}, |v{r+e}|')
            for e in range(4):
                a(CVT(r + e, r + 2 * e))
            for e in range(4):
                a(f'v_pk_max_i16 v{r+e}, v{r+e}, 0')
            hst.append(f'buffer_store_dwordx4 {v(r,4)}, v{tmp+u}, {WS}, s{sHS if t else sOff} offen offset:{1024*ap} sc1')
            if OPT.get('hs', 0):
                a(hst.pop())
    a.stamp(3)
    bar()
    a(hst)
    a.label('L_h_p2')
    a.c('waves 8..11: K/V stream, second FFN GEMM (64 x 96 tiles on even workgroups, 64 x 64 on odd ones), output projection')
    jitter()
    a.stamp(5)
    R = Regs(2)
    acc = R(96)
    AF = [R(8) for _ in range(4)]
    tmp = R(8)
    assert R.n <= vL16
    BF = [vWr + 4 + 4 * i for i in range(3)]
    sKVo, sH0, sH1, sW2, sWo, sMK, sMV, sR2 = range(40, 48)
    W2, WO, RES = 48, 52, 56
    sM40 = 60
    MASK, FULL = f's_mov_b64 exec, s[{sM40}:{sM40+1}]', 's_mov_b64 exec, -1'

    def kv(c):
        slot = c % 4
        ld = lambda so, off: f'buffer_load_dwordx4 v{vL16}, {WS}, s{so} offen offset:{off} sc1 lds'
        return [([f's_add_u32 m0, s{sMK}, {slot*5120}', f's_add_u32 s{sT0}, s{sKVo}, {c*10240}'], ld(sT0, 0), ('kv', c), True),
                ([], ld(sT0, 640), ('kv', c), True),
                ([f's_add_u32 m0, s{sMV}, {slot*5248}', f's_add_u32 s{sT0}, s{sT0}, 5120'], ld(sT0, 0), ('kv', c), True),
                ([f's_sub_u32 s{sT0}, s{sT0}, 16'], ld(sT0, 656), ('kv', c), True)]
    def emit(fl):
        masked = False
        for pre, ins, tg, mk in fl:
            a(pre)
            if mk != masked:
                a(MASK if mk else FULL); masked = mk
            a.vmem(ins, tg)
        if masked:
            a(FULL)

    a.vm = ['hst']
    a(f's_mov_b32 s{sM40}, -1', f's_mov_b32 s{sM40+1}, 0xff')
    a(f's_mul_i32 s{sKVo}, s{sHead}, 163840', f's_mul_i32 s{sT0}, s{sG}, 1280', f's_add_u32 s{sKVo}, s{sKVo}, s{sT0}', f's_add_u32 s{sKVo}, s{sKVo}, {WS_KV}')
    a(f's_add_u32 s{sMK}, s{sT0}, {L_K}', f's_mul_i32 s{sMV}, s{sG}, 1312', f's_add_u32 s{sMV}, s{sMV}, {L_V}')
    emit(kv(2))
    a.srd(W2, 16, 1728 * 1280)
    a.srd(WO, 8, 640 * 1280)
    a(f's_mul_i32 s{sR2}, s{sRG}, 27', f's_lshr_b32 s{sR2}, s{sR2}, 5')
    a(f's_mul_i32 s{sT0}, s{sG}, 27', f's_add_u32 s{sT0}, s{sT0}, s{sR2}', f's_mul_i32 s{sW2}, s{sT0}, {16*1280}', f's_and_b32 s69, s{sRG}, {OPT.get("sw", 1)}')
    a(f's_lshl1_add_u32 s{sWo}, s{sG}, s69', f's_xor_b32 s68, s{sWo}, 1', f's_mul_i32 s{sWo}, s{sWo}, {80*1280}', f's_mul_i32 s68, s68, {80*1280}')
    a(f's_mul_i32 s{sH0}, s{sRow}, {108*1024}', f's_lshl_b32 s{sT0}, s{sT0}, 10', f's_add_u32 s{sH0}, s{sH0}, s{sT0}', f's_add_u32 s{sH0}, s{sH0}, {WS_H}',
      f's_cmp_eq_u32 s{sOwn}, 0', CSEL(sH1, 108 * 1024, -108 * 1024))
    a(f's_lshl_b32 s{sT3}, s{sRB}, 1', f's_add_u32 s{sT3}, s{sT3}, s{sOwn}', f's_lshl_b32 s{sT3}, s{sT3}, 4', f's_add_u32 s{sT3}, s{sT3}, s{sCG}', f's_lshl_b32 s{sT3}, s{sT3}, 7',
      f's_lshl_b32 s{sT1}, s{sKH}, 2', f's_add_u32 s{sT3}, s{sT3}, s{sT1}', f's_add_u32 s{sT3}, s{sT3}, {WS_FH}', f'v_mov_b32 v{tmp+1}, s{sTag}',
      f'v_min_u32 v{tmp}, 27, v0', f'v_and_b32 v1, 1, v{tmp}', 'v_lshlrev_b32 v1, 2, v1', f'v_lshrrev_b32 v{tmp}, 1, v{tmp}', f'v_lshl_add_u32 v1, v{tmp}, 7, v1')
    a(f'v_add_u32 v{tmp+2}, s{sReg}, v{vL16}', 's_bitcmp1_b32 s2, 0', CSEL(sT0, 20480, 30720), f's_xor_b32 s{sT1}, s{sG}, 1', f's_mul_i32 s{sT1}, s{sT1}, s{sT0}',
      f'v_add_u32 v{tmp+3}, s{sT1}, v{vL16}', f'v_xor_b32 v{tmp+4}, 64, v{vRes}', 's_setprio 0')
    vm0 = list(a.vm)
    a('s_bitcmp1_b32 s2, 0', 's_cbranch_scc1 L_p2_2')

    def phase2(NT):
        PITCH, STEP, NPAIR = 64 * NT, 1024 * NT, 27 * NT
        a.label(f'L_p2_{NT}')
        a.vm = list(vm0)
        b0 = OPT.get('b0')
        bcnt = [1]
        def barB():
            c = bcnt[0]; bcnt[0] += 1
            rec = b0 is not None and b0 <= c < b0 + 6
            if rec:
                a.lock = None; a.stamp(2 + 2 * (c - b0))
            bar()
            if rec:
                a.stamp(3 + 2 * (c - b0))
            if b0 is not None:
                a.lock = tuple(range(2, 14))
        if b0 is not None:
            a.lock = tuple(range(2, 14))
        def wrap(d, base, st, scale):
            return [f's_cmp_ge_u32 s{sR2}, {27-st}', f's_cselect_b32 s{d}, {27*scale}, 0', f's_sub_u32 s{d}, s{base}, s{d}', f's_add_u32 s{d}, s{d}, {st*scale}']
        def stage(srd, pre, voff, tg):
            assert 'm0' not in pre[-1]
            return [(pre if i == 0 else [], f'buffer_load_dwordx4 v{voff+i}, s[{srd}:{srd+3}], s{sT0} offen offset:{1024*i} lds', tg, False) for i in range(NT)]
        slotm0 = lambda slot: [f's_add_u32 m0, s{sReg}, {slot*STEP}']
        def f2B(st):
            return stage(W2, slotm0(st % 4) + wrap(sT0, sW2, st, 16 * 1280), vW, ('fb', st))
        def f2A(st):
            return [(wrap(sT1, sH0, st, 1024), f'buffer_load_dwordx4 {v(AF[st%4],4)}, v{vL16}, {WS}, s{sT1} offen sc1', ('fa', st), False),
                    ([f's_add_u32 s{sT1}, s{sT1}, s{sH1}'], f'buffer_load_dwordx4 {v(AF[st%4]+4,4)}, v{vL16}, {WS}, s{sT1} offen sc1', ('fa', st), False)]
        def wo(slot):
            gl, i = divmod(slot, 5)
            return stage(WO, slotm0(slot) + [f's_add_u32 s{sT0}, s{68 if gl else sWo}, {(20*i if i < 4 else 0)*1280}'], vW if i < 4 else vWr, ('wo', slot))

        barB()
        emit(kv(3) + f2B(0))
        a.wait_vm('hst')
        a('s_mov_b64 exec, 1')
        a.vmem(f'buffer_store_dword v{tmp+1}, v1, {WS}, s{sT3} offen sc1', 'flag')
        a(FULL)
        a.stamp(6)
        a(f's_lshl_b32 s{sT3}, s{sRG}, 11', f's_add_u32 s{sT3}, s{sT3}, {WS_FH}', f's_mov_b32 s{sT2}, {SPIN}')
        a.wait_vm(('kv', 2))
        barB()
        emit(kv(4) + f2B(1) + f2B(2) + wo(4))
        if NT == 2:
            a.srd(RES, 4, 2621440)
            emit(stage(RES, [f's_lshl_b32 s{sT0}, s{sG}, 11', f's_add_u32 m0, s{sT0}, {L_XR}', f's_lshl2_add_u32 s{sT0}, s{sRG}, s{sG}', f's_mul_i32 s{sT0}, s{sT0}, {16*1280}'], vW, 'xr'))
            a.srd(RES, 18, 1280)
            emit(stage(RES, [f's_mov_b32 m0, {L_B2}', f's_mov_b32 s{sT0}, 0'], vW, 'xr')[:1])
        else:
            a(f's_cmp_eq_u32 s{sKH}, 0', f's_cselect_b32 s{RES}, s4, s18', f's_cselect_b32 s{RES+1}, s5, s19', CSEL(RES + 2, 2621440, 1280), f's_mov_b32 s{RES+3}, 0x00020000')
        poll2 = f'buffer_load_dword v{tmp}, v1, {WS}, s{sT3} offen sc1'
        a.vmem(poll2, 'poll')
        a.wait_vm(('kv', 3))
        barB()
        a('s_setprio 3')
        a.label(f'L_poll2_{NT}')
        a('s_waitcnt vmcnt(0)', f'v_cmp_ne_u32 vcc, s{sTag}, v{tmp}', 's_nop 1', 's_cmp_eq_u64 vcc, 0', f's_cbranch_scc1 L_poll2x_{NT}',
          f's_sub_u32 s{sT2}, s{sT2}, 1', f's_cbranch_scc1 L_poll2x_{NT}', backoff('s2'), poll2, f's_branch L_poll2_{NT}')
        a.label(f'L_poll2x_{NT}')
        jitter()
        a.vm = []
        a.stamp(7)
        a('s_setprio 0')
        emit(f2A(0) + kv(5) + f2A(1) + f2A(2) + wo(5))
        rsoff = [f's_lshl_b32 s{sT0}, s{sRG}, 10', f's_lshl4_add_u32 s{sT0}, s{sOwn}, s{sT0}', f's_add_u32 s{sT0}, s{sT0}, {WS_RS}']
        rsld = f'buffer_load_dwordx2 {v(vR2,2)}, v{vR2+3}, {WS}, s{sT0} offen offset:8 sc1'
        a(rsoff)
        a.vmem(rsld, 'res')

        LATE = NT == 3 and OPT.get('late', 0)
        def tr(b, c, base):
            ad, off = (vTr, base + 64 * c) if NT == 3 else (vTr2 if c else vTr, base)
            return [f'ds_read_b64_tr_b16 {v(BF[b],2)}, v{ad} offset:{off}', f'ds_read_b64_tr_b16 {v(BF[b]+2,2)}, v{ad} offset:{off+8*PITCH}']
        fq = []
        def need(tg):
            assert all(f[2] != tg for f in fq), tg
            a.wait_vm(tg)
        def f2tr(p):
            if p < NPAIR:
                st, c = divmod(p, NT)
                if c == 0:
                    need(('fb', st))
                a(tr(p % 3, c, (st % 4) * STEP))
        def f2_pairs(ps):
            for p in ps:
                st, c = divmod(p, NT)
                if c == 0:
                    if st + 3 < 27:
                        fq.extend(f2B(st + 3) + f2A(st + 3))
                    elif LATE:
                        fq.extend(wo((st - 1) % 4))
                    need(('fa', st))
                for t in range(2):
                    if t == 0:
                        a(f's_waitcnt lgkmcnt({2 if p + 1 < NPAIR else 0})')
                    a(M16(acc + 48 * t + 16 * c, BF[p % 3], AF[st % 4] + 4 * t, '0' if st == 0 else None))
                    if t == 0:
                        f2tr(p + 2)
                    n = -(-len(fq) // (2 * NT - 1))
                    emit(fq[:n]); del fq[:n]
        f2tr(0); f2tr(1)
        P3 = OPT.get(f'p3{NT}', 0)
        f2_pairs(range(P3))
        barB()
        E = 15 if LATE else OPT.get(f'ex{NT}', 14 if NT == 3 else 13)
        res, p = AF[0], P3
        for c in range(4, 16):
            if c + 2 < 16:
                fq.extend(kv(c + 2))
            if c in (6, 9, 12):
                fq.extend(wo(6 + (c - 6) // 3))
            if c == 14 and LATE:
                fq.extend(wo(9))
            if c <= E:
                left = E - c + OPT.get('lastw', 50 if LATE else 70) / 100
                n = NPAIR - p if c == E else round((NPAIR - p) / left)
                f2_pairs(range(p, p + n)); p += n
            if c == E and LATE:
                emit(fq + wo(2)); del fq[:]
                for gi in range(6):
                    a.vmem(f'buffer_load_dwordx4 {v(res+4*gi,4)}, v{vRes}, s[{RES}:{RES+3}], 0 offen offset:{32*gi}', 'res')
            elif c == E:
                emit(fq); del fq[:]
                a('s_nop 7', 's_nop 3')
                for i in range(4 * NT):
                    a(f'ds_write_b128 v{tmp+2}, {v(acc+48+4*i,4)} offset:{1024*i}')
                a('s_waitcnt lgkmcnt(0)')
            if c == E + 1:
                for i in range(4 * NT):
                    a(f'ds_read_b128 {v(acc+48+4*i,4)}, v{tmp+3} offset:{1024*i}')
                if NT == 2:
                    for gi in range(4):
                        a(f'ds_read_b128 {v(res+4*gi,4)}, v{tmp+4 if gi >= 2 else vRes} offset:{32*(gi&1)}')
                else:
                    for gi in range(6):
                        a.vmem(f'buffer_load_dwordx4 {v(res+4*gi,4)}, v{vRes}, s[{RES}:{RES+3}], 0 offen offset:{32*gi}', 'res')
            if c == max(E + 1, 14):
                fq.extend(wo(9))
            if c == E + 2:
                fq.extend(wo(0) + wo(1) + wo(2) + wo(3))
            if c > E:
                emit(fq); del fq[:]
                a('s_waitcnt lgkmcnt(0)')
            need(('kv', c + 1))
            if c == 10: a.stamp(8)
            barB()
            if c == 10: a.stamp(9)
        assert p == NPAIR
        if E == 14:
            emit(wo(0) + wo(1) + wo(2) + wo(3))
        OF = acc + 48
        assert OF + 80 <= tmp
        sO0, sO1, OUT = sH0, sH1, W2
        a.srd(OUT, 20, 2621440)
        a(f's_mul_i32 s{sO0}, s{sRow}, 40960', f's_add_u32 s{sO0}, s{sO0}, {WS_O}', f's_lshl_b32 s{sT0}, s{sKH}, 12', f's_add_u32 s{sO1}, s{sO0}, s{sT0}',
          f's_add_u32 s{sO1}, s{sO1}, 32768', f's_lshl_b32 s{sT0}, s{sKH}, 14', f's_add_u32 s{sO0}, s{sO0}, s{sT0}')
        a(f's_lshl_b32 s{sT3}, s{sRow}, 12', f's_lshl_b32 s{sT0}, s{sKH}, {11-FOS}', f's_add_u32 s{sT3}, s{sT3}, s{sT0}', f's_add_u32 s{sT3}, s{sT3}, {WS_FO}', f's_mov_b32 s{sT2}, {SPIN}')
        for k in range(4):
            a(f's_xor_b32 s{sT0}, s69, {k}', f's_lshl_b32 s{sT0}, s{sT0}, 10', f's_add_u32 s{RES+k}, s{sO1}, s{sT0}', f's_lshl2_add_u32 s{WO+k}, s{sT0}, s{sO0}')
        a(f's_add_u32 s67, s{sCol}, {32*1280}', f's_mul_i32 s43, s{sOwn}, {10*STEP}', f's_mul_i32 s44, s{sG}, 10240', f's_add_u32 s44, s44, {L_FX}',
          f's_xor_b32 s45, s{sG}, 2', f's_mul_i32 s45, s45, 10240', f's_add_u32 s45, s45, {L_FX}')
        a(rsoff)
        a.label(f'L_rs{NT}')
        a.drain_vm()
        a(f'v_cmp_ne_u32 vcc, s{sTag}, v{vR2+1}', f's_cbranch_vccz L_rsx{NT}', f's_sub_u32 s{sT2}, s{sT2}, 1', f's_cbranch_scc1 L_rsx{NT}', rsld, f's_branch L_rs{NT}')
        a.label(f'L_rsx{NT}')
        jitter()
        a(f's_mov_b32 s{sT2}, {SPIN}')
        a.stamp(10)
        bar()
        poll3 = f'buffer_load_dword v{tmp}, v1, {WS}, s{sT3} offen sc1'
        a(f'v_bfe_u32 v1, v0, {FOS}, {4-FOS}', 'v_lshlrev_b32 v1, 7, v1', f'v_and_b32 v{tmp}, {(1<<FOS)-1}, v0', f'v_lshl_add_u32 v1, v{tmp}, 2, v1', poll3)
        if LATE:
            a(f's_xor_b32 s46, s{sG}, 1', 's_mul_i32 s46, s46, 10240', f's_add_u32 s46, s46, {L_FX}', f'v_add_u32 v{tmp+2}, s44, v{vL16}', f'v_add_u32 v{tmp+3}, s46, v{vL16}')
            for i in range(10):
                a(f'ds_write_b128 v{tmp+2}, {v(acc+48+4*i,4)} offset:{1024*i}')
            a('s_waitcnt lgkmcnt(0)', 's_barrier')
            for i in range(10):
                a(f'ds_read_b128 {v(acc+48+4*i,4)}, v{tmp+3} offset:{1024*i}')
            for i in range(2):
                a(f'ds_write_b128 v{tmp+3}, {v(acc+88+4*i,4)} offset:{1024*i}')
            a('s_waitcnt lgkmcnt(0)', 's_barrier')
            for i in range(2):
                a(f'ds_read_b128 {v(acc+88+4*i,4)}, v{tmp+2} offset:{1024*i}')
        a(f'v_subrev_u32 v{vTr}, s43, v{vTr}', f'v_subrev_u32 v{vTr2}, s43, v{vTr2}', f'v_add_u32 v{tmp+2}, s44, v{vL16}', f'v_add_u32 v{tmp+3}, s45, v{vL16}', f'v_mul_f32 v{vR2}, v{vR2}, v{vR2}')
        for j in range(8 * NT):
            if LATE and j == 20:
                a('s_waitcnt lgkmcnt(0)')
            a(f'v_pk_add_f32 {v(acc+2*j,2)}, {v(acc+2*j,2)}, {v(acc+48+2*j,2)}', f'v_lshlrev_b32 v{vR2+1}, 16, v{res+j}', f'v_and_b32 v{vR2+2}, 0xffff0000, v{res+j}',
              f'v_fma_f32 v{acc+2*j}, v{acc+2*j}, v{vR2}, v{vR2+1}', f'v_fma_f32 v{acc+2*j+1}, v{acc+2*j+1}, v{vR2}, v{vR2+2}')
        TWO = OPT.get(f'two{NT}', 0)
        ORD = (0, 2, 1, 3) if TWO else (0, 1, 2, 3)
        pos = lambda i: (5 * ORD[i // 5] + i % 5) * STEP
        def oload(i):
            k, j = ORD[i // 5], i % 5
            if j < 4:
                a.vmem(f'buffer_load_dwordx4 {v(OF+4*i,4)}, v{vL16}, {WS}, s{WO+k} offen offset:{j*1024} sc1', ('o', i))
            else:
                a.vmem(f'buffer_load_dwordx2 {v(OF+4*i,2)}, v{vL8}, {WS}, s{RES+k} offen sc1', ('o', i))
                a.vmem(f'buffer_load_dwordx2 {v(OF+4*i+2,2)}, v{vL8}, {WS}, s{RES+k} offen offset:512 sc1', ('o', i))
        def flags(lab, mask):
            a.label(f'L_p{lab}')
            a('s_waitcnt vmcnt(0)', f'v_cmp_ne_u32 vcc, s{sTag}, v{tmp}', 's_nop 1', f's_and_b32 s{sT0}, vcc_lo, {hex(mask)}', f's_cbranch_scc0 L_g{lab}',
              f's_sub_u32 s{sT2}, s{sT2}, 1', f's_cbranch_scc1 L_g{lab}', backoff('s3'), poll3, f's_branch L_p{lab}')
            a.label(f'L_g{lab}')
            a.vm = []
        LA = 10 if TWO else OPT.get('la', 8)
        a(f's_cmp_eq_u32 s{sKH}, 0', f's_cbranch_scc0 L_hi{NT}')
        lo, hi = tuple(range(NT - 1)), (NT - 1,)
        for nm, send, keep in (('lo', hi, lo), ('hi', lo, hi)):
            nm = f'{nm}{NT}'
            page(f'L_{nm}', 900 * NT, nm[0] == 'l')
            seq = [(i, c) for i in range(20) for c in send + keep]
            for q in range(3):
                a(tr(q, seq[q][1], pos(seq[q][0])))
            flags('a' + nm, 0x0f0f if TWO else 0xffff)
            a.stamp(11)
            for i in range(LA):
                oload(i)
            if TWO:
                a.vmem(poll3, 'poll')
                a(f's_mov_b32 s{sT2}, {SPIN}')
            nl = LA
            for q, (i, c) in enumerate(seq):
                if q % NT == 0:
                    if TWO and i == TWO:
                        flags('b' + nm, 0xf0f0)
                        for _ in range(OPT.get('lb', 4)):
                            oload(nl); nl += 1
                    a.wait_vm(('o', i))
                a(f's_waitcnt lgkmcnt({2*min(2, len(seq)-1-q)})', M16(acc + 16 * c, BF[q % 3], OF + 4 * i))
                if q + 3 < len(seq):
                    a(tr(q % 3, seq[q + 3][1], pos(seq[q + 3][0])))
                if q % NT < 2 and nl < 20 and i >= TWO:
                    oload(nl); nl += 1
            a.stamp(12)
            jitter()
            a(f's_nop {11 - 2*(NT-1)}')
            for k, c in enumerate(send):
                for i in range(4):
                    a(f'ds_write_b128 v{tmp+2}, {v(acc+16*c+4*i,4)} offset:{4096*k+1024*i}')
            a('s_waitcnt lgkmcnt(0)', 's_barrier')
            for k, c in enumerate(keep):
                for i in range(4):
                    a(f'ds_read_b128 {v(OF+16*k+4*i,4)}, v{tmp+3} offset:{4096*k+1024*i}')
            for k, c in enumerate(keep):
                r = acc + 16 * c
                for hf in range(2):
                    a(f's_waitcnt lgkmcnt({4*(len(keep)-1-k) + 2*(1-hf)})')
                    for e in range(8 * hf, 8 * hf + 8, 2):
                        a(f'v_pk_add_f32 {v(r+e,2)}, {v(r+e,2)}, {v(OF+16*k+e,2)}')
                    for e in range(4):
                        a(CVT(r + 8 * hf + e, r + 8 * hf + 2 * e))
                a('s_nop 1')
                for e in range(4):
                    a(f'v_permlane16_swap_b32 v{r+e}, v{r+8+e}')
                a(f'buffer_store_dwordx4 {v(r,4)}, v{vOut}, s[{OUT}:{OUT+3}], s{sCol} offen offset:{64*c} sc1', f'buffer_store_dwordx4 {v(r+8,4)}, v{vOut}, s[{OUT}:{OUT+3}], s67 offen offset:{64*c} sc1')
            if nm == 'hi3':
                a(f's_or_b32 s{sT0}, s2, s{sOwn}', 's_cbranch_scc1 L_noep')
                a(f'v_mov_b32 v1, s{sTag}', f'v_mov_b32 v{tmp}, 0', f's_mov_b32 s{sT0}, {WS_EP}', 's_mov_b64 exec, 1', f'buffer_store_dword v1, v{tmp}, {WS}, s{sT0} offen sc1')
                a.label('L_noep')
            if Asm.diag:
                a.stamp(13)
                a('s_waitcnt vmcnt(0)')
                a.dump(0, sW, 24)
            a('s_endpgm')

    phase2(3)
    phase2(2)
    a.label('L_done')
    a('s_endpgm')
    return kernel_header(name, OPT.get('al', 1) >= 1) + a.text(), kernel_desc(name, 168, 102 if OPT.get('jit') else 70)
```

```python
from asmlib import *
import struct, math

def fbits(x):
    return hex(struct.unpack('<I', struct.pack('<f', x))[0])

WS_Q   = 0x000000
WS_KV  = 0x280000
WS_H   = 0x780000
WS_O   = 0xE40000
WS_RS  = 0x10C0000
WS_CS  = 0x10C8000
WS_F1  = 0x10D0000
WS_FH  = 0x10E0000
WS_FO  = 0x1100000
WS_EP  = 0x1140000
WS_END = 0x1141000

L_V = 122368
L_K = 143360
L_MEAN, L_ISTD, L_RSTD = 158720, 159232, 159744
L_TAG = 160256
L_Q0, L_Q1 = 114688, 161024
L_XR, L_B2 = 81920, 90112
L_FX = 122880
LDS_BYTES = 163840
FAR = 0x30000

QSCALE = 20 ** -0.5 * math.log2(math.e)
MAXOFF = 96.0
SPIN = 0x100000
OPT = {}

sW, sRB, sCG, sHead, sQB, sTag, sT0, sT1, sT2, sT3 = range(28, 38)
WS = 's[24:27]'


def gen(name):
    a = Asm()
    NA, NB, NE = 5, 4, OPT.get('ne', 3)
    L_A, L_B = 16384 * NB, 0
    SP = OPT.get('sp', 5)
    JOBS = [('Q', c) for c in range(SP)] + [('F', c) for c in range(SP - NE, SP)] + [('Q', c) for c in range(SP, 10)] + [('F', c) for c in range(5, 15 - NE)]
    REL = list(range(SP - NE)) + list(range(SP, 5))
    kof = lambda c: c if c < 10 else REL[c - 10]
    slotA = lambda c: (c + NE - 2) % NA
    slotB = lambda j: j % NB
    QE = 10 + NE
    KVB = 17
    SKIP = {0: (QE + 1, QE + 3), 1: (), 2: (QE + 1,), 3: (QE + 1, QE + 3, QE + 5), 4: (QE + 1, QE + 2), 5: (QE + 2, QE + 3)}[OPT.get('skip', 4)]
    def pbar(c):
        if c not in SKIP:
            bar()
    bar = lambda: a('s_barrier')

    a.c('One launch, 256 workgroups of 12 waves. Phase 1: x @ [wqkv | w1] on raw x with the LayerNorm applied as a rank-2 correction')
    a.c('(-mean x column sum, std x bias) and a per-row scale. Phase 2: attention for one head x 256 queries (waves 0..7) while waves 8..11')
    a.c('stream K/V and run the second FFN GEMM. Last stage: output projection into the same accumulators, residual, store.')
    a.c('Hand-offs between workgroups go through d_ws with write-through stores; flags and statistics carry a tag that differs from')
    a.c("the previous launch's tag.")
    a('s_cmp_ge_u32 s2, 256', 's_cbranch_scc1 L_done')
    a.stamp(0); a.stamp(1, True)
    KA = OPT.get('ka', 0)
    rest = ['s_load_dwordx2 s[8:9], s[0:1], 16', 's_load_dwordx8 s[12:19], s[0:1], 32', 's_load_dwordx2 s[20:21], s[0:1], 64', 's_load_dwordx2 s[22:23], s[0:1], 80']
    a('s_load_dwordx4 s[4:7], s[0:1], 0', [] if KA else rest)
    a('v_lshrrev_b32 v1, 6, v0', 'v_and_b32 v0, 63, v0', f'v_readfirstlane_b32 s{sW}, v1')
    if OPT.get('map', 4) == 0:
        a(f's_bfe_u32 s{sT2}, s2, 0x20001', f's_lshr_b32 s{sCG}, s2, 6', f's_lshl2_add_u32 s{sCG}, s{sT2}, s{sCG}',
          f's_bfe_u32 s{sT1}, s2, 0x30003', f's_and_b32 s{sT3}, s2, 1', f's_lshl3_add_u32 s{sRB}, s{sT3}, s{sT1}')
    else:
        T = [[(0, 1, 2, 3), (8, 9, 10, 15), (4, 5, 6, 7), (11, 12, 13, 14)], [(8, 9, 10, 15), (0, 1, 2, 3), (11, 12, 13, 14), (4, 5, 6, 7)],
             [(0, 1, 2, 13), (8, 9, 10, 15), (4, 5, 6, 7), (11, 12, 3, 14)], [(0, 1, 2, 14), (8, 9, 10, 15), (4, 5, 6, 13), (11, 12, 3, 7)],
             [(0, 5, 6, 10), (2, 8, 12, 15), (1, 4, 7, 11), (3, 9, 13, 14)]][OPT.get('map', 4) - 1]
        w = lambda q: hex(sum(c << (4 * i) for i, c in enumerate(T[q] + T[q + 1])))
        a(f's_and_b32 s{sT2}, s2, 3', f's_lshr_b32 s{sCG}, s2, 6', f's_lshl2_add_u32 s{sCG}, s{sT2}, s{sCG}', f's_lshl_b32 s{sCG}, s{sCG}, 2',
          f's_bitcmp0_b32 s2, 1', CSEL(sT0, w(0), w(2)), f's_lshr_b32 s{sCG}, s{sT0}, s{sCG}', f's_and_b32 s{sCG}, s{sCG}, 15',
          [f's_bfe_u32 s{sT0}, s2, {hex(0x10000 + OPT.get("swp", 3))}', f's_lshl_b32 s{sT0}, s{sT0}, 3', f's_and_b32 s{sT1}, s{sCG}, 7', f's_cmp_eq_u32 s{sT1}, 7', f's_cselect_b32 s{sT0}, s{sT0}, 0',
           f's_xor_b32 s{sCG}, s{sCG}, s{sT0}'] if OPT.get('swp', 3) else [],
          f's_bfe_u32 s{sT1}, s2, 0x30003', f's_bfe_u32 s{sT3}, s2, 0x10002', f's_lshl3_add_u32 s{sRB}, s{sT3}, s{sT1}')
    a(f's_cmp_lt_u32 s{sW}, 4', 's_cbranch_scc1 L_x', f's_cmp_ge_u32 s{sW}, 8', 's_cbranch_scc1 L_helper')
    def decode2():
        a(f's_and_b32 s{sHead}, s2, 7', f's_bfe_u32 s{sQB}, s2, 0x20003', f's_lshl2_add_u32 s{sHead}, s{sHead}, s{sQB}', f's_lshr_b32 s{sQB}, s2, 5')

    jn = [0]
    def jitter():
        if not OPT.get('jit'):
            return
        jn[0] += 1
        a(f's_mul_i32 s100, s2, {37 + 2 * jn[0] * OPT["jit"]}', f's_mul_i32 s101, s{sW}, {11 + 6 * jn[0]}', 's_add_u32 s100, s100, s101', 's_lshr_b32 s100, s100, 2', 's_and_b32 s100, s100, 15')
        a.label(f'L_j{jn[0]}')
        a('s_sleep 6', 's_sub_u32 s100, s100, 1', f's_cbranch_scc0 L_j{jn[0]}')
    def page(label, nbytes, jump=True):
        if OPT.get('al', 1) >= 2:
            if jump:
                a(f's_branch {label}')
            a.raw(f'.p2align 12,,{nbytes}')
        a.label(label)
    def backoff(key):
        n = OPT.get(key, 0)
        return [f's_sleep {n}'] if n else []
    def ws_setup():
        a.srd(24, 22, WS_END)
    def lds_tag(t):
        a(f'v_mov_b32 v{t}, {L_TAG}', f'ds_read_b32 v{t}, v{t}', 's_waitcnt lgkmcnt(0)', f'v_readfirstlane_b32 s{sTag}, v{t}')
    def f1_off(d, t, n, m):
        a(f's_lshl_b32 s{d}, s{sCG}, 1', f's_add_u32 s{d}, s{d}, s{n}', f's_lshl_b32 s{d}, s{d}, 10', f's_lshr_b32 s{t}, s{sRB}, 1', f's_lshl_b32 s{t}, s{t}, 7',
          f's_add_u32 s{d}, s{d}, s{t}', f's_add_u32 s{d}, s{d}, {WS_F1}')
        if m is not None:
            a(f's_and_b32 s{t}, s{sRB}, 1', f's_lshl_b32 s{t}, s{t}, 1', f's_add_u32 s{t}, s{t}, s{m}', f's_lshl_b32 s{t}, s{t}, 2', f's_add_u32 s{d}, s{d}, s{t}')

    SD = 48
    SX = 122

    sL, sOA, sOB, sSlot, sMA, sMB, sCnt, sBstep = range(40, 48)
    XA, WB = 48, 52
    vA1, vB1, vB2 = 8, 12, 16
    vA2 = vA1
    sRot, sRB1 = 47, 46
    a.c('waves 4..7: stream activation and weight chunks into the LDS rings')
    a('s_setprio 3', f's_and_b32 s{sL}, s{sW}, 3')
    if 'rw' not in OPT:
        a(f's_lshl1_add_u32 s{sRot}, s{sT2}, s{sT1}', f's_mul_i32 s{sRot}, s{sRot}, 5', f's_lshl1_add_u32 s{sRot}, s{sT3}, s{sRot}', f's_lshr_b32 s{sRot}, s{sRot}, 2',
          f's_cmp_ge_u32 s{sRot}, 10', f's_cselect_b32 s{sT0}, 10, 0', f's_sub_u32 s{sRot}, s{sRot}, s{sT0}')
    else:
        wr, wc, wh, wp = [(5, 20, 2, 5), (5, 4, 2, 10), (5, 10, 2, 3), (5, 2, 2, 10), (2, 2, 20, 10), (3, 0, 20, 10), (5, 0, 2, 0), (10, 0, 5, 10),
                          (20, 0, 10, 10), (20, 0, 10, 5), (10, 0, 5, 20), (10, 2, 5, 10), (13, 0, 7, 10), (10, 0, 0, 10), (10, 20, 5, 10)][OPT['rw']]
        a(f's_mul_i32 s{sRot}, s{sT1}, {wr}', f's_lshr_b32 s{sT0}, s2, 6', f's_mul_i32 s{sT0}, s{sT0}, {wc}', f's_add_u32 s{sRot}, s{sRot}, s{sT0}', f's_mul_i32 s{sT0}, s{sT3}, {wh}',
          f's_add_u32 s{sRot}, s{sRot}, s{sT0}', f's_mul_i32 s{sT0}, s{sT2}, {wp}', f's_add_u32 s{sRot}, s{sRot}, s{sT0}', f's_lshr_b32 s{sRot}, s{sRot}, 2',
          f's_mul_i32 s{sT0}, s{sRot}, 26', f's_lshr_b32 s{sT0}, s{sT0}, 8', f's_mul_i32 s{sT0}, s{sT0}, 10', f's_sub_u32 s{sRot}, s{sRot}, s{sT0}')
    a('v_lshrrev_b32 v1, 3, v0', 'v_lshrrev_b32 v2, 4, v0', 'v_and_b32 v3, 7, v0', 'v_xor_b32 v3, v3, v2')
    a(f's_lshr_b32 s{sT0}, s{sL}, 1', f's_lshl1_add_u32 s{sT0}, s{sRB}, s{sT0}', f's_lshl_b32 s{sT0}, s{sT0}, 6', f's_and_b32 s{sT1}, s{sL}, 1', f's_add_u32 s{sT0}, s{sT0}, s{sT1}',
      f's_mul_i32 s{sOA}, s{sT0}, 10', f's_add_u32 s{sOA}, s{sOA}, s{sRot}', f's_lshl_b32 s{sOA}, s{sOA}, 7', f's_lshl_b32 s{sT1}, s{sT1}, 2')
    a(f'v_xor_b32 v3, s{sT1}, v3', 'v_mul_u32_u24 v5, 0xa0, v1', 'v_xor_b32 v4, 4, v3', f'v_add_lshl_u32 v{vA1}, v5, v3, 4', 'v_add_lshl_u32 v4, v5, v4, 4')
    a(f'v_add_u32 v{vA1+1}, {20480-1024}, v4', f'v_add_u32 v{vA1+2}, {2*(20480-1024)}, v{vA1}', f'v_add_u32 v{vA1+3}, {3*(20480-1024)}, v4')
    sCL = 45
    a(f's_cmp_lt_u32 s{sCG}, 15', f's_cselect_b32 s{XA+2}, 2621440, 0', f's_cselect_b32 s{sCL}, s{sCG}, s{sRB}', f's_mov_b32 s{XA+3}, 0x00020000', f's_lshl_b32 s{sMA}, s{sL}, 12')
    def koff(k, base, scale):
        if k == 0:
            return [f's_mov_b32 s{sT0}, s{base}']
        return [f's_cmp_ge_u32 s{sRot}, {10-k}', f's_cselect_b32 s{sT0}, {10*scale}, 0', f's_sub_u32 s{sT0}, s{base}, s{sT0}', f's_add_u32 s{sT0}, s{sT0}, {scale*k}']
    WF = 56
    firstA = {}
    lastA = {}
    for j, (t, c) in enumerate(JOBS):
        firstA.setdefault(c, j); lastA[c] = j
    def ldA(c, lo=0, hi=4):
        a(f's_add_u32 m0, s{sMA}, {L_A + slotA(c) * 16384}', koff(kof(c), sOA, 128))
        for i in range(lo, hi):
            a.vmem(f'buffer_load_dwordx4 v{vA1+i}, s[{XA}:{XA+3}], s{sT0} offen offset:{1024*i} lds', ('c', firstA[c]))
    SUMS = [('Q', c) for c in range(10)] + [('F', c) for c in range(10)]
    def ldB(j, lo=0, hi=4, JOBS=JOBS):
        q = JOBS[j][0] == 'Q'
        a(f's_add_u32 m0, s{sMA}, {L_B + slotB(j) * 16384}', koff(kof(JOBS[j][1]), sOB if q else sRB1, 64 * (3840 if q else 3456)))
        for i in range(lo, hi):
            d = WB if q else WF
            a.vmem(f'buffer_load_dwordx4 v{(vB1 if q else vB2)+i}, s[{d}:{d+3}], s{sT0} offen offset:{1024*i} lds', ('c', j))

    a.vm = []
    a('s_waitcnt lgkmcnt(0)', f's_mov_b32 s{XA}, s4', f's_mov_b32 s{XA+1}, s5')
    if OPT.get('zst'): a.stamp(4)
    ldA(0)
    a(rest if KA else [])
    a('v_and_b32 v6, 15, v0', 'v_lshlrev_b32 v7, 2, v2', 'v_xor_b32 v6, v6, v7', 'v_mul_u32_u24 v7, 0xf0, v2', f'v_add_lshl_u32 v{vB1}, v7, v6, 4')
    for i in range(1, 4):
        a(f'v_add_u32 v{vB1+i}, {i*(4*3840-1024)}, v{vB1}')
    a(f's_lshl2_add_u32 s{sT1}, s{sRot}, s{sL}', f's_mul_i32 s{sOB}, s{sT1}, {16*3840}', f's_lshl_b32 s{sT2}, s{sCL}, 8', f's_add_u32 s{sOB}, s{sOB}, s{sT2}',
      f's_cmp_lt_u32 s{sCL}, 15', f's_cselect_b32 s{WB+2}, {640*3840}, 0', f's_mov_b32 s{WB}, s6', f's_mov_b32 s{WB+1}, s7', f's_mov_b32 s{WB+3}, 0x00020000')
    a.label('L_p0')
    ldB(0)
    if OPT.get('zst'): a.stamp(5)
    ldA(1); ldB(1)
    if OPT.get('zst'):
        a.stamp(6); a('s_waitcnt vmcnt(8)'); a.stamp(7)
    a('s_setprio 0', 's_waitcnt lgkmcnt(0)')
    ws_setup()
    decode2()
    a(f's_mul_i32 s{sRB1}, s{sT1}, {16*3456}', f's_add_u32 s{sRB1}, s{sRB1}, s{sT2}', 'v_mul_u32_u24 v7, 0xd8, v2', f'v_add_lshl_u32 v{vB2}, v7, v6, 4')
    for i in range(1, 4):
        a(f'v_add_u32 v{vB2+i}, {i*(4*3456-1024)}, v{vB2}')
    a(f's_cmp_lt_u32 s{sCL}, 14', f's_cselect_b32 s{WF+2}, {640*3456}, 0', f's_mov_b32 s{WF}, s12', f's_mov_b32 s{WF+1}, s13', f's_mov_b32 s{WF+3}, 0x00020000')
    vm1 = list(a.vm)
    if OPT.get('so', 1):
        a(f's_cmp_eq_u32 s{sCG}, 15', 's_cbranch_scc1 L_z_sum')
    units = []
    for j in range(2, 20):
        c = JOBS[j][1]
        if firstA[c] == j:
            units.append((j, lastA[c - NA] + 1 if c >= NA else 0, 'A', c))
        units.append((j, j - NB + 1, 'B', j))
    c0 = OPT.get('c0', 99)
    bars = [c for c in range(20) if c not in SKIP]
    part = {}
    hold = {QE - 1: 0, QE + 3: OPT.get('b3', 2), QE + 4: OPT.get('b4', 3)}
    for n, c in enumerate(bars):
        nxt = bars[n + 1] if n + 1 < len(bars) else 20
        rec = c0 <= c < c0 + 4
        if c == 19:
            break
        if rec: a.stamp(2 + 3 * (c - c0))
        assert all(u[0] >= nxt for u in units), (c, units[:2])
        a.wait_vm(*[('c', x) for x in range(c, nxt)])
        if rec: a.stamp(3 + 3 * (c - c0))
        if OPT.get('zst') and c == 0:
            a.stamp(8); a.lock = (7, 8)
        bar()
        if rec: a.stamp(4 + 3 * (c - c0))
        nn = bars[n + 2] if n + 2 < len(bars) else 20
        must = max(nn, c + 3) if c < QE else nn
        budget = OPT.get('bq', 7) if c < QE else 4 * hold.get(c, 2 if nxt == c + 1 else 3)
        for u in list(units):
            if u[1] <= c and (budget > 0 or u[0] < must):
                lo = part.get(u, 0)
                hi = 4 if u[0] < must else min(4, lo + budget)
                if u[2] == 'A' and u[3] == 10:
                    a(f's_cmp_lt_u32 s{sCG}, 14', f's_cselect_b32 s{XA+2}, 2621440, 0')
                (ldA if u[2] == 'A' else ldB)(u[3], lo, hi); budget -= hi - lo; part[u] = hi
                if hi == 4:
                    units.remove(u)
                if Asm.diag: a.c(f'after P({c}): {u[2]}{u[3]} {lo}:{hi}')
    assert not units
    zvm = list(a.vm)
    a('s_branch L_attn_z')

    R = Regs(2)
    vH, vTok = R(), R()
    vAa = R(4); vBa = R(2)
    F = [(R(8), R(8)), (R(8), R(8))]
    FR = F[0][0]
    acc = R(64)
    tmp = R(16)
    vCx = tmp + 14
    sCs, sLd = 58, 59
    sM, sN, sDA, sDB, sSA, sSB = range(40, 46)
    sCntC = 55
    sOff, sHS, sScale = 52, 53, 54

    sMask = 69
    def gemm_setup(wave_base, j0, cnt, maybe_v):
        a(f's_sub_u32 s{sN}, s{sW}, {wave_base}', f's_and_b32 s{sM}, s{sN}, 1', f's_lshr_b32 s{sN}, s{sN}, 1')
        a(f'v_lshrrev_b32 v{vH}, 5, v0', f'v_and_b32 v{vTok}, 31, v0', f'v_mov_b32 v{tmp}, v{vTok}')
        if maybe_v:
            a(f's_cmp_lt_u32 s{sCG}, 10', 's_cbranch_scc1 L_x_rows', f'v_and_b32 v1, 1, v0', f'v_lshrrev_b32 v{tmp}, 1, v{vTok}', f'v_lshl_add_u32 v{tmp}, v1, 5, v{tmp}')
            a.label('L_x_rows')
        a(f'v_bfe_u32 v1, v{tmp}, 1, 3', f'v_xor_b32 v1, v1, v{vH}', f'v_lshrrev_b32 v{tmp+1}, 5, v{tmp}', f'v_lshlrev_b32 v{tmp+1}, 2, v{tmp+1}', f'v_xor_b32 v1, v1, v{tmp+1}')
        a(f's_lshl_b32 s{sT0}, s{sM}, 13', f's_add_u32 s{sT0}, s{sT0}, {L_A+16384*slotA(JOBS[j0][1])}', f'v_lshlrev_b32 v{tmp}, 7, v{tmp}', f'v_add_u32 v{tmp}, s{sT0}, v{tmp}')
        for st in range(4):
            a(f'v_xor_b32 v{tmp+1}, {2*st}, v1', f'v_lshl_add_u32 v{vAa+st}, v{tmp+1}, 4, v{tmp}')
        a('v_lshrrev_b32 v1, 2, v0', 'v_and_b32 v1, 3, v1')
        a(f'v_lshl_add_u32 v{tmp}, v{vH}, 3, v1', f'v_lshlrev_b32 v{tmp}, 8, v{tmp}')
        a(f'v_and_b32 v{tmp+1}, 3, v0', f'v_lshl_add_u32 v{tmp}, v{tmp+1}, 3, v{tmp}')
        a(f'v_and_b32 v{tmp+1}, 16, v0', f'v_lshl_add_u32 v{tmp}, v{tmp+1}, 1, v{tmp}', f'v_add_u32 v{tmp}, {L_B+16384*slotB(j0)}, v{tmp}')
        a(f's_lshl_b32 s{sT0}, s{sN}, 1', f's_add_u32 s{sT0}, s{sT0}, s{sM}', f'v_xor_b32 v1, s{sT0}, v1')
        a(f's_lshl_b32 s{sT0}, s{sT0}, 8', f'v_lshl_add_u32 v{vCx}, v{vTok}, 3, s{sT0}', f'v_xor_b32 v{vCx+1}, 256, v{vCx}',
          f's_lshl_b32 s{sCs}, s{sCG}, 10', f's_add_u32 s{sCs}, s{sCs}, {WS_CS + (16384 if wave_base else 0)}', f's_mov_b32 s{sLd}, -1')
        a(f'v_lshl_add_u32 v{vBa}, v1, 6, v{tmp}', 'v_xor_b32 v1, 1, v1', f'v_lshl_add_u32 v{vBa+1}, v1, 6, v{tmp}')
        a(f's_mov_b32 s{sSA}, {slotA(JOBS[j0][1])}', f's_mov_b32 s{sSB}, {slotB(j0)}', f's_mov_b32 s{sCntC}, {cnt}', f's_mov_b32 s{sMask}, 0')

    def zero_acc(lo, hi):
        for i in range(lo, hi, 2):
            a(f'v_mov_b64 {v(acc+i,2)}, 0')

    def reads(st, f, swap):
        FA, FB = F[f]
        return [f'ds_read_b128 {v(FA,4)}, v{vAa+st}',
                f'ds_read_b64_tr_b16 {v(FB,2)}, v{vBa} offset:{4096*st}',
                f'ds_read_b64_tr_b16 {v(FB+2,2)}, v{vBa} offset:{4096*st+1024}',
                f'ds_read_b64_tr_b16 {v(FB+4,2)}, v{vBa+1} offset:{4096*st}',
                f'ds_read_b64_tr_b16 {v(FB+6,2)}, v{vBa+1} offset:{4096*st+1024}',
                f'ds_read_b128 {v(FA+4,4)}, v{vAa+st} offset:2048' if swap else f'ds_read_b128 {v(FA+4,4)}, v{vAa+(st^2)} offset:4096']

    def mfmas(f, swap):
        FA, FB = F[f]
        out = []
        for t, u in ((0, 0), (0, 1), (1, 1), (1, 0)):
            x, w = FA + 4 * t, FB + 4 * u
            out.append(M16(acc + 32 * t + 16 * u, x, w) if swap else M16(acc + 32 * t + 16 * u, w, x))
            if OPT.get('abl16'):
                d = acc + 32 * t + 16 * u + 8 * f
                out[-1] = [f'v_mfma_f32_16x16x32_bf16 {v(d,4)}, {v(w,4)}, {v(x,4)}, {v(d,4)}', f'v_mfma_f32_16x16x32_bf16 {v(d+4,4)}, {v(x,4)}, {v(w,4)}, {v(d+4,4)}']
        return out

    CT, CF, CR = SX, SX + 4, SX + 8
    CS, vTg = [SX + 36, SX + 38], SX + 40
    csload = ['s_mov_b32 exec_hi, 0'] + [f'buffer_load_dwordx2 {v(CS[u],2)}, v{vCx+u}, {WS}, s{sCs} offen sc1' for u in range(2)] + ['s_mov_b32 exec_hi, -1']
    def colsum_setup():
        a(f'v_mov_b64 {v(CS[0],2)}, 0', f'v_mov_b64 {v(CS[1],2)}, 0', f'v_mov_b32 v{vTg}, {L_TAG}')
    def corr_split():
        out = []
        for t in range(2):
            out += [CVT(CT + 2 * t, CR + t, CR + t), CVT(CF + 2 * t, CS[t], CS[t])]
        for t in range(2):
            out += [f'v_and_b32 v{CR+4+t}, 0xffff0000, v{CT+2*t}', f'v_and_b32 v{CR+6+t}, 0xffff0000, v{CF+2*t}']
        for t in range(2):
            out += [f'v_sub_f32 v{CR+4+t}, v{CR+t}, v{CR+4+t}', f'v_sub_f32 v{CR+6+t}, v{CS[t]}, v{CR+6+t}']
        for t in range(2):
            out += [CVT(CT + 2 * t + 1, CR + 4 + t, CR + 4 + t), CVT(CF + 2 * t, CS[t], CR + 6 + t), CVT(CF + 2 * t + 1, CS[t], CR + 6 + t)]
        return out
    def corr_mfma(swap, c=None):
        out = []
        for t, u in ((0, 0), (0, 1), (1, 1), (1, 0)):
            x, w = CT + 2 * t, CF + 2 * u
            out.append(M8(acc + 32 * t + 16 * u, x, w, c) if swap else M8(acc + 32 * t + 16 * u, w, x, c))
        return out

    def mainloop(tagname, swap, pre_last, jp, jr, je, mid):
        a.label(f'L_ent_{tagname}')
        jitter()
        bar()
        a(reads(0, 0, swap))
        a.label(f'L_loop_{tagname}')
        for st in range(3):
            m = mfmas(st & 1, swap); rd = reads(st + 1, (st + 1) & 1, swap)
            a('s_waitcnt lgkmcnt(3)', m[0], rd[0:3], 's_waitcnt lgkmcnt(4)', m[1], rd[3:6], 's_waitcnt lgkmcnt(6)', m[2])
            if st == 0:
                a(f's_add_u32 s{sSA}, s{sSA}, 1', f's_cmp_eq_u32 s{sSA}, {NA}', CSEL(sDA, -16384*(NA-1), 16384), f's_cselect_b32 s{sSA}, 0, s{sSA}')
            if st == 1:
                a(f's_add_u32 s{sSB}, s{sSB}, 1', f's_cmp_eq_u32 s{sSB}, {NB}', CSEL(sDB, -16384*(NB-1), 16384), f's_cselect_b32 s{sSB}, 0, s{sSB}')
            if st == 2:
                a(f'v_add_u32 v{vAa}, s{sDA}, v{vAa}', f'v_add_u32 v{vBa}, s{sDB}, v{vBa}', f'v_add_u32 v{vBa+1}, s{sDB}, v{vBa+1}')
            a(m[3])
            if st == 0:
                a(f's_cmp_eq_u32 s{sCntC}, s{sLd}', f's_cbranch_scc1 L_ld_{tagname}')
                a.label(f'L_ldx_{tagname}')
            if st == 2:
                a(f's_sub_u32 s{sCntC}, s{sCntC}, 1')
                for r in (vAa + 1, vAa + 2, vAa + 3):
                    a(f'v_add_u32 v{r}, s{sDA}, v{r}')
        m = mfmas(1, swap); rd = reads(0, 0, swap)
        a(f's_cmp_eq_u32 s{sCntC}, 0', 's_waitcnt lgkmcnt(0)', f's_cbranch_scc1 L_last_{tagname}')
        mask = sum(1 << (je - c) for c in SKIP if jr < c < je)
        if mask:
            a(f's_bitcmp1_b32 s{sMask}, s{sCntC}', f's_cbranch_scc1 L_nob_{tagname}')
        a('s_barrier')
        a.label(f'L_nob_{tagname}')
        a(m[0], rd[0:3], m[1], rd[3:6], m[2], m[3], f's_branch L_loop_{tagname}')
        a.label(f'L_ld_{tagname}')
        a(csload, f's_branch L_ldx_{tagname}')
        a.label(f'L_pause_{tagname}')
        d = 16384 * (slotB(jr) - slotB(jp))
        a('s_barrier', m[0], f's_mov_b32 s{sMask}, {hex(mask | 1 << 31)}', m[1], f's_mov_b32 s{sSB}, {slotB(jr)}', m[2], f's_mov_b32 s{sCntC}, {je-jr}', m[3], f's_mov_b32 s{sLd}, {OPT.get("ld" + tagname[0], 2)}',
          f'v_add_u32 v{vBa}, {d}, v{vBa}', f'v_add_u32 v{vBa+1}, {d}, v{vBa+1}')
        d = 16384 * (slotA(JOBS[jr][1]) - slotA(SP))
        if d:
            a(f's_mov_b32 s{sSA}, {slotA(JOBS[jr][1])}', [f'v_add_u32 v{vAa+i}, {d}, v{vAa+i}' for i in range(4)])
        mid()
        a.label(f'L_last_{tagname}')
        a(f's_bitcmp0_b32 s{sMask}, 31', f's_cbranch_scc1 L_pause_{tagname}')
        sp = corr_split()
        if je == QE:
            bar()
        a(f'ds_read_b32 v{vTg}, v{vTg}', pre_last[:1], m[0], pre_last[1:], m[1], f's_mov_b32 s{sLd}, {SPIN}', f's_waitcnt lgkmcnt({len(pre_last)-1})')
        tok = [x for x in sp if not any(f'v{r}' in x.replace(',', ' ').split() for r in (CF, CF + 1, CF + 2, CF + 3, CS[0], CS[1]))]
        col = [x for x in sp if x not in tok]
        a(tok[:5], m[2], tok[5:])
        a.label(f'L_cs_{tagname}')
        a('s_waitcnt vmcnt(0)', f'v_cmp_ne_u32 vcc, v{vTg}, v{CS[0]+1}', f'v_cmp_ne_u32 s[46:47], v{vTg}, v{CS[1]+1}', 's_nop 1', 's_or_b32 vcc_lo, vcc_lo, s46', f's_cbranch_scc0 L_csx_{tagname}',
          f's_sub_u32 s{sLd}, s{sLd}, 1', f's_cbranch_scc1 L_csx_{tagname}', backoff('s0'), csload, f's_branch L_cs_{tagname}')
        a.label(f'L_csx_{tagname}')
        a(m[3], col, 's_nop 1', corr_mfma(swap))
        a.stamp(4)

    a.label('L_x')
    a.c('waves 0..3: QKV projection tile (128 tokens x 128 columns)')
    a(rest if KA else [])
    if OPT.get('cpf', 1):
        a('s_getpc_b64 s[40:41]')
        a.label('L_pc')
        a('s_lshr_b32 s42, s2, 3', f's_lshl2_add_u32 s42, s42, s{sW}', 's_lshl_b32 s42, s42, 9', 's_sub_u32 s40, s40, L_pc-L_p0', 's_subb_u32 s41, s41, 0', f's_mov_b32 s43, L_done-L_p0', 'v_lshlrev_b32 v2, 7, v0', 'v_add_u32 v2, s42, v2', 'v_min_u32 v2, s43, v2',
          'v_mov_b32 v3, s41', 'v_add_co_u32 v2, vcc, s40, v2', 's_mov_b64 exec, 15', 's_nop 0', 'v_addc_co_u32 v3, vcc, 0, v3, vcc',
          'global_load_dword v167, v[2:3], off', 's_mov_b64 exec, -1')
    decode2()
    XBAR = {0: (1, 4), 1: (1, 3, 5), 2: (0, 2, 5), 3: (2, 5), 4: (3,), 5: (2,), 6: (2, 6), 7: (), 8: (4,), 9: (5,), 10: (6,), 11: (0,), 12: (1,)}[OPT.get('xbar', 7)]
    XSIG = QE + OPT.get('xsig', 3)
    XP = QE + OPT.get('xp', 5)
    XB = [c for c in range(QE + 1, XP) if c not in SKIP]
    assert XP not in SKIP and XP >= KVB - 1 and XSIG < XP
    gemm_setup(0, 0, SP, True)
    a('s_waitcnt lgkmcnt(0)')
    ws_setup()
    zero_acc(0, 64)
    colsum_setup()
    vAd, vSa, vSb = tmp, tmp + 8, tmp + 9
    t0, t1, t2 = tmp + 10, tmp + 11, tmp + 12
    a(f's_cmp_ge_u32 s{sCG}, 10', 's_cbranch_scc1 L_x_v')
    a(f's_cmp_lt_u32 s{sCG}, 5',
      CSEL(sHS, 81920, 163840), f's_cselect_b32 s{sScale}, {fbits(QSCALE)}, 1.0',
      CSEL(sT0, 5120, 10240), CSEL(sOff, WS_Q, WS_KV), f's_cselect_b32 s{sT1}, 0, 5')
    a(f's_mul_i32 s{sT0}, s{sT0}, s{sRB}', f's_add_u32 s{sOff}, s{sOff}, s{sT0}',
      f's_mul_i32 s{sT0}, s{sM}, 2560', f's_add_u32 s{sOff}, s{sOff}, s{sT0}')
    a(f's_sub_u32 s{sT1}, s{sCG}, s{sT1}', f's_lshl_b32 s{sT1}, s{sT1}, 1', f's_add_u32 s{sT1}, s{sT1}, s{sN}', f's_lshl_b32 s{sT1}, s{sT1}, 4',
      f's_sub_u32 s{sHS}, s{sHS}, 2560')
    a(f's_lshl_b32 s{sT0}, s{sM}, 3', f's_add_u32 s{sT1}, s{sT1}, s{sT0}')
    for sl in range(2):
        if sl:
            a(f's_xor_b32 s{sT1}, s{sT1}, 8')
        a(f'v_add_u32 v1, s{sT1}, v{vH}', f'v_lshlrev_b32 v{t2}, 4, v{vTok}', f'v_lshl_add_u32 v{t2}, v1, 9, v{t2}', 'v_mul_u32_u24 v1, 205, v1')
        for q in range(4):
            a(f'v_add_u32 v{t0}, {2*q*205}, v1', f'v_lshrrev_b32 v{t0}, 10, v{t0}', f'v_mad_u32_u24 v{vAd+4*sl+q}, v{t0}, s{sHS}, v{t2}')
    vSc = tmp + 13
    a(f's_lshl_b32 s{sT2}, s{sM}, 8', f's_add_u32 s{sT2}, s{sT2}, {L_MEAN}', f'v_lshl_add_u32 v{vSc}, v{vTok}, 3, s{sT2}', f'v_lshl_add_u32 v{vSa}, v{vH}, 9, v{vSc}')
    a.stamp(2)
    a('s_setprio 1')
    vRs = SX + 16
    def xmid(tg):
        def f():
            for c in range(SP + 1, SP + NE):
                bar()
            a(f's_branch L_ent_{tg}')
        return f
    mainloop('qk', False, [f'ds_read_b64 {v(CR,2)}, v{vSa}', f'ds_read_b64 {v(vRs,2)}, v{vSc} offset:{L_RSTD-L_MEAN}'], SP, SP + NE, QE, xmid('qk'))
    a(f's_setprio {OPT.get("xprio", 0)}', 's_waitcnt lgkmcnt(0)')
    a(f'v_mul_f32 v{vRs}, s{sScale}, v{vRs}', f'v_mul_f32 v{vRs+1}, s{sScale}, v{vRs+1}', 's_nop 5')
    for n, i in enumerate((4, 5, 6, 7, 0, 1, 2, 3)):
        u, q = i // 4, i % 4
        pk = FR + 4 * n
        for t in range(2):
            r = acc + 32 * t + 16 * u + 4 * q
            for e in range(4):
                a(f'v_mul_f32 v{r+e}, v{vRs+t}, v{r+e}')
            a(CVT(pk + 2 * t, r), CVT(pk + 2 * t + 1, r + 2))
        a(f'buffer_store_dwordx4 {v(pk,4)}, v{vAd+i}, {WS}, s{sOff} offen offset:{1024*(i%4)} sc1')
        if n in XBAR:
            bar()
    a('s_branch L_x_sig')
    a.label('L_x_v')
    a(f's_cmp_ge_u32 s{sCG}, 15', 's_cbranch_scc1 L_x_idle', f's_lshl_b32 s{sT2}, s{sM}, 8', f's_add_u32 s{sT2}, s{sT2}, {L_MEAN}')
    a(f's_mul_i32 s{sOff}, s{sRB}, 10240', f's_mul_i32 s{sT0}, s{sM}, 2560', f's_add_u32 s{sOff}, s{sOff}, s{sT0}', f's_add_u32 s{sOff}, s{sOff}, {WS_KV+5120}')
    a(f's_sub_u32 s{sT1}, s{sCG}, 10', f's_lshl_b32 s{sT1}, s{sT1}, 7', f's_lshl_b32 s{sT0}, s{sN}, 6', f's_add_u32 s{sT1}, s{sT1}, s{sT0}',
      f's_lshl_b32 s{sT0}, s{sM}, 5', f's_add_u32 s{sT1}, s{sT1}, s{sT0}', f'v_add_u32 v1, s{sT1}, v{vTok}', f'v_mul_u32_u24 v{t2}, 320, v{vH}')
    for u in range(2):
        a(f'v_xor_b32 v{t0}, {32*u}, v1', f'v_mul_u32_u24 v{t1}, 3277, v{t0}', f'v_lshrrev_b32 v{t1}, 16, v{t1}',
          f'v_mul_u32_u24 v{t1}, {163840-320}, v{t1}', f'v_lshl_add_u32 v{t1}, v{t0}, 4, v{t1}', f'v_add_u32 v{vAd+u}, v{t1}, v{t2}')
    a(f'v_lshl_add_u32 v{vSa}, v{vTok}, 2, s{sT2}', f'v_lshl_add_u32 v{vSa}, v{vH}, 9, v{vSa}', f'v_lshl_add_u32 v{vSc}, v{vH}, 4, s{sT2}')
    a.stamp(2)
    a('s_setprio 1')
    def v_stats(t, dst):
        return [f'ds_read_b128 {v(dst+4*q,4)}, v{vSc} offset:{L_RSTD-L_MEAN+128*t+32*q}' for q in range(4)]
    mainloop('v', True, [f'ds_read2_b32 {v(CR,2)}, v{vSa} offset0:0 offset1:32'] + v_stats(0, vRs), SP, SP + NE, QE, xmid('v'))
    a(f's_setprio {OPT.get("xprio", 0)}', v_stats(1, FR), 's_waitcnt lgkmcnt(4)', 's_nop 2')
    n = 0
    for t in range(2):
        st_ = FR if t else vRs
        if t:
            a('s_waitcnt lgkmcnt(0)')
        for u in range(2):
            for ap in range(2):
                r = acc + 32 * t + 16 * u + 8 * ap
                for e in range(8):
                    a(f'v_mul_f32 v{r+e}, v{st_+8*ap+e}, v{r+e}')
                for e in range(4):
                    a(CVT(r + e, r + 2 * e))
                a(f'buffer_store_dwordx4 {v(r,4)}, v{vAd+u}, {WS}, s{sOff} offen offset:{640*(2*t+ap)} sc1')
                if n in XBAR:
                    bar()
                n += 1
    a.label('L_x_sig')
    jitter()
    a.stamp(5)
    lds_tag(4)
    f1_off(sT0, sT1, sN, sM)
    a('v_mov_b32 v1, 0', 's_mov_b64 vcc, 1')
    for c in XB[len(XBAR):]:
        if c <= XSIG:
            bar()
    a('s_mov_b64 exec, vcc', 's_waitcnt vmcnt(0)', f'buffer_store_dword v4, v1, {WS}, s{sT0} offen sc1', 's_mov_b64 exec, -1')
    a.stamp(6)
    for c in XB[len(XBAR):]:
        if c > XSIG:
            bar()

    a.label('L_attn')
    a.c('attention set-up; waves 0..3 wait for the projections and stage Q and the first K/V chunks')
    if 'c0' in OPT:
        a.lock = tuple(range(2, 14))
    a.stamp(7)
    R = Regs(2)
    vH, vTokA, vVa, vK2a = R(), R(), R(), R()
    vKa = [R(), R()]
    Q1 = R(4); Q2 = [R(2), R(2)]
    S = [R(16), R(16)]
    P = R(8); O = R(16); C = R(16)
    K1 = [R(4), R(4)]; V = [R(8), R(8)]; K2 = R(2)
    tp = R(8)
    sCnt, sKV, sPass, sM40 = 40, 41, 42, 44
    vKg = tp + 6
    def a_setup():
        a(f'v_lshrrev_b32 v{vH}, 5, v0', f'v_and_b32 v{vTokA}, 31, v0', f's_mul_i32 s{sKV}, s{sHead}, 163840', f's_add_u32 s{sKV}, s{sKV}, {WS_KV}')
        a(f'v_lshlrev_b32 v{vK2a}, 3, v{vTokA}', f'v_lshl_add_u32 v{vKg}, v{vH}, 9, v{vK2a}')
        a(f'v_add_u32 v{vKa[0]}, {L_K}, v{vKg}', f'v_add_u32 v{vKa[1]}, {L_K+256}, v{vKg}', f'v_lshlrev_b32 v{vK2a}, 3, v0', f'v_add_u32 v{vK2a}, {L_K+2048}, v{vK2a}')
        a(f'v_lshlrev_b32 v{vVa}, 4, v{vTokA}', f'v_mul_u32_u24 v{K2}, 320, v{vH}', f'v_add_u32 v{vVa}, v{vVa}, v{K2}', f'v_add_u32 v{vVa}, {L_V}, v{vVa}')
        a(f'v_cmp_eq_u32 vcc, 20, v{vTokA}', f'v_mov_b32 v{K2}, {L_V+640}', f'v_mov_b32 v{K2+1}, {FAR}', f'v_cndmask_b32 v{vVa}, v{vVa}, v{K2}, vcc',
          f'v_cmp_lt_u32 vcc, 20, v{vTokA}', 's_nop 1', f'v_cndmask_b32 v{vVa}, v{vVa}, v{K2+1}, vcc')
        for i in range(16):
            a(f'v_mov_b32 v{O+i}, 0')
        for i in range(4):
            a(f'v_mov_b32 v{P+4+i}, 0', f'v_mov_b32 v{V[1]+4+i}, 0')
        a(f's_lshr_b32 s{sT0}, s{sW}, 1', f's_cmp_lt_u32 s{sT0}, 3', CSEL(sT1, L_Q0, L_Q1 - 7680), f's_mul_i32 s{sT0}, s{sT0}, 2560', f's_add_u32 s{sT0}, s{sT0}, s{sT1}',
          f's_and_b32 s{sT1}, s{sW}, 1', f's_lshl_b32 s{sT1}, s{sT1}, 3', f's_add_u32 s{sT0}, s{sT0}, s{sT1}',
          f'v_lshl_add_u32 v{vQb}, v{vTokA}, 4, s{sT0}', f'v_lshl_add_u32 v{vQa}, v{vH}, 9, v{vQb}')
    vQa, vQb = tp + 4, tp + 5
    a_setup()
    sP, sNB, sSpin = 48, 49, 50
    if True:
        a(f's_mul_i32 s{sT0}, s{sHead}, 20', f's_add_u32 s{sT1}, s{sT0}, 19', f's_lshr_b32 s{sT0}, s{sT0}, 6', f's_lshr_b32 s{sT1}, s{sT1}, 6', f's_sub_u32 s{sT1}, s{sT1}, s{sT0}',
          f's_lshl_b32 s{sT1}, s{sT1}, 10', f's_lshl_b32 s{sP}, s{sT0}, 10', f's_add_u32 s{sP}, s{sP}, {WS_F1}')
        a(f'v_bfe_u32 v{tp}, v0, 2, 2', f's_lshl_b32 s{sT0}, s{sW}, 1', f's_sub_u32 s{sT0}, s{sT0}, 1', f'v_add_u32 v1, s{sT0}, v{tp}', f'v_cmp_eq_u32 vcc, 0, v{tp}',
          f'v_bfe_u32 v{tp+1}, v0, 1, 1', f'v_add_u32 v{tp+1}, 1, v{tp+1}', 'v_cndmask_b32 v1, v1, 0, vcc' if False else f'v_cndmask_b32 v1, v1, v{tp}, vcc',
          f'v_cmp_eq_u32 vcc, 3, v{tp}', f'v_mov_b32 v{tp+2}, s{sQB}', f'v_mov_b32 v{tp+3}, 0', f'v_cndmask_b32 v1, v1, v{tp+2}, vcc', f'v_cndmask_b32 v{tp+1}, v{tp+1}, v{tp+3}, vcc',
          'v_lshlrev_b32 v1, 7, v1', f'v_mul_u32_u24 v{tp+1}, 10240, v{tp+1}', f'v_add_u32 v1, v1, v{tp+1}', f'v_and_b32 v{tp}, 1, v0', f'v_mad_u32_u24 v1, v{tp}, s{sT1}, v1')
    a(f's_mov_b32 s{sSpin}, {SPIN}')
    a(f's_mov_b32 s{sM40}, -1', f's_mov_b32 s{sM40+1}, 0xff')
    a(f's_lshl_b32 s{sT0}, s{sHead}, 5', f's_lshl_b32 s{sT1}, s{sQB}, 2', f's_add_u32 s{sT0}, s{sT0}, s{sT1}', f's_add_u32 s{sT0}, s{sT0}, s{sW}', f's_mul_i32 s51, s{sT0}, 2560',
      f's_add_u32 s51, s51, {WS_Q}', f's_cmp_lt_u32 s{sW}, 3', CSEL(sT1, L_Q0, L_Q1 - 7680), f's_mul_i32 s52, s{sW}, 2560', f's_add_u32 s52, s52, s{sT1}')
    a(f's_mul_i32 s{sT0}, s{sW}, 1280', f's_mul_i32 s{sT1}, s{sW}, 1312', f's_add_u32 s{sT2}, s{sT0}, s{sKV}')
    poll1 = ['s_mov_b64 exec, 0xffff', f'buffer_load_dwordx4 {v(tp,4)}, v1, {WS}, s{sP} offen sc1', 's_mov_b64 exec, -1']
    check = ['s_waitcnt vmcnt(0)'] + [f'v_xor_b32 v{tp+i}, s{sTag}, v{tp+i}' for i in range(4)] + [
        f'v_or3_b32 v{tp}, v{tp}, v{tp+1}, v{tp+2}', f'v_or_b32 v{tp}, v{tp}, v{tp+3}', f'v_cmp_ne_u32 vcc, 0, v{tp}', 's_nop 1', 's_and_b32 vcc_lo, vcc_lo, 0xffff', 's_cbranch_scc0 L_poll1_ok']
    a(f's_mov_b32 s{sNB}, 0', f's_cmp_ge_u32 s{sCG}, 15', 's_cbranch_scc1 L_poll1c')
    bar()
    left = len([c for c in range(XP + 1, 20) if c not in SKIP])
    a(poll1, f's_mov_b32 s{sNB}, {max(0, left-1)}')
    if left:
        a.label('L_poll1a')
        bar()
        a(check, poll1, f's_sub_u32 s{sNB}, s{sNB}, 1', 's_cbranch_scc0 L_poll1a', f's_mov_b32 s{sNB}, 0')
    a.label('L_poll1b')
    a(check, f's_sub_u32 s{sSpin}, s{sSpin}, 1', 's_cbranch_scc1 L_poll1_ok', backoff('s1'))
    a.label('L_poll1c')
    a(poll1, 's_branch L_poll1b')
    a.label('L_poll1_ok')
    jitter()
    a.stamp(8)
    a('v_lshlrev_b32 v1, 4, v0', 's_mov_b32 m0, s52', f's_mov_b64 exec, s[{sM40}:{sM40+1}]')
    for i in range(4):
        a(f'buffer_load_dwordx4 v1, {WS}, s51 offen offset:{640*i} sc1 lds')
    for c in range(2):
        a(f's_add_u32 m0, s{sT0}, {L_K+5120*c}', f's_add_u32 s{sT3}, s{sT2}, {10240*c}')
        a(f'buffer_load_dwordx4 v1, {WS}, s{sT3} offen sc1 lds', f'buffer_load_dwordx4 v1, {WS}, s{sT3} offen offset:640 sc1 lds')
        a(f's_add_u32 m0, s{sT1}, {L_V+5248*c}', f's_add_u32 s{sT3}, s{sT3}, 5120')
        a(f'buffer_load_dwordx4 v1, {WS}, s{sT3} offen sc1 lds', f's_sub_u32 s{sT3}, s{sT3}, 16', f'buffer_load_dwordx4 v1, {WS}, s{sT3} offen offset:656 sc1 lds')
    a('s_mov_b64 exec, -1')
    a.label('L_rest')
    a(f's_sub_u32 s{sNB}, s{sNB}, 1', 's_cbranch_scc1 L_rest_done', 's_barrier', 's_branch L_rest')
    a.label('L_rest_done')
    a('s_waitcnt vmcnt(4)', 's_branch L_attn_j')
    a.label('L_attn_z')
    jitter()
    a.vm = zvm
    lds_tag(1)
    a_setup()
    a(f'v_mul_u32_u24 v1, 656, v{vTokA}', f'v_add_u32 v1, {L_V+640}, v1')
    for i in range(4):
        a(f'v_mov_b32 v{K1[0]+i}, 0x3f803f80')
    a(f's_cmp_lg_u32 s{sW}, 4', 's_cbranch_scc1 L_noones', f'ds_write_b128 v1, {v(K1[0],4)}')
    a.label('L_noones')
    a.wait_vm(('c', 19))
    pbar(19)
    a('s_waitcnt lgkmcnt(0)')
    page('L_attn_j', 4092)
    sHi = 46
    a('s_mov_b32 vcc_lo, -1', 's_mov_b32 vcc_hi, 0', f's_mov_b32 s{sHi}, -1', f's_mov_b32 s{sHi+1}, 0')

    def rdK1(dst, blk):
        o = (blk // 2 % 8) * 5
        return f'ds_read2st64_b64 {v(dst,4)}, v{vKa[blk % 2]} offset0:{o} offset1:{o+2}'
    def rdK2(pair):
        return f'ds_read_b64 {v(K2,2)}, v{vK2a} offset:{(pair % 8) * 2560}'
    def rdV(dst, blk, half):
        return f'ds_read_b128 {v(dst+4*half,4)}, v{vVa} offset:{((blk % 16) * 2 + half) * 656}'

    a.stamp(9)
    bar()
    a.stamp(10)
    a(f'ds_read2st64_b64 {v(Q1,4)}, v{vQa} offset0:0 offset1:2', rdK1(K1[0], 0), rdK1(K1[1], 1), f'ds_read_b64 {v(tp,2)}, v{vQb} offset:2048', rdK2(0),
      rdV(V[0], 0, 0), rdV(V[0], 0, 1), 's_waitcnt lgkmcnt(5)')
    a(M16(S[0], K1[0], Q1, '0'), 's_waitcnt lgkmcnt(3)')
    for i in range(2):
        a(f'v_cndmask_b32 v{Q2[0]+i}, 0, v{tp+i}, vcc')
    for i in range(2):
        a(f'v_cndmask_b32 v{Q2[1]+i}, v{tp+i}, 0, s[{sHi}:{sHi+1}]')
    a(M16(S[1], K1[1], Q1, '0'), 's_waitcnt lgkmcnt(2)', M8(S[0], K2, Q2[0]), M8(S[1], K2, Q2[1]), 's_nop 10')
    a.c('stand-in for the row maximum: maximum over the first 64 keys plus 96 (log2 units); checked after the loop')
    vals = [S[0] + i for i in range(16)] + [S[1] + i for i in range(16)]
    a(f'v_max3_f32 v{tp}, v{vals[0]}, v{vals[1]}, v{vals[2]}', f'v_max3_f32 v{tp+1}, v{vals[3]}, v{vals[4]}, v{vals[5]}')
    for i in range(6, 32, 2):
        r = tp + (i // 2 + 1) % 2
        a(f'v_max3_f32 v{r}, v{r}, v{vals[i]}, v{vals[i+1]}')
    a(f'v_max_f32 v{tp}, v{tp}, v{tp+1}', f'v_mov_b32 v{tp+1}, v{tp}', 's_nop 1', f'v_permlane32_swap_b32 v{tp}, v{tp+1}', 's_nop 1')
    a(f'v_max_f32 v{tp}, v{tp}, v{tp+1}', f'v_sub_f32 v{C}, {fbits(-float(OPT.get("mo", MAXOFF)))}, v{tp}')
    a(f'v_mov_b32 v{C+1}, v{C}')
    for i in range(2, 16, 2):
        a(f'v_mov_b64 {v(C+i,2)}, {v(C,2)}')
    if OPT.get('pro', 0) == 0:
        a('s_nop 1', M16(S[0], K1[0], Q1, C), M8(S[0], K2, Q2[0]), f's_mov_b32 s{sCnt}, 4', 's_waitcnt vmcnt(0)', 's_nop 7')
    else:
        for i in range(16):
            a(f'v_add_f32 v{S[0]+i}, v{S[0]+i}, v{C}')
        a(f's_mov_b32 s{sCnt}, 4', 's_waitcnt vmcnt(0)')
    a.stamp(11)
    a.raw('.p2align 3')
    a.label('L_at_loop')
    LAD = [(3, 2, 1, 0), (3, 2, 1, 1), (2, 1, 0, 0), (3, 3, 2, 1), (2, 2, 1, 0)][OPT.get('lad', 0)]
    for b in range(16):
        cur, nxt = S[b & 1], S[(b + 1) & 1]
        E = lambda i: EXP(cur + i)
        Cv = lambda i: CVT(P + i, cur + 2 * i)
        a(M16(nxt, K1[(b + 1) & 1], Q1, C))
        if b % 4 == 2:
            bar()
        a(f's_setprio {LAD[(b + 2) % 4]}', rdK1(K1[b & 1], b + 2))
        vs = [E(0), E(1), E(2), Cv(0), E(3), E(4), Cv(1), E(5), E(6), Cv(2), E(7), E(8), Cv(3), E(9), E(10), Cv(4), E(11), E(12), Cv(5), E(13), E(14), E(15), Cv(6), Cv(7)]
        c1, c2, c3 = [(6, 12, 18), (4, 8, 15), (4, 10, 15), (5, 10, 16), (7, 13, 19), (6, 11, 17), (5, 12, 18), (8, 12, 20)][OPT.get('sch', 0)]
        a(vs[:c1])
        a(M16(O, V[(b + 1) & 1] + 4, P + 4), 's_waitcnt lgkmcnt(1)', rdV(V[(b + 1) & 1], b + 1, 0), rdV(V[(b + 1) & 1], b + 1, 1))
        a(vs[c1:c2])
        a(M8(nxt, K2, Q2[(b + 1) & 1]))
        a(vs[c2:c3])
        a(M16(O, V[b & 1], P), 's_waitcnt lgkmcnt(2)')
        if b % 2 == 0:
            a(rdK2(b // 2 + 1))
        if b == 15:
            a(f's_sub_u32 s{sCnt}, s{sCnt}, 1', f's_cmp_lg_u32 s{sCnt}, 0')
        a(vs[c3:])
    a('s_cbranch_scc1 L_at_loop')
    a('s_nop 0', M16(O, V[1] + 4, P + 4), f's_mov_b32 s{sPass}, 0', 's_waitcnt lgkmcnt(0)')
    if OPT.get('ep', 1) == 2:
        a('s_setprio 1')
    a.stamp(12)

    a.label('L_at_fin')
    a.c('normalise and store; if a sum overflowed or came near the flush range, redo this wave with the true row maximum')
    jitter()
    a(f's_lshl_b32 s{sT0}, s{sQB}, 3', f's_add_u32 s{sT0}, s{sT0}, s{sW}', f's_mul_i32 s{sT0}, s{sT0}, 40960', f's_add_u32 s{sT0}, s{sT0}, {WS_O}',
      f's_lshl_b32 s{sT1}, s{sHead}, 10', f's_add_u32 s{sT1}, s{sT1}, s{sT0}',
      f's_lshl_b32 s{sT2}, s{sHead}, 8', f's_add_u32 s{sT2}, s{sT2}, s{sT0}', f's_add_u32 s{sT2}, s{sT2}, 32768', f's_mov_b32 s{sT3}, {fbits(2.0**-102)}', 's_nop 1')
    vL, vSum, N = tp, tp + 1, S[0]
    a(f'v_mov_b32 v{vL}, v{O+8}', f'v_mov_b32 v{tp+2}, v{O+8}', 'v_lshlrev_b32 v1, 4, v0', f'v_lshlrev_b32 v{tp+4}, 3, v0')
    a(f'v_permlane32_swap_b32 v{tp+2}, v{vL}', f'v_add_f32 v{vSum}, |v{O}|, |v{O+1}|', f'v_add_f32 v{tp+3}, |v{O+8}|, |v{O+9}|', f'v_rcp_f32 v{vL}, v{vL}', f'v_add_f32 v{vSum}, v{vSum}, |v{O+2}|')
    for i in range(8):
        a(f'v_mul_f32 v{N+i}, v{O+i}, v{vL}')
    for i in range(4):
        a(CVT(N + i, N + 2 * i))
    a(f'buffer_store_dwordx4 {v(N,4)}, v1, {WS}, s{sT1} offen sc1')
    for i in range(8, 12):
        a(f'v_mul_f32 v{N+i}, v{O+i}, v{vL}')
    a(CVT(N + 8, N + 8), CVT(N + 9, N + 10), 's_mov_b32 exec_hi, 0', f'buffer_store_dwordx2 {v(N+8,2)}, v{tp+4}, {WS}, s{sT2} offen sc1', 's_mov_b32 exec_hi, -1', 's_setprio 0' if OPT.get('ep', 1) else 's_nop 0')
    for i in range(3, 8):
        a(f'v_add_f32 v{vSum}, v{vSum}, |v{O+i}|')
    a(f'v_add_f32 v{tp+3}, v{tp+3}, |v{O+10}|', f'v_add_f32 v{tp+3}, v{tp+3}, |v{O+11}|', f'v_add_f32 v{tp+3}, v{tp+3}, v{vSum}')
    a(f'v_cmp_ngt_f32 vcc, {fbits(2.0**120)}, v{tp+3}', f'v_cmp_gt_f32 s[46:47], s{sT3}, v{vSum}', 's_nop 1',
      's_or_b64 s[46:47], s[46:47], vcc', f's_cmp_eq_u32 s{sPass}, 0', 's_cselect_b64 s[46:47], s[46:47], 0', 's_cmp_lg_u64 s[46:47], 0',
      's_cbranch_scc1 L_at_slow' if not OPT.get('noslow') else 's_nop 0')
    FOS = OPT.get('fos', 2)
    a(f's_lshl_b32 s{sT0}, s{sQB}, 3', f's_add_u32 s{sT0}, s{sT0}, s{sW}', f's_lshl_b32 s{sT0}, s{sT0}, 12', f's_lshr_b32 s{sT1}, s{sHead}, {FOS}', f's_lshl_b32 s{sT1}, s{sT1}, 7',
      f's_add_u32 s{sT0}, s{sT0}, s{sT1}', f's_and_b32 s{sT1}, s{sHead}, {(1<<FOS)-1}', f's_lshl_b32 s{sT1}, s{sT1}, 2',
      f's_add_u32 s{sT0}, s{sT0}, s{sT1}', f's_add_u32 s{sT0}, s{sT0}, {WS_FO}', f'v_mov_b32 v1, s{sTag}', 'v_mov_b32 v2, 0', 's_mov_b64 exec, 1')
    a('s_waitcnt vmcnt(0)', f'buffer_store_dword v1, v2, {WS}, s{sT0} offen sc1')
    a.stamp(13)
    a.dump(0, sW, 24)
    a('s_endpgm')

    a.label('L_at_slow')
    a.c('true row maximum over all keys, then the weighted sum again')
    vVg, vL8s = tp + 4, tp + 7
    a(f'v_min_u32 v1, 19, v{vTokA}', 'v_lshlrev_b32 v1, 4, v1', f'v_mul_u32_u24 v{vVg}, 320, v{vH}', f'v_add_u32 v{vVg}, v1, v{vVg}', f'v_lshlrev_b32 v{vL8s}, 3, v0')
    a(f'v_mov_b32 v{tp}, 0xff800000', f's_mov_b32 s{sCnt}, 0')
    def pair_off():
        a(f's_lshr_b32 s{sT0}, s{sCnt}, 1', f's_mul_i32 s{sT0}, s{sT0}, 10240', f's_and_b32 s{sT1}, s{sCnt}, 1', f's_mul_i32 s{sT1}, s{sT1}, 2560',
          f's_add_u32 s{sT0}, s{sT0}, s{sT1}', f's_add_u32 s{sT0}, s{sT0}, s{sKV}', f's_add_u32 s{sT1}, s{sT0}, 5120')
    def ldK():
        for b in range(2):
            a(f'buffer_load_dwordx2 {v(K1[b],2)}, v{vKg}, {WS}, s{sT0} offen offset:{256*b} sc1',
              f'buffer_load_dwordx2 {v(K1[b]+2,2)}, v{vKg}, {WS}, s{sT0} offen offset:{256*b+1024} sc1')
        a(f'buffer_load_dwordx2 {v(K2,2)}, v{vL8s}, {WS}, s{sT0} offen offset:2048 sc1')
    a.label('L_at_slow_max')
    pair_off(); ldK()
    a('s_waitcnt vmcnt(0)')
    a(M16(S[0], K1[0], Q1, '0'), M16(S[1], K1[1], Q1, '0'), M8(S[0], K2, Q2[0]), M8(S[1], K2, Q2[1]), 's_nop 12')
    for i in range(16):
        a(f'v_max3_f32 v{tp}, v{tp}, v{S[0]+i}, v{S[1]+i}')
    a(f's_add_u32 s{sCnt}, s{sCnt}, 1', f's_cmp_lt_u32 s{sCnt}, 32', 's_cbranch_scc1 L_at_slow_max')
    a(f'v_mov_b32 v{tp+1}, v{tp}', 's_nop 1', f'v_permlane32_swap_b32 v{tp}, v{tp+1}', 's_nop 1', f'v_max_f32 v{tp}, v{tp}, v{tp+1}')
    for i in range(16):
        a(f'v_sub_f32 v{C+i}, 0, v{tp}', f'v_mov_b32 v{O+i}, 0')
    a(f'v_cmp_eq_u32 s[48:49], 20, v{vTokA}', f'v_mov_b32 v{tp+5}, 0x3f803f80', f's_mov_b32 s{sCnt}, 0')
    a.label('L_at_slow_pv')
    pair_off(); ldK()
    for g in range(4):
        a(f'buffer_load_dwordx4 {v(V[g//2]+4*(g%2),4)}, v{vVg}, {WS}, s{sT1} offen offset:{640*g} sc1')
    a('s_waitcnt vmcnt(0)')
    a(M16(S[0], K1[0], Q1, C), M16(S[1], K1[1], Q1, C), M8(S[0], K2, Q2[0]), M8(S[1], K2, Q2[1]))
    for b in range(2):
        for i in range(8):
            a(f'v_cndmask_b32 v{V[b]+i}, v{V[b]+i}, v{tp+5}, s[48:49]')
    for b in range(2):
        for i in range(16):
            a(EXP(S[b] + i))
        a('s_nop 0')
        for i in range(8):
            a(CVT(P + i, S[b] + 2 * i))
        a('s_nop 1', M16(O, V[b], P), M16(O, V[b] + 4, P + 4))
    a(f's_add_u32 s{sCnt}, s{sCnt}, 1', f's_cmp_lt_u32 s{sCnt}, 32', 's_cbranch_scc1 L_at_slow_pv')
    a(f's_mov_b32 s{sPass}, 1', 's_branch L_at_fin')

    if OPT.get('so', 1):
        a.label('L_z_sum')
        a.vm = vm1
        nb = 2
        for n, c in enumerate(bars[:-1]):
            a.wait_vm(*[('c', x) for x in range(c, bars[n + 1])])
            bar()
            while nb < min(20, c + NB):
                ldB(nb, JOBS=SUMS); nb += 1
        a('s_waitcnt vmcnt(0)', 's_branch L_attn_z')
    a.label('L_x_idle')
    a.c('workgroups without a projection tile: column sums of the weights of column group rb')
    jitter()
    PA = acc
    def sum_setup():
        a('v_cmp_eq_u32 vcc, 0, v3', 'v_cmp_eq_u32 s[46:47], 20, v3', 'v_mov_b32 v1, 0x3f803f80', 's_nop 0', 's_or_b64 vcc, vcc, s[46:47]', 's_nop 1')
        for i in range(4):
            a(f'v_cndmask_b32 v{PA+i}, 0, v1, vcc')
    def sum_job(j):
        SS = acc + (4 if SUMS[j][0] == 'Q' else 8)
        for st in range(4):
            o = slotB(j) * 16384 + 4096 * st
            a(f'ds_read_b64_tr_b16 {v(FR+16+4*st,2)}, v{vBa} offset:{o}', f'ds_read_b64_tr_b16 {v(FR+16+4*st+2,2)}, v{vBa} offset:{o+1024}')
        for st in range(4):
            a(f's_waitcnt lgkmcnt({6-2*st})', f'v_mfma_f32_16x16x32_bf16 {v(SS,4)}, {v(PA,4)}, {v(FR+16+4*st,4)}, {v(SS,4)}')
    def publish(SS, off):
        a(f's_lshl_b32 s{sCs}, s{sRB}, 10', f's_add_u32 s{sCs}, s{sCs}, {off}', 's_nop 5', f'v_mov_b32 v{SS+1}, s{sTag}', 's_mov_b32 exec_hi, 0',
          f'buffer_store_dwordx2 {v(SS,2)}, v{vCx}, {WS}, s{sCs} offen sc1', 's_mov_b32 exec_hi, -1')
    sum_setup()
    for j, (ty, c) in enumerate(JOBS):
        pbar(j)
        if j == (10 if OPT.get('so', 1) else QE):
            lds_tag(1)
            publish(acc + 4, WS_CS)
            a.stamp(2)
        sum_job(j)
    publish(acc + 8, WS_CS + 16384)
    a.stamp(3)
    a('s_branch L_attn')

    a.label('L_helper')
    a.c('waves 8..11: row statistics, first FFN GEMM')
    a(rest if KA else [])
    jitter()
    a.lock = None
    sG = 38
    a(f's_sub_u32 s{sG}, s{sW}, 8')
    decode2()
    gemm_setup(8, SP, NE, False)
    sFB = 39
    a(f's_lshl_b32 s{sT0}, s{sRB}, 7', f's_lshl_b32 s{sT1}, s{sCG}, 3', f's_add_u32 s{sT0}, s{sT0}, s{sT1}', f's_lshl_b32 s{sT1}, s{sG}, 1', f's_add_u32 s{sT2}, s{sT0}, s{sT1}',
      f's_mul_i32 s{sT3}, s{sT2}, 1280', f's_lshl_b32 s{sT2}, s{sT2}, 4', f's_add_u32 s{sT2}, s{sT2}, {WS_RS}')
    a(f'v_mul_u32_u24 v1, 1280, v2', f'v_lshl_add_u32 v{tmp+4}, v{vTok}, 4, v1', f'v_lshl_add_u32 v{tmp+5}, v{vTok}, 3, v1', f'v_lshlrev_b32 v{tmp+6}, 1, v{vTok}')
    a(f's_lshl_b32 s{sFB}, s{sCG}, 1', f's_add_u32 s{sFB}, s{sFB}, s{sN}', f's_lshl_b32 s{sT0}, s{sFB}, 7')
    a('s_waitcnt lgkmcnt(0)')
    ws_setup()
    a(f's_add_u32 s10, s22, {WS_EP}', 's_addc_u32 s11, s23, 0', f's_load_dword s{sTag}, s[10:11], 0')
    def touch(off, extra=(0,)):
        a(f's_and_b32 s10, s{off}, 0xffffff80', 's_add_u32 s10, s22, s10', 's_addc_u32 s11, s23, 0')
        for e in extra:
            a(f's_load_dword s61, s[10:11], {e}', f's_load_dword s61, s[10:11], {e+64}')
    if OPT.get('tch', 1):
        touch(sT2)
        f1_off(56, 57, sN, None)
        touch(56)
        a(f's_lshl_b32 s56, s{sRB}, 1', f's_add_u32 s56, s56, s{sM}', 's_lshl_b32 s56, s56, 4', f's_add_u32 s56, s56, s{sCG}', 's_lshl_b32 s56, s56, 7', f's_add_u32 s56, s56, {WS_FH}')
        touch(56)
        a(f's_lshl_b32 s56, s{sQB}, 2', f's_add_u32 s56, s56, s{sG}', 's_lshl_b32 s56, s56, 13', f's_lshr_b32 s57, s{sHead}, {OPT.get("fos", 2)}', 's_lshl_b32 s57, s57, 7',
          's_add_u32 s56, s56, s57', f's_add_u32 s56, s56, {WS_FO}')
        touch(56, (0, 4096))
    vL16, vL8, vTr, vTr2, vOut, vRes = range(SX + 16, SX + 22)
    vW, vWr = SX + 22, SX + 26
    vR2 = SX + 42
    sOwn, sKH, sRow, sCol, sReg, sRG = 62, 63, 64, 65, 66, 3
    t = tmp + 10
    a(f's_mov_b32 s60, s{sT0}')
    a(f's_bfe_u32 s{sRG}, s2, 0x20001', f's_bfe_u32 s{sT0}, s2, 0x30003', f's_lshl3_add_u32 s{sRG}, s{sRG}, s{sT0}',
      f's_and_b32 s{sOwn}, s{sG}, 1', f's_lshr_b32 s{sKH}, s{sG}, 1', f's_lshl1_add_u32 s{sRow}, s{sRG}, s{sOwn}', f's_lshr_b32 s{sCol}, s2, 6')
    a(f'v_lshlrev_b32 v{vL16}, 4, v0', f'v_lshlrev_b32 v{vL8}, 3, v0', f'v_lshlrev_b32 v{vR2+3}, 5, v{vTok}')
    a(f's_lshl_b32 s{sT0}, s{sRG}, 6', f's_add_u32 s{sT0}, s{sT0}, s{sOwn}', f'v_and_b32 v1, 15, v0', f'v_lshl_add_u32 v1, v1, 1, s{sT0}', f'v_mul_u32_u24 v{vOut}, 1280, v1',
      f'v_and_b32 v{t}, 16, v0', f'v_lshl_add_u32 v{vOut}, v{t}, 1, v{vOut}', f'v_lshl_add_u32 v{vOut}, v2, 4, v{vOut}')
    a(f'v_lshlrev_b32 v{vTr}, 1, v{t}', f'v_and_b32 v{t}, 1, v0', f'v_lshl_add_u32 v{vTr}, v{t}, 4, v{vTr}', f'v_and_b32 v{t}, 2, v0', f'v_lshl_add_u32 v{vTr}, v{t}, 2, v{vTr}',
      f'v_bfe_u32 v{t}, v0, 2, 2', f'v_lshl_add_u32 v{t}, v2, 2, v{t}')
    def rows(i, row, piece):
        a(f'v_lshl_add_u32 v{piece}, v{piece}, 4, s{sCol}', f'v_mul_u32_u24 v{vW+i}, 1280, v{row}', f'v_add_u32 v{vW+i}, v{vW+i}, v{piece}',
          f'v_lshrrev_b32 v{row}, 2, v{row}', f'v_add_u32 v{row}, 1, v{row}', f'v_mul_u32_u24 v{row}, {16*1280}, v{row}')
        if i:
            a(f'v_subrev_u32 v{vW+i}, {1024*i}, v{vW+i}')
        a(f'v_add_u32 v{vWr+i}, v{vW+i}, v{row}')
    a('s_bitcmp1_b32 s2, 0', 's_cbranch_scc1 L_su2')
    a(f's_mul_i32 s{sCol}, s{sCol}, 192', f's_mul_i32 s{sReg}, s{sG}, 30720', f'v_mul_u32_u24 v{t}, 192, v{t}', f'v_add3_u32 v{vTr}, v{vTr}, v{t}, s{sReg}', f'v_mov_b32 v{vTr2}, v{vTr}')
    a(f's_cmp_eq_u32 s{sKH}, 0', 's_cselect_b32 s67, 1280, 0', f'v_lshl_add_u32 v1, v{vTok}, 1, s{sT0}', f'v_mul_u32_u24 v{vRes}, s67, v1', f'v_lshl_add_u32 v1, v2, 4, s{sCol}', f'v_add_u32 v{vRes}, v{vRes}, v1')
    for i in range(3):
        a(f'v_add_u32 v{t}, {64*i}, v0', f'v_mul_u32_u24 v1, 171, v{t}', 'v_lshrrev_b32 v1, 11, v1', f'v_mul_u32_u24 v{t+1}, 12, v1', f'v_sub_u32 v{t}, v{t}, v{t+1}')
        rows(i, 1, t)
    a('s_branch L_su3')
    a.label('L_su2')
    a(f's_lshl_b32 s{sCol}, s{sCol}, 7', f's_add_u32 s{sCol}, s{sCol}, 768', f's_mul_i32 s{sReg}, s{sG}, 20480', f'v_lshlrev_b32 v1, 7, v{t}', f'v_add3_u32 v{vTr}, v{vTr}, v1, s{sReg}',
      f'v_and_b32 v1, 2, v{t}', f'v_lshl_add_u32 v{vTr}, v1, 5, v{vTr}', f'v_xor_b32 v{vTr2}, 64, v{vTr}')
    a(f's_cmp_eq_u32 s{sKH}, 0', 's_cselect_b32 s67, -1, 0', CSEL(68, L_XR, L_B2), f's_lshl_b32 s{sT1}, s{sOwn}, 7', f'v_lshl_add_u32 v1, v{vTok}, 8, s{sT1}', f'v_and_b32 v{t}, 1, v0', f'v_lshl_add_u32 v1, v{t}, 6, v1',
      'v_and_b32 v1, s67, v1', 'v_lshl_add_u32 v1, v2, 4, v1', f'v_add_u32 v{vRes}, s68, v1')
    for i in range(2):
        a('v_lshrrev_b32 v1, 3, v0', f'v_and_b32 v{t}, 7, v0', f'v_and_b32 v{t+1}, 16, v0', f'v_lshrrev_b32 v{t+1}, 2, v{t+1}', f'v_xor_b32 v{t}, v{t}, v{t+1}', f'v_add_u32 v1, {8*i}, v1')
        rows(i, 1, t)
    a(f'v_mov_b32 v{vW+2}, 0', f'v_mov_b32 v{vWr+2}, 0')
    a.label('L_su3')
    colsum_setup()
    zero_acc(0, 64)
    a(f's_lshl_b32 s{sT0}, s{sRB}, 2', f's_lshl_b32 s{sT1}, s{sM}, 1', f's_add_u32 s{sT0}, s{sT0}, s{sT1}', f's_mul_i32 s{sT0}, s{sT0}, 108',
      f's_lshl_b32 s{sT1}, s{sFB}, 2', f's_add_u32 s{sT0}, s{sT0}, s{sT1}', f's_lshl_b32 s{sT0}, s{sT0}, 10',
      f's_add_u32 s{sOff}, s{sT0}, {WS_H}', f's_add_u32 s{sHS}, s{sOff}, {108*1024}', f's_lshl_b32 s{sT0}, s{sM}, 11', f'v_lshl_add_u32 v{tmp}, v0, 4, s{sT0}', f'v_xor_b32 v{tmp+1}, 2048, v{tmp}')
    a(f's_lshl_b32 s{sT0}, s{sM}, 8', f's_add_u32 s{sT0}, s{sT0}, {L_MEAN}', f'v_lshl_add_u32 v{tmp+3}, v{vTok}, 3, s{sT0}', f'v_lshl_add_u32 v{tmp+3}, v2, 9, v{tmp+3}')
    a(f's_lshl_b32 s{sT0}, s{sG}, 7', f's_add_u32 s{sT0}, s{sT0}, {L_MEAN}', f'v_lshl_add_u32 v{tmp+9}, v{vTok}, 2, s{sT0}', f'v_mov_b32 v{tmp+10}, {L_TAG}',
      f'v_lshlrev_b32 v{tmp+2}, 4, v{vTok}', f's_mov_b32 s{sT0}, s60')
    a.srd(SD, 4, 2621440)
    bar()
    a(f'buffer_load_dwordx4 {v(SX,4)}, v{tmp+4}, s[{SD}:{SD+3}], s{sT3} offen', f'buffer_load_dwordx4 {v(SX+4,4)}, v{tmp+4}, s[{SD}:{SD+3}], s{sT3} offen offset:512',
      f'buffer_load_dwordx2 {v(SX+8,2)}, v{tmp+5}, s[{SD}:{SD+3}], s{sT3} offen offset:1024')
    bar(); bar()
    def rowstats():
        a('s_waitcnt vmcnt(0) lgkmcnt(0)', f's_add_u32 s{sTag}, s{sTag}, 0x9e3779b1')
        a('s_mov_b64 exec, 1', f'v_mov_b32 v1, s{sTag}', f'ds_write_b32 v{tmp+10}, v1', 's_mov_b64 exec, -1')
        a.srd(SD, 14, 3456)
        a(f's_lshl_b32 s{sT1}, s{sM}, 6', f's_add_u32 s{sT0}, s{sT0}, s{sT1}', f's_xor_b32 s{sT1}, s{sT0}, 64')
        a(f'buffer_load_ushort v{tmp+7}, v{tmp+6}, s[{SD}:{SD+3}], s{sT0} offen', f'buffer_load_ushort v{tmp+8}, v{tmp+6}, s[{SD}:{SD+3}], s{sT1} offen')
        a(f's_lshl_b32 s{sT1}, s{sRB}, 11', f's_lshl_b32 s{sT0}, s{sG}, 9', f's_add_u32 s{sT1}, s{sT1}, s{sT0}', f's_add_u32 s{sT1}, s{sT1}, {WS_RS}', f's_mov_b32 s{sT3}, {SPIN}')
        r0, r1, r2, r3 = FR, FR + 1, FR + 2, FR + 3
        def reduce32(r):
            for mod in ('quad_perm:[1,0,3,2]', 'quad_perm:[2,3,0,1]', 'row_half_mirror', 'row_mirror'):
                a('s_nop 1', f'v_add_f32_dpp v{r}, v{r}, v{r} {mod} row_mask:0xf bank_mask:0xf')
            a(f'v_mov_b32 v{r3}, v{r}', 's_nop 1', f'v_permlane16_swap_b32 v{r}, v{r3}', 's_nop 1', f'v_add_f32 v{r}, v{r}, v{r3}')
        U = lambda i: (FR + 8 + i) if i < 10 else (SX + i - 10)
        for i in range(10):
            a(f'v_lshlrev_b32 v{U(i)}, 16, v{SX+i}', f'v_and_b32 v{SX+i}, 0xffff0000, v{SX+i}')
            if i < 2:
                a(f'v_add_f32 v{r0+i}, v{U(i)}, v{U(10+i)}')
            else:
                a(f'v_add_f32 v{r0}, v{r0}, v{U(i)}', f'v_add_f32 v{r1}, v{r1}, v{U(10+i)}')
        a(f'v_add_f32 v{r0}, v{r0}, v{r1}')
        reduce32(r0)
        a(f'v_mul_f32 v{r0}, {fbits(1/640)}, v{r0}', f'v_mov_b32 v{r1}, 0', f'v_mov_b32 v{r2}, 0')
        bar()
        for i in range(0, 20, 2):
            a(f'v_sub_f32 v{U(i)}, v{U(i)}, v{r0}', f'v_sub_f32 v{U(i+1)}, v{U(i+1)}, v{r0}', f'v_fmac_f32 v{r1}, v{U(i)}, v{U(i)}', f'v_fmac_f32 v{r2}, v{U(i+1)}, v{U(i+1)}')
        a(f'v_add_f32 v{r2}, v{r1}, v{r2}')
        reduce32(r2)
        a(f'v_mov_b32 v{r3}, {fbits(1e-5)}', f'v_fmac_f32 v{r3}, {fbits(1/640)}, v{r2}', f'v_rsq_f32 v{r2}, v{r3}', f'v_mov_b32 v{r1}, s{sTag}', f'v_mov_b32 v{r3}, s{sTag}',
          'v_lshrrev_b32 v1, 1, v0', 's_mov_b32 exec_lo, 1', 's_mov_b32 exec_hi, 1', f'buffer_store_dwordx4 {v(r0,4)}, v1, {WS}, s{sT2} offen sc1', 's_mov_b64 exec, -1')
        a.stamp(2)
    if SP == 5:
        rowstats()
        bar()
    else:
        for c in range(3, SP):
            bar()
    a('s_waitcnt lgkmcnt(0)')
    a(f's_cmp_lt_u32 s{sFB}, 27', 's_cbranch_scc1 L_h_act')
    for c in range(SP, SP + NE + 1):
        bar()
    a('s_branch L_h_mid')
    def gmid():
        a.label('L_h_mid')
        jitter()
        g0 = FR
        gather = f'buffer_load_dwordx4 {v(g0,4)}, v{tmp+2}, {WS}, s{sT1} offen sc1'
        a('s_setprio 0')
        nb_ = QE - 1 - (SP + NE)
        if SP != 5:
            rowstats(); nb_ -= 1
            for _ in range(nb_ - 3):
                bar()
            a('s_waitcnt lgkmcnt(0)')
            nb_ = 3
        a(gather)
        bar(); bar()
        a(f's_cmp_eq_u32 s{sCG}, 15', f's_cselect_b32 s{sT3}, 0, s{sT3}')
        a.label('L_h_chk')
        a('s_waitcnt vmcnt(0)', f'v_cmp_ne_u32 vcc, s{sTag}, v{g0+1}', f'v_cmp_ne_u32 s[46:47], s{sTag}, v{g0+3}', 's_nop 1', 's_or_b64 vcc, vcc, s[46:47]',
          's_cbranch_scc0 L_h_got', f's_sub_u32 s{sT3}, s{sT3}, 1', 's_cbranch_scc1 L_h_got', backoff('s0'), gather, 's_branch L_h_chk')
        a.label('L_h_got')
        a(f'v_rcp_f32 v{g0+1}, v{g0+2}', f'v_sub_f32 v{g0}, 0, v{g0}')
        a('s_mov_b32 exec_lo, 0', f'v_lshlrev_b32 v{CS[0]}, 16, v{tmp+7}', f'v_lshlrev_b32 v{CS[1]}, 16, v{tmp+8}', 's_mov_b32 exec_lo, -1')
        for _ in range(nb_ - 2):
            bar()
        a('s_mov_b32 exec_hi, 0', f'ds_write_b32 v{tmp+9}, v{g0}', f'ds_write_b32 v{tmp+9}, v{g0+1} offset:{L_ISTD-L_MEAN}', f'ds_write_b32 v{tmp+9}, v{g0+2} offset:{L_RSTD-L_MEAN}',
          's_mov_b64 exec, -1', 's_waitcnt lgkmcnt(0)')
        a(f's_cmp_lt_u32 s{sFB}, 27', 's_cbranch_scc1 L_h_act')
        for c in range(QE, 20):
            pbar(c)
        bar()
        a('s_branch L_h_p2')
    page('L_h_act', 2400, False)
    a('s_setprio 1')
    mainloop('ffn', False, [f'ds_read_b64 {v(CR,2)}, v{tmp+3}'], SP + NE, QE, 20, gmid)
    a('s_nop 8')
    hst = []
    for t, u in ((0, 0), (0, 1), (1, 1), (1, 0)):
        for ap in range(2):
            r = acc + 32 * t + 16 * u + 8 * ap
            for e in range(8):
                a(f'v_mul_f32 v{r+e}, v{r+e}, |v{r+e}|')
            for e in range(4):
                a(CVT(r + e, r + 2 * e))
            for e in range(4):
                a(f'v_pk_max_i16 v{r+e}, v{r+e}, 0')
            hst.append(f'buffer_store_dwordx4 {v(r,4)}, v{tmp+u}, {WS}, s{sHS if t else sOff} offen offset:{1024*ap} sc1')
            if OPT.get('hs', 0):
                a(hst.pop())
    a.stamp(3)
    bar()
    a(hst)
    a.label('L_h_p2')
    a.c('waves 8..11: K/V stream, second FFN GEMM (64 x 96 tiles on even workgroups, 64 x 64 on odd ones), output projection')
    jitter()
    a.stamp(5)
    R = Regs(2)
    acc = R(96)
    AF = [R(8) for _ in range(4)]
    tmp = R(8)
    assert R.n <= vL16
    BF = [vWr + 4 + 4 * i for i in range(3)]
    sKVo, sH0, sH1, sW2, sWo, sMK, sMV, sR2 = range(40, 48)
    W2, WO, RES = 48, 52, 56
    sM40 = 60
    MASK, FULL = f's_mov_b64 exec, s[{sM40}:{sM40+1}]', 's_mov_b64 exec, -1'

    def kv(c):
        slot = c % 4
        ld = lambda so, off: f'buffer_load_dwordx4 v{vL16}, {WS}, s{so} offen offset:{off} sc1 lds'
        return [([f's_add_u32 m0, s{sMK}, {slot*5120}', f's_add_u32 s{sT0}, s{sKVo}, {c*10240}'], ld(sT0, 0), ('kv', c), True),
                ([], ld(sT0, 640), ('kv', c), True),
                ([f's_add_u32 m0, s{sMV}, {slot*5248}', f's_add_u32 s{sT0}, s{sT0}, 5120'], ld(sT0, 0), ('kv', c), True),
                ([f's_sub_u32 s{sT0}, s{sT0}, 16'], ld(sT0, 656), ('kv', c), True)]
    def emit(fl):
        masked = False
        for pre, ins, tg, mk in fl:
            a(pre)
            if mk != masked:
                a(MASK if mk else FULL); masked = mk
            a.vmem(ins, tg)
        if masked:
            a(FULL)

    a.vm = ['hst']
    a(f's_mov_b32 s{sM40}, -1', f's_mov_b32 s{sM40+1}, 0xff')
    a(f's_mul_i32 s{sKVo}, s{sHead}, 163840', f's_mul_i32 s{sT0}, s{sG}, 1280', f's_add_u32 s{sKVo}, s{sKVo}, s{sT0}', f's_add_u32 s{sKVo}, s{sKVo}, {WS_KV}')
    a(f's_add_u32 s{sMK}, s{sT0}, {L_K}', f's_mul_i32 s{sMV}, s{sG}, 1312', f's_add_u32 s{sMV}, s{sMV}, {L_V}')
    emit(kv(2))
    a.srd(W2, 16, 1728 * 1280)
    a.srd(WO, 8, 640 * 1280)
    a(f's_mul_i32 s{sR2}, s{sRG}, 27', f's_lshr_b32 s{sR2}, s{sR2}, 5')
    a(f's_mul_i32 s{sT0}, s{sG}, 27', f's_add_u32 s{sT0}, s{sT0}, s{sR2}', f's_mul_i32 s{sW2}, s{sT0}, {16*1280}', f's_and_b32 s69, s{sRG}, {OPT.get("sw", 1)}')
    a(f's_lshl1_add_u32 s{sWo}, s{sG}, s69', f's_xor_b32 s68, s{sWo}, 1', f's_mul_i32 s{sWo}, s{sWo}, {80*1280}', f's_mul_i32 s68, s68, {80*1280}')
    a(f's_mul_i32 s{sH0}, s{sRow}, {108*1024}', f's_lshl_b32 s{sT0}, s{sT0}, 10', f's_add_u32 s{sH0}, s{sH0}, s{sT0}', f's_add_u32 s{sH0}, s{sH0}, {WS_H}',
      f's_cmp_eq_u32 s{sOwn}, 0', CSEL(sH1, 108 * 1024, -108 * 1024))
    a(f's_lshl_b32 s{sT3}, s{sRB}, 1', f's_add_u32 s{sT3}, s{sT3}, s{sOwn}', f's_lshl_b32 s{sT3}, s{sT3}, 4', f's_add_u32 s{sT3}, s{sT3}, s{sCG}', f's_lshl_b32 s{sT3}, s{sT3}, 7',
      f's_lshl_b32 s{sT1}, s{sKH}, 2', f's_add_u32 s{sT3}, s{sT3}, s{sT1}', f's_add_u32 s{sT3}, s{sT3}, {WS_FH}', f'v_mov_b32 v{tmp+1}, s{sTag}',
      f'v_min_u32 v{tmp}, 27, v0', f'v_and_b32 v1, 1, v{tmp}', 'v_lshlrev_b32 v1, 2, v1', f'v_lshrrev_b32 v{tmp}, 1, v{tmp}', f'v_lshl_add_u32 v1, v{tmp}, 7, v1')
    a(f'v_add_u32 v{tmp+2}, s{sReg}, v{vL16}', 's_bitcmp1_b32 s2, 0', CSEL(sT0, 20480, 30720), f's_xor_b32 s{sT1}, s{sG}, 1', f's_mul_i32 s{sT1}, s{sT1}, s{sT0}',
      f'v_add_u32 v{tmp+3}, s{sT1}, v{vL16}', f'v_xor_b32 v{tmp+4}, 64, v{vRes}', 's_setprio 0')
    vm0 = list(a.vm)
    a('s_bitcmp1_b32 s2, 0', 's_cbranch_scc1 L_p2_2')

    def phase2(NT):
        PITCH, STEP, NPAIR = 64 * NT, 1024 * NT, 27 * NT
        a.label(f'L_p2_{NT}')
        a.vm = list(vm0)
        b0 = OPT.get('b0')
        bcnt = [1]
        def barB():
            c = bcnt[0]; bcnt[0] += 1
            rec = b0 is not None and b0 <= c < b0 + 6
            if rec:
                a.lock = None; a.stamp(2 + 2 * (c - b0))
            bar()
            if rec:
                a.stamp(3 + 2 * (c - b0))
            if b0 is not None:
                a.lock = tuple(range(2, 14))
        if b0 is not None:
            a.lock = tuple(range(2, 14))
        def wrap(d, base, st, scale):
            return [f's_cmp_ge_u32 s{sR2}, {27-st}', f's_cselect_b32 s{d}, {27*scale}, 0', f's_sub_u32 s{d}, s{base}, s{d}', f's_add_u32 s{d}, s{d}, {st*scale}']
        def stage(srd, pre, voff, tg):
            assert 'm0' not in pre[-1]
            return [(pre if i == 0 else [], f'buffer_load_dwordx4 v{voff+i}, s[{srd}:{srd+3}], s{sT0} offen offset:{1024*i} lds', tg, False) for i in range(NT)]
        slotm0 = lambda slot: [f's_add_u32 m0, s{sReg}, {slot*STEP}']
        def f2B(st):
            return stage(W2, slotm0(st % 4) + wrap(sT0, sW2, st, 16 * 1280), vW, ('fb', st))
        def f2A(st):
            return [(wrap(sT1, sH0, st, 1024), f'buffer_load_dwordx4 {v(AF[st%4],4)}, v{vL16}, {WS}, s{sT1} offen sc1', ('fa', st), False),
                    ([f's_add_u32 s{sT1}, s{sT1}, s{sH1}'], f'buffer_load_dwordx4 {v(AF[st%4]+4,4)}, v{vL16}, {WS}, s{sT1} offen sc1', ('fa', st), False)]
        def wo(slot):
            gl, i = divmod(slot, 5)
            return stage(WO, slotm0(slot) + [f's_add_u32 s{sT0}, s{68 if gl else sWo}, {(20*i if i < 4 else 0)*1280}'], vW if i < 4 else vWr, ('wo', slot))

        barB()
        emit(kv(3) + f2B(0))
        a.wait_vm('hst')
        a('s_mov_b64 exec, 1')
        a.vmem(f'buffer_store_dword v{tmp+1}, v1, {WS}, s{sT3} offen sc1', 'flag')
        a(FULL)
        a.stamp(6)
        a(f's_lshl_b32 s{sT3}, s{sRG}, 11', f's_add_u32 s{sT3}, s{sT3}, {WS_FH}', f's_mov_b32 s{sT2}, {SPIN}')
        a.wait_vm(('kv', 2))
        barB()
        emit(kv(4) + f2B(1) + f2B(2) + wo(4))
        if NT == 2:
            a.srd(RES, 4, 2621440)
            emit(stage(RES, [f's_lshl_b32 s{sT0}, s{sG}, 11', f's_add_u32 m0, s{sT0}, {L_XR}', f's_lshl2_add_u32 s{sT0}, s{sRG}, s{sG}', f's_mul_i32 s{sT0}, s{sT0}, {16*1280}'], vW, 'xr'))
            a.srd(RES, 18, 1280)
            emit(stage(RES, [f's_mov_b32 m0, {L_B2}', f's_mov_b32 s{sT0}, 0'], vW, 'xr')[:1])
        else:
            a(f's_cmp_eq_u32 s{sKH}, 0', f's_cselect_b32 s{RES}, s4, s18', f's_cselect_b32 s{RES+1}, s5, s19', CSEL(RES + 2, 2621440, 1280), f's_mov_b32 s{RES+3}, 0x00020000')
        poll2 = f'buffer_load_dword v{tmp}, v1, {WS}, s{sT3} offen sc1'
        a.vmem(poll2, 'poll')
        a.wait_vm(('kv', 3))
        barB()
        a('s_setprio 3')
        a.label(f'L_poll2_{NT}')
        a('s_waitcnt vmcnt(0)', f'v_cmp_ne_u32 vcc, s{sTag}, v{tmp}', 's_nop 1', 's_cmp_eq_u64 vcc, 0', f's_cbranch_scc1 L_poll2x_{NT}',
          f's_sub_u32 s{sT2}, s{sT2}, 1', f's_cbranch_scc1 L_poll2x_{NT}', backoff('s2'), poll2, f's_branch L_poll2_{NT}')
        a.label(f'L_poll2x_{NT}')
        jitter()
        a.vm = []
        a.stamp(7)
        a('s_setprio 0')
        emit(f2A(0) + kv(5) + f2A(1) + f2A(2) + wo(5))
        rsoff = [f's_lshl_b32 s{sT0}, s{sRG}, 10', f's_lshl4_add_u32 s{sT0}, s{sOwn}, s{sT0}', f's_add_u32 s{sT0}, s{sT0}, {WS_RS}']
        rsld = f'buffer_load_dwordx2 {v(vR2,2)}, v{vR2+3}, {WS}, s{sT0} offen offset:8 sc1'
        a(rsoff)
        a.vmem(rsld, 'res')

        LATE = NT == 3 and OPT.get('late', 0)
        def tr(b, c, base):
            ad, off = (vTr, base + 64 * c) if NT == 3 else (vTr2 if c else vTr, base)
            return [f'ds_read_b64_tr_b16 {v(BF[b],2)}, v{ad} offset:{off}', f'ds_read_b64_tr_b16 {v(BF[b]+2,2)}, v{ad} offset:{off+8*PITCH}']
        fq = []
        def need(tg):
            assert all(f[2] != tg for f in fq), tg
            a.wait_vm(tg)
        def f2tr(p):
            if p < NPAIR:
                st, c = divmod(p, NT)
                if c == 0:
                    need(('fb', st))
                a(tr(p % 3, c, (st % 4) * STEP))
        def f2_pairs(ps):
            for p in ps:
                st, c = divmod(p, NT)
                if c == 0:
                    if st + 3 < 27:
                        fq.extend(f2B(st + 3) + f2A(st + 3))
                    elif LATE:
                        fq.extend(wo((st - 1) % 4))
                    need(('fa', st))
                for t in range(2):
                    if t == 0:
                        a(f's_waitcnt lgkmcnt({2 if p + 1 < NPAIR else 0})')
                    a(M16(acc + 48 * t + 16 * c, BF[p % 3], AF[st % 4] + 4 * t, '0' if st == 0 else None))
                    if t == 0:
                        f2tr(p + 2)
                    n = -(-len(fq) // (2 * NT - 1))
                    emit(fq[:n]); del fq[:n]
        f2tr(0); f2tr(1)
        P3 = OPT.get(f'p3{NT}', 0)
        f2_pairs(range(P3))
        barB()
        E = 15 if LATE else OPT.get(f'ex{NT}', 14 if NT == 3 else 13)
        res, p = AF[0], P3
        for c in range(4, 16):
            if c + 2 < 16:
                fq.extend(kv(c + 2))
            if c in (6, 9, 12):
                fq.extend(wo(6 + (c - 6) // 3))
            if c == 14 and LATE:
                fq.extend(wo(9))
            if c <= E:
                left = E - c + OPT.get('lastw', 50 if LATE else 70) / 100
                n = NPAIR - p if c == E else round((NPAIR - p) / left)
                f2_pairs(range(p, p + n)); p += n
            if c == E and LATE:
                emit(fq + wo(2)); del fq[:]
                for gi in range(6):
                    a.vmem(f'buffer_load_dwordx4 {v(res+4*gi,4)}, v{vRes}, s[{RES}:{RES+3}], 0 offen offset:{32*gi}', 'res')
            elif c == E:
                emit(fq); del fq[:]
                a('s_nop 7', 's_nop 3')
                for i in range(4 * NT):
                    a(f'ds_write_b128 v{tmp+2}, {v(acc+48+4*i,4)} offset:{1024*i}')
                a('s_waitcnt lgkmcnt(0)')
            if c == E + 1:
                for i in range(4 * NT):
                    a(f'ds_read_b128 {v(acc+48+4*i,4)}, v{tmp+3} offset:{1024*i}')
                if NT == 2:
                    for gi in range(4):
                        a(f'ds_read_b128 {v(res+4*gi,4)}, v{tmp+4 if gi >= 2 else vRes} offset:{32*(gi&1)}')
                else:
                    for gi in range(6):
                        a.vmem(f'buffer_load_dwordx4 {v(res+4*gi,4)}, v{vRes}, s[{RES}:{RES+3}], 0 offen offset:{32*gi}', 'res')
            if c == max(E + 1, 14):
                fq.extend(wo(9))
            if c == E + 2:
                fq.extend(wo(0) + wo(1) + wo(2) + wo(3))
            if c > E:
                emit(fq); del fq[:]
                a('s_waitcnt lgkmcnt(0)')
            need(('kv', c + 1))
            if c == 10: a.stamp(8)
            barB()
            if c == 10: a.stamp(9)
        assert p == NPAIR
        if E == 14:
            emit(wo(0) + wo(1) + wo(2) + wo(3))
        OF = acc + 48
        assert OF + 80 <= tmp
        sO0, sO1, OUT = sH0, sH1, W2
        a.srd(OUT, 20, 2621440)
        a(f's_mul_i32 s{sO0}, s{sRow}, 40960', f's_add_u32 s{sO0}, s{sO0}, {WS_O}', f's_lshl_b32 s{sT0}, s{sKH}, 12', f's_add_u32 s{sO1}, s{sO0}, s{sT0}',
          f's_add_u32 s{sO1}, s{sO1}, 32768', f's_lshl_b32 s{sT0}, s{sKH}, 14', f's_add_u32 s{sO0}, s{sO0}, s{sT0}')
        a(f's_lshl_b32 s{sT3}, s{sRow}, 12', f's_lshl_b32 s{sT0}, s{sKH}, {11-FOS}', f's_add_u32 s{sT3}, s{sT3}, s{sT0}', f's_add_u32 s{sT3}, s{sT3}, {WS_FO}', f's_mov_b32 s{sT2}, {SPIN}')
        for k in range(4):
            a(f's_xor_b32 s{sT0}, s69, {k}', f's_lshl_b32 s{sT0}, s{sT0}, 10', f's_add_u32 s{RES+k}, s{sO1}, s{sT0}', f's_lshl2_add_u32 s{WO+k}, s{sT0}, s{sO0}')
        a(f's_add_u32 s67, s{sCol}, {32*1280}', f's_mul_i32 s43, s{sOwn}, {10*STEP}', f's_mul_i32 s44, s{sG}, 10240', f's_add_u32 s44, s44, {L_FX}',
          f's_xor_b32 s45, s{sG}, 2', f's_mul_i32 s45, s45, 10240', f's_add_u32 s45, s45, {L_FX}')
        a(rsoff)
        a.label(f'L_rs{NT}')
        a.drain_vm()
        a(f'v_cmp_ne_u32 vcc, s{sTag}, v{vR2+1}', f's_cbranch_vccz L_rsx{NT}', f's_sub_u32 s{sT2}, s{sT2}, 1', f's_cbranch_scc1 L_rsx{NT}', rsld, f's_branch L_rs{NT}')
        a.label(f'L_rsx{NT}')
        jitter()
        a(f's_mov_b32 s{sT2}, {SPIN}')
        a.stamp(10)
        bar()
        poll3 = f'buffer_load_dword v{tmp}, v1, {WS}, s{sT3} offen sc1'
        a(f'v_bfe_u32 v1, v0, {FOS}, {4-FOS}', 'v_lshlrev_b32 v1, 7, v1', f'v_and_b32 v{tmp}, {(1<<FOS)-1}, v0', f'v_lshl_add_u32 v1, v{tmp}, 2, v1', poll3)
        if LATE:
            a(f's_xor_b32 s46, s{sG}, 1', 's_mul_i32 s46, s46, 10240', f's_add_u32 s46, s46, {L_FX}', f'v_add_u32 v{tmp+2}, s44, v{vL16}', f'v_add_u32 v{tmp+3}, s46, v{vL16}')
            for i in range(10):
                a(f'ds_write_b128 v{tmp+2}, {v(acc+48+4*i,4)} offset:{1024*i}')
            a('s_waitcnt lgkmcnt(0)', 's_barrier')
            for i in range(10):
                a(f'ds_read_b128 {v(acc+48+4*i,4)}, v{tmp+3} offset:{1024*i}')
            for i in range(2):
                a(f'ds_write_b128 v{tmp+3}, {v(acc+88+4*i,4)} offset:{1024*i}')
            a('s_waitcnt lgkmcnt(0)', 's_barrier')
            for i in range(2):
                a(f'ds_read_b128 {v(acc+88+4*i,4)}, v{tmp+2} offset:{1024*i}')
        a(f'v_subrev_u32 v{vTr}, s43, v{vTr}', f'v_subrev_u32 v{vTr2}, s43, v{vTr2}', f'v_add_u32 v{tmp+2}, s44, v{vL16}', f'v_add_u32 v{tmp+3}, s45, v{vL16}', f'v_mul_f32 v{vR2}, v{vR2}, v{vR2}')
        for j in range(8 * NT):
            if LATE and j == 20:
                a('s_waitcnt lgkmcnt(0)')
            a(f'v_pk_add_f32 {v(acc+2*j,2)}, {v(acc+2*j,2)}, {v(acc+48+2*j,2)}', f'v_lshlrev_b32 v{vR2+1}, 16, v{res+j}', f'v_and_b32 v{vR2+2}, 0xffff0000, v{res+j}',
              f'v_fma_f32 v{acc+2*j}, v{acc+2*j}, v{vR2}, v{vR2+1}', f'v_fma_f32 v{acc+2*j+1}, v{acc+2*j+1}, v{vR2}, v{vR2+2}')
        TWO = OPT.get(f'two{NT}', 0)
        ORD = (0, 2, 1, 3) if TWO else (0, 1, 2, 3)
        pos = lambda i: (5 * ORD[i // 5] + i % 5) * STEP
        def oload(i):
            k, j = ORD[i // 5], i % 5
            if j < 4:
                a.vmem(f'buffer_load_dwordx4 {v(OF+4*i,4)}, v{vL16}, {WS}, s{WO+k} offen offset:{j*1024} sc1', ('o', i))
            else:
                a.vmem(f'buffer_load_dwordx2 {v(OF+4*i,2)}, v{vL8}, {WS}, s{RES+k} offen sc1', ('o', i))
                a.vmem(f'buffer_load_dwordx2 {v(OF+4*i+2,2)}, v{vL8}, {WS}, s{RES+k} offen offset:512 sc1', ('o', i))
        def flags(lab, mask):
            a.label(f'L_p{lab}')
            a('s_waitcnt vmcnt(0)', f'v_cmp_ne_u32 vcc, s{sTag}, v{tmp}', 's_nop 1', f's_and_b32 s{sT0}, vcc_lo, {hex(mask)}', f's_cbranch_scc0 L_g{lab}',
              f's_sub_u32 s{sT2}, s{sT2}, 1', f's_cbranch_scc1 L_g{lab}', backoff('s3'), poll3, f's_branch L_p{lab}')
            a.label(f'L_g{lab}')
            a.vm = []
        LA = 10 if TWO else OPT.get('la', 8)
        a(f's_cmp_eq_u32 s{sKH}, 0', f's_cbranch_scc0 L_hi{NT}')
        lo, hi = tuple(range(NT - 1)), (NT - 1,)
        for nm, send, keep in (('lo', hi, lo), ('hi', lo, hi)):
            nm = f'{nm}{NT}'
            page(f'L_{nm}', 900 * NT, nm[0] == 'l')
            seq = [(i, c) for i in range(20) for c in send + keep]
            for q in range(3):
                a(tr(q, seq[q][1], pos(seq[q][0])))
            flags('a' + nm, 0x0f0f if TWO else 0xffff)
            a.stamp(11)
            for i in range(LA):
                oload(i)
            if TWO:
                a.vmem(poll3, 'poll')
                a(f's_mov_b32 s{sT2}, {SPIN}')
            nl = LA
            for q, (i, c) in enumerate(seq):
                if q % NT == 0:
                    if TWO and i == TWO:
                        flags('b' + nm, 0xf0f0)
                        for _ in range(OPT.get('lb', 4)):
                            oload(nl); nl += 1
                    a.wait_vm(('o', i))
                a(f's_waitcnt lgkmcnt({2*min(2, len(seq)-1-q)})', M16(acc + 16 * c, BF[q % 3], OF + 4 * i))
                if q + 3 < len(seq):
                    a(tr(q % 3, seq[q + 3][1], pos(seq[q + 3][0])))
                if q % NT < 2 and nl < 20 and i >= TWO:
                    oload(nl); nl += 1
            a.stamp(12)
            jitter()
            a(f's_nop {11 - 2*(NT-1)}')
            for k, c in enumerate(send):
                for i in range(4):
                    a(f'ds_write_b128 v{tmp+2}, {v(acc+16*c+4*i,4)} offset:{4096*k+1024*i}')
            a('s_waitcnt lgkmcnt(0)', 's_barrier')
            for k, c in enumerate(keep):
                for i in range(4):
                    a(f'ds_read_b128 {v(OF+16*k+4*i,4)}, v{tmp+3} offset:{4096*k+1024*i}')
            for k, c in enumerate(keep):
                r = acc + 16 * c
                for hf in range(2):
                    a(f's_waitcnt lgkmcnt({4*(len(keep)-1-k) + 2*(1-hf)})')
                    for e in range(8 * hf, 8 * hf + 8, 2):
                        a(f'v_pk_add_f32 {v(r+e,2)}, {v(r+e,2)}, {v(OF+16*k+e,2)}')
                    for e in range(4):
                        a(CVT(r + 8 * hf + e, r + 8 * hf + 2 * e))
                a('s_nop 1')
                for e in range(4):
                    a(f'v_permlane16_swap_b32 v{r+e}, v{r+8+e}')
                a(f'buffer_store_dwordx4 {v(r,4)}, v{vOut}, s[{OUT}:{OUT+3}], s{sCol} offen offset:{64*c} sc1', f'buffer_store_dwordx4 {v(r+8,4)}, v{vOut}, s[{OUT}:{OUT+3}], s67 offen offset:{64*c} sc1')
            if nm == 'hi3':
                a(f's_or_b32 s{sT0}, s2, s{sOwn}', 's_cbranch_scc1 L_noep')
                a(f'v_mov_b32 v1, s{sTag}', f'v_mov_b32 v{tmp}, 0', f's_mov_b32 s{sT0}, {WS_EP}', 's_mov_b64 exec, 1', f'buffer_store_dword v1, v{tmp}, {WS}, s{sT0} offen sc1')
                a.label('L_noep')
            if Asm.diag:
                a.stamp(13)
                a('s_waitcnt vmcnt(0)')
                a.dump(0, sW, 24)
            a('s_endpgm')

    phase2(3)
    phase2(2)
    a.label('L_done')
    a('s_endpgm')
    return kernel_header(name, OPT.get('al', 1) >= 1) + a.text(), kernel_desc(name, 168, 102 if OPT.get('jit') else 70)
```

```python
from asmlib import *
import struct, math

def fbits(x):
    return hex(struct.unpack('<I', struct.pack('<f', x))[0])

WS_Q   = 0x000000
WS_KV  = 0x280000
WS_H   = 0x780000
WS_O   = 0xE40000
WS_RS  = 0x10C0000
WS_CS  = 0x10C8000
WS_F1  = 0x10D0000
WS_FH  = 0x10E0000
WS_FO  = 0x1100000
WS_EP  = 0x1140000
WS_END = 0x1141000

L_V = 122368
L_K = 143360
L_MEAN, L_ISTD, L_RSTD = 158720, 159232, 159744
L_TAG = 160256
L_Q0, L_Q1 = 114688, 161024
L_XR, L_B2 = 81920, 90112
L_FX = 122880
LDS_BYTES = 163840
FAR = 0x30000

QSCALE = 20 ** -0.5 * math.log2(math.e)
MAXOFF = 96.0
SPIN = 0x100000
OPT = {}

sW, sRB, sCG, sHead, sQB, sTag, sT0, sT1, sT2, sT3 = range(28, 38)
WS = 's[24:27]'


def gen(name):
    a = Asm()
    NA, NB, NE = 5, 4, OPT.get('ne', 3)
    L_A, L_B = 16384 * NB, 0
    SP = OPT.get('sp', 5)
    JOBS = [('Q', c) for c in range(SP)] + [('F', c) for c in range(SP - NE, SP)] + [('Q', c) for c in range(SP, 10)] + [('F', c) for c in range(5, 15 - NE)]
    REL = list(range(SP - NE)) + list(range(SP, 5))
    kof = lambda c: c if c < 10 else REL[c - 10]
    slotA = lambda c: (c + NE - 2) % NA
    slotB = lambda j: j % NB
    QE = 10 + NE
    KVB = 17
    SKIP = {0: (QE + 1, QE + 3), 1: (), 2: (QE + 1,), 3: (QE + 1, QE + 3, QE + 5), 4: (QE + 1, QE + 2), 5: (QE + 2, QE + 3)}[OPT.get('skip', 4)]
    def pbar(c):
        if c not in SKIP:
            bar()
    bar = lambda: a('s_barrier')

    a.c('One launch, 256 workgroups of 12 waves. Phase 1: x @ [wqkv | w1] on raw x with the LayerNorm applied as a rank-2 correction')
    a.c('(-mean x column sum, std x bias) and a per-row scale. Phase 2: attention for one head x 256 queries (waves 0..7) while waves 8..11')
    a.c('stream K/V and run the second FFN GEMM. Last stage: output projection into the same accumulators, residual, store.')
    a.c('Hand-offs between workgroups go through d_ws with write-through stores; flags and statistics carry a tag that differs from')
    a.c("the previous launch's tag.")
    a('s_cmp_ge_u32 s2, 256', 's_cbranch_scc1 L_done')
    a.stamp(0); a.stamp(1, True)
    KA = OPT.get('ka', 0)
    rest = ['s_load_dwordx2 s[8:9], s[0:1], 16', 's_load_dwordx8 s[12:19], s[0:1], 32', 's_load_dwordx2 s[20:21], s[0:1], 64', 's_load_dwordx2 s[22:23], s[0:1], 80']
    a('s_load_dwordx4 s[4:7], s[0:1], 0', [] if KA else rest)
    a('v_lshrrev_b32 v1, 6, v0', 'v_and_b32 v0, 63, v0', f'v_readfirstlane_b32 s{sW}, v1')
    if OPT.get('map', 4) == 0:
        a(f's_bfe_u32 s{sT2}, s2, 0x20001', f's_lshr_b32 s{sCG}, s2, 6', f's_lshl2_add_u32 s{sCG}, s{sT2}, s{sCG}',
          f's_bfe_u32 s{sT1}, s2, 0x30003', f's_and_b32 s{sT3}, s2, 1', f's_lshl3_add_u32 s{sRB}, s{sT3}, s{sT1}')
    else:
        T = [[(0, 1, 2, 3), (8, 9, 10, 15), (4, 5, 6, 7), (11, 12, 13, 14)], [(8, 9, 10, 15), (0, 1, 2, 3), (11, 12, 13, 14), (4, 5, 6, 7)],
             [(0, 1, 2, 13), (8, 9, 10, 15), (4, 5, 6, 7), (11, 12, 3, 14)], [(0, 1, 2, 14), (8, 9, 10, 15), (4, 5, 6, 13), (11, 12, 3, 7)],
             [(0, 5, 6, 10), (2, 8, 12, 15), (1, 4, 7, 11), (3, 9, 13, 14)]][OPT.get('map', 4) - 1]
        w = lambda q: hex(sum(c << (4 * i) for i, c in enumerate(T[q] + T[q + 1])))
        a(f's_and_b32 s{sT2}, s2, 3', f's_lshr_b32 s{sCG}, s2, 6', f's_lshl2_add_u32 s{sCG}, s{sT2}, s{sCG}', f's_lshl_b32 s{sCG}, s{sCG}, 2',
          f's_bitcmp0_b32 s2, 1', CSEL(sT0, w(0), w(2)), f's_lshr_b32 s{sCG}, s{sT0}, s{sCG}', f's_and_b32 s{sCG}, s{sCG}, 15',
          [f's_bfe_u32 s{sT0}, s2, {hex(0x10000 + OPT.get("swp", 3))}', f's_lshl_b32 s{sT0}, s{sT0}, 3', f's_and_b32 s{sT1}, s{sCG}, 7', f's_cmp_eq_u32 s{sT1}, 7', f's_cselect_b32 s{sT0}, s{sT0}, 0',
           f's_xor_b32 s{sCG}, s{sCG}, s{sT0}'] if OPT.get('swp', 3) else [],
          f's_bfe_u32 s{sT1}, s2, 0x30003', f's_bfe_u32 s{sT3}, s2, 0x10002', f's_lshl3_add_u32 s{sRB}, s{sT3}, s{sT1}')
    a(f's_cmp_lt_u32 s{sW}, 4', 's_cbranch_scc1 L_x', f's_cmp_ge_u32 s{sW}, 8', 's_cbranch_scc1 L_helper')
    def decode2():
        a(f's_and_b32 s{sHead}, s2, 7', f's_bfe_u32 s{sQB}, s2, 0x20003', f's_lshl2_add_u32 s{sHead}, s{sHead}, s{sQB}', f's_lshr_b32 s{sQB}, s2, 5')

    jn = [0]
    def jitter():
        if not OPT.get('jit'):
            return
        jn[0] += 1
        a(f's_mul_i32 s100, s2, {37 + 2 * jn[0] * OPT["jit"]}', f's_mul_i32 s101, s{sW}, {11 + 6 * jn[0]}', 's_add_u32 s100, s100, s101', 's_lshr_b32 s100, s100, 2', 's_and_b32 s100, s100, 15')
        a.label(f'L_j{jn[0]}')
        a('s_sleep 6', 's_sub_u32 s100, s100, 1', f's_cbranch_scc0 L_j{jn[0]}')
    def page(label, nbytes, jump=True):
        if OPT.get('al', 1) >= 2:
            if jump:
                a(f's_branch {label}')
            a.raw(f'.p2align 12,,{nbytes}')
        a.label(label)
    def backoff(key):
        n = OPT.get(key, 0)
        return [f's_sleep {n}'] if n else []
    def ws_setup():
        a.srd(24, 22, WS_END)
    def lds_tag(t):
        a(f'v_mov_b32 v{t}, {L_TAG}', f'ds_read_b32 v{t}, v{t}', 's_waitcnt lgkmcnt(0)', f'v_readfirstlane_b32 s{sTag}, v{t}')
    def f1_off(d, t, n, m):
        a(f's_lshl_b32 s{d}, s{sCG}, 1', f's_add_u32 s{d}, s{d}, s{n}', f's_lshl_b32 s{d}, s{d}, 10', f's_lshr_b32 s{t}, s{sRB}, 1', f's_lshl_b32 s{t}, s{t}, 7',
          f's_add_u32 s{d}, s{d}, s{t}', f's_add_u32 s{d}, s{d}, {WS_F1}')
        if m is not None:
            a(f's_and_b32 s{t}, s{sRB}, 1', f's_lshl_b32 s{t}, s{t}, 1', f's_add_u32 s{t}, s{t}, s{m}', f's_lshl_b32 s{t}, s{t}, 2', f's_add_u32 s{d}, s{d}, s{t}')

    SD = 48
    SX = 122

    sL, sOA, sOB, sSlot, sMA, sMB, sCnt, sBstep = range(40, 48)
    XA, WB = 48, 52
    vA1, vB1, vB2 = 8, 12, 16
    vA2 = vA1
    sRot, sRB1 = 47, 46
    a.c('waves 4..7: stream activation and weight chunks into the LDS rings')
    a('s_setprio 3', f's_and_b32 s{sL}, s{sW}, 3')
    if 'rw' not in OPT:
        a(f's_lshl1_add_u32 s{sRot}, s{sT2}, s{sT1}', f's_mul_i32 s{sRot}, s{sRot}, 5', f's_lshl1_add_u32 s{sRot}, s{sT3}, s{sRot}', f's_lshr_b32 s{sRot}, s{sRot}, 2',
          f's_cmp_ge_u32 s{sRot}, 10', f's_cselect_b32 s{sT0}, 10, 0', f's_sub_u32 s{sRot}, s{sRot}, s{sT0}')
    else:
        wr, wc, wh, wp = [(5, 20, 2, 5), (5, 4, 2, 10), (5, 10, 2, 3), (5, 2, 2, 10), (2, 2, 20, 10), (3, 0, 20, 10), (5, 0, 2, 0), (10, 0, 5, 10),
                          (20, 0, 10, 10), (20, 0, 10, 5), (10, 0, 5, 20), (10, 2, 5, 10), (13, 0, 7, 10), (10, 0, 0, 10), (10, 20, 5, 10)][OPT['rw']]
        a(f's_mul_i32 s{sRot}, s{sT1}, {wr}', f's_lshr_b32 s{sT0}, s2, 6', f's_mul_i32 s{sT0}, s{sT0}, {wc}', f's_add_u32 s{sRot}, s{sRot}, s{sT0}', f's_mul_i32 s{sT0}, s{sT3}, {wh}',
          f's_add_u32 s{sRot}, s{sRot}, s{sT0}', f's_mul_i32 s{sT0}, s{sT2}, {wp}', f's_add_u32 s{sRot}, s{sRot}, s{sT0}', f's_lshr_b32 s{sRot}, s{sRot}, 2',
          f's_mul_i32 s{sT0}, s{sRot}, 26', f's_lshr_b32 s{sT0}, s{sT0}, 8', f's_mul_i32 s{sT0}, s{sT0}, 10', f's_sub_u32 s{sRot}, s{sRot}, s{sT0}')
    a('v_lshrrev_b32 v1, 3, v0', 'v_lshrrev_b32 v2, 4, v0', 'v_and_b32 v3, 7, v0', 'v_xor_b32 v3, v3, v2')
    a(f's_lshr_b32 s{sT0}, s{sL}, 1', f's_lshl1_add_u32 s{sT0}, s{sRB}, s{sT0}', f's_lshl_b32 s{sT0}, s{sT0}, 6', f's_and_b32 s{sT1}, s{sL}, 1', f's_add_u32 s{sT0}, s{sT0}, s{sT1}',
      f's_mul_i32 s{sOA}, s{sT0}, 10', f's_add_u32 s{sOA}, s{sOA}, s{sRot}', f's_lshl_b32 s{sOA}, s{sOA}, 7', f's_lshl_b32 s{sT1}, s{sT1}, 2')
    a(f'v_xor_b32 v3, s{sT1}, v3', 'v_mul_u32_u24 v5, 0xa0, v1', 'v_xor_b32 v4, 4, v3', f'v_add_lshl_u32 v{vA1}, v5, v3, 4', 'v_add_lshl_u32 v4, v5, v4, 4')
    a(f'v_add_u32 v{vA1+1}, {20480-1024}, v4', f'v_add_u32 v{vA1+2}, {2*(20480-1024)}, v{vA1}', f'v_add_u32 v{vA1+3}, {3*(20480-1024)}, v4')
    sCL = 45
    a(f's_cmp_lt_u32 s{sCG}, 15', f's_cselect_b32 s{XA+2}, 2621440, 0', f's_cselect_b32 s{sCL}, s{sCG}, s{sRB}', f's_mov_b32 s{XA+3}, 0x00020000', f's_lshl_b32 s{sMA}, s{sL}, 12')
    def koff(k, base, scale):
        if k == 0:
            return [f's_mov_b32 s{sT0}, s{base}']
        return [f's_cmp_ge_u32 s{sRot}, {10-k}', f's_cselect_b32 s{sT0}, {10*scale}, 0', f's_sub_u32 s{sT0}, s{base}, s{sT0}', f's_add_u32 s{sT0}, s{sT0}, {scale*k}']
    WF = 56
    firstA = {}
    lastA = {}
    for j, (t, c) in enumerate(JOBS):
        firstA.setdefault(c, j); lastA[c] = j
    def ldA(c, lo=0, hi=4):
        a(f's_add_u32 m0, s{sMA}, {L_A + slotA(c) * 16384}', koff(kof(c), sOA, 128))
        for i in range(lo, hi):
            a.vmem(f'buffer_load_dwordx4 v{vA1+i}, s[{XA}:{XA+3}], s{sT0} offen offset:{1024*i} lds', ('c', firstA[c]))
    SUMS = [('Q', c) for c in range(10)] + [('F', c) for c in range(10)]
    def ldB(j, lo=0, hi=4, JOBS=JOBS):
        q = JOBS[j][0] == 'Q'
        a(f's_add_u32 m0, s{sMA}, {L_B + slotB(j) * 16384}', koff(kof(JOBS[j][1]), sOB if q else sRB1, 64 * (3840 if q else 3456)))
        for i in range(lo, hi):
            d = WB if q else WF
            a.vmem(f'buffer_load_dwordx4 v{(vB1 if q else vB2)+i}, s[{d}:{d+3}], s{sT0} offen offset:{1024*i} lds', ('c', j))

    a.vm = []
    a('s_waitcnt lgkmcnt(0)', f's_mov_b32 s{XA}, s4', f's_mov_b32 s{XA+1}, s5')
    if OPT.get('zst'): a.stamp(4)
    ldA(0)
    a(rest if KA else [])
    a('v_and_b32 v6, 15, v0', 'v_lshlrev_b32 v7, 2, v2', 'v_xor_b32 v6, v6, v7', 'v_mul_u32_u24 v7, 0xf0, v2', f'v_add_lshl_u32 v{vB1}, v7, v6, 4')
    for i in range(1, 4):
        a(f'v_add_u32 v{vB1+i}, {i*(4*3840-1024)}, v{vB1}')
    a(f's_lshl2_add_u32 s{sT1}, s{sRot}, s{sL}', f's_mul_i32 s{sOB}, s{sT1}, {16*3840}', f's_lshl_b32 s{sT2}, s{sCL}, 8', f's_add_u32 s{sOB}, s{sOB}, s{sT2}',
      f's_cmp_lt_u32 s{sCL}, 15', f's_cselect_b32 s{WB+2}, {640*3840}, 0', f's_mov_b32 s{WB}, s6', f's_mov_b32 s{WB+1}, s7', f's_mov_b32 s{WB+3}, 0x00020000')
    a.label('L_p0')
    ldB(0)
    if OPT.get('zst'): a.stamp(5)
    ldA(1); ldB(1)
    if OPT.get('zst'):
        a.stamp(6); a('s_waitcnt vmcnt(8)'); a.stamp(7)
    a('s_setprio 0', 's_waitcnt lgkmcnt(0)')
    ws_setup()
    decode2()
    a(f's_mul_i32 s{sRB1}, s{sT1}, {16*3456}', f's_add_u32 s{sRB1}, s{sRB1}, s{sT2}', 'v_mul_u32_u24 v7, 0xd8, v2', f'v_add_lshl_u32 v{vB2}, v7, v6, 4')
    for i in range(1, 4):
        a(f'v_add_u32 v{vB2+i}, {i*(4*3456-1024)}, v{vB2}')
    a(f's_cmp_lt_u32 s{sCL}, 14', f's_cselect_b32 s{WF+2}, {640*3456}, 0', f's_mov_b32 s{WF}, s12', f's_mov_b32 s{WF+1}, s13', f's_mov_b32 s{WF+3}, 0x00020000')
    vm1 = list(a.vm)
    if OPT.get('so', 1):
        a(f's_cmp_eq_u32 s{sCG}, 15', 's_cbranch_scc1 L_z_sum')
    units = []
    for j in range(2, 20):
        c = JOBS[j][1]
        if firstA[c] == j:
            units.append((j, lastA[c - NA] + 1 if c >= NA else 0, 'A', c))
        units.append((j, j - NB + 1, 'B', j))
    c0 = OPT.get('c0', 99)
    bars = [c for c in range(20) if c not in SKIP]
    part = {}
    hold = {QE - 1: 0, QE + 3: OPT.get('b3', 2), QE + 4: OPT.get('b4', 3)}
    for n, c in enumerate(bars):
        nxt = bars[n + 1] if n + 1 < len(bars) else 20
        rec = c0 <= c < c0 + 4
        if c == 19:
            break
        if rec: a.stamp(2 + 3 * (c - c0))
        assert all(u[0] >= nxt for u in units), (c, units[:2])
        a.wait_vm(*[('c', x) for x in range(c, nxt)])
        if rec: a.stamp(3 + 3 * (c - c0))
        if OPT.get('zst') and c == 0:
            a.stamp(8); a.lock = (7, 8)
        bar()
        if rec: a.stamp(4 + 3 * (c - c0))
        nn = bars[n + 2] if n + 2 < len(bars) else 20
        must = max(nn, c + 3) if c < QE else nn
        budget = OPT.get('bq', 7) if c < QE else 4 * hold.get(c, 2 if nxt == c + 1 else 3)
        for u in list(units):
            if u[1] <= c and (budget > 0 or u[0] < must):
                lo = part.get(u, 0)
                hi = 4 if u[0] < must else min(4, lo + budget)
                if u[2] == 'A' and u[3] == 10:
                    a(f's_cmp_lt_u32 s{sCG}, 14', f's_cselect_b32 s{XA+2}, 2621440, 0')
                (ldA if u[2] == 'A' else ldB)(u[3], lo, hi); budget -= hi - lo; part[u] = hi
                if hi == 4:
                    units.remove(u)
                if Asm.diag: a.c(f'after P({c}): {u[2]}{u[3]} {lo}:{hi}')
    assert not units
    zvm = list(a.vm)
    a('s_branch L_attn_z')

    R = Regs(2)
    vH, vTok = R(), R()
    vAa = R(4); vBa = R(2)
    F = [(R(8), R(8)), (R(8), R(8))]
    FR = F[0][0]
    acc = R(64)
    tmp = R(16)
    vCx = tmp + 14
    sCs, sLd = 58, 59
    sM, sN, sDA, sDB, sSA, sSB = range(40, 46)
    sCntC = 55
    sOff, sHS, sScale = 52, 53, 54

    sMask = 69
    def gemm_setup(wave_base, j0, cnt, maybe_v):
        a(f's_sub_u32 s{sN}, s{sW}, {wave_base}', f's_and_b32 s{sM}, s{sN}, 1', f's_lshr_b32 s{sN}, s{sN}, 1')
        a(f'v_lshrrev_b32 v{vH}, 5, v0', f'v_and_b32 v{vTok}, 31, v0', f'v_mov_b32 v{tmp}, v{vTok}')
        if maybe_v:
            a(f's_cmp_lt_u32 s{sCG}, 10', 's_cbranch_scc1 L_x_rows', f'v_and_b32 v1, 1, v0', f'v_lshrrev_b32 v{tmp}, 1, v{vTok}', f'v_lshl_add_u32 v{tmp}, v1, 5, v{tmp}')
            a.label('L_x_rows')
        a(f'v_bfe_u32 v1, v{tmp}, 1, 3', f'v_xor_b32 v1, v1, v{vH}', f'v_lshrrev_b32 v{tmp+1}, 5, v{tmp}', f'v_lshlrev_b32 v{tmp+1}, 2, v{tmp+1}', f'v_xor_b32 v1, v1, v{tmp+1}')
        a(f's_lshl_b32 s{sT0}, s{sM}, 13', f's_add_u32 s{sT0}, s{sT0}, {L_A+16384*slotA(JOBS[j0][1])}', f'v_lshlrev_b32 v{tmp}, 7, v{tmp}', f'v_add_u32 v{tmp}, s{sT0}, v{tmp}')
        for st in range(4):
            a(f'v_xor_b32 v{tmp+1}, {2*st}, v1', f'v_lshl_add_u32 v{vAa+st}, v{tmp+1}, 4, v{tmp}')
        a('v_lshrrev_b32 v1, 2, v0', 'v_and_b32 v1, 3, v1')
        a(f'v_lshl_add_u32 v{tmp}, v{vH}, 3, v1', f'v_lshlrev_b32 v{tmp}, 8, v{tmp}')
        a(f'v_and_b32 v{tmp+1}, 3, v0', f'v_lshl_add_u32 v{tmp}, v{tmp+1}, 3, v{tmp}')
        a(f'v_and_b32 v{tmp+1}, 16, v0', f'v_lshl_add_u32 v{tmp}, v{tmp+1}, 1, v{tmp}', f'v_add_u32 v{tmp}, {L_B+16384*slotB(j0)}, v{tmp}')
        a(f's_lshl_b32 s{sT0}, s{sN}, 1', f's_add_u32 s{sT0}, s{sT0}, s{sM}', f'v_xor_b32 v1, s{sT0}, v1')
        a(f's_lshl_b32 s{sT0}, s{sT0}, 8', f'v_lshl_add_u32 v{vCx}, v{vTok}, 3, s{sT0}', f'v_xor_b32 v{vCx+1}, 256, v{vCx}',
          f's_lshl_b32 s{sCs}, s{sCG}, 10', f's_add_u32 s{sCs}, s{sCs}, {WS_CS + (16384 if wave_base else 0)}', f's_mov_b32 s{sLd}, -1')
        a(f'v_lshl_add_u32 v{vBa}, v1, 6, v{tmp}', 'v_xor_b32 v1, 1, v1', f'v_lshl_add_u32 v{vBa+1}, v1, 6, v{tmp}')
        a(f's_mov_b32 s{sSA}, {slotA(JOBS[j0][1])}', f's_mov_b32 s{sSB}, {slotB(j0)}', f's_mov_b32 s{sCntC}, {cnt}', f's_mov_b32 s{sMask}, 0')

    def zero_acc(lo, hi):
        for i in range(lo, hi, 2):
            a(f'v_mov_b64 {v(acc+i,2)}, 0')

    def reads(st, f, swap):
        FA, FB = F[f]
        return [f'ds_read_b128 {v(FA,4)}, v{vAa+st}',
                f'ds_read_b64_tr_b16 {v(FB,2)}, v{vBa} offset:{4096*st}',
                f'ds_read_b64_tr_b16 {v(FB+2,2)}, v{vBa} offset:{4096*st+1024}',
                f'ds_read_b64_tr_b16 {v(FB+4,2)}, v{vBa+1} offset:{4096*st}',
                f'ds_read_b64_tr_b16 {v(FB+6,2)}, v{vBa+1} offset:{4096*st+1024}',
                f'ds_read_b128 {v(FA+4,4)}, v{vAa+st} offset:2048' if swap else f'ds_read_b128 {v(FA+4,4)}, v{vAa+(st^2)} offset:4096']

    def mfmas(f, swap):
        FA, FB = F[f]
        out = []
        for t, u in ((0, 0), (0, 1), (1, 1), (1, 0)):
            x, w = FA + 4 * t, FB + 4 * u
            out.append(M16(acc + 32 * t + 16 * u, x, w) if swap else M16(acc + 32 * t + 16 * u, w, x))
            if OPT.get('abl16'):
                d = acc + 32 * t + 16 * u + 8 * f
                out[-1] = [f'v_mfma_f32_16x16x32_bf16 {v(d,4)}, {v(w,4)}, {v(x,4)}, {v(d,4)}', f'v_mfma_f32_16x16x32_bf16 {v(d+4,4)}, {v(x,4)}, {v(w,4)}, {v(d+4,4)}']
        return out

    CT, CF, CR = SX, SX + 4, SX + 8
    CS, vTg = [SX + 36, SX + 38], SX + 40
    csload = ['s_mov_b32 exec_hi, 0'] + [f'buffer_load_dwordx2 {v(CS[u],2)}, v{vCx+u}, {WS}, s{sCs} offen sc1' for u in range(2)] + ['s_mov_b32 exec_hi, -1']
    def colsum_setup():
        a(f'v_mov_b64 {v(CS[0],2)}, 0', f'v_mov_b64 {v(CS[1],2)}, 0', f'v_mov_b32 v{vTg}, {L_TAG}')
    def corr_split():
        out = []
        for t in range(2):
            out += [CVT(CT + 2 * t, CR + t, CR + t), CVT(CF + 2 * t, CS[t], CS[t])]
        for t in range(2):
            out += [f'v_and_b32 v{CR+4+t}, 0xffff0000, v{CT+2*t}', f'v_and_b32 v{CR+6+t}, 0xffff0000, v{CF+2*t}']
        for t in range(2):
            out += [f'v_sub_f32 v{CR+4+t}, v{CR+t}, v{CR+4+t}', f'v_sub_f32 v{CR+6+t}, v{CS[t]}, v{CR+6+t}']
        for t in range(2):
            out += [CVT(CT + 2 * t + 1, CR + 4 + t, CR + 4 + t), CVT(CF + 2 * t, CS[t], CR + 6 + t), CVT(CF + 2 * t + 1, CS[t], CR + 6 + t)]
        return out
    def corr_mfma(swap, c=None):
        out = []
        for t, u in ((0, 0), (0, 1), (1, 1), (1, 0)):
            x, w = CT + 2 * t, CF + 2 * u
            out.append(M8(acc + 32 * t + 16 * u, x, w, c) if swap else M8(acc + 32 * t + 16 * u, w, x, c))
        return out

    def mainloop(tagname, swap, pre_last, jp, jr, je, mid):
        a.label(f'L_ent_{tagname}')
        jitter()
        bar()
        a(reads(0, 0, swap))
        a.label(f'L_loop_{tagname}')
        for st in range(3):
            m = mfmas(st & 1, swap); rd = reads(st + 1, (st + 1) & 1, swap)
            a('s_waitcnt lgkmcnt(3)', m[0], rd[0:3], 's_waitcnt lgkmcnt(4)', m[1], rd[3:6], 's_waitcnt lgkmcnt(6)', m[2])
            if st == 0:
                a(f's_add_u32 s{sSA}, s{sSA}, 1', f's_cmp_eq_u32 s{sSA}, {NA}', CSEL(sDA, -16384*(NA-1), 16384), f's_cselect_b32 s{sSA}, 0, s{sSA}')
            if st == 1:
                a(f's_add_u32 s{sSB}, s{sSB}, 1', f's_cmp_eq_u32 s{sSB}, {NB}', CSEL(sDB, -16384*(NB-1), 16384), f's_cselect_b32 s{sSB}, 0, s{sSB}')
            if st == 2:
                a(f'v_add_u32 v{vAa}, s{sDA}, v{vAa}', f'v_add_u32 v{vBa}, s{sDB}, v{vBa}', f'v_add_u32 v{vBa+1}, s{sDB}, v{vBa+1}')
            a(m[3])
            if st == 0:
                a(f's_cmp_eq_u32 s{sCntC}, s{sLd}', f's_cbranch_scc1 L_ld_{tagname}')
                a.label(f'L_ldx_{tagname}')
            if st == 2:
                a(f's_sub_u32 s{sCntC}, s{sCntC}, 1')
                for r in (vAa + 1, vAa + 2, vAa + 3):
                    a(f'v_add_u32 v{r}, s{sDA}, v{r}')
        m = mfmas(1, swap); rd = reads(0, 0, swap)
        a(f's_cmp_eq_u32 s{sCntC}, 0', 's_waitcnt lgkmcnt(0)', f's_cbranch_scc1 L_last_{tagname}')
        mask = sum(1 << (je - c) for c in SKIP if jr < c < je)
        if mask:
            a(f's_bitcmp1_b32 s{sMask}, s{sCntC}', f's_cbranch_scc1 L_nob_{tagname}')
        a('s_barrier')
        a.label(f'L_nob_{tagname}')
        a(m[0], rd[0:3], m[1], rd[3:6], m[2], m[3], f's_branch L_loop_{tagname}')
        a.label(f'L_ld_{tagname}')
        a(csload, f's_branch L_ldx_{tagname}')
        a.label(f'L_pause_{tagname}')
        d = 16384 * (slotB(jr) - slotB(jp))
        a('s_barrier', m[0], f's_mov_b32 s{sMask}, {hex(mask | 1 << 31)}', m[1], f's_mov_b32 s{sSB}, {slotB(jr)}', m[2], f's_mov_b32 s{sCntC}, {je-jr}', m[3], f's_mov_b32 s{sLd}, {OPT.get("ld" + tagname[0], 2)}',
          f'v_add_u32 v{vBa}, {d}, v{vBa}', f'v_add_u32 v{vBa+1}, {d}, v{vBa+1}')
        d = 16384 * (slotA(JOBS[jr][1]) - slotA(SP))
        if d:
            a(f's_mov_b32 s{sSA}, {slotA(JOBS[jr][1])}', [f'v_add_u32 v{vAa+i}, {d}, v{vAa+i}' for i in range(4)])
        mid()
        a.label(f'L_last_{tagname}')
        a(f's_bitcmp0_b32 s{sMask}, 31', f's_cbranch_scc1 L_pause_{tagname}')
        sp = corr_split()
        if je == QE:
            bar()
        a(f'ds_read_b32 v{vTg}, v{vTg}', pre_last[:1], m[0], pre_last[1:], m[1], f's_mov_b32 s{sLd}, {SPIN}', f's_waitcnt lgkmcnt({len(pre_last)-1})')
        tok = [x for x in sp if not any(f'v{r}' in x.replace(',', ' ').split() for r in (CF, CF + 1, CF + 2, CF + 3, CS[0], CS[1]))]
        col = [x for x in sp if x not in tok]
        a(tok[:5], m[2], tok[5:])
        a.label(f'L_cs_{tagname}')
        a('s_waitcnt vmcnt(0)', f'v_cmp_ne_u32 vcc, v{vTg}, v{CS[0]+1}', f'v_cmp_ne_u32 s[46:47], v{vTg}, v{CS[1]+1}', 's_nop 1', 's_or_b32 vcc_lo, vcc_lo, s46', f's_cbranch_scc0 L_csx_{tagname}',
          f's_sub_u32 s{sLd}, s{sLd}, 1', f's_cbranch_scc1 L_csx_{tagname}', backoff('s0'), csload, f's_branch L_cs_{tagname}')
        a.label(f'L_csx_{tagname}')
        a(m[3], col, 's_nop 1', corr_mfma(swap))
        a.stamp(4)

    a.label('L_x')
    a.c('waves 0..3: QKV projection tile (128 tokens x 128 columns)')
    a(rest if KA else [])
    if OPT.get('cpf', 1):
        a('s_getpc_b64 s[40:41]')
        a.label('L_pc')
        a('s_lshr_b32 s42, s2, 3', f's_lshl2_add_u32 s42, s42, s{sW}', 's_lshl_b32 s42, s42, 9', 's_sub_u32 s40, s40, L_pc-L_p0', 's_subb_u32 s41, s41, 0', f's_mov_b32 s43, L_done-L_p0', 'v_lshlrev_b32 v2, 7, v0', 'v_add_u32 v2, s42, v2', 'v_min_u32 v2, s43, v2',
          'v_mov_b32 v3, s41', 'v_add_co_u32 v2, vcc, s40, v2', 's_mov_b64 exec, 15', 's_nop 0', 'v_addc_co_u32 v3, vcc, 0, v3, vcc',
          'global_load_dword v167, v[2:3], off', 's_mov_b64 exec, -1')
    decode2()
    XBAR = {0: (1, 4), 1: (1, 3, 5), 2: (0, 2, 5), 3: (2, 5), 4: (3,), 5: (2,), 6: (2, 6), 7: (), 8: (4,), 9: (5,), 10: (6,), 11: (0,), 12: (1,)}[OPT.get('xbar', 7)]
    XSIG = QE + OPT.get('xsig', 3)
    XP = QE + OPT.get('xp', 5)
    XB = [c for c in range(QE + 1, XP) if c not in SKIP]
    assert XP not in SKIP and XP >= KVB - 1 and XSIG < XP
    gemm_setup(0, 0, SP, True)
    a('s_waitcnt lgkmcnt(0)')
    ws_setup()
    zero_acc(0, 64)
    colsum_setup()
    vAd, vSa, vSb = tmp, tmp + 8, tmp + 9
    t0, t1, t2 = tmp + 10, tmp + 11, tmp + 12
    a(f's_cmp_ge_u32 s{sCG}, 10', 's_cbranch_scc1 L_x_v')
    a(f's_cmp_lt_u32 s{sCG}, 5',
      CSEL(sHS, 81920, 163840), f's_cselect_b32 s{sScale}, {fbits(QSCALE)}, 1.0',
      CSEL(sT0, 5120, 10240), CSEL(sOff, WS_Q, WS_KV), f's_cselect_b32 s{sT1}, 0, 5')
    a(f's_mul_i32 s{sT0}, s{sT0}, s{sRB}', f's_add_u32 s{sOff}, s{sOff}, s{sT0}',
      f's_mul_i32 s{sT0}, s{sM}, 2560', f's_add_u32 s{sOff}, s{sOff}, s{sT0}')
    a(f's_sub_u32 s{sT1}, s{sCG}, s{sT1}', f's_lshl_b32 s{sT1}, s{sT1}, 1', f's_add_u32 s{sT1}, s{sT1}, s{sN}', f's_lshl_b32 s{sT1}, s{sT1}, 4',
      f's_sub_u32 s{sHS}, s{sHS}, 2560')
    a(f's_lshl_b32 s{sT0}, s{sM}, 3', f's_add_u32 s{sT1}, s{sT1}, s{sT0}')
    for sl in range(2):
        if sl:
            a(f's_xor_b32 s{sT1}, s{sT1}, 8')
        a(f'v_add_u32 v1, s{sT1}, v{vH}', f'v_lshlrev_b32 v{t2}, 4, v{vTok}', f'v_lshl_add_u32 v{t2}, v1, 9, v{t2}', 'v_mul_u32_u24 v1, 205, v1')
        for q in range(4):
            a(f'v_add_u32 v{t0}, {2*q*205}, v1', f'v_lshrrev_b32 v{t0}, 10, v{t0}', f'v_mad_u32_u24 v{vAd+4*sl+q}, v{t0}, s{sHS}, v{t2}')
    vSc = tmp + 13
    a(f's_lshl_b32 s{sT2}, s{sM}, 8', f's_add_u32 s{sT2}, s{sT2}, {L_MEAN}', f'v_lshl_add_u32 v{vSc}, v{vTok}, 3, s{sT2}', f'v_lshl_add_u32 v{vSa}, v{vH}, 9, v{vSc}')
    a.stamp(2)
    a('s_setprio 1')
    vRs = SX + 16
    def xmid(tg):
        def f():
            for c in range(SP + 1, SP + NE):
                bar()
            a(f's_branch L_ent_{tg}')
        return f
    mainloop('qk', False, [f'ds_read_b64 {v(CR,2)}, v{vSa}', f'ds_read_b64 {v(vRs,2)}, v{vSc} offset:{L_RSTD-L_MEAN}'], SP, SP + NE, QE, xmid('qk'))
    a(f's_setprio {OPT.get("xprio", 0)}', 's_waitcnt lgkmcnt(0)')
    a(f'v_mul_f32 v{vRs}, s{sScale}, v{vRs}', f'v_mul_f32 v{vRs+1}, s{sScale}, v{vRs+1}', 's_nop 5')
    for n, i in enumerate((4, 5, 6, 7, 0, 1, 2, 3)):
        u, q = i // 4, i % 4
        pk = FR + 4 * n
        for t in range(2):
            r = acc + 32 * t + 16 * u + 4 * q
            for e in range(4):
                a(f'v_mul_f32 v{r+e}, v{vRs+t}, v{r+e}')
            a(CVT(pk + 2 * t, r), CVT(pk + 2 * t + 1, r + 2))
        a(f'buffer_store_dwordx4 {v(pk,4)}, v{vAd+i}, {WS}, s{sOff} offen offset:{1024*(i%4)} sc1')
        if n in XBAR:
            bar()
    a('s_branch L_x_sig')
    a.label('L_x_v')
    a(f's_cmp_ge_u32 s{sCG}, 15', 's_cbranch_scc1 L_x_idle', f's_lshl_b32 s{sT2}, s{sM}, 8', f's_add_u32 s{sT2}, s{sT2}, {L_MEAN}')
    a(f's_mul_i32 s{sOff}, s{sRB}, 10240', f's_mul_i32 s{sT0}, s{sM}, 2560', f's_add_u32 s{sOff}, s{sOff}, s{sT0}', f's_add_u32 s{sOff}, s{sOff}, {WS_KV+5120}')
    a(f's_sub_u32 s{sT1}, s{sCG}, 10', f's_lshl_b32 s{sT1}, s{sT1}, 7', f's_lshl_b32 s{sT0}, s{sN}, 6', f's_add_u32 s{sT1}, s{sT1}, s{sT0}',
      f's_lshl_b32 s{sT0}, s{sM}, 5', f's_add_u32 s{sT1}, s{sT1}, s{sT0}', f'v_add_u32 v1, s{sT1}, v{vTok}', f'v_mul_u32_u24 v{t2}, 320, v{vH}')
    for u in range(2):
        a(f'v_xor_b32 v{t0}, {32*u}, v1', f'v_mul_u32_u24 v{t1}, 3277, v{t0}', f'v_lshrrev_b32 v{t1}, 16, v{t1}',
          f'v_mul_u32_u24 v{t1}, {163840-320}, v{t1}', f'v_lshl_add_u32 v{t1}, v{t0}, 4, v{t1}', f'v_add_u32 v{vAd+u}, v{t1}, v{t2}')
    a(f'v_lshl_add_u32 v{vSa}, v{vTok}, 2, s{sT2}', f'v_lshl_add_u32 v{vSa}, v{vH}, 9, v{vSa}', f'v_lshl_add_u32 v{vSc}, v{vH}, 4, s{sT2}')
    a.stamp(2)
    a('s_setprio 1')
    def v_stats(t, dst):
        return [f'ds_read_b128 {v(dst+4*q,4)}, v{vSc} offset:{L_RSTD-L_MEAN+128*t+32*q}' for q in range(4)]
    mainloop('v', True, [f'ds_read2_b32 {v(CR,2)}, v{vSa} offset0:0 offset1:32'] + v_stats(0, vRs), SP, SP + NE, QE, xmid('v'))
    a(f's_setprio {OPT.get("xprio", 0)}', v_stats(1, FR), 's_waitcnt lgkmcnt(4)', 's_nop 2')
    n = 0
    for t in range(2):
        st_ = FR if t else vRs
        if t:
            a('s_waitcnt lgkmcnt(0)')
        for u in range(2):
            for ap in range(2):
                r = acc + 32 * t + 16 * u + 8 * ap
                for e in range(8):
                    a(f'v_mul_f32 v{r+e}, v{st_+8*ap+e}, v{r+e}')
                for e in range(4):
                    a(CVT(r + e, r + 2 * e))
                a(f'buffer_store_dwordx4 {v(r,4)}, v{vAd+u}, {WS}, s{sOff} offen offset:{640*(2*t+ap)} sc1')
                if n in XBAR:
                    bar()
                n += 1
    a.label('L_x_sig')
    jitter()
    a.stamp(5)
    lds_tag(4)
    f1_off(sT0, sT1, sN, sM)
    a('v_mov_b32 v1, 0', 's_mov_b64 vcc, 1')
    for c in XB[len(XBAR):]:
        if c <= XSIG:
            bar()
    a('s_mov_b64 exec, vcc', 's_waitcnt vmcnt(0)', f'buffer_store_dword v4, v1, {WS}, s{sT0} offen sc1', 's_mov_b64 exec, -1')
    a.stamp(6)
    for c in XB[len(XBAR):]:
        if c > XSIG:
            bar()

    a.label('L_attn')
    a.c('attention set-up; waves 0..3 wait for the projections and stage Q and the first K/V chunks')
    if 'c0' in OPT:
        a.lock = tuple(range(2, 14))
    a.stamp(7)
    R = Regs(2)
    vH, vTokA, vVa, vK2a = R(), R(), R(), R()
    vKa = [R(), R()]
    Q1 = R(4); Q2 = [R(2), R(2)]
    S = [R(16), R(16)]
    P = R(8); O = R(16); C = R(16)
    K1 = [R(4), R(4)]; V = [R(8), R(8)]; K2 = R(2)
    tp = R(8)
    sCnt, sKV, sPass, sM40 = 40, 41, 42, 44
    vKg = tp + 6
    def a_setup():
        a(f'v_lshrrev_b32 v{vH}, 5, v0', f'v_and_b32 v{vTokA}, 31, v0', f's_mul_i32 s{sKV}, s{sHead}, 163840', f's_add_u32 s{sKV}, s{sKV}, {WS_KV}')
        a(f'v_lshlrev_b32 v{vK2a}, 3, v{vTokA}', f'v_lshl_add_u32 v{vKg}, v{vH}, 9, v{vK2a}')
        a(f'v_add_u32 v{vKa[0]}, {L_K}, v{vKg}', f'v_add_u32 v{vKa[1]}, {L_K+256}, v{vKg}', f'v_lshlrev_b32 v{vK2a}, 3, v0', f'v_add_u32 v{vK2a}, {L_K+2048}, v{vK2a}')
        a(f'v_lshlrev_b32 v{vVa}, 4, v{vTokA}', f'v_mul_u32_u24 v{K2}, 320, v{vH}', f'v_add_u32 v{vVa}, v{vVa}, v{K2}', f'v_add_u32 v{vVa}, {L_V}, v{vVa}')
        a(f'v_cmp_eq_u32 vcc, 20, v{vTokA}', f'v_mov_b32 v{K2}, {L_V+640}', f'v_mov_b32 v{K2+1}, {FAR}', f'v_cndmask_b32 v{vVa}, v{vVa}, v{K2}, vcc',
          f'v_cmp_lt_u32 vcc, 20, v{vTokA}', 's_nop 1', f'v_cndmask_b32 v{vVa}, v{vVa}, v{K2+1}, vcc')
        for i in range(16):
            a(f'v_mov_b32 v{O+i}, 0')
        for i in range(4):
            a(f'v_mov_b32 v{P+4+i}, 0', f'v_mov_b32 v{V[1]+4+i}, 0')
        a(f's_lshr_b32 s{sT0}, s{sW}, 1', f's_cmp_lt_u32 s{sT0}, 3', CSEL(sT1, L_Q0, L_Q1 - 7680), f's_mul_i32 s{sT0}, s{sT0}, 2560', f's_add_u32 s{sT0}, s{sT0}, s{sT1}',
          f's_and_b32 s{sT1}, s{sW}, 1', f's_lshl_b32 s{sT1}, s{sT1}, 3', f's_add_u32 s{sT0}, s{sT0}, s{sT1}',
          f'v_lshl_add_u32 v{vQb}, v{vTokA}, 4, s{sT0}', f'v_lshl_add_u32 v{vQa}, v{vH}, 9, v{vQb}')
    vQa, vQb = tp + 4, tp + 5
    a_setup()
    sP, sNB, sSpin = 48, 49, 50
    if True:
        a(f's_mul_i32 s{sT0}, s{sHead}, 20', f's_add_u32 s{sT1}, s{sT0}, 19', f's_lshr_b32 s{sT0}, s{sT0}, 6', f's_lshr_b32 s{sT1}, s{sT1}, 6', f's_sub_u32 s{sT1}, s{sT1}, s{sT0}',
          f's_lshl_b32 s{sT1}, s{sT1}, 10', f's_lshl_b32 s{sP}, s{sT0}, 10', f's_add_u32 s{sP}, s{sP}, {WS_F1}')
        a(f'v_bfe_u32 v{tp}, v0, 2, 2', f's_lshl_b32 s{sT0}, s{sW}, 1', f's_sub_u32 s{sT0}, s{sT0}, 1', f'v_add_u32 v1, s{sT0}, v{tp}', f'v_cmp_eq_u32 vcc, 0, v{tp}',
          f'v_bfe_u32 v{tp+1}, v0, 1, 1', f'v_add_u32 v{tp+1}, 1, v{tp+1}', 'v_cndmask_b32 v1, v1, 0, vcc' if False else f'v_cndmask_b32 v1, v1, v{tp}, vcc',
          f'v_cmp_eq_u32 vcc, 3, v{tp}', f'v_mov_b32 v{tp+2}, s{sQB}', f'v_mov_b32 v{tp+3}, 0', f'v_cndmask_b32 v1, v1, v{tp+2}, vcc', f'v_cndmask_b32 v{tp+1}, v{tp+1}, v{tp+3}, vcc',
          'v_lshlrev_b32 v1, 7, v1', f'v_mul_u32_u24 v{tp+1}, 10240, v{tp+1}', f'v_add_u32 v1, v1, v{tp+1}', f'v_and_b32 v{tp}, 1, v0', f'v_mad_u32_u24 v1, v{tp}, s{sT1}, v1')
    a(f's_mov_b32 s{sSpin}, {SPIN}')
    a(f's_mov_b32 s{sM40}, -1', f's_mov_b32 s{sM40+1}, 0xff')
    a(f's_lshl_b32 s{sT0}, s{sHead}, 5', f's_lshl_b32 s{sT1}, s{sQB}, 2', f's_add_u32 s{sT0}, s{sT0}, s{sT1}', f's_add_u32 s{sT0}, s{sT0}, s{sW}', f's_mul_i32 s51, s{sT0}, 2560',
      f's_add_u32 s51, s51, {WS_Q}', f's_cmp_lt_u32 s{sW}, 3', CSEL(sT1, L_Q0, L_Q1 - 7680), f's_mul_i32 s52, s{sW}, 2560', f's_add_u32 s52, s52, s{sT1}')
    a(f's_mul_i32 s{sT0}, s{sW}, 1280', f's_mul_i32 s{sT1}, s{sW}, 1312', f's_add_u32 s{sT2}, s{sT0}, s{sKV}')
    poll1 = ['s_mov_b64 exec, 0xffff', f'buffer_load_dwordx4 {v(tp,4)}, v1, {WS}, s{sP} offen sc1', 's_mov_b64 exec, -1']
    check = ['s_waitcnt vmcnt(0)'] + [f'v_xor_b32 v{tp+i}, s{sTag}, v{tp+i}' for i in range(4)] + [
        f'v_or3_b32 v{tp}, v{tp}, v{tp+1}, v{tp+2}', f'v_or_b32 v{tp}, v{tp}, v{tp+3}', f'v_cmp_ne_u32 vcc, 0, v{tp}', 's_nop 1', 's_and_b32 vcc_lo, vcc_lo, 0xffff', 's_cbranch_scc0 L_poll1_ok']
    a(f's_mov_b32 s{sNB}, 0', f's_cmp_ge_u32 s{sCG}, 15', 's_cbranch_scc1 L_poll1c')
    bar()
    left = len([c for c in range(XP + 1, 20) if c not in SKIP])
    a(poll1, f's_mov_b32 s{sNB}, {max(0, left-1)}')
    if left:
        a.label('L_poll1a')
        bar()
        a(check, poll1, f's_sub_u32 s{sNB}, s{sNB}, 1', 's_cbranch_scc0 L_poll1a', f's_mov_b32 s{sNB}, 0')
    a.label('L_poll1b')
    a(check, f's_sub_u32 s{sSpin}, s{sSpin}, 1', 's_cbranch_scc1 L_poll1_ok', backoff('s1'))
    a.label('L_poll1c')
    a(poll1, 's_branch L_poll1b')
    a.label('L_poll1_ok')
    jitter()
    a.stamp(8)
    a('v_lshlrev_b32 v1, 4, v0', 's_mov_b32 m0, s52', f's_mov_b64 exec, s[{sM40}:{sM40+1}]')
    for i in range(4):
        a(f'buffer_load_dwordx4 v1, {WS}, s51 offen offset:{640*i} sc1 lds')
    for c in range(2):
        a(f's_add_u32 m0, s{sT0}, {L_K+5120*c}', f's_add_u32 s{sT3}, s{sT2}, {10240*c}')
        a(f'buffer_load_dwordx4 v1, {WS}, s{sT3} offen sc1 lds', f'buffer_load_dwordx4 v1, {WS}, s{sT3} offen offset:640 sc1 lds')
        a(f's_add_u32 m0, s{sT1}, {L_V+5248*c}', f's_add_u32 s{sT3}, s{sT3}, 5120')
        a(f'buffer_load_dwordx4 v1, {WS}, s{sT3} offen sc1 lds', f's_sub_u32 s{sT3}, s{sT3}, 16', f'buffer_load_dwordx4 v1, {WS}, s{sT3} offen offset:656 sc1 lds')
    a('s_mov_b64 exec, -1')
    a.label('L_rest')
    a(f's_sub_u32 s{sNB}, s{sNB}, 1', 's_cbranch_scc1 L_rest_done', 's_barrier', 's_branch L_rest')
    a.label('L_rest_done')
    a('s_waitcnt vmcnt(4)', 's_branch L_attn_j')
    a.label('L_attn_z')
    jitter()
    a.vm = zvm
    lds_tag(1)
    a_setup()
    a(f'v_mul_u32_u24 v1, 656, v{vTokA}', f'v_add_u32 v1, {L_V+640}, v1')
    for i in range(4):
        a(f'v_mov_b32 v{K1[0]+i}, 0x3f803f80')
    a(f's_cmp_lg_u32 s{sW}, 4', 's_cbranch_scc1 L_noones', f'ds_write_b128 v1, {v(K1[0],4)}')
    a.label('L_noones')
    a.wait_vm(('c', 19))
    pbar(19)
    a('s_waitcnt lgkmcnt(0)')
    page('L_attn_j', 4092)
    sHi = 46
    a('s_mov_b32 vcc_lo, -1', 's_mov_b32 vcc_hi, 0', f's_mov_b32 s{sHi}, -1', f's_mov_b32 s{sHi+1}, 0')

    def rdK1(dst, blk):
        o = (blk // 2 % 8) * 5
        return f'ds_read2st64_b64 {v(dst,4)}, v{vKa[blk % 2]} offset0:{o} offset1:{o+2}'
    def rdK2(pair):
        return f'ds_read_b64 {v(K2,2)}, v{vK2a} offset:{(pair % 8) * 2560}'
    def rdV(dst, blk, half):
        return f'ds_read_b128 {v(dst+4*half,4)}, v{vVa} offset:{((blk % 16) * 2 + half) * 656}'

    a.stamp(9)
    bar()
    a.stamp(10)
    a(f'ds_read2st64_b64 {v(Q1,4)}, v{vQa} offset0:0 offset1:2', rdK1(K1[0], 0), rdK1(K1[1], 1), f'ds_read_b64 {v(tp,2)}, v{vQb} offset:2048', rdK2(0),
      rdV(V[0], 0, 0), rdV(V[0], 0, 1), 's_waitcnt lgkmcnt(5)')
    a(M16(S[0], K1[0], Q1, '0'), 's_waitcnt lgkmcnt(3)')
    for i in range(2):
        a(f'v_cndmask_b32 v{Q2[0]+i}, 0, v{tp+i}, vcc')
    for i in range(2):
        a(f'v_cndmask_b32 v{Q2[1]+i}, v{tp+i}, 0, s[{sHi}:{sHi+1}]')
    a(M16(S[1], K1[1], Q1, '0'), 's_waitcnt lgkmcnt(2)', M8(S[0], K2, Q2[0]), M8(S[1], K2, Q2[1]), 's_nop 10')
    a.c('stand-in for the row maximum: maximum over the first 64 keys plus 96 (log2 units); checked after the loop')
    vals = [S[0] + i for i in range(16)] + [S[1] + i for i in range(16)]
    a(f'v_max3_f32 v{tp}, v{vals[0]}, v{vals[1]}, v{vals[2]}', f'v_max3_f32 v{tp+1}, v{vals[3]}, v{vals[4]}, v{vals[5]}')
    for i in range(6, 32, 2):
        r = tp + (i // 2 + 1) % 2
        a(f'v_max3_f32 v{r}, v{r}, v{vals[i]}, v{vals[i+1]}')
    a(f'v_max_f32 v{tp}, v{tp}, v{tp+1}', f'v_mov_b32 v{tp+1}, v{tp}', 's_nop 1', f'v_permlane32_swap_b32 v{tp}, v{tp+1}', 's_nop 1')
    a(f'v_max_f32 v{tp}, v{tp}, v{tp+1}', f'v_sub_f32 v{C}, {fbits(-float(OPT.get("mo", MAXOFF)))}, v{tp}')
    a(f'v_mov_b32 v{C+1}, v{C}')
    for i in range(2, 16, 2):
        a(f'v_mov_b64 {v(C+i,2)}, {v(C,2)}')
    if OPT.get('pro', 0) == 0:
        a('s_nop 1', M16(S[0], K1[0], Q1, C), M8(S[0], K2, Q2[0]), f's_mov_b32 s{sCnt}, 4', 's_waitcnt vmcnt(0)', 's_nop 7')
    else:
        for i in range(16):
            a(f'v_add_f32 v{S[0]+i}, v{S[0]+i}, v{C}')
        a(f's_mov_b32 s{sCnt}, 4', 's_waitcnt vmcnt(0)')
    a.stamp(11)
    a.raw('.p2align 3')
    a.label('L_at_loop')
    LAD = [(3, 2, 1, 0), (3, 2, 1, 1), (2, 1, 0, 0), (3, 3, 2, 1), (2, 2, 1, 0)][OPT.get('lad', 0)]
    for b in range(16):
        cur, nxt = S[b & 1], S[(b + 1) & 1]
        E = lambda i: EXP(cur + i)
        Cv = lambda i: CVT(P + i, cur + 2 * i)
        a(M16(nxt, K1[(b + 1) & 1], Q1, C))
        if b % 4 == 2:
            bar()
        a(f's_setprio {LAD[(b + 2) % 4]}', rdK1(K1[b & 1], b + 2))
        vs = [E(0), E(1), E(2), Cv(0), E(3), E(4), Cv(1), E(5), E(6), Cv(2), E(7), E(8), Cv(3), E(9), E(10), Cv(4), E(11), E(12), Cv(5), E(13), E(14), E(15), Cv(6), Cv(7)]
        c1, c2, c3 = [(6, 12, 18), (4, 8, 15), (4, 10, 15), (5, 10, 16), (7, 13, 19), (6, 11, 17), (5, 12, 18), (8, 12, 20)][OPT.get('sch', 0)]
        a(vs[:c1])
        a(M16(O, V[(b + 1) & 1] + 4, P + 4), 's_waitcnt lgkmcnt(1)', rdV(V[(b + 1) & 1], b + 1, 0), rdV(V[(b + 1) & 1], b + 1, 1))
        a(vs[c1:c2])
        a(M8(nxt, K2, Q2[(b + 1) & 1]))
        a(vs[c2:c3])
        a(M16(O, V[b & 1], P), 's_waitcnt lgkmcnt(2)')
        if b % 2 == 0:
            a(rdK2(b // 2 + 1))
        if b == 15:
            a(f's_sub_u32 s{sCnt}, s{sCnt}, 1', f's_cmp_lg_u32 s{sCnt}, 0')
        a(vs[c3:])
    a('s_cbranch_scc1 L_at_loop')
    a('s_nop 0', M16(O, V[1] + 4, P + 4), f's_mov_b32 s{sPass}, 0', 's_waitcnt lgkmcnt(0)')
    if OPT.get('ep', 1) == 2:
        a('s_setprio 1')
    a.stamp(12)

    a.label('L_at_fin')
    a.c('normalise and store; if a sum overflowed or came near the flush range, redo this wave with the true row maximum')
    jitter()
    a(f's_lshl_b32 s{sT0}, s{sQB}, 3', f's_add_u32 s{sT0}, s{sT0}, s{sW}', f's_mul_i32 s{sT0}, s{sT0}, 40960', f's_add_u32 s{sT0}, s{sT0}, {WS_O}',
      f's_lshl_b32 s{sT1}, s{sHead}, 10', f's_add_u32 s{sT1}, s{sT1}, s{sT0}',
      f's_lshl_b32 s{sT2}, s{sHead}, 8', f's_add_u32 s{sT2}, s{sT2}, s{sT0}', f's_add_u32 s{sT2}, s{sT2}, 32768', f's_mov_b32 s{sT3}, {fbits(2.0**-102)}', 's_nop 1')
    vL, vSum, N = tp, tp + 1, S[0]
    a(f'v_mov_b32 v{vL}, v{O+8}', f'v_mov_b32 v{tp+2}, v{O+8}', 'v_lshlrev_b32 v1, 4, v0', f'v_lshlrev_b32 v{tp+4}, 3, v0')
    a(f'v_permlane32_swap_b32 v{tp+2}, v{vL}', f'v_add_f32 v{vSum}, |v{O}|, |v{O+1}|', f'v_add_f32 v{tp+3}, |v{O+8}|, |v{O+9}|', f'v_rcp_f32 v{vL}, v{vL}', f'v_add_f32 v{vSum}, v{vSum}, |v{O+2}|')
    for i in range(8):
        a(f'v_mul_f32 v{N+i}, v{O+i}, v{vL}')
    for i in range(4):
        a(CVT(N + i, N + 2 * i))
    a(f'buffer_store_dwordx4 {v(N,4)}, v1, {WS}, s{sT1} offen sc1')
    for i in range(8, 12):
        a(f'v_mul_f32 v{N+i}, v{O+i}, v{vL}')
    a(CVT(N + 8, N + 8), CVT(N + 9, N + 10), 's_mov_b32 exec_hi, 0', f'buffer_store_dwordx2 {v(N+8,2)}, v{tp+4}, {WS}, s{sT2} offen sc1', 's_mov_b32 exec_hi, -1', 's_setprio 0' if OPT.get('ep', 1) else 's_nop 0')
    for i in range(3, 8):
        a(f'v_add_f32 v{vSum}, v{vSum}, |v{O+i}|')
    a(f'v_add_f32 v{tp+3}, v{tp+3}, |v{O+10}|', f'v_add_f32 v{tp+3}, v{tp+3}, |v{O+11}|', f'v_add_f32 v{tp+3}, v{tp+3}, v{vSum}')
    a(f'v_cmp_ngt_f32 vcc, {fbits(2.0**120)}, v{tp+3}', f'v_cmp_gt_f32 s[46:47], s{sT3}, v{vSum}', 's_nop 1',
      's_or_b64 s[46:47], s[46:47], vcc', f's_cmp_eq_u32 s{sPass}, 0', 's_cselect_b64 s[46:47], s[46:47], 0', 's_cmp_lg_u64 s[46:47], 0',
      's_cbranch_scc1 L_at_slow' if not OPT.get('noslow') else 's_nop 0')
    FOS = OPT.get('fos', 2)
    a(f's_lshl_b32 s{sT0}, s{sQB}, 3', f's_add_u32 s{sT0}, s{sT0}, s{sW}', f's_lshl_b32 s{sT0}, s{sT0}, 12', f's_lshr_b32 s{sT1}, s{sHead}, {FOS}', f's_lshl_b32 s{sT1}, s{sT1}, 7',
      f's_add_u32 s{sT0}, s{sT0}, s{sT1}', f's_and_b32 s{sT1}, s{sHead}, {(1<<FOS)-1}', f's_lshl_b32 s{sT1}, s{sT1}, 2',
      f's_add_u32 s{sT0}, s{sT0}, s{sT1}', f's_add_u32 s{sT0}, s{sT0}, {WS_FO}', f'v_mov_b32 v1, s{sTag}', 'v_mov_b32 v2, 0', 's_mov_b64 exec, 1')
    a('s_waitcnt vmcnt(0)', f'buffer_store_dword v1, v2, {WS}, s{sT0} offen sc1')
    a.stamp(13)
    a.dump(0, sW, 24)
    a('s_endpgm')

    a.label('L_at_slow')
    a.c('true row maximum over all keys, then the weighted sum again')
    vVg, vL8s = tp + 4, tp + 7
    a(f'v_min_u32 v1, 19, v{vTokA}', 'v_lshlrev_b32 v1, 4, v1', f'v_mul_u32_u24 v{vVg}, 320, v{vH}', f'v_add_u32 v{vVg}, v1, v{vVg}', f'v_lshlrev_b32 v{vL8s}, 3, v0')
    a(f'v_mov_b32 v{tp}, 0xff800000', f's_mov_b32 s{sCnt}, 0')
    def pair_off():
        a(f's_lshr_b32 s{sT0}, s{sCnt}, 1', f's_mul_i32 s{sT0}, s{sT0}, 10240', f's_and_b32 s{sT1}, s{sCnt}, 1', f's_mul_i32 s{sT1}, s{sT1}, 2560',
          f's_add_u32 s{sT0}, s{sT0}, s{sT1}', f's_add_u32 s{sT0}, s{sT0}, s{sKV}', f's_add_u32 s{sT1}, s{sT0}, 5120')
    def ldK():
        for b in range(2):
            a(f'buffer_load_dwordx2 {v(K1[b],2)}, v{vKg}, {WS}, s{sT0} offen offset:{256*b} sc1',
              f'buffer_load_dwordx2 {v(K1[b]+2,2)}, v{vKg}, {WS}, s{sT0} offen offset:{256*b+1024} sc1')
        a(f'buffer_load_dwordx2 {v(K2,2)}, v{vL8s}, {WS}, s{sT0} offen offset:2048 sc1')
    a.label('L_at_slow_max')
    pair_off(); ldK()
    a('s_waitcnt vmcnt(0)')
    a(M16(S[0], K1[0], Q1, '0'), M16(S[1], K1[1], Q1, '0'), M8(S[0], K2, Q2[0]), M8(S[1], K2, Q2[1]), 's_nop 12')
    for i in range(16):
        a(f'v_max3_f32 v{tp}, v{tp}, v{S[0]+i}, v{S[1]+i}')
    a(f's_add_u32 s{sCnt}, s{sCnt}, 1', f's_cmp_lt_u32 s{sCnt}, 32', 's_cbranch_scc1 L_at_slow_max')
    a(f'v_mov_b32 v{tp+1}, v{tp}', 's_nop 1', f'v_permlane32_swap_b32 v{tp}, v{tp+1}', 's_nop 1', f'v_max_f32 v{tp}, v{tp}, v{tp+1}')
    for i in range(16):
        a(f'v_sub_f32 v{C+i}, 0, v{tp}', f'v_mov_b32 v{O+i}, 0')
    a(f'v_cmp_eq_u32 s[48:49], 20, v{vTokA}', f'v_mov_b32 v{tp+5}, 0x3f803f80', f's_mov_b32 s{sCnt}, 0')
    a.label('L_at_slow_pv')
    pair_off(); ldK()
    for g in range(4):
        a(f'buffer_load_dwordx4 {v(V[g//2]+4*(g%2),4)}, v{vVg}, {WS}, s{sT1} offen offset:{640*g} sc1')
    a('s_waitcnt vmcnt(0)')
    a(M16(S[0], K1[0], Q1, C), M16(S[1], K1[1], Q1, C), M8(S[0], K2, Q2[0]), M8(S[1], K2, Q2[1]))
    for b in range(2):
        for i in range(8):
            a(f'v_cndmask_b32 v{V[b]+i}, v{V[b]+i}, v{tp+5}, s[48:49]')
    for b in range(2):
        for i in range(16):
            a(EXP(S[b] + i))
        a('s_nop 0')
        for i in range(8):
            a(CVT(P + i, S[b] + 2 * i))
        a('s_nop 1', M16(O, V[b], P), M16(O, V[b] + 4, P + 4))
    a(f's_add_u32 s{sCnt}, s{sCnt}, 1', f's_cmp_lt_u32 s{sCnt}, 32', 's_cbranch_scc1 L_at_slow_pv')
    a(f's_mov_b32 s{sPass}, 1', 's_branch L_at_fin')

    if OPT.get('so', 1):
        a.label('L_z_sum')
        a.vm = vm1
        nb = 2
        for n, c in enumerate(bars[:-1]):
            a.wait_vm(*[('c', x) for x in range(c, bars[n + 1])])
            bar()
            while nb < min(20, c + NB):
                ldB(nb, JOBS=SUMS); nb += 1
        a('s_waitcnt vmcnt(0)', 's_branch L_attn_z')
    a.label('L_x_idle')
    a.c('workgroups without a projection tile: column sums of the weights of column group rb')
    jitter()
    PA = acc
    def sum_setup():
        a('v_cmp_eq_u32 vcc, 0, v3', 'v_cmp_eq_u32 s[46:47], 20, v3', 'v_mov_b32 v1, 0x3f803f80', 's_nop 0', 's_or_b64 vcc, vcc, s[46:47]', 's_nop 1')
        for i in range(4):
            a(f'v_cndmask_b32 v{PA+i}, 0, v1, vcc')
    def sum_job(j):
        SS = acc + (4 if SUMS[j][0] == 'Q' else 8)
        for st in range(4):
            o = slotB(j) * 16384 + 4096 * st
            a(f'ds_read_b64_tr_b16 {v(FR+16+4*st,2)}, v{vBa} offset:{o}', f'ds_read_b64_tr_b16 {v(FR+16+4*st+2,2)}, v{vBa} offset:{o+1024}')
        for st in range(4):
            a(f's_waitcnt lgkmcnt({6-2*st})', f'v_mfma_f32_16x16x32_bf16 {v(SS,4)}, {v(PA,4)}, {v(FR+16+4*st,4)}, {v(SS,4)}')
    def publish(SS, off):
        a(f's_lshl_b32 s{sCs}, s{sRB}, 10', f's_add_u32 s{sCs}, s{sCs}, {off}', 's_nop 5', f'v_mov_b32 v{SS+1}, s{sTag}', 's_mov_b32 exec_hi, 0',
          f'buffer_store_dwordx2 {v(SS,2)}, v{vCx}, {WS}, s{sCs} offen sc1', 's_mov_b32 exec_hi, -1')
    sum_setup()
    for j, (ty, c) in enumerate(JOBS):
        pbar(j)
        if j == (10 if OPT.get('so', 1) else QE):
            lds_tag(1)
            publish(acc + 4, WS_CS)
            a.stamp(2)
        sum_job(j)
    publish(acc + 8, WS_CS + 16384)
    a.stamp(3)
    a('s_branch L_attn')

    a.label('L_helper')
    a.c('waves 8..11: row statistics, first FFN GEMM')
    a(rest if KA else [])
    jitter()
    a.lock = None
    sG = 38
    a(f's_sub_u32 s{sG}, s{sW}, 8')
    decode2()
    gemm_setup(8, SP, NE, False)
    sFB = 39
    a(f's_lshl_b32 s{sT0}, s{sRB}, 7', f's_lshl_b32 s{sT1}, s{sCG}, 3', f's_add_u32 s{sT0}, s{sT0}, s{sT1}', f's_lshl_b32 s{sT1}, s{sG}, 1', f's_add_u32 s{sT2}, s{sT0}, s{sT1}',
      f's_mul_i32 s{sT3}, s{sT2}, 1280', f's_lshl_b32 s{sT2}, s{sT2}, 4', f's_add_u32 s{sT2}, s{sT2}, {WS_RS}')
    a(f'v_mul_u32_u24 v1, 1280, v2', f'v_lshl_add_u32 v{tmp+4}, v{vTok}, 4, v1', f'v_lshl_add_u32 v{tmp+5}, v{vTok}, 3, v1', f'v_lshlrev_b32 v{tmp+6}, 1, v{vTok}')
    a(f's_lshl_b32 s{sFB}, s{sCG}, 1', f's_add_u32 s{sFB}, s{sFB}, s{sN}', f's_lshl_b32 s{sT0}, s{sFB}, 7')
    a('s_waitcnt lgkmcnt(0)')
    ws_setup()
    a(f's_add_u32 s10, s22, {WS_EP}', 's_addc_u32 s11, s23, 0', f's_load_dword s{sTag}, s[10:11], 0')
    def touch(off, extra=(0,)):
        a(f's_and_b32 s10, s{off}, 0xffffff80', 's_add_u32 s10, s22, s10', 's_addc_u32 s11, s23, 0')
        for e in extra:
            a(f's_load_dword s61, s[10:11], {e}', f's_load_dword s61, s[10:11], {e+64}')
    if OPT.get('tch', 1):
        touch(sT2)
        f1_off(56, 57, sN, None)
        touch(56)
        a(f's_lshl_b32 s56, s{sRB}, 1', f's_add_u32 s56, s56, s{sM}', 's_lshl_b32 s56, s56, 4', f's_add_u32 s56, s56, s{sCG}', 's_lshl_b32 s56, s56, 7', f's_add_u32 s56, s56, {WS_FH}')
        touch(56)
        a(f's_lshl_b32 s56, s{sQB}, 2', f's_add_u32 s56, s56, s{sG}', 's_lshl_b32 s56, s56, 13', f's_lshr_b32 s57, s{sHead}, {OPT.get("fos", 2)}', 's_lshl_b32 s57, s57, 7',
          's_add_u32 s56, s56, s57', f's_add_u32 s56, s56, {WS_FO}')
        touch(56, (0, 4096))
    vL16, vL8, vTr, vTr2, vOut, vRes = range(SX + 16, SX + 22)
    vW, vWr = SX + 22, SX + 26
    vR2 = SX + 42
    sOwn, sKH, sRow, sCol, sReg, sRG = 62, 63, 64, 65, 66, 3
    t = tmp + 10
    a(f's_mov_b32 s60, s{sT0}')
    a(f's_bfe_u32 s{sRG}, s2, 0x20001', f's_bfe_u32 s{sT0}, s2, 0x30003', f's_lshl3_add_u32 s{sRG}, s{sRG}, s{sT0}',
      f's_and_b32 s{sOwn}, s{sG}, 1', f's_lshr_b32 s{sKH}, s{sG}, 1', f's_lshl1_add_u32 s{sRow}, s{sRG}, s{sOwn}', f's_lshr_b32 s{sCol}, s2, 6')
    a(f'v_lshlrev_b32 v{vL16}, 4, v0', f'v_lshlrev_b32 v{vL8}, 3, v0', f'v_lshlrev_b32 v{vR2+3}, 5, v{vTok}')
    a(f's_lshl_b32 s{sT0}, s{sRG}, 6', f's_add_u32 s{sT0}, s{sT0}, s{sOwn}', f'v_and_b32 v1, 15, v0', f'v_lshl_add_u32 v1, v1, 1, s{sT0}', f'v_mul_u32_u24 v{vOut}, 1280, v1',
      f'v_and_b32 v{t}, 16, v0', f'v_lshl_add_u32 v{vOut}, v{t}, 1, v{vOut}', f'v_lshl_add_u32 v{vOut}, v2, 4, v{vOut}')
    a(f'v_lshlrev_b32 v{vTr}, 1, v{t}', f'v_and_b32 v{t}, 1, v0', f'v_lshl_add_u32 v{vTr}, v{t}, 4, v{vTr}', f'v_and_b32 v{t}, 2, v0', f'v_lshl_add_u32 v{vTr}, v{t}, 2, v{vTr}',
      f'v_bfe_u32 v{t}, v0, 2, 2', f'v_lshl_add_u32 v{t}, v2, 2, v{t}')
    def rows(i, row, piece):
        a(f'v_lshl_add_u32 v{piece}, v{piece}, 4, s{sCol}', f'v_mul_u32_u24 v{vW+i}, 1280, v{row}', f'v_add_u32 v{vW+i}, v{vW+i}, v{piece}',
          f'v_lshrrev_b32 v{row}, 2, v{row}', f'v_add_u32 v{row}, 1, v{row}', f'v_mul_u32_u24 v{row}, {16*1280}, v{row}')
        if i:
            a(f'v_subrev_u32 v{vW+i}, {1024*i}, v{vW+i}')
        a(f'v_add_u32 v{vWr+i}, v{vW+i}, v{row}')
    a('s_bitcmp1_b32 s2, 0', 's_cbranch_scc1 L_su2')
    a(f's_mul_i32 s{sCol}, s{sCol}, 192', f's_mul_i32 s{sReg}, s{sG}, 30720', f'v_mul_u32_u24 v{t}, 192, v{t}', f'v_add3_u32 v{vTr}, v{vTr}, v{t}, s{sReg}', f'v_mov_b32 v{vTr2}, v{vTr}')
    a(f's_cmp_eq_u32 s{sKH}, 0', 's_cselect_b32 s67, 1280, 0', f'v_lshl_add_u32 v1, v{vTok}, 1, s{sT0}', f'v_mul_u32_u24 v{vRes}, s67, v1', f'v_lshl_add_u32 v1, v2, 4, s{sCol}', f'v_add_u32 v{vRes}, v{vRes}, v1')
    for i in range(3):
        a(f'v_add_u32 v{t}, {64*i}, v0', f'v_mul_u32_u24 v1, 171, v{t}', 'v_lshrrev_b32 v1, 11, v1', f'v_mul_u32_u24 v{t+1}, 12, v1', f'v_sub_u32 v{t}, v{t}, v{t+1}')
        rows(i, 1, t)
    a('s_branch L_su3')
    a.label('L_su2')
    a(f's_lshl_b32 s{sCol}, s{sCol}, 7', f's_add_u32 s{sCol}, s{sCol}, 768', f's_mul_i32 s{sReg}, s{sG}, 20480', f'v_lshlrev_b32 v1, 7, v{t}', f'v_add3_u32 v{vTr}, v{vTr}, v1, s{sReg}',
      f'v_and_b32 v1, 2, v{t}', f'v_lshl_add_u32 v{vTr}, v1, 5, v{vTr}', f'v_xor_b32 v{vTr2}, 64, v{vTr}')
    a(f's_cmp_eq_u32 s{sKH}, 0', 's_cselect_b32 s67, -1, 0', CSEL(68, L_XR, L_B2), f's_lshl_b32 s{sT1}, s{sOwn}, 7', f'v_lshl_add_u32 v1, v{vTok}, 8, s{sT1}', f'v_and_b32 v{t}, 1, v0', f'v_lshl_add_u32 v1, v{t}, 6, v1',
      'v_and_b32 v1, s67, v1', 'v_lshl_add_u32 v1, v2, 4, v1', f'v_add_u32 v{vRes}, s68, v1')
    for i in range(2):
        a('v_lshrrev_b32 v1, 3, v0', f'v_and_b32 v{t}, 7, v0', f'v_and_b32 v{t+1}, 16, v0', f'v_lshrrev_b32 v{t+1}, 2, v{t+1}', f'v_xor_b32 v{t}, v{t}, v{t+1}', f'v_add_u32 v1, {8*i}, v1')
        rows(i, 1, t)
    a(f'v_mov_b32 v{vW+2}, 0', f'v_mov_b32 v{vWr+2}, 0')
    a.label('L_su3')
    colsum_setup()
    zero_acc(0, 64)
    a(f's_lshl_b32 s{sT0}, s{sRB}, 2', f's_lshl_b32 s{sT1}, s{sM}, 1', f's_add_u32 s{sT0}, s{sT0}, s{sT1}', f's_mul_i32 s{sT0}, s{sT0}, 108',
      f's_lshl_b32 s{sT1}, s{sFB}, 2', f's_add_u32 s{sT0}, s{sT0}, s{sT1}', f's_lshl_b32 s{sT0}, s{sT0}, 10',
      f's_add_u32 s{sOff}, s{sT0}, {WS_H}', f's_add_u32 s{sHS}, s{sOff}, {108*1024}', f's_lshl_b32 s{sT0}, s{sM}, 11', f'v_lshl_add_u32 v{tmp}, v0, 4, s{sT0}', f'v_xor_b32 v{tmp+1}, 2048, v{tmp}')
    a(f's_lshl_b32 s{sT0}, s{sM}, 8', f's_add_u32 s{sT0}, s{sT0}, {L_MEAN}', f'v_lshl_add_u32 v{tmp+3}, v{vTok}, 3, s{sT0}', f'v_lshl_add_u32 v{tmp+3}, v2, 9, v{tmp+3}')
    a(f's_lshl_b32 s{sT0}, s{sG}, 7', f's_add_u32 s{sT0}, s{sT0}, {L_MEAN}', f'v_lshl_add_u32 v{tmp+9}, v{vTok}, 2, s{sT0}', f'v_mov_b32 v{tmp+10}, {L_TAG}',
      f'v_lshlrev_b32 v{tmp+2}, 4, v{vTok}', f's_mov_b32 s{sT0}, s60')
    a.srd(SD, 4, 2621440)
    bar()
    a(f'buffer_load_dwordx4 {v(SX,4)}, v{tmp+4}, s[{SD}:{SD+3}], s{sT3} offen', f'buffer_load_dwordx4 {v(SX+4,4)}, v{tmp+4}, s[{SD}:{SD+3}], s{sT3} offen offset:512',
      f'buffer_load_dwordx2 {v(SX+8,2)}, v{tmp+5}, s[{SD}:{SD+3}], s{sT3} offen offset:1024')
    bar(); bar()
    def rowstats():
        a('s_waitcnt vmcnt(0) lgkmcnt(0)', f's_add_u32 s{sTag}, s{sTag}, 0x9e3779b1')
        a('s_mov_b64 exec, 1', f'v_mov_b32 v1, s{sTag}', f'ds_write_b32 v{tmp+10}, v1', 's_mov_b64 exec, -1')
        a.srd(SD, 14, 3456)
        a(f's_lshl_b32 s{sT1}, s{sM}, 6', f's_add_u32 s{sT0}, s{sT0}, s{sT1}', f's_xor_b32 s{sT1}, s{sT0}, 64')
        a(f'buffer_load_ushort v{tmp+7}, v{tmp+6}, s[{SD}:{SD+3}], s{sT0} offen', f'buffer_load_ushort v{tmp+8}, v{tmp+6}, s[{SD}:{SD+3}], s{sT1} offen')
        a(f's_lshl_b32 s{sT1}, s{sRB}, 11', f's_lshl_b32 s{sT0}, s{sG}, 9', f's_add_u32 s{sT1}, s{sT1}, s{sT0}', f's_add_u32 s{sT1}, s{sT1}, {WS_RS}', f's_mov_b32 s{sT3}, {SPIN}')
        r0, r1, r2, r3 = FR, FR + 1, FR + 2, FR + 3
        def reduce32(r):
            for mod in ('quad_perm:[1,0,3,2]', 'quad_perm:[2,3,0,1]', 'row_half_mirror', 'row_mirror'):
                a('s_nop 1', f'v_add_f32_dpp v{r}, v{r}, v{r} {mod} row_mask:0xf bank_mask:0xf')
            a(f'v_mov_b32 v{r3}, v{r}', 's_nop 1', f'v_permlane16_swap_b32 v{r}, v{r3}', 's_nop 1', f'v_add_f32 v{r}, v{r}, v{r3}')
        U = lambda i: (FR + 8 + i) if i < 10 else (SX + i - 10)
        for i in range(10):
            a(f'v_lshlrev_b32 v{U(i)}, 16, v{SX+i}', f'v_and_b32 v{SX+i}, 0xffff0000, v{SX+i}')
            if i < 2:
                a(f'v_add_f32 v{r0+i}, v{U(i)}, v{U(10+i)}')
            else:
                a(f'v_add_f32 v{r0}, v{r0}, v{U(i)}', f'v_add_f32 v{r1}, v{r1}, v{U(10+i)}')
        a(f'v_add_f32 v{r0}, v{r0}, v{r1}')
        reduce32(r0)
        a(f'v_mul_f32 v{r0}, {fbits(1/640)}, v{r0}', f'v_mov_b32 v{r1}, 0', f'v_mov_b32 v{r2}, 0')
        bar()
        for i in range(0, 20, 2):
            a(f'v_sub_f32 v{U(i)}, v{U(i)}, v{r0}', f'v_sub_f32 v{U(i+1)}, v{U(i+1)}, v{r0}', f'v_fmac_f32 v{r1}, v{U(i)}, v{U(i)}', f'v_fmac_f32 v{r2}, v{U(i+1)}, v{U(i+1)}')
        a(f'v_add_f32 v{r2}, v{r1}, v{r2}')
        reduce32(r2)
        a(f'v_mov_b32 v{r3}, {fbits(1e-5)}', f'v_fmac_f32 v{r3}, {fbits(1/640)}, v{r2}', f'v_rsq_f32 v{r2}, v{r3}', f'v_mov_b32 v{r1}, s{sTag}', f'v_mov_b32 v{r3}, s{sTag}',
          'v_lshrrev_b32 v1, 1, v0', 's_mov_b32 exec_lo, 1', 's_mov_b32 exec_hi, 1', f'buffer_store_dwordx4 {v(r0,4)}, v1, {WS}, s{sT2} offen sc1', 's_mov_b64 exec, -1')
        a.stamp(2)
    if SP == 5:
        rowstats()
        bar()
    else:
        for c in range(3, SP):
            bar()
    a('s_waitcnt lgkmcnt(0)')
    a(f's_cmp_lt_u32 s{sFB}, 27', 's_cbranch_scc1 L_h_act')
    for c in range(SP, SP + NE + 1):
        bar()
    a('s_branch L_h_mid')
    def gmid():
        a.label('L_h_mid')
        jitter()
        g0 = FR
        gather = f'buffer_load_dwordx4 {v(g0,4)}, v{tmp+2}, {WS}, s{sT1} offen sc1'
        a('s_setprio 0')
        nb_ = QE - 1 - (SP + NE)
        if SP != 5:
            rowstats(); nb_ -= 1
            for _ in range(nb_ - 3):
                bar()
            a('s_waitcnt lgkmcnt(0)')
            nb_ = 3
        a(gather)
        bar(); bar()
        a(f's_cmp_eq_u32 s{sCG}, 15', f's_cselect_b32 s{sT3}, 0, s{sT3}')
        a.label('L_h_chk')
        a('s_waitcnt vmcnt(0)', f'v_cmp_ne_u32 vcc, s{sTag}, v{g0+1}', f'v_cmp_ne_u32 s[46:47], s{sTag}, v{g0+3}', 's_nop 1', 's_or_b64 vcc, vcc, s[46:47]',
          's_cbranch_scc0 L_h_got', f's_sub_u32 s{sT3}, s{sT3}, 1', 's_cbranch_scc1 L_h_got', backoff('s0'), gather, 's_branch L_h_chk')
        a.label('L_h_got')
        a(f'v_rcp_f32 v{g0+1}, v{g0+2}', f'v_sub_f32 v{g0}, 0, v{g0}')
        a('s_mov_b32 exec_lo, 0', f'v_lshlrev_b32 v{CS[0]}, 16, v{tmp+7}', f'v_lshlrev_b32 v{CS[1]}, 16, v{tmp+8}', 's_mov_b32 exec_lo, -1')
        for _ in range(nb_ - 2):
            bar()
        a('s_mov_b32 exec_hi, 0', f'ds_write_b32 v{tmp+9}, v{g0}', f'ds_write_b32 v{tmp+9}, v{g0+1} offset:{L_ISTD-L_MEAN}', f'ds_write_b32 v{tmp+9}, v{g0+2} offset:{L_RSTD-L_MEAN}',
          's_mov_b64 exec, -1', 's_waitcnt lgkmcnt(0)')
        a(f's_cmp_lt_u32 s{sFB}, 27', 's_cbranch_scc1 L_h_act')
        for c in range(QE, 20):
            pbar(c)
        bar()
        a('s_branch L_h_p2')
    page('L_h_act', 2400, False)
    a('s_setprio 1')
    mainloop('ffn', False, [f'ds_read_b64 {v(CR,2)}, v{tmp+3}'], SP + NE, QE, 20, gmid)
    a('s_nop 8')
    hst = []
    for t, u in ((0, 0), (0, 1), (1, 1), (1, 0)):
        for ap in range(2):
            r = acc + 32 * t + 16 * u + 8 * ap
            for e in range(8):
                a(f'v_mul_f32 v{r+e}, v{r+e}, |v{r+e}|')
            for e in range(4):
                a(CVT(r + e, r + 2 * e))
            for e in range(4):
                a(f'v_pk_max_i16 v{r+e}, v{r+e}, 0')
            hst.append(f'buffer_store_dwordx4 {v(r,4)}, v{tmp+u}, {WS}, s{sHS if t else sOff} offen offset:{1024*ap} sc1')
            if OPT.get('hs', 0):
                a(hst.pop())
    a.stamp(3)
    bar()
    a(hst)
    a.label('L_h_p2')
    a.c('waves 8..11: K/V stream, second FFN GEMM (64 x 96 tiles on even workgroups, 64 x 64 on odd ones), output projection')
    jitter()
    a.stamp(5)
    R = Regs(2)
    acc = R(96)
    AF = [R(8) for _ in range(4)]
    tmp = R(8)
    assert R.n <= vL16
    BF = [vWr + 4 + 4 * i for i in range(3)]
    sKVo, sH0, sH1, sW2, sWo, sMK, sMV, sR2 = range(40, 48)
    W2, WO, RES = 48, 52, 56
    sM40 = 60
    MASK, FULL = f's_mov_b64 exec, s[{sM40}:{sM40+1}]', 's_mov_b64 exec, -1'

    def kv(c):
        slot = c % 4
        ld = lambda so, off: f'buffer_load_dwordx4 v{vL16}, {WS}, s{so} offen offset:{off} sc1 lds'
        return [([f's_add_u32 m0, s{sMK}, {slot*5120}', f's_add_u32 s{sT0}, s{sKVo}, {c*10240}'], ld(sT0, 0), ('kv', c), True),
                ([], ld(sT0, 640), ('kv', c), True),
                ([f's_add_u32 m0, s{sMV}, {slot*5248}', f's_add_u32 s{sT0}, s{sT0}, 5120'], ld(sT0, 0), ('kv', c), True),
                ([f's_sub_u32 s{sT0}, s{sT0}, 16'], ld(sT0, 656), ('kv', c), True)]
    def emit(fl):
        masked = False
        for pre, ins, tg, mk in fl:
            a(pre)
            if mk != masked:
                a(MASK if mk else FULL); masked = mk
            a.vmem(ins, tg)
        if masked:
            a(FULL)

    a.vm = ['hst']
    a(f's_mov_b32 s{sM40}, -1', f's_mov_b32 s{sM40+1}, 0xff')
    a(f's_mul_i32 s{sKVo}, s{sHead}, 163840', f's_mul_i32 s{sT0}, s{sG}, 1280', f's_add_u32 s{sKVo}, s{sKVo}, s{sT0}', f's_add_u32 s{sKVo}, s{sKVo}, {WS_KV}')
    a(f's_add_u32 s{sMK}, s{sT0}, {L_K}', f's_mul_i32 s{sMV}, s{sG}, 1312', f's_add_u32 s{sMV}, s{sMV}, {L_V}')
    emit(kv(2))
    a.srd(W2, 16, 1728 * 1280)
    a.srd(WO, 8, 640 * 1280)
    a(f's_mul_i32 s{sR2}, s{sRG}, 27', f's_lshr_b32 s{sR2}, s{sR2}, 5')
    a(f's_mul_i32 s{sT0}, s{sG}, 27', f's_add_u32 s{sT0}, s{sT0}, s{sR2}', f's_mul_i32 s{sW2}, s{sT0}, {16*1280}', f's_and_b32 s69, s{sRG}, {OPT.get("sw", 1)}')
    a(f's_lshl1_add_u32 s{sWo}, s{sG}, s69', f's_xor_b32 s68, s{sWo}, 1', f's_mul_i32 s{sWo}, s{sWo}, {80*1280}', f's_mul_i32 s68, s68, {80*1280}')
    a(f's_mul_i32 s{sH0}, s{sRow}, {108*1024}', f's_lshl_b32 s{sT0}, s{sT0}, 10', f's_add_u32 s{sH0}, s{sH0}, s{sT0}', f's_add_u32 s{sH0}, s{sH0}, {WS_H}',
      f's_cmp_eq_u32 s{sOwn}, 0', CSEL(sH1, 108 * 1024, -108 * 1024))
    a(f's_lshl_b32 s{sT3}, s{sRB}, 1', f's_add_u32 s{sT3}, s{sT3}, s{sOwn}', f's_lshl_b32 s{sT3}, s{sT3}, 4', f's_add_u32 s{sT3}, s{sT3}, s{sCG}', f's_lshl_b32 s{sT3}, s{sT3}, 7',
      f's_lshl_b32 s{sT1}, s{sKH}, 2', f's_add_u32 s{sT3}, s{sT3}, s{sT1}', f's_add_u32 s{sT3}, s{sT3}, {WS_FH}', f'v_mov_b32 v{tmp+1}, s{sTag}',
      f'v_min_u32 v{tmp}, 27, v0', f'v_and_b32 v1, 1, v{tmp}', 'v_lshlrev_b32 v1, 2, v1', f'v_lshrrev_b32 v{tmp}, 1, v{tmp}', f'v_lshl_add_u32 v1, v{tmp}, 7, v1')
    a(f'v_add_u32 v{tmp+2}, s{sReg}, v{vL16}', 's_bitcmp1_b32 s2, 0', CSEL(sT0, 20480, 30720), f's_xor_b32 s{sT1}, s{sG}, 1', f's_mul_i32 s{sT1}, s{sT1}, s{sT0}',
      f'v_add_u32 v{tmp+3}, s{sT1}, v{vL16}', f'v_xor_b32 v{tmp+4}, 64, v{vRes}', 's_setprio 0')
    vm0 = list(a.vm)
    a('s_bitcmp1_b32 s2, 0', 's_cbranch_scc1 L_p2_2')

    def phase2(NT):
        PITCH, STEP, NPAIR = 64 * NT, 1024 * NT, 27 * NT
        a.label(f'L_p2_{NT}')
        a.vm = list(vm0)
        b0 = OPT.get('b0')
        bcnt = [1]
        def barB():
            c = bcnt[0]; bcnt[0] += 1
            rec = b0 is not None and b0 <= c < b0 + 6
            if rec:
                a.lock = None; a.stamp(2 + 2 * (c - b0))
            bar()
            if rec:
                a.stamp(3 + 2 * (c - b0))
            if b0 is not None:
                a.lock = tuple(range(2, 14))
        if b0 is not None:
            a.lock = tuple(range(2, 14))
        def wrap(d, base, st, scale):
            return [f's_cmp_ge_u32 s{sR2}, {27-st}', f's_cselect_b32 s{d}, {27*scale}, 0', f's_sub_u32 s{d}, s{base}, s{d}', f's_add_u32 s{d}, s{d}, {st*scale}']
        def stage(srd, pre, voff, tg):
            assert 'm0' not in pre[-1]
            return [(pre if i == 0 else [], f'buffer_load_dwordx4 v{voff+i}, s[{srd}:{srd+3}], s{sT0} offen offset:{1024*i} lds', tg, False) for i in range(NT)]
        slotm0 = lambda slot: [f's_add_u32 m0, s{sReg}, {slot*STEP}']
        def f2B(st):
            return stage(W2, slotm0(st % 4) + wrap(sT0, sW2, st, 16 * 1280), vW, ('fb', st))
        def f2A(st):
            return [(wrap(sT1, sH0, st, 1024), f'buffer_load_dwordx4 {v(AF[st%4],4)}, v{vL16}, {WS}, s{sT1} offen sc1', ('fa', st), False),
                    ([f's_add_u32 s{sT1}, s{sT1}, s{sH1}'], f'buffer_load_dwordx4 {v(AF[st%4]+4,4)}, v{vL16}, {WS}, s{sT1} offen sc1', ('fa', st), False)]
        def wo(slot):
            gl, i = divmod(slot, 5)
            return stage(WO, slotm0(slot) + [f's_add_u32 s{sT0}, s{68 if gl else sWo}, {(20*i if i < 4 else 0)*1280}'], vW if i < 4 else vWr, ('wo', slot))

        barB()
        emit(kv(3) + f2B(0))
        a.wait_vm('hst')
        a('s_mov_b64 exec, 1')
        a.vmem(f'buffer_store_dword v{tmp+1}, v1, {WS}, s{sT3} offen sc1', 'flag')
        a(FULL)
        a.stamp(6)
        a(f's_lshl_b32 s{sT3}, s{sRG}, 11', f's_add_u32 s{sT3}, s{sT3}, {WS_FH}', f's_mov_b32 s{sT2}, {SPIN}')
        a.wait_vm(('kv', 2))
        barB()
        emit(kv(4) + f2B(1) + f2B(2) + wo(4))
        if NT == 2:
            a.srd(RES, 4, 2621440)
            emit(stage(RES, [f's_lshl_b32 s{sT0}, s{sG}, 11', f's_add_u32 m0, s{sT0}, {L_XR}', f's_lshl2_add_u32 s{sT0}, s{sRG}, s{sG}', f's_mul_i32 s{sT0}, s{sT0}, {16*1280}'], vW, 'xr'))
            a.srd(RES, 18, 1280)
            emit(stage(RES, [f's_mov_b32 m0, {L_B2}', f's_mov_b32 s{sT0}, 0'], vW, 'xr')[:1])
        else:
            a(f's_cmp_eq_u32 s{sKH}, 0', f's_cselect_b32 s{RES}, s4, s18', f's_cselect_b32 s{RES+1}, s5, s19', CSEL(RES + 2, 2621440, 1280), f's_mov_b32 s{RES+3}, 0x00020000')
        poll2 = f'buffer_load_dword v{tmp}, v1, {WS}, s{sT3} offen sc1'
        a.vmem(poll2, 'poll')
        a.wait_vm(('kv', 3))
        barB()
        a('s_setprio 3')
        a.label(f'L_poll2_{NT}')
        a('s_waitcnt vmcnt(0)', f'v_cmp_ne_u32 vcc, s{sTag}, v{tmp}', 's_nop 1', 's_cmp_eq_u64 vcc, 0', f's_cbranch_scc1 L_poll2x_{NT}',
          f's_sub_u32 s{sT2}, s{sT2}, 1', f's_cbranch_scc1 L_poll2x_{NT}', backoff('s2'), poll2, f's_branch L_poll2_{NT}')
        a.label(f'L_poll2x_{NT}')
        jitter()
        a.vm = []
        a.stamp(7)
        a('s_setprio 0')
        emit(f2A(0) + kv(5) + f2A(1) + f2A(2) + wo(5))
        rsoff = [f's_lshl_b32 s{sT0}, s{sRG}, 10', f's_lshl4_add_u32 s{sT0}, s{sOwn}, s{sT0}', f's_add_u32 s{sT0}, s{sT0}, {WS_RS}']
        rsld = f'buffer_load_dwordx2 {v(vR2,2)}, v{vR2+3}, {WS}, s{sT0} offen offset:8 sc1'
        a(rsoff)
        a.vmem(rsld, 'res')

        LATE = NT == 3 and OPT.get('late', 0)
        def tr(b, c, base):
            ad, off = (vTr, base + 64 * c) if NT == 3 else (vTr2 if c else vTr, base)
            return [f'ds_read_b64_tr_b16 {v(BF[b],2)}, v{ad} offset:{off}', f'ds_read_b64_tr_b16 {v(BF[b]+2,2)}, v{ad} offset:{off+8*PITCH}']
        fq = []
        def need(tg):
            assert all(f[2] != tg for f in fq), tg
            a.wait_vm(tg)
        def f2tr(p):
            if p < NPAIR:
                st, c = divmod(p, NT)
                if c == 0:
                    need(('fb', st))
                a(tr(p % 3, c, (st % 4) * STEP))
        def f2_pairs(ps):
            for p in ps:
                st, c = divmod(p, NT)
                if c == 0:
                    if st + 3 < 27:
                        fq.extend(f2B(st + 3) + f2A(st + 3))
                    elif LATE:
                        fq.extend(wo((st - 1) % 4))
                    need(('fa', st))
                for t in range(2):
                    if t == 0:
                        a(f's_waitcnt lgkmcnt({2 if p + 1 < NPAIR else 0})')
                    a(M16(acc + 48 * t + 16 * c, BF[p % 3], AF[st % 4] + 4 * t, '0' if st == 0 else None))
                    if t == 0:
                        f2tr(p + 2)
                    n = -(-len(fq) // (2 * NT - 1))
                    emit(fq[:n]); del fq[:n]
        f2tr(0); f2tr(1)
        P3 = OPT.get(f'p3{NT}', 0)
        f2_pairs(range(P3))
        barB()
        E = 15 if LATE else OPT.get(f'ex{NT}', 14 if NT == 3 else 13)
        res, p = AF[0], P3
        for c in range(4, 16):
            if c + 2 < 16:
                fq.extend(kv(c + 2))
            if c in (6, 9, 12):
                fq.extend(wo(6 + (c - 6) // 3))
            if c == 14 and LATE:
                fq.extend(wo(9))
            if c <= E:
                left = E - c + OPT.get('lastw', 50 if LATE else 70) / 100
                n = NPAIR - p if c == E else round((NPAIR - p) / left)
                f2_pairs(range(p, p + n)); p += n
            if c == E and LATE:
                emit(fq + wo(2)); del fq[:]
                for gi in range(6):
                    a.vmem(f'buffer_load_dwordx4 {v(res+4*gi,4)}, v{vRes}, s[{RES}:{RES+3}], 0 offen offset:{32*gi}', 'res')
            elif c == E:
                emit(fq); del fq[:]
                a('s_nop 7', 's_nop 3')
                for i in range(4 * NT):
                    a(f'ds_write_b128 v{tmp+2}, {v(acc+48+4*i,4)} offset:{1024*i}')
                a('s_waitcnt lgkmcnt(0)')
            if c == E + 1:
                for i in range(4 * NT):
                    a(f'ds_read_b128 {v(acc+48+4*i,4)}, v{tmp+3} offset:{1024*i}')
                if NT == 2:
                    for gi in range(4):
                        a(f'ds_read_b128 {v(res+4*gi,4)}, v{tmp+4 if gi >= 2 else vRes} offset:{32*(gi&1)}')
                else:
                    for gi in range(6):
                        a.vmem(f'buffer_load_dwordx4 {v(res+4*gi,4)}, v{vRes}, s[{RES}:{RES+3}], 0 offen offset:{32*gi}', 'res')
            if c == max(E + 1, 14):
                fq.extend(wo(9))
            if c == E + 2:
                fq.extend(wo(0) + wo(1) + wo(2) + wo(3))
            if c > E:
                emit(fq); del fq[:]
                a('s_waitcnt lgkmcnt(0)')
            need(('kv', c + 1))
            if c == 10: a.stamp(8)
            barB()
            if c == 10: a.stamp(9)
        assert p == NPAIR
        if E == 14:
            emit(wo(0) + wo(1) + wo(2) + wo(3))
        OF = acc + 48
        assert OF + 80 <= tmp
        sO0, sO1, OUT = sH0, sH1, W2
        a.srd(OUT, 20, 2621440)
        a(f's_mul_i32 s{sO0}, s{sRow}, 40960', f's_add_u32 s{sO0}, s{sO0}, {WS_O}', f's_lshl_b32 s{sT0}, s{sKH}, 12', f's_add_u32 s{sO1}, s{sO0}, s{sT0}',
          f's_add_u32 s{sO1}, s{sO1}, 32768', f's_lshl_b32 s{sT0}, s{sKH}, 14', f's_add_u32 s{sO0}, s{sO0}, s{sT0}')
        a(f's_lshl_b32 s{sT3}, s{sRow}, 12', f's_lshl_b32 s{sT0}, s{sKH}, {11-FOS}', f's_add_u32 s{sT3}, s{sT3}, s{sT0}', f's_add_u32 s{sT3}, s{sT3}, {WS_FO}', f's_mov_b32 s{sT2}, {SPIN}')
        for k in range(4):
            a(f's_xor_b32 s{sT0}, s69, {k}', f's_lshl_b32 s{sT0}, s{sT0}, 10', f's_add_u32 s{RES+k}, s{sO1}, s{sT0}', f's_lshl2_add_u32 s{WO+k}, s{sT0}, s{sO0}')
        a(f's_add_u32 s67, s{sCol}, {32*1280}', f's_mul_i32 s43, s{sOwn}, {10*STEP}', f's_mul_i32 s44, s{sG}, 10240', f's_add_u32 s44, s44, {L_FX}',
          f's_xor_b32 s45, s{sG}, 2', f's_mul_i32 s45, s45, 10240', f's_add_u32 s45, s45, {L_FX}')
        a(rsoff)
        a.label(f'L_rs{NT}')
        a.drain_vm()
        a(f'v_cmp_ne_u32 vcc, s{sTag}, v{vR2+1}', f's_cbranch_vccz L_rsx{NT}', f's_sub_u32 s{sT2}, s{sT2}, 1', f's_cbranch_scc1 L_rsx{NT}', rsld, f's_branch L_rs{NT}')
        a.label(f'L_rsx{NT}')
        jitter()
        a(f's_mov_b32 s{sT2}, {SPIN}')
        a.stamp(10)
        bar()
        poll3 = f'buffer_load_dword v{tmp}, v1, {WS}, s{sT3} offen sc1'
        a(f'v_bfe_u32 v1, v0, {FOS}, {4-FOS}', 'v_lshlrev_b32 v1, 7, v1', f'v_and_b32 v{tmp}, {(1<<FOS)-1}, v0', f'v_lshl_add_u32 v1, v{tmp}, 2, v1', poll3)
        if LATE:
            a(f's_xor_b32 s46, s{sG}, 1', 's_mul_i32 s46, s46, 10240', f's_add_u32 s46, s46, {L_FX}', f'v_add_u32 v{tmp+2}, s44, v{vL16}', f'v_add_u32 v{tmp+3}, s46, v{vL16}')
            for i in range(10):
                a(f'ds_write_b128 v{tmp+2}, {v(acc+48+4*i,4)} offset:{1024*i}')
            a('s_waitcnt lgkmcnt(0)', 's_barrier')
            for i in range(10):
                a(f'ds_read_b128 {v(acc+48+4*i,4)}, v{tmp+3} offset:{1024*i}')
            for i in range(2):
                a(f'ds_write_b128 v{tmp+3}, {v(acc+88+4*i,4)} offset:{1024*i}')
            a('s_waitcnt lgkmcnt(0)', 's_barrier')
            for i in range(2):
                a(f'ds_read_b128 {v(acc+88+4*i,4)}, v{tmp+2} offset:{1024*i}')
        a(f'v_subrev_u32 v{vTr}, s43, v{vTr}', f'v_subrev_u32 v{vTr2}, s43, v{vTr2}', f'v_add_u32 v{tmp+2}, s44, v{vL16}', f'v_add_u32 v{tmp+3}, s45, v{vL16}', f'v_mul_f32 v{vR2}, v{vR2}, v{vR2}')
        for j in range(8 * NT):
            if LATE and j == 20:
                a('s_waitcnt lgkmcnt(0)')
            a(f'v_pk_add_f32 {v(acc+2*j,2)}, {v(acc+2*j,2)}, {v(acc+48+2*j,2)}', f'v_lshlrev_b32 v{vR2+1}, 16, v{res+j}', f'v_and_b32 v{vR2+2}, 0xffff0000, v{res+j}',
              f'v_fma_f32 v{acc+2*j}, v{acc+2*j}, v{vR2}, v{vR2+1}', f'v_fma_f32 v{acc+2*j+1}, v{acc+2*j+1}, v{vR2}, v{vR2+2}')
        TWO = OPT.get(f'two{NT}', 0)
        ORD = (0, 2, 1, 3) if TWO else (0, 1, 2, 3)
        pos = lambda i: (5 * ORD[i // 5] + i % 5) * STEP
        def oload(i):
            k, j = ORD[i // 5], i % 5
            if j < 4:
                a.vmem(f'buffer_load_dwordx4 {v(OF+4*i,4)}, v{vL16}, {WS}, s{WO+k} offen offset:{j*1024} sc1', ('o', i))
            else:
                a.vmem(f'buffer_load_dwordx2 {v(OF+4*i,2)}, v{vL8}, {WS}, s{RES+k} offen sc1', ('o', i))
                a.vmem(f'buffer_load_dwordx2 {v(OF+4*i+2,2)}, v{vL8}, {WS}, s{RES+k} offen offset:512 sc1', ('o', i))
        def flags(lab, mask):
            a.label(f'L_p{lab}')
            a('s_waitcnt vmcnt(0)', f'v_cmp_ne_u32 vcc, s{sTag}, v{tmp}', 's_nop 1', f's_and_b32 s{sT0}, vcc_lo, {hex(mask)}', f's_cbranch_scc0 L_g{lab}',
              f's_sub_u32 s{sT2}, s{sT2}, 1', f's_cbranch_scc1 L_g{lab}', backoff('s3'), poll3, f's_branch L_p{lab}')
            a.label(f'L_g{lab}')
            a.vm = []
        LA = 10 if TWO else OPT.get('la', 8)
        a(f's_cmp_eq_u32 s{sKH}, 0', f's_cbranch_scc0 L_hi{NT}')
        lo, hi = tuple(range(NT - 1)), (NT - 1,)
        for nm, send, keep in (('lo', hi, lo), ('hi', lo, hi)):
            nm = f'{nm}{NT}'
            page(f'L_{nm}', 900 * NT, nm[0] == 'l')
            DF = OPT.get(f'df{NT}', 10)
            nd = DF // len(keep)
            seq = [(i, c) for i in range(20) for c in (send + keep if i < 20 - nd else send)] + [(i, c) for i in range(20 - nd, 20) for c in keep]
            qs = len(seq) - nd * len(keep)
            lq = []
            def ds(ins, tg):
                a(ins); lq.extend([tg] * len(ins))
            def dwait(tg):
                if tg in lq:
                    k = len(lq) - 1 - max(j for j, x in enumerate(lq) if x == tg)
                    assert k <= 15
                    a(f's_waitcnt lgkmcnt({k})'); del lq[:len(lq) - k]
                else:
                    a('s_nop 0')
            for q in range(3):
                ds(tr(q, seq[q][1], pos(seq[q][0])), q)
            flags('a' + nm, 0xffff)
            a.stamp(11)
            jitter()
            for i in range(LA):
                oload(i)
            nl = LA
            wr = [f'ds_write_b128 v{tmp+2}, {v(acc+16*c+4*i,4)} offset:{4096*k+1024*i}' for k, c in enumerate(send) for i in range(4)]
            rd = [f'ds_read_b128 {v(OF+16*k+4*i,4)}, v{tmp+3} offset:{4096*k+1024*i}' for k, c in enumerate(keep) for i in range(4)]
            W0, XB_ = OPT.get('w0', 2), OPT.get('xb', 3)
            def exchange():
                dwait('w'); a('s_barrier')
                for j, x in enumerate(rd):
                    ds([x], ('r', j // 2))
            for q, (i, c) in enumerate(seq):
                a.wait_vm(('o', i))
                dwait(q)
                a(M16(acc + 16 * c, BF[q % 3], OF + 4 * i))
                if q + 3 < len(seq):
                    ds(tr(q % 3, seq[q + 3][1], pos(seq[q + 3][0])), q + 3)
                if q % NT < 2 and nl < 20:
                    oload(nl); nl += 1
                if nd and q >= qs + W0 and wr:
                    n = -(-len(wr) // max(1, len(seq) - XB_ - 1 - q))
                    ds(wr[:n], 'w'); del wr[:n]
                if nd and q == len(seq) - XB_:
                    assert not wr
                    exchange()
            a.stamp(12)
            if not nd:
                a(f's_nop {11 - 2*(NT-1)}')
                ds(wr, 'w')
                exchange()
            else:
                a(f's_nop {10 - 2*(len(keep)-1)}')
            for k, c in enumerate(keep):
                r = acc + 16 * c
                for hf in range(2):
                    dwait(('r', 2 * k + hf))
                    for e in range(8 * hf, 8 * hf + 8, 2):
                        a(f'v_pk_add_f32 {v(r+e,2)}, {v(r+e,2)}, {v(OF+16*k+e,2)}')
                    for e in range(4):
                        a(CVT(r + 8 * hf + e, r + 8 * hf + 2 * e))
                a('s_nop 1')
                for e in range(4):
                    a(f'v_permlane16_swap_b32 v{r+e}, v{r+8+e}')
                a(f'buffer_store_dwordx4 {v(r,4)}, v{vOut}, s[{OUT}:{OUT+3}], s{sCol} offen offset:{64*c} sc1', f'buffer_store_dwordx4 {v(r+8,4)}, v{vOut}, s[{OUT}:{OUT+3}], s67 offen offset:{64*c} sc1')
            if nm == 'hi3':
                a(f's_or_b32 s{sT0}, s2, s{sOwn}', 's_cbranch_scc1 L_noep')
                a(f'v_mov_b32 v1, s{sTag}', f'v_mov_b32 v{tmp}, 0', f's_mov_b32 s{sT0}, {WS_EP}', 's_mov_b64 exec, 1', f'buffer_store_dword v1, v{tmp}, {WS}, s{sT0} offen sc1')
                a.label('L_noep')
            if Asm.diag:
                a.stamp(13)
                a('s_waitcnt vmcnt(0)')
                a.dump(0, sW, 24)
            a('s_endpgm')

    phase2(3)
    phase2(2)
    a.label('L_done')
    a('s_endpgm')
    return kernel_header(name, OPT.get('al', 1) >= 1) + a.text(), kernel_desc(name, 168, 102 if OPT.get('jit') else 70)
```
